```python
import torch

def _softmax(x, axis=-1):
    return torch.softmax(x, dim=axis)
def _gelu(x):
    return torch.nn.functional.gelu(x, approximate="tanh")
def _silu(x):
    return torch.nn.functional.silu(x)
def _sigmoid(x):
    return torch.sigmoid(x)
def _layernorm(x, axis=-1, eps=1e-5):
    m = x.mean(dim=axis, keepdim=True)
    v = x.var(dim=axis, keepdim=True, unbiased=False)
    return (x - m) / torch.sqrt(v + eps)
def _scatter_add(tgt, idx, src, axis=0):
    return tgt.clone().index_add_(axis, idx, src)
def _segment_sum(src, seg, n):
    out = torch.zeros((n,) + src.shape[1:], dtype=src.dtype)
    return out.index_add_(0, seg, src)
def _pad(x, pw):
    flat = tuple(v for pair in reversed(pw) for v in pair)
    return torch.nn.functional.pad(x, flat)

kernel_name = 'parallel_sum__softmax_full_mha__glu_gated_geglu__prompt'

def setup_inputs():

    _w = (lambda a: (lambda t: t.to(torch.bfloat16) if t.is_floating_point() else t)(torch.as_tensor(a)))
    def _A_setup():
        B, S, D = 1, 2048, 512
        return {
            "x": _w((lambda *s: torch.randn(*s, dtype=torch.bfloat16) * 0.05)(B, S, D)),
            "wqkv": _w((lambda *s: torch.randn(*s, dtype=torch.bfloat16) * 0.05)(D, 3 * D)),
            "wo": _w((lambda *s: torch.randn(*s, dtype=torch.bfloat16) * 0.05)(D, D)),
        }
    _A_in = _A_setup()

    def _B_setup():
        B, S, Dm, Df = 1, 2048, 512, 1792
        return {
            "x": _w((lambda *s: torch.randn(*s, dtype=torch.bfloat16) * 0.05)(B, S, Dm)),
            "w_gate": _w((lambda *s: torch.randn(*s, dtype=torch.bfloat16) * 0.4)(Dm, Df) * (Dm ** -0.5)),
            "w_up": _w((lambda *s: torch.randn(*s, dtype=torch.bfloat16) * 0.4)(Dm, Df) * (Dm ** -0.5)),
            "w_down": _w((lambda *s: torch.randn(*s, dtype=torch.bfloat16) * 0.4)(Df, Dm) * (Df ** -0.5)),
        }
    _B_in = _B_setup()

    return {
        "A_x": _A_in["x"],
        "A_wqkv": _A_in["wqkv"],
        "A_wo": _A_in["wo"],
        "B_x": _B_in["x"],
        "B_w_gate": _B_in["w_gate"],
        "B_w_up": _B_in["w_up"],
        "B_w_down": _B_in["w_down"],
    }

def reference(A_x, A_wqkv, A_wo, B_x, B_w_gate, B_w_up, B_w_down):
    def _A_ref(x, wqkv, wo):
        B, S, D = x.shape
        H = 32; Dh = D // H
        qkv = (lambda x, *d: x.permute(*d))((x @ wqkv).reshape(B, S, 3, H, Dh), 2, 0, 3, 1, 4)
        q, k, v = qkv[0], qkv[1], qkv[2]
        scale = Dh ** -0.5
        scores = torch.einsum("bhqd,bhkd->bhqk", q, k) * scale
        p = _softmax(scores, axis=-1)
        o = torch.einsum("bhqk,bhkd->bhqd", p, v)
        return (lambda x, *d: x.permute(*d))(o, 0, 2, 1, 3).reshape(B, S, D) @ wo

    def _B_ref(x, w_gate, w_up, w_down):
        g = torch.einsum("bsd,df->bsf", x, w_gate)
        u = torch.einsum("bsd,df->bsf", x, w_up)
        h = _gelu(g) * u
        return torch.einsum("bsf,fd->bsd", h, w_down)

    x = A_x
    xn = _layernorm(x, axis=-1)
    return x + _A_ref(xn, A_wqkv, A_wo) + _B_ref(xn, B_w_gate, B_w_up, B_w_down)
```

```python
import re

class Asm:
    def __init__(self):
        self.lines = []
        self.vm = []
        self.uid = 0
    def __call__(self, s):
        for l in s.strip("\n").split("\n"):
            l = l.strip()
            if l: self.lines.append(l)
    def label(self, name): self.lines.append(name + ":")
    def newlabel(self, base):
        self.uid += 1
        return "%s_%d" % (base, self.uid)
    def comment(self, s): self.lines.append("; " + s)
    def vmem(self, s, tag):
        self(s); self.vm.append(tag)
    def vm_count_after(self, tag):
        idx = max((i for i, t in enumerate(self.vm) if t == tag), default=-1)
        if idx < 0: return None
        return len(self.vm) - 1 - idx
    def wait_vm(self, tag, extra=""):
        n = self.vm_count_after(tag)
        if n is None:
            if extra: self("s_waitcnt " + extra)
            return
        assert n <= 63, n
        self("s_waitcnt vmcnt(%d) %s" % (n, extra))
        self.vm = self.vm[len(self.vm) - n:] if n else []
    def nop(self, n):
        while n > 0:
            k = min(n, 16); self("s_nop %d" % (k - 1)); n -= k
    def text(self):
        out = []
        for l in self.lines:
            out.append(l if (l.endswith(":") or l.startswith(";") or l.startswith(".")) else "    " + l)
        return "\n".join(out) + "\n"

def v(a, n=1): return "v%d" % a if n == 1 else "v[%d:%d]" % (a, a + n - 1)
def s(a, n=1): return "s%d" % a if n == 1 else "s[%d:%d]" % (a, a + n - 1)
def acc(a, n=1): return "a%d" % a if n == 1 else "a[%d:%d]" % (a, a + n - 1)

_REG = re.compile(r"\b([vas])(?:(\d+)|\[(\d+):(\d+)\])")
TRANS = ("v_exp_", "v_log_", "v_rcp_", "v_rsq_", "v_sqrt_", "v_sin_", "v_cos_")
def regs_of(op):
    out = set()
    for m in _REG.finditer(op):
        k = m.group(1)
        if m.group(2) is not None: out.add((k, int(m.group(2))))
        else: out.update((k, i) for i in range(int(m.group(3)), int(m.group(4)) + 1))
    if re.search(r"\bvcc\b", op): out.add(("s", 106)); out.add(("s", 107))
    if re.search(r"\bexec\b", op): out.add(("s", 126)); out.add(("s", 127))
    if re.search(r"\bm0\b", op): out.add(("s", 124))
    return out
def split_ops(rest):
    ops, depth, cur = [], 0, ""
    for ch in rest:
        if ch == "[": depth += 1
        if ch == "]": depth -= 1
        if ch == "," and depth == 0: ops.append(cur.strip()); cur = ""
        else: cur += ch
    if cur.strip(): ops.append(cur.strip())
    return ops
class Ins:
    def __init__(self, line):
        self.line = line
        line = line.split(";")[0].strip()
        p = line.split(None, 1)
        self.mn = p[0]; rest = p[1] if len(p) > 1 else ""
        ops = split_ops(rest)
        self.ops = ops
        mn = self.mn
        self.is_mfma = mn.startswith("v_mfma")
        self.is_valu = mn.startswith("v_") and not self.is_mfma
        self.is_trans = mn.startswith(TRANS)
        self.is_salu = mn.startswith("s_")
        self.is_ds = mn.startswith("ds_")
        self.is_vmem = mn.startswith(("buffer_", "global_", "flat_"))
        self.is_dpp = "dpp" in mn or "row_" in rest or "quad_perm" in rest
        self.is_lds_dma = self.is_vmem and (re.search(r"\blds\b", rest) is not None or "load_lds" in mn)
        self.w, self.r = set(), set()
        self.srcc = set(); self.srcab = set(); self.stdata = set()
        R = [regs_of(o) for o in ops]
        if self.is_mfma:
            self.w = R[0]; self.srcab = R[1] | R[2]; self.srcc = R[3]; self.r = self.srcab | self.srcc
            self.passes = 8 if "32x32" in mn else 4
        elif self.is_valu:
            if mn.startswith("v_cmp"):
                self.w = R[0]; self.r = set().union(*R[1:])
                if mn.startswith("v_cmpx"): self.w |= {("s", 126), ("s", 127)}
            elif "swap" in mn:
                self.w = R[0] | R[1]; self.r = R[0] | R[1]
            elif mn.startswith(("v_add_co", "v_sub_co", "v_addc_co", "v_subb_co", "v_div_scale")):
                self.w = R[0] | R[1]; self.r = set().union(*R[2:])
            elif mn == "v_nop": pass
            else:
                self.w = R[0]; self.r = set().union(*R[1:]) if len(R) > 1 else set()
                if mn.startswith(("v_fmac", "v_dot2c", "v_pk_fmac", "v_writelane")) or "UNUSED_PRESERVE" in rest or self.is_dpp: self.r |= R[0]
        elif self.is_ds:
            if "read" in mn or "permute" in mn or "swizzle" in mn or "rtn" in mn:
                self.w = R[0]; self.r = set().union(*R[1:])
            else: self.r = set().union(*R)
        elif self.is_vmem:
            if self.is_lds_dma: self.r = set().union(*R) | {("s", 124)}
            elif "load" in mn: self.w = R[0]; self.r = set().union(*R[1:])
            elif mn.startswith("buffer_store") or mn.startswith("buffer_atomic"):
                self.r = set().union(*R); self.stdata = R[0]
            elif "store" in mn or "atomic" in mn:
                self.r = set().union(*R); self.stdata = R[1] if len(R) > 1 else set()
            if not ("x3" in mn or "x4" in mn): self.stdata = set()
        elif self.is_salu:
            if mn.startswith(("s_cmp", "s_cbranch", "s_branch", "s_waitcnt", "s_nop", "s_barrier", "s_endpgm", "s_setprio", "s_sleep", "s_bitcmp")):
                self.r = set().union(*R) if R else set()
            else:
                self.w = R[0] if R else set(); self.r = set().union(*R[1:]) if len(R) > 1 else set()
                if "saveexec" in mn: self.w |= {("s", 126), ("s", 127)}
        self.states = 1
        if mn == "s_nop": self.states = int(ops[0], 0) + 1

def need(p, c):
    n = 0
    vw = {x for x in p.w if x[0] != "s"}; sw = {x for x in p.w if x[0] == "s"}
    if p.is_valu:
        if c.is_mfma and vw & c.r: n = max(n, 2)
        if c.is_valu and c.is_dpp and vw & c.r: n = max(n, 2)
        if c.is_valu and c.mn.startswith("v_permlane") and vw & c.r: n = max(n, 2)
        if c.mn.startswith(("v_readlane", "v_readfirstlane")) and vw & c.r: n = max(n, 1)
        if p.is_trans and c.is_valu and not c.is_trans and vw & c.r: n = max(n, 1)
        if p.is_trans and (c.is_ds or c.is_vmem) and vw & c.r: n = max(n, 1)
        if "sdwa" in p.mn or "op_sel" in p.line:
            if c.is_valu and vw & (c.r | c.w): n = max(n, 1)
        if sw:
            if c.is_vmem and sw & c.r: n = max(n, 5)
            if c.is_valu and sw & c.r: n = max(n, 2)
            if c.mn.startswith(("v_readlane", "v_writelane")) and sw & c.r: n = max(n, 4)
            if c.is_salu and sw & c.r: n = max(n, 1)
            if ("s", 126) in sw:
                if c.is_mfma: n = max(n, 4)
                if c.is_dpp: n = max(n, 5)
                if c.mn.startswith(("v_readlane", "v_readfirstlane", "v_writelane", "v_permlane")): n = max(n, 4)
        if p.mn.startswith("v_dot"):
            if vw & (c.r | c.w):
                if c.mn == p.mn:
                    cs = regs_of(c.ops[3]) if len(c.ops) > 3 else regs_of(c.ops[0])
                    ab = regs_of(c.ops[1]) | regs_of(c.ops[2])
                    if vw & ab: n = max(n, 3)
                else: n = max(n, 3)
    if p.is_mfma:
        t = {4: (0, 6, 8, 8, 3), 8: (0, 10, 12, 12, 7)}[p.passes]
        if c.is_mfma:
            if p.w & c.srcc:
                n = max(n, t[0] if (c.srcc == p.w and c.passes == p.passes) else t[1])
            if p.w & c.srcab: n = max(n, t[2])
            if p.w & c.w and not (p.w & c.srcc): n = max(n, 0)
        elif c.is_valu or c.is_ds or c.is_vmem:
            if p.w & (c.r | c.w): n = max(n, t[3])
            if c.is_valu and p.srcc & c.w: n = max(n, t[4])
    if p.is_salu and ("s", 124) in p.w and c.is_lds_dma: n = max(n, 1)
    if p.stdata and (p.stdata & c.w): n = max(n, 2 if c.is_valu else 1)
    return n

def check_hazards(lines, name=""):
    ins, labels = [], {}
    for l in lines:
        if l.startswith(";") or l.startswith("."): continue
        if l.endswith(":"): labels[l[:-1]] = len(ins); continue
        ins.append(Ins(l))
    errs = []
    def succ(i):
        x = ins[i]; out = []
        if x.mn == "s_endpgm": return out
        if x.mn.startswith(("s_cbranch", "s_branch")):
            t = x.ops[0]
            if t in labels: out.append(labels[t])
            if x.mn == "s_branch": return out
        if i + 1 < len(ins): out.append(i + 1)
        return out
    for i, p in enumerate(ins):
        if not (p.is_valu or p.is_mfma or p.stdata or (p.is_salu and ("s", 124) in p.w)): continue
        stack = [(j, 0) for j in succ(i)]; seen = set()
        while stack:
            j, d = stack.pop()
            if d >= 13 or (j, d) in seen or j >= len(ins): continue
            seen.add((j, d))
            c = ins[j]
            n = need(p, c)
            if n > d: errs.append("%s HAZARD need %d have %d:\n   %s\n   %s" % (name, n, d, p.line, c.line))
            for k in succ(j): stack.append((k, d + c.states))
    return errs
```

```python
from common import *
from layout import *

def gen_k1(name="ln_qkv_kernel"):
    a = Asm()
    LDS_X = 0; LDS_W = 65536
    SX, SW, SWS = 12, 16, 20
    sMT, sNG, sW, sT0, sT1, sT2 = 24, 25, 26, 27, 28, 29
    sXO = 30
    sWO = 34
    sM0 = 35
    sONE = 36
    a("s_cmp_ge_u32 s2, 256")
    a("s_cbranch_scc1 L_k1_end")
    a("s_load_dwordx4 s[4:7], s[0:1], %d" % KA_X)
    a("s_load_dwordx2 s[8:9], s[0:1], %d" % KA_WS)
    a("v_lshrrev_b32 v1, 6, v0")
    a("v_and_b32 v2, 63, v0")
    a("v_readfirstlane_b32 s%d, v1" % sW)
    a("s_and_b32 s%d, s2, 7" % sT0)
    a("s_lshr_b32 s%d, s2, 3" % sT1)
    a("s_lshr_b32 s%d, s%d, 1" % (sMT, sT0))
    a("s_lshl_b32 s%d, s%d, 3" % (sMT, sMT))
    a("s_and_b32 s%d, s%d, 7" % (sT2, sT1))
    a("s_add_u32 s%d, s%d, s%d" % (sMT, sMT, sT2))
    a("s_and_b32 s%d, s%d, 1" % (sNG, sT0))
    a("s_lshl_b32 s%d, s%d, 2" % (sNG, sNG))
    a("s_lshr_b32 s%d, s%d, 3" % (sT2, sT1))
    a("s_add_u32 s%d, s%d, s%d" % (sNG, sNG, sT2))
    a("v_lshrrev_b32 v3, 4, v2")
    a("v_and_b32 v4, 15, v2")
    a("v_lshlrev_b32 v5, 10, v3")
    a("v_lshl_add_u32 v5, v4, 4, v5")
    a("s_lshl_b32 s%d, s%d, 16" % (sXO, sMT))
    a("s_lshl_b32 s%d, s%d, 14" % (sT0, sW))
    a("s_add_u32 s%d, s%d, s%d" % (sXO, sXO, sT0))
    for g in range(1, 4): a("s_add_u32 s%d, s%d, %d" % (sXO + g, sXO, g * 4096))
    a("v_lshrrev_b32 v6, 3, v2")
    a("v_and_b32 v7, 7, v2")
    a("v_lshlrev_b32 v8, 1, v6")
    a("v_and_b32 v8, 4, v8")
    a("v_xor_b32 v7, v7, v8")
    a("v_mul_u32_u24 v6, 3072, v6")
    a("v_lshl_add_u32 v6, v7, 4, v6")
    a("s_mul_i32 s%d, s%d, %d" % (sWO, sW, 16 * 3072))
    a("s_lshl_b32 s%d, s%d, 7" % (sT0, sNG))
    a("s_add_u32 s%d, s%d, s%d" % (sWO, sWO, sT0))
    a("s_mul_i32 s%d, s%d, 6144" % (sM0, sW))
    a("s_add_u32 s%d, s%d, %d" % (sM0, sM0, LDS_W))
    a("s_mov_b32 s%d, 0x3f803f80" % sONE)
    a("s_waitcnt lgkmcnt(0)")
    srd(a, SX, 4, 2 * MB); srd(a, SW, 6, 512 * 3072); srd(a, SWS, 8, WS_BYTES)
    XR = 64
    for g in range(4):
        for p in range(4):
            a.vmem("buffer_load_dwordx4 %s, v5, %s, s%d offen offset:%d" % (v(XR + g * 16 + p * 4, 4), s(SX, 4), sXO + g, p * 256), "x%d" % g)
    def dma_chunk(kc):
        slot = kc % 4
        for i in range(2):
            a("s_add_u32 m0, s%d, %d" % (sM0, slot * 24576 + i * 3072))
            a("s_add_u32 s%d, s%d, %d" % (sT0, sWO, (kc * 64 + 8 * i) * 3072))
            for m in range(3):
                a.vmem("buffer_load_dwordx4 v6, %s, s%d offen offset:%d lds" % (s(SW, 4), sT0, m * 1024), "w%d" % kc)
    for kc in range(4): dma_chunk(kc)
    a("v_xor_b32 v9, v4, v3")
    a("v_lshlrev_b32 v10, 10, v3")
    a("v_lshl_add_u32 v9, v9, 4, v10")
    a("s_lshl_b32 s%d, s%d, 14" % (sT0, sW))
    a("v_add_u32 v9, s%d, v9" % sT0)
    for g in range(1, 4): a("v_xor_b32 v%d, %d, v9" % (9 + g, g << 6))
    a("v_and_b32 v13, 31, v2")
    a("v_lshrrev_b32 v14, 5, v2")
    a("v_and_b32 v15, 15, v2")
    a("v_xor_b32 v15, v15, v14")
    a("v_lshlrev_b32 v15, 4, v15")
    a("v_lshl_add_u32 v16, v13, 10, v15")
    a("s_and_b32 s%d, s%d, 1" % (sT1, sW))
    a("s_lshl_b32 s%d, s%d, 15" % (sT0, sT1))
    a("v_add_u32 v16, s%d, v16" % sT0)
    for i in range(1, 8): a("v_xor_b32 v%d, %d, v16" % (16 + i, i << 5))
    a("v_bfe_u32 v24, v2, 2, 2")
    a("v_and_b32 v25, 3, v2")
    a("v_lshlrev_b32 v25, 3, v25")
    a("v_and_b32 v26, 16, v2")
    a("v_lshl_add_u32 v25, v26, 1, v25")
    a("s_lshr_b32 s%d, s%d, 1" % (sT2, sW))
    a("s_lshl_b32 s%d, s%d, 6" % (sT0, sT2))
    a("v_add_u32 v25, s%d, v25" % sT0)
    a("v_lshlrev_b32 v26, 5, v24")
    a("v_and_b32 v26, 64, v26")
    a("v_xor_b32 v25, v25, v26")
    a("v_lshl_add_u32 v25, v24, 7, v25")
    a("v_mul_u32_u24 v26, 3072, v14")
    a("v_add_u32 v24, v25, v26")
    a("v_add_u32 v24, %d, v24" % LDS_W)
    a("v_add_u32 v25, 49152, v24")
    for g in range(4):
        a.wait_vm("x%d" % g)
        for i in range(16):
            r = XR + g * 16 + i
            a("v_dot2_f32_bf16 v%d, v%d, s%d, %s" % (32 + g, r, sONE, "0" if i == 0 else "v%d" % (32 + g)))
            a("v_dot2_f32_bf16 v%d, v%d, v%d, %s" % (36 + g, r, r, "0" if i == 0 else "v%d" % (36 + g)))
    a.nop(3)
    for sh in (8, 4, 2, 1):
        for k in range(8):
            a("v_add_f32_dpp v%d, v%d, v%d row_ror:%d row_mask:0xf bank_mask:0xf" % (32 + k, 32 + k, 32 + k, sh))
    def bf16r(r):
        a("v_cvt_pk_bf16_f32 v%d, v%d, v%d" % (r, r, r))
        a("v_and_b32 v%d, 0xffff0000, v%d" % (r, r))
    for g in range(4): a("v_mul_f32 v%d, 0x3b000000, v%d" % (32 + g, 32 + g))
    for g in range(4): a("v_mul_f32 v%d, v%d, v%d" % (40 + g, 32 + g, 32 + g))
    for g in range(4): a("v_mul_f32 v%d, 0x3b000000, v%d" % (36 + g, 36 + g))
    for g in range(4): a("v_sub_f32 v%d, v%d, v%d" % (36 + g, 36 + g, 40 + g))
    for g in range(4): a("v_max_f32 v%d, 0, v%d" % (36 + g, 36 + g))
    for g in range(4): bf16r(32 + g)
    for g in range(4): bf16r(36 + g)
    for g in range(4): a("v_add_f32 v%d, 0x3727c5ac, v%d" % (36 + g, 36 + g))
    for g in range(4): bf16r(36 + g)
    for g in range(4): a("v_sqrt_f32 v%d, v%d" % (36 + g, 36 + g))
    for g in range(4): bf16r(36 + g)
    for g in range(4): a("v_rcp_f32 v%d, v%d" % (36 + g, 36 + g))
    a.nop(1)
    for g in range(4): a("v_mul_f32_e64 v%d, -v%d, v%d" % (32 + g, 32 + g, 36 + g))
    for g in range(4):
        for p in range(4):
            for i in range(4):
                r = XR + g * 16 + p * 4 + i
                t = 44 + 2 * i
                a("v_lshlrev_b32 v%d, 16, v%d" % (t, r))
                a("v_and_b32 v%d, 0xffff0000, v%d" % (t + 1, r))
                a("v_fma_f32 v%d, v%d, v%d, v%d" % (t, t, 36 + g, 32 + g))
                a("v_fma_f32 v%d, v%d, v%d, v%d" % (t + 1, t + 1, 36 + g, 32 + g))
                a("v_cvt_pk_bf16_f32 v%d, v%d, v%d" % (r, t, t + 1))
            a("ds_write_b128 v%d, %s offset:%d" % (9 + g, v(XR + g * 16 + p * 4, 4), g * 4096 + p * 256))
    ACC = 128
    FB = [64, 80]
    def reads(sg):
        kc, s4 = sg // 4, sg % 4
        slot = kc % 4
        fb = FB[sg % 2]
        a("ds_read_b128 %s, v%d offset:%d" % (v(fb, 4), 16 + (sg & 7), (sg >> 3) * 256))
        wa = 24 + (slot >> 1)
        for m in range(3):
            for sec in range(2):
                a("ds_read_b64_tr_b16 %s, v%d offset:%d" % (v(fb + 4 + m * 4 + sec * 2, 2), wa, (slot & 1) * 24576 + s4 * 6144 + m * 1024 + sec * 512))
    a.wait_vm("w0", "lgkmcnt(0)")
    a("s_barrier")
    reads(0)
    for sg in range(32):
        kc = sg // 4
        if sg + 1 < 32:
            if (sg + 1) % 4 == 0:
                a.wait_vm("w%d" % (kc + 1), "lgkmcnt(0)")
                a("s_barrier")
                reads(sg + 1)
                if kc + 4 < 8: dma_chunk(kc + 4)
            else:
                reads(sg + 1)
                a("s_waitcnt lgkmcnt(7)")
        else:
            a("s_lshl_b32 s%d, s%d, 2" % (sT0, sNG))
            a("s_and_b32 s%d, s%d, 2" % (sT1, sW))
            a("s_add_u32 s%d, s%d, s%d" % (sT0, sT0, sT1))
            a("s_and_b32 s%d, s%d, 7" % (sT1, sT0))
            a("s_lshl_b32 s%d, s%d, 5" % (sT1, sT1))
            a("s_lshr_b32 s%d, s%d, 3" % (sT2, sT0))
            a("s_lshl_b32 s%d, s%d, 8" % (sT2, sT2))
            a("v_lshlrev_b32 v26, 4, v2")
            a("v_xor_b32 v27, s%d, v16" % sT1)
            a("v_add_u32 v27, s%d, v27" % sT2)
            a("v_xor_b32 v28, 32, v27")
            a("ds_read_b128 v[96:99], v27")
            a("ds_read_b128 v[100:103], v28")
            a("s_waitcnt lgkmcnt(2)")
        fb = FB[sg % 2]
        for m in range(3):
            c = "0" if sg == 0 else v(ACC + 16 * m, 16)
            if m < 2: a("v_mfma_f32_32x32x16_bf16 %s, %s, %s, %s" % (v(ACC + 16 * m, 16), v(fb + 4 + 4 * m, 4), v(fb, 4), c))
            else:     a("v_mfma_f32_32x32x16_bf16 %s, %s, %s, %s" % (v(ACC + 16 * m, 16), v(fb, 4), v(fb + 4 + 4 * m, 4), c))
    a("s_lshl_b32 s%d, s%d, 16" % (sT1, sMT))
    a("s_lshl_b32 s%d, s%d, 10" % (sT2, sT0))
    a("s_add_u32 s%d, s%d, s%d" % (sT2, sT2, sT1))
    a("s_and_b32 s%d, s%d, 1" % (sT1, sW))
    a("s_lshl_b32 s%d, s%d, 15" % (sT1, sT1))
    a("s_add_u32 s%d, s%d, s%d" % (sT2, sT2, sT1))
    a("s_waitcnt lgkmcnt(0)")
    a("buffer_store_dwordx4 v[96:99], v26, %s, s%d offen" % (s(SWS, 4), sT2))
    a("buffer_store_dwordx4 v[100:103], v26, %s, s%d offen offset:1024" % (s(SWS, 4), sT2))
    a("s_lshr_b32 s%d, s%d, 1" % (sT0, sW))
    a("s_lshl_b32 s%d, s%d, 1" % (sT0, sT0))
    a("s_lshl_b32 s%d, s%d, 2" % (sT1, sNG))
    a("s_add_u32 s%d, s%d, s%d" % (sT0, sT0, sT1))
    a("s_and_b32 s%d, s%d, 1" % (sT1, sW))
    a("s_lshl_b32 s%d, s%d, 1" % (sT2, sMT))
    a("s_add_u32 s%d, s%d, s%d" % (sT1, sT1, sT2))
    sQ, sK = 30, 32
    a("s_lshl_b32 s%d, s%d, 16" % (sQ, sT0))
    a("s_lshl_b32 s%d, s%d, 10" % (sT2, sT1))
    a("s_add_u32 s%d, s%d, s%d" % (sQ, sQ, sT2))
    a("s_lshl_b32 s%d, s%d, 1" % (sK, sQ))
    a("s_add_u32 s%d, s%d, %d" % (sQ, sQ, QF_OFF))
    a("s_add_u32 s%d, s%d, 65536" % (sQ + 1, sQ))
    a("s_add_u32 s%d, s%d, %d" % (sK, sK, KV_OFF))
    a("s_add_u32 s%d, s%d, 131072" % (sK + 1, sK))
    a("v_and_b32 v27, 16, v2")
    a("v_lshlrev_b32 v27, 13, v27")
    a("v_lshl_add_u32 v27, v14, 8, v27")
    a("v_lshl_add_u32 v27, v4, 4, v27")
    for i in range(16): a("v_mul_f32 v%d, 0x%x, v%d" % (ACC + i, QSCALE, ACC + i))
    for m in range(3):
        for i in range(8):
            a("v_cvt_pk_bf16_f32 v%d, v%d, v%d" % (64 + m * 8 + i, ACC + 16 * m + 2 * i, ACC + 16 * m + 2 * i + 1))
    a("buffer_store_dwordx4 v[64:67], v26, %s, s%d offen" % (s(SWS, 4), sQ))
    a("buffer_store_dwordx4 v[68:71], v26, %s, s%d offen" % (s(SWS, 4), sQ + 1))
    a("buffer_store_dwordx4 v[72:75], v26, %s, s%d offen" % (s(SWS, 4), sK))
    a("buffer_store_dwordx4 v[76:79], v26, %s, s%d offen" % (s(SWS, 4), sK + 1))
    a("buffer_store_dwordx4 v[80:83], v27, %s, s%d offen offset:1024" % (s(SWS, 4), sK))
    a("buffer_store_dwordx4 v[84:87], v27, %s, s%d offen offset:1536" % (s(SWS, 4), sK))
    a.label("L_k1_end")
    a("s_endpgm")
    return dict(name=name, asm=a, vgpr=176, grid=(256, 1, 1), block=(256, 1, 1), lds=163840)
```

```python
from common import *
from layout import *

def gen_attn(name="attn_kernel"):
    a = Asm()
    SWS = 8
    sHEAD, sQT, sW, sT0, sT1, sT2, sKV, sCNT = 12, 13, 14, 15, 16, 17, 18, 19
    sVM = 20
    a("s_cmp_ge_u32 s2, 256")
    a("s_cbranch_scc1 L_at_end")
    a("s_load_dwordx2 s[4:5], s[0:1], %d" % KA_WS)
    a("v_lshrrev_b32 v1, 6, v0")
    a("v_and_b32 v2, 63, v0")
    a("v_readfirstlane_b32 s%d, v1" % sW)
    a("s_and_b32 s%d, s2, 7" % sT0)
    a("s_lshr_b32 s%d, s2, 3" % sT1)
    a("s_lshl_b32 s%d, s%d, 2" % (sHEAD, sT0))
    a("s_lshr_b32 s%d, s%d, 3" % (sT2, sT1))
    a("s_add_u32 s%d, s%d, s%d" % (sHEAD, sHEAD, sT2))
    a("s_and_b32 s%d, s%d, 7" % (sQT, sT1))
    a("s_lshl_b32 s%d, s%d, 3" % (sQT, sQT))
    a("s_add_u32 s%d, s%d, s%d" % (sQT, sQT, sW))
    a("v_lshlrev_b32 v3, 4, v2")
    a("s_lshl_b32 s%d, s%d, 17" % (sKV, sHEAD))
    a("s_add_u32 s%d, s%d, %d" % (sKV, sKV, KV_OFF))
    a("s_mov_b32 s%d, 0x0000ffff" % sVM)
    a("s_mov_b32 s%d, 0x0000ffff" % (sVM + 1))
    a("s_waitcnt lgkmcnt(0)")
    srd(a, SWS, 4, WS_BYTES)
    Q = 4;
    a("s_lshl_b32 s%d, s%d, 16" % (sT0, sHEAD))
    a("s_lshl_b32 s%d, s%d, 10" % (sT1, sQT))
    a("s_add_u32 s%d, s%d, s%d" % (sT0, sT0, sT1))
    a("s_add_u32 s%d, s%d, %d" % (sT0, sT0, QF_OFF))
    a.vmem("buffer_load_dwordx4 %s, v3, %s, s%d offen" % (v(Q, 4), s(SWS, 4), sT0), "q")
    a("s_lshl_b32 s%d, s%d, 11" % (sT1, sW))
    a("s_add_u32 s%d, s%d, s%d" % (sT2, sKV, sT1))
    for c in range(8):
        a("s_add_u32 m0, s%d, %d" % (sT1, c * 16384))
        a("s_add_u32 s%d, s%d, %d" % (sT0, sT2, c * 16384))
        a.vmem("buffer_load_dwordx4 v3, %s, s%d offen lds" % (s(SWS, 4), sT0), "c%d" % c)
        a.vmem("buffer_load_dwordx4 v3, %s, s%d offen offset:1024 lds" % (s(SWS, 4), sT0), "c%d" % c)
    KA, VA = 8, 9
    KF = [12, 16]
    VF = [20, 28]
    P = 36
    S = [48, 64]
    O = 80
    C = 96
    a("v_mov_b32 v%d, v3" % KA)
    a("v_lshrrev_b32 v10, 5, v2")
    a("v_and_b32 v11, 15, v2")
    a("v_lshlrev_b32 v11, 4, v11")
    a("v_lshl_add_u32 v%d, v10, 8, v11" % VA)
    for i in range(16): a("v_mov_b32 v%d, 0x3f803f80" % (VF[0] + i))
    for i in range(16): a("v_mov_b32 v%d, 0" % (O + i))
    def rdK(t, off): a("ds_read_b128 %s, v%d offset:%d" % (v(KF[t % 2], 4), KA, off))
    def rdV(t, off):
        a("s_mov_b64 exec, %s" % s(sVM, 2))
        a("ds_read_b128 %s, v%d offset:%d" % (v(VF[t % 2], 4), VA, off + 1024))
        a("ds_read_b128 %s, v%d offset:%d" % (v(VF[t % 2] + 4, 4), VA, off + 1536))
        a("s_mov_b64 exec, -1")
    def mfS(t, c): a("v_mfma_f32_32x32x16_bf16 %s, %s, %s, %s" % (v(S[t % 2], 16), v(KF[t % 2], 4), v(Q, 4), c))
    def mfPV(t, j): a("v_mfma_f32_32x32x16_bf16 %s, %s, %s, %s" % (v(O, 16), v(VF[t % 2] + 4 * j, 4), v(P + 4 * j, 4), v(O, 16)))
    a.wait_vm("c0")
    a("s_barrier")
    rdK(0, 0); rdV(0, 0); rdK(1, 2048)
    a("s_waitcnt lgkmcnt(3)")
    mfS(0, "0")
    a.nop(12)
    s0 = S[0]
    a("v_max3_f32 v10, v%d, v%d, v%d" % (s0, s0 + 1, s0 + 2))
    for i in range(3, 15, 2): a("v_max3_f32 v10, v10, v%d, v%d" % (s0 + i, s0 + i + 1))
    a("v_max_f32 v10, v10, v%d" % (s0 + 15))
    a("v_mov_b32 v11, v10")
    a.nop(2)
    a("v_permlane32_swap_b32 v10, v11")
    a("v_max_f32 v10, v10, v11")
    for i in range(16): a("v_sub_f32 v%d, 0, v10" % (C + i))
    for i in range(4): a("v_mov_b32 v%d, 0" % (P + 4 + i))
    a.nop(2)
    mfS(0, v(C, 16))
    a("s_mov_b32 s%d, 0" % sCNT)
    a("s_waitcnt lgkmcnt(0)")
    a.nop(8)
    a.label("L_at_loop")
    for t in range(8):
        Sx = S[t % 2]
        e = lambda i: a("v_exp_f32 v%d, v%d" % (Sx + i, Sx + i))
        cv = lambda i: a("v_cvt_pk_bf16_f32 v%d, v%d, v%d" % (P + i, Sx + 2 * i, Sx + 2 * i + 1))
        a("s_waitcnt lgkmcnt(0)")
        mfS(t + 1, v(C, 16))
        if t == 6:
            a("s_waitcnt vmcnt(0)")
            a("s_barrier")
        e(0); e(1); e(2); e(3)
        mfPV(t - 1, 1)
        rdK(t + 2, (t + 2) * 2048)
        rdV(t + 1, (t + 1) * 2048)
        cv(0); e(4); cv(1); e(5); e(6); e(7); cv(2); e(8); cv(3); e(9); e(10)
        mfPV(t, 0)
        e(11); cv(4); e(12); cv(5); e(13); e(14); e(15); cv(6)
        if t == 7:
            a("v_add_u32 v%d, 16384, v%d" % (KA, KA))
            cv(7)
            a("v_add_u32 v%d, 16384, v%d" % (VA, VA))
            a("s_add_u32 s%d, s%d, 1" % (sCNT, sCNT))
            a("s_cmp_lt_u32 s%d, 8" % sCNT)
        else:
            a("s_nop 0")
            cv(7)
    a("s_cbranch_scc1 L_at_loop")
    a.nop(1)
    mfPV(7, 1)
    a("s_mul_i32 s%d, s%d, %d" % (sT0, sQT, A2_TT))
    a("s_lshl_b32 s%d, s%d, 10" % (sT1, sHEAD))
    a("s_add_u32 s%d, s%d, s%d" % (sT0, sT0, sT1))
    a("s_add_u32 s%d, s%d, %d" % (sT0, sT0, A2_OFF))
    a("s_waitcnt lgkmcnt(0)")
    a.nop(8)
    a("v_rcp_f32 v10, v%d" % (O + 8))
    a.nop(1)
    for i in range(8): a("v_mul_f32 v%d, v%d, v10" % (O + i, O + i))
    for i in range(4): a("v_cvt_pk_bf16_f32 v%d, v%d, v%d" % (P + i, O + 2 * i, O + 2 * i + 1))
    a("buffer_store_dwordx4 %s, v3, %s, s%d offen" % (v(P, 4), s(SWS, 4), sT0))
    a.label("L_at_end")
    a("s_endpgm")
    return dict(name=name, asm=a, vgpr=112, grid=(256, 1, 1), block=(512, 1, 1), lds=131072 + 4096)
```

```python
from common import *
from layout import *
import struct
def f2u(x): return struct.unpack("<I", struct.pack("<f", x))[0]
import math
C1 = -2.0 * math.log2(math.e) * math.sqrt(2.0 / math.pi)
C2 = C1 * 0.044715

def gen_gu(name="gu_kernel"):
    a = Asm()
    NSLOT = 4; SLOT = 28800; UPOFF = 14464
    SWW, SWS = 12, 16
    sMT, sNJ, sW, sT0, sT1, sT2 = 24, 25, 26, 27, 28, 29
    sXO, sWO, sM0 = 30, 31, 32
    a("s_cmp_ge_u32 s2, 256")
    a("s_cbranch_scc1 L_gu_end")
    a("s_load_dwordx4 s[4:7], s[0:1], %d" % KA_WG)
    a("s_load_dwordx2 s[8:9], s[0:1], %d" % KA_WS)
    a("v_lshrrev_b32 v1, 6, v0")
    a("v_and_b32 v2, 63, v0")
    a("v_readfirstlane_b32 s%d, v1" % sW)
    a("s_and_b32 s%d, s2, 7" % sT0)
    a("s_lshr_b32 s%d, s2, 3" % sT1)
    a("s_lshr_b32 s%d, s%d, 2" % (sMT, sT0))
    a("s_lshl_b32 s%d, s%d, 3" % (sMT, sMT))
    a("s_and_b32 s%d, s%d, 7" % (sT2, sT1))
    a("s_add_u32 s%d, s%d, s%d" % (sMT, sMT, sT2))
    a("s_and_b32 s%d, s%d, 3" % (sNJ, sT0))
    a("s_lshl_b32 s%d, s%d, 2" % (sNJ, sNJ))
    a("s_lshr_b32 s%d, s%d, 3" % (sT2, sT1))
    a("s_add_u32 s%d, s%d, s%d" % (sNJ, sNJ, sT2))
    a("v_lshlrev_b32 v3, 4, v2")
    for i in range(7):
        a("v_add_u32 v4, %d, v2" % (64 * i))
        a("v_mul_u32_u24 v5, 4682, v4")
        a("v_lshrrev_b32 v5, 16, v5")
        a("v_mul_u32_u24 v6, %d, v5" % (3584 - 224))
        a("v_lshl_add_u32 v6, v4, 4, v6")
        a("v_subrev_u32 v%d, %d, v6" % (8 + i, (i % 4) * 1024))
    a("s_lshl_b32 s%d, s%d, 2" % (sT0, sMT))
    a("s_add_u32 s%d, s%d, s%d" % (sT0, sT0, sW))
    a("s_lshl_b32 s%d, s%d, 15" % (sXO, sT0))
    a("s_and_b32 s%d, s%d, 1" % (sT1, sW))
    a("s_mul_i32 s%d, s%d, %d" % (sWO, sT1, 32 * 3584))
    a("s_mul_i32 s%d, s%d, 224" % (sT2, sNJ))
    a("s_add_u32 s%d, s%d, s%d" % (sWO, sWO, sT2))
    a("s_mul_i32 s%d, s%d, 7168" % (sM0, sT1))
    a("s_lshr_b32 s%d, s%d, 1" % (sT2, sW))
    a("s_mul_i32 s%d, s%d, %d" % (sT2, sT2, UPOFF))
    a("s_add_u32 s%d, s%d, s%d" % (sM0, sM0, sT2))
    a("s_waitcnt lgkmcnt(0)")
    a("s_cmp_ge_u32 s%d, 2" % sW)
    a("s_cselect_b32 s4, s6, s4")
    a("s_cselect_b32 s5, s7, s5")
    srd(a, SWW, 4, 512 * 3584); srd(a, SWS, 8, WS_BYTES)
    def dma_chunk(kc):
        slot = kc % NSLOT
        a("s_add_u32 s%d, s%d, %d" % (sT0, sWO, kc * 64 * 3584))
        for i in range(7):
            if i % 4 == 0:
                a("s_add_u32 m0, s%d, %d" % (sM0, slot * SLOT + i * 1024))
                a.nop(1)
            a.vmem("buffer_load_dwordx4 v%d, %s, s%d offen offset:%d lds" % (8 + i, s(SWW, 4), sT0, (i % 4) * 1024), "w%d" % kc)
    XR = 32
    def x_chunk(kc):
        a("s_add_u32 s%d, s%d, %d" % (sT1, sXO, kc * 4096))
        for i in range(4):
            a.vmem("buffer_load_dwordx4 %s, v3, %s, s%d offen offset:%d" % (v(XR + (kc % NSLOT) * 16 + 4 * i, 4), s(SWS, 4), sT1, i * 1024), "w%d" % kc)
    for kc in range(NSLOT):
        x_chunk(kc); dma_chunk(kc)
    a("v_bfe_u32 v4, v2, 2, 2")
    a("v_lshrrev_b32 v5, 5, v2")
    a("v_lshl_add_u32 v4, v5, 3, v4")
    a("v_mul_u32_u24 v4, 224, v4")
    a("v_and_b32 v5, 3, v2")
    a("v_lshl_add_u32 v4, v5, 3, v4")
    a("v_bfe_u32 v5, v2, 4, 1")
    a("v_mul_u32_u24 v5, %d, v5" % UPOFF)
    a("v_add_u32 v16, v4, v5")
    a("v_add_u32 v17, %d, v16" % (2 * SLOT))
    ACC = 128
    FB = [96, 112]
    units = [(sg, hf) for sg in range(32) for hf in range(2)]
    def tiles(hf): return range(0, 4) if hf == 0 else range(4, 7)
    def reads(u):
        sg, hf = units[u]
        kc, s4 = sg // 4, sg % 4
        slot = kc % NSLOT
        n = 0
        for t in tiles(hf):
            for sec in range(2):
                a("ds_read_b64_tr_b16 %s, v%d offset:%d" % (v(FB[hf] + (t % 4) * 4 + sec * 2, 2), 16 + (slot >> 1), (slot & 1) * SLOT + s4 * 3584 + sec * 896 + t * 32))
                n += 1
        return n
    a.wait_vm("w0")
    a("s_barrier")
    reads(0)
    for u in range(64):
        sg, hf = units[u]; kc = sg // 4
        if u + 1 < 64:
            if (u + 1) % 8 == 0:
                a.wait_vm("w%d" % (kc + 1), "lgkmcnt(0)")
                a("s_barrier")
                reads(u + 1)
                if kc + NSLOT < 8: dma_chunk(kc + NSLOT)
            else:
                n = reads(u + 1)
                a("s_waitcnt lgkmcnt(%d)" % n)
        else:
            a("s_waitcnt lgkmcnt(0)")
        xf = XR + (kc % NSLOT) * 16 + (sg % 4) * 4
        for t in tiles(hf):
            c = "0" if sg == 0 else v(ACC + 16 * t, 16)
            a("v_mfma_f32_32x32x16_bf16 %s, %s, %s, %s" % (v(ACC + 16 * t, 16), v(FB[hf] + (t % 4) * 4, 4), v(xf, 4), c))
        if (u + 1) % 8 == 0 and kc + NSLOT < 8: x_chunk(kc + NSLOT)
    a("s_lshr_b32 s%d, s%d, 15" % (sT0, sXO))
    a("s_mul_i32 s%d, s%d, %d" % (sT0, sT0, A2_TT))
    a("s_mul_i32 s%d, s%d, 7168" % (sT1, sNJ))
    a("s_add_u32 s%d, s%d, s%d" % (sT0, sT0, sT1))
    a("s_add_u32 s%d, s%d, %d" % (sT0, sT0, A2_OFF + 32 * 1024))
    a("s_add_u32 s%d, s%d, 4096" % (sT1, sT0))
    a("v_mov_b32 v20, 0x%x" % f2u(C1))
    a.nop(6)
    for t in range(7):
        G = ACC + 16 * t; U = G + 8; T = 32 + (t % 2) * 16
        for i in range(8): a("v_mul_f32 v%d, v%d, v%d" % (T + i, G + i, G + i))
        for i in range(8): a("v_fmamk_f32 v%d, v%d, 0x%x, v20" % (T + i, T + i, f2u(C2)))
        for i in range(8): a("v_mul_f32 v%d, v%d, v%d" % (T + i, T + i, G + i))
        for i in range(8): a("v_exp_f32 v%d, v%d" % (T + i, T + i))
        for i in range(8): a("v_mul_f32 v%d, v%d, v%d" % (G + i, G + i, U + i))
        for i in range(8): a("v_add_f32 v%d, 1.0, v%d" % (T + i, T + i))
        for i in range(8): a("v_rcp_f32 v%d, v%d" % (T + i, T + i))
        a.nop(1)
        for i in range(8): a("v_mul_f32 v%d, v%d, v%d" % (G + i, G + i, T + i))
        for i in range(4): a("v_cvt_pk_bf16_f32 v%d, v%d, v%d" % (T + 8 + i, G + 2 * i, G + 2 * i + 1))
        a("buffer_store_dwordx4 %s, v3, %s, s%d offen offset:%d" % (v(T + 8, 4), s(SWS, 4), sT0 if t < 4 else sT1, (t % 4) * 1024))
    a.label("L_gu_end")
    a("s_endpgm")
    return dict(name=name, asm=a, vgpr=240, grid=(256, 1, 1), block=(256, 1, 1), lds=NSLOT * SLOT)
```

```python
from common import *
from layout import *

def gen_out(name="out_kernel"):
    a = Asm()
    NSLOT = 4; SLOT = 32768; NCH = 18
    SX, SWO, SWD, SWS, SOUT = 16, 20, 24, 28, 32
    sMT, sNT, sW, sT0, sT1, sT2 = 36, 37, 38, 39, 40, 41
    sAO, sWOFF, sM0A, sM0W, sXO = 42, 43, 44, 45, 46
    a("s_cmp_ge_u32 s2, 256")
    a("s_cbranch_scc1 L_out_end")
    a("s_load_dwordx2 s[4:5], s[0:1], %d" % KA_X)
    a("s_load_dwordx2 s[6:7], s[0:1], %d" % KA_WO)
    a("s_load_dwordx4 s[8:11], s[0:1], %d" % KA_WD)
    a("s_load_dwordx2 s[12:13], s[0:1], %d" % KA_WS)
    a("v_lshrrev_b32 v1, 6, v0")
    a("v_and_b32 v2, 63, v0")
    a("v_readfirstlane_b32 s%d, v1" % sW)
    a("s_and_b32 s%d, s2, 7" % sT0)
    a("s_lshr_b32 s%d, s2, 3" % sT1)
    a("s_lshl_b32 s%d, s%d, 2" % (sMT, sT0))
    a("s_and_b32 s%d, s%d, 3" % (sT2, sT1))
    a("s_add_u32 s%d, s%d, s%d" % (sMT, sMT, sT2))
    a("s_lshr_b32 s%d, s%d, 2" % (sNT, sT1))
    a("v_lshlrev_b32 v3, 4, v2")
    a("v_lshrrev_b32 v4, 3, v2")
    a("v_and_b32 v5, 7, v2")
    a("v_lshlrev_b32 v6, 1, v4")
    a("v_and_b32 v6, 4, v6")
    a("v_xor_b32 v5, v5, v6")
    a("v_lshlrev_b32 v4, 10, v4")
    a("v_lshl_add_u32 v8, v5, 4, v4")
    for i in range(1, 4): a("v_add_u32 v%d, %d, v8" % (8 + i, i * 7168))
    a("s_and_b32 s%d, s%d, 1" % (sT0, sW))
    a("s_lshr_b32 s%d, s%d, 1" % (sT1, sW))
    a("s_lshl_b32 s%d, s%d, 1" % (sT2, sMT))
    a("s_add_u32 s%d, s%d, s%d" % (sT2, sT2, sT0))
    a("s_mul_i32 s%d, s%d, %d" % (sAO, sT2, A2_TT))
    a("s_lshl_b32 s%d, s%d, 15" % (sXO, sT2))
    a("s_lshl_b32 s%d, s%d, 12" % (sT2, sT1))
    a("s_add_u32 s%d, s%d, s%d" % (sAO, sAO, sT2))
    a("s_add_u32 s%d, s%d, %d" % (sAO, sAO, A2_OFF))
    a("s_lshl_b32 s%d, s%d, 13" % (sM0A, sT0))
    a("s_add_u32 s%d, s%d, s%d" % (sM0A, sM0A, sT2))
    a("s_lshl_b32 s%d, s%d, 12" % (sM0W, sW))
    a("s_add_u32 s%d, s%d, 16384" % (sM0W, sM0W))
    a("s_lshl_b32 s%d, s%d, 15" % (sWOFF, sW))
    a("s_lshl_b32 s%d, s%d, 7" % (sT2, sNT))
    a("s_add_u32 s%d, s%d, s%d" % (sWOFF, sWOFF, sT2))
    a("s_add_u32 s%d, s%d, s%d" % (sXO, sXO, sT2))
    a("s_lshl_b32 s%d, s%d, 6" % (sT2, sT1))
    a("s_add_u32 s%d, s%d, s%d" % (sXO, sXO, sT2))
    a("v_and_b32 v4, 31, v2")
    a("v_lshrrev_b32 v5, 5, v2")
    a("v_lshlrev_b32 v4, 10, v4")
    a("v_lshl_add_u32 v12, v5, 4, v4")
    a("s_waitcnt lgkmcnt(0)")
    srd(a, SX, 4, 2 * MB); srd(a, SWO, 6, 512 * 1024); srd(a, SWD, 8, 1792 * 1024); srd(a, SOUT, 10, 2 * MB); srd(a, SWS, 12, WS_BYTES)
    def dma_chunk(kc):
        slot = kc % NSLOT
        a("s_add_u32 m0, s%d, %d" % (sM0A, slot * SLOT))
        a("s_add_u32 s%d, s%d, %d" % (sT2, sAO, kc * 8192))
        for i in range(4):
            a.vmem("buffer_load_dwordx4 v3, %s, s%d offen offset:%d lds" % (s(SWS, 4), sT2, i * 1024), "w%d" % kc)
        a("s_add_u32 m0, s%d, %d" % (sM0W, slot * SLOT))
        srdw, kk = (SWO, kc) if kc < 4 else (SWD, kc - 4)
        a("s_add_u32 s%d, s%d, %d" % (sT2, sWOFF, kk * 128 * 1024))
        for i in range(4):
            a.vmem("buffer_load_dwordx4 v%d, %s, s%d offen offset:%d lds" % (8 + i, s(srdw, 4), sT2, i * 1024), "w%d" % kc)
    for kc in range(NSLOT): dma_chunk(kc)
    a.vmem("buffer_load_dwordx4 v[24:27], v12, %s, s%d offen" % (s(SX, 4), sXO), "x")
    a.vmem("buffer_load_dwordx4 v[28:31], v12, %s, s%d offen offset:32" % (s(SX, 4), sXO), "x")
    a("s_lshl_b32 s%d, s%d, 13" % (sT2, sT0))
    a("v_add_u32 v14, s%d, v3" % sT2)
    a("v_add_u32 v15, 65536, v14")
    a("v_bfe_u32 v4, v2, 2, 2")
    a("v_and_b32 v6, 1, v2")
    a("v_lshlrev_b32 v6, 4, v6")
    a("v_and_b32 v7, 2, v2")
    a("v_lshl_add_u32 v6, v7, 2, v6")
    a("v_and_b32 v7, 16, v2")
    a("v_lshl_add_u32 v6, v7, 1, v6")
    a("s_lshl_b32 s%d, s%d, 6" % (sT2, sT1))
    a("v_add_u32 v6, s%d, v6" % sT2)
    a("v_lshlrev_b32 v7, 5, v4")
    a("v_and_b32 v7, 64, v7")
    a("v_xor_b32 v6, v6, v7")
    a("v_lshl_add_u32 v4, v5, 2, v4")
    a("v_lshl_add_u32 v6, v4, 7, v6")
    a("v_add_u32 v16, 16384, v6")
    a("v_add_u32 v17, 65536, v16")
    ACC = 32; FB = [48, 80]
    def reads(u):
        kc, hf = u // 2, u % 2
        slot = kc % NSLOT
        for i in range(4):
            ks = hf * 4 + i
            fb = FB[u % 2] + 8 * i
            a("ds_read_b128 %s, v%d offset:%d" % (v(fb, 4), 14 + (slot >> 1), (slot & 1) * SLOT + ks * 1024))
            for sec in range(2):
                a("ds_read_b64_tr_b16 %s, v%d offset:%d" % (v(fb + 4 + 2 * sec, 2), 16 + (slot >> 1), (slot & 1) * SLOT + ks * 2048 + sec * 1024))
    a.wait_vm("w0")
    a("s_barrier")
    reads(0)
    NU = 2 * NCH
    for u in range(NU):
        kc = u // 2
        if u + 1 < NU:
            if (u + 1) % 2 == 0:
                a.wait_vm("w%d" % (kc + 1), "lgkmcnt(0)")
                a("s_barrier")
                reads(u + 1)
                if kc + NSLOT < NCH: dma_chunk(kc + NSLOT)
            else:
                reads(u + 1)
                a("s_waitcnt lgkmcnt(12)")
        else:
            a("s_waitcnt lgkmcnt(0)")
        for i in range(4):
            fb = FB[u % 2] + 8 * i
            c = "0" if (u == 0 and i == 0) else v(ACC, 16)
            a("v_mfma_f32_32x32x16_bf16 %s, %s, %s, %s" % (v(ACC, 16), v(fb + 4, 4), v(fb, 4), c))
    a("s_waitcnt vmcnt(0)")
    for i in range(8):
        a("v_lshlrev_b32 v%d, 16, v%d" % (48 + 2 * i, 24 + i))
        a("v_and_b32 v%d, 0xffff0000, v%d" % (49 + 2 * i, 24 + i))
    for i in range(16): a("v_add_f32 v%d, v%d, v%d" % (48 + i, 48 + i, ACC + i))
    for i in range(8): a("v_cvt_pk_bf16_f32 v%d, v%d, v%d" % (24 + i, 48 + 2 * i, 49 + 2 * i))
    a("buffer_store_dwordx4 v[24:27], v12, %s, s%d offen" % (s(SOUT, 4), sXO))
    a("buffer_store_dwordx4 v[28:31], v12, %s, s%d offen offset:32" % (s(SOUT, 4), sXO))
    a.label("L_out_end")
    a("s_endpgm")
    return dict(name=name, asm=a, vgpr=112, grid=(256, 1, 1), block=(256, 1, 1), lds=NSLOT * SLOT)
```

```python
MB = 1 << 20
XN_OFF = 0
QF_OFF = 2 * MB
KV_OFF = 4 * MB
A2_OFF = 8 * MB
A2_TT = 144 * 1024
Y_OFF = 20 * MB
WS_BYTES = 0x10000000
KA_X, KA_WQKV, KA_WO, KA_BX, KA_WG, KA_WU, KA_WD, KA_OUT, KA_DBG, KA_WS = [8 * i for i in range(10)]
QSCALE = 0x3EB8AA3B

def srd(a, d, base, nbytes, scc_safe=True):
    if d != base: a("s_mov_b64 s[%d:%d], s[%d:%d]" % (d, d + 1, base, base + 1))
    a("s_mov_b32 s%d, 0x%x" % (d + 2, nbytes))
    a("s_mov_b32 s%d, 0x00020000" % (d + 3))
```

```python
import re

class Asm:
    def __init__(self):
        self.lines = []
        self.vm = []
        self.uid = 0
    def __call__(self, s):
        for l in s.strip("\n").split("\n"):
            l = l.strip()
            if l: self.lines.append(l)
    def label(self, name): self.lines.append(name + ":")
    def newlabel(self, base):
        self.uid += 1
        return "%s_%d" % (base, self.uid)
    def comment(self, s): self.lines.append("; " + s)
    def vmem(self, s, tag):
        self(s); self.vm.append(tag)
    def vm_count_after(self, tag):
        idx = max((i for i, t in enumerate(self.vm) if t == tag), default=-1)
        if idx < 0: return None
        return len(self.vm) - 1 - idx
    def wait_vm(self, tag, extra=""):
        n = self.vm_count_after(tag)
        if n is None:
            if extra: self("s_waitcnt " + extra)
            return
        assert n <= 63, n
        self("s_waitcnt vmcnt(%d) %s" % (n, extra))
        self.vm = self.vm[len(self.vm) - n:] if n else []
    diag = False
    cyc = False
    def stamp(self, i):
        if not Asm.diag: return
        assert i < 16
        if i == 0:
            self("s_memtime s[96:97]")
            for k in range(1, 16): self("s_mov_b32 s%d, 0" % (64 + 2 * k))
        self("%s s[%d:%d]" % ("s_memtime" if Asm.cyc else "s_memrealtime", 64 + 2 * i, 65 + 2 * i))
    def stamp_flush(self, kidx, sws, sw, nwaves):
        if not Asm.diag: return
        self("s_waitcnt vmcnt(0)")
        self("s_memtime s[98:99]")
        self.stamp(15)
        self("s_waitcnt lgkmcnt(0)")
        self("s_mul_i32 s100, s2, %d" % nwaves)
        self("s_add_u32 s100, s100, s%d" % sw)
        self("s_lshl_b32 s100, s100, 7")
        self("s_add_u32 s100, s100, %d" % ((64 + kidx) << 20))
        self("s_sub_u32 s96, s98, s96")
        self("v_mov_b32 v0, 0")
        self("s_mov_b64 exec, 1")
        for i in range(17):
            self("v_mov_b32 v1, s%d" % (64 + 2 * i))
            self("buffer_store_dword v1, v0, s[%d:%d], s100 offen offset:%d" % (sws, sws + 3, 4 * i))
    def nop(self, n):
        while n > 0:
            k = min(n, 16); self("s_nop %d" % (k - 1)); n -= k
    def text(self):
        out = []
        for l in self.lines:
            out.append(l if (l.endswith(":") or l.startswith(";") or l.startswith(".")) else "    " + l)
        return "\n".join(out) + "\n"

def v(a, n=1): return "v%d" % a if n == 1 else "v[%d:%d]" % (a, a + n - 1)
def s(a, n=1): return "s%d" % a if n == 1 else "s[%d:%d]" % (a, a + n - 1)
def acc(a, n=1): return "a%d" % a if n == 1 else "a[%d:%d]" % (a, a + n - 1)

_REG = re.compile(r"\b([vas])(?:(\d+)|\[(\d+):(\d+)\])")
TRANS = ("v_exp_", "v_log_", "v_rcp_", "v_rsq_", "v_sqrt_", "v_sin_", "v_cos_")
def regs_of(op):
    out = set()
    for m in _REG.finditer(op):
        k = m.group(1)
        if m.group(2) is not None: out.add((k, int(m.group(2))))
        else: out.update((k, i) for i in range(int(m.group(3)), int(m.group(4)) + 1))
    if re.search(r"\bvcc\b", op): out.add(("s", 106)); out.add(("s", 107))
    if re.search(r"\bexec\b", op): out.add(("s", 126)); out.add(("s", 127))
    if re.search(r"\bm0\b", op): out.add(("s", 124))
    return out
def split_ops(rest):
    ops, depth, cur = [], 0, ""
    for ch in rest:
        if ch == "[": depth += 1
        if ch == "]": depth -= 1
        if ch == "," and depth == 0: ops.append(cur.strip()); cur = ""
        else: cur += ch
    if cur.strip(): ops.append(cur.strip())
    return ops
class Ins:
    def __init__(self, line):
        self.line = line
        line = line.split(";")[0].strip()
        p = line.split(None, 1)
        self.mn = p[0]; rest = p[1] if len(p) > 1 else ""
        ops = split_ops(rest)
        self.ops = ops
        mn = self.mn
        self.is_mfma = mn.startswith("v_mfma")
        self.is_valu = mn.startswith("v_") and not self.is_mfma
        self.is_trans = mn.startswith(TRANS)
        self.is_salu = mn.startswith("s_")
        self.is_ds = mn.startswith("ds_")
        self.is_vmem = mn.startswith(("buffer_", "global_", "flat_"))
        self.is_dpp = "dpp" in mn or "row_" in rest or "quad_perm" in rest
        self.is_lds_dma = self.is_vmem and (re.search(r"\blds\b", rest) is not None or "load_lds" in mn)
        self.w, self.r = set(), set()
        self.srcc = set(); self.srcab = set(); self.stdata = set()
        R = [regs_of(o) for o in ops]
        if self.is_mfma:
            self.w = R[0]; self.srcab = R[1] | R[2]; self.srcc = R[3]; self.r = self.srcab | self.srcc
            self.passes = 8 if "32x32" in mn else 4
        elif self.is_valu:
            if mn.startswith("v_cmp"):
                self.w = R[0]; self.r = set().union(*R[1:])
                if mn.startswith("v_cmpx"): self.w |= {("s", 126), ("s", 127)}
            elif "swap" in mn:
                self.w = R[0] | R[1]; self.r = R[0] | R[1]
            elif mn.startswith(("v_add_co", "v_sub_co", "v_addc_co", "v_subb_co", "v_div_scale")):
                self.w = R[0] | R[1]; self.r = set().union(*R[2:])
            elif mn == "v_nop": pass
            else:
                self.w = R[0]; self.r = set().union(*R[1:]) if len(R) > 1 else set()
                if mn.startswith(("v_fmac", "v_dot2c", "v_pk_fmac", "v_writelane")) or "UNUSED_PRESERVE" in rest or self.is_dpp: self.r |= R[0]
        elif self.is_ds:
            if "read" in mn or "permute" in mn or "swizzle" in mn or "rtn" in mn:
                self.w = R[0]; self.r = set().union(*R[1:])
            else: self.r = set().union(*R)
        elif self.is_vmem:
            if self.is_lds_dma: self.r = set().union(*R) | {("s", 124)}
            elif "load" in mn: self.w = R[0]; self.r = set().union(*R[1:])
            elif mn.startswith("buffer_store") or mn.startswith("buffer_atomic"):
                self.r = set().union(*R); self.stdata = R[0]
            elif "store" in mn or "atomic" in mn:
                self.r = set().union(*R); self.stdata = R[1] if len(R) > 1 else set()
            if not ("x3" in mn or "x4" in mn): self.stdata = set()
        elif self.is_salu:
            if mn.startswith(("s_cmp", "s_cbranch", "s_branch", "s_waitcnt", "s_nop", "s_barrier", "s_endpgm", "s_setprio", "s_sleep", "s_bitcmp")):
                self.r = set().union(*R) if R else set()
            else:
                self.w = R[0] if R else set(); self.r = set().union(*R[1:]) if len(R) > 1 else set()
                if "saveexec" in mn: self.w |= {("s", 126), ("s", 127)}
        self.states = 1
        if mn == "s_nop": self.states = int(ops[0], 0) + 1

def need(p, c):
    n = 0
    vw = {x for x in p.w if x[0] != "s"}; sw = {x for x in p.w if x[0] == "s"}
    if p.is_valu:
        if c.is_mfma and vw & c.r: n = max(n, 2)
        if c.is_valu and c.is_dpp and vw & c.r: n = max(n, 2)
        if c.is_valu and c.mn.startswith("v_permlane") and vw & c.r: n = max(n, 2)
        if c.mn.startswith(("v_readlane", "v_readfirstlane")) and vw & c.r: n = max(n, 1)
        if p.is_trans and c.is_valu and not c.is_trans and vw & c.r: n = max(n, 1)
        if p.is_trans and (c.is_ds or c.is_vmem) and vw & c.r: n = max(n, 1)
        if "sdwa" in p.mn or "op_sel" in p.line:
            if c.is_valu and vw & (c.r | c.w): n = max(n, 1)
        if sw:
            if c.is_vmem and sw & c.r: n = max(n, 5)
            if c.is_valu and sw & c.r: n = max(n, 2)
            if c.mn.startswith(("v_readlane", "v_writelane")) and sw & c.r: n = max(n, 4)
            if c.is_salu and sw & c.r: n = max(n, 1)
            if ("s", 126) in sw:
                if c.is_mfma: n = max(n, 4)
                if c.is_dpp: n = max(n, 5)
                if c.mn.startswith(("v_readlane", "v_readfirstlane", "v_writelane", "v_permlane")): n = max(n, 4)
        if p.mn.startswith("v_dot"):
            if vw & (c.r | c.w):
                if c.mn == p.mn:
                    cs = regs_of(c.ops[3]) if len(c.ops) > 3 else regs_of(c.ops[0])
                    ab = regs_of(c.ops[1]) | regs_of(c.ops[2])
                    if vw & ab: n = max(n, 3)
                else: n = max(n, 3)
    if p.is_mfma:
        t = {4: (0, 6, 8, 8, 3), 8: (0, 10, 12, 12, 7)}[p.passes]
        if c.is_mfma:
            if p.w & c.srcc:
                n = max(n, t[0] if (c.srcc == p.w and c.passes == p.passes) else t[1])
            if p.w & c.srcab: n = max(n, t[2])
            if p.w & c.w and not (p.w & c.srcc): n = max(n, 0)
        elif c.is_valu or c.is_ds or c.is_vmem:
            if p.w & (c.r | c.w): n = max(n, t[3])
            if c.is_valu and p.srcc & c.w: n = max(n, t[4])
    if p.is_salu and ("s", 124) in p.w and c.is_lds_dma: n = max(n, 1)
    if p.stdata and (p.stdata & c.w): n = max(n, 2 if c.is_valu else 1)
    return n

def check_hazards(lines, name=""):
    ins, labels = [], {}
    for l in lines:
        if l.startswith(";") or l.startswith("."): continue
        if l.endswith(":"): labels[l[:-1]] = len(ins); continue
        ins.append(Ins(l))
    errs = []
    def succ(i):
        x = ins[i]; out = []
        if x.mn == "s_endpgm": return out
        if x.mn.startswith(("s_cbranch", "s_branch")):
            t = x.ops[0]
            if t in labels: out.append(labels[t])
            if x.mn == "s_branch": return out
        if i + 1 < len(ins): out.append(i + 1)
        return out
    for i, p in enumerate(ins):
        if not (p.is_valu or p.is_mfma or p.stdata or (p.is_salu and ("s", 124) in p.w)): continue
        stack = [(j, 0) for j in succ(i)]; seen = set()
        while stack:
            j, d = stack.pop()
            if d >= 13 or (j, d) in seen or j >= len(ins): continue
            seen.add((j, d))
            c = ins[j]
            n = need(p, c)
            if n > d: errs.append("%s HAZARD need %d have %d:\n   %s\n   %s" % (name, n, d, p.line, c.line))
            for k in succ(j): stack.append((k, d + c.states))
    return errs
```

```python
from common import *
from layout import *
from kgu import f2u, C1, C2

FL_OFF = 32 * MB
EPOCH_OFF = FL_OFF
FX_OFF = FL_OFF + 0x1000
FQ_OFF = FL_OFF + 0x8000
FH_OFF = FL_OFF + 0x10000
FO_OFF = FL_OFF + 0x14000
TAGX = 0x5bd1e995

LDS_W1 = 65536
LDS_F = 65536
FSLOT = 28800; UPOFF = 14464; FNS = 3
F2REG = 20480
LDS_CNT = LDS_F + FNS * FSLOT
LDS_TOTAL = 163840

P_X, P_WQKV, P_WO, P_WG, P_WU, P_WD, P_OUT, P_WS = 4, 6, 8, 12, 14, 16, 18, 22
SWS, SA, SB = 24, 28, 32
sW = 36
sT0, sT1, sT2, sT3 = 37, 38, 39, 40
sXCD, sJ = 41, 42
sTAG = 60
sSPIN = 62
VTAG = 166
SC = "sc0 sc1"

def arrive(a, vaddr, vone, off):
    a("s_mov_b64 exec, 1")
    a("ds_add_u32 v%d, v%d offset:%d" % (vaddr, vone, off))
    a("s_mov_b64 exec, -1")

def spin(a, vaddr, vp, off, stmp, target, name):
    a("s_mov_b32 s%d, 0x200000" % sSPIN)
    a.label(name)
    a("ds_read_b32 v%d, v%d offset:%d" % (vp, vaddr, off))
    a("s_waitcnt lgkmcnt(0)")
    a("v_readfirstlane_b32 s%d, v%d" % (stmp, vp))
    a("s_nop 0")
    a("s_cmp_ge_u32 s%d, %s" % (stmp, target))
    a("s_cbranch_scc1 %s_ok" % name)
    a("s_sleep 1")
    a("s_sub_u32 s%d, s%d, 1" % (sSPIN, sSPIN))
    a("s_cbranch_scc0 %s" % name)
    a.label(name + "_ok")

def set_flag(a, soff, vz):
    a("s_waitcnt vmcnt(0)")
    a("s_mov_b64 exec, 1")
    a("buffer_store_dwordx2 %s, v%d, %s, s%d offen %s" % (v(VTAG, 2), vz, s(SWS, 4), soff, SC))
    a("s_mov_b64 exec, -1")

def poll(a, voff, soff, nl, vp, name):
    a("s_mov_b32 s%d, 0x20000" % sSPIN)
    assert nl <= 32
    a("s_mov_b32 exec_lo, 0x%x" % ((1 << nl) - 1))
    a("s_mov_b32 exec_hi, 0")
    a.label(name)
    a("buffer_load_dwordx2 %s, v%d, %s, s%d offen sc1" % (v(vp, 2), voff, s(SWS, 4), soff))
    a("s_waitcnt vmcnt(0)")
    a("v_cmp_ne_u64 vcc, %s, %s" % (s(sTAG, 2), v(vp, 2)))
    a("s_sub_u32 s%d, s%d, 1" % (sSPIN, sSPIN))
    a("s_cbranch_scc1 %s_ok" % name)
    a("s_cbranch_vccz %s_ok" % name)
    a("s_sleep 2")
    a("s_branch %s" % name)
    a.label(name + "_ok")
    a("s_mov_b64 exec, -1")

sMT, sNG, sROT = 43, 44, 45
def p1_ids(a):
    a("s_lshr_b32 s%d, s%d, 1" % (sMT, sXCD))
    a("s_lshl_b32 s%d, s%d, 3" % (sMT, sMT))
    a("s_and_b32 s%d, s%d, 7" % (sROT, sJ))
    a("s_add_u32 s%d, s%d, s%d" % (sMT, sMT, sROT))
    a("s_and_b32 s%d, s%d, 1" % (sNG, sXCD))
    a("s_lshl_b32 s%d, s%d, 2" % (sNG, sNG))
    a("s_lshr_b32 s%d, s%d, 3" % (sT2, sJ))
    a("s_add_u32 s%d, s%d, s%d" % (sNG, sNG, sT2))

XA0, XA, WA = 16, 17, 24
ACC1 = 128
FB1 = [64, 96]
def p1_addrs(a):
    a("v_and_b32 v13, 31, v2")
    a("v_lshrrev_b32 v14, 5, v2")
    a("v_and_b32 v15, 15, v2")
    a("v_xor_b32 v15, v15, v14")
    a("v_lshlrev_b32 v15, 4, v15")
    a("v_lshl_add_u32 v%d, v13, 10, v15" % XA0)
    a("s_and_b32 s%d, s%d, 1" % (sT1, sW))
    a("s_lshl_b32 s%d, s%d, 15" % (sT0, sT1))
    a("v_add_u32 v%d, s%d, v%d" % (XA0, sT0, XA0))
    a("v_bfe_u32 v24, v2, 2, 2")
    a("v_and_b32 v25, 3, v2")
    a("v_lshlrev_b32 v25, 3, v25")
    a("v_and_b32 v26, 16, v2")
    a("v_lshl_add_u32 v25, v26, 1, v25")
    a("s_and_b32 s%d, s%d, 2" % (sT0, sW))
    a("s_lshl_b32 s%d, s%d, 5" % (sT0, sT0))
    a("v_add_u32 v25, s%d, v25" % sT0)
    a("v_lshlrev_b32 v26, 5, v24")
    a("v_and_b32 v26, 64, v26")
    a("v_xor_b32 v25, v25, v26")
    a("v_lshl_add_u32 v25, v24, 7, v25")
    a("v_mul_u32_u24 v26, 3072, v14")
    a("v_add_u32 v24, v25, v26")
    a("s_lshr_b32 s%d, s%d, 2" % (sT0, sW))
    a("s_lshl_b32 s%d, s%d, 10" % (sT0, sT0))
    a("s_add_u32 s%d, s%d, %d" % (sT0, sT0, LDS_W1))
    a("v_add_u32 v24, s%d, v24" % sT0)
    a("v_add_u32 v25, 49152, v24")

sKC = 46
def p1_reads(a, i):
    slot = i % 4; fb = FB1[i % 2]
    a("s_and_b32 s%d, s%d, 1" % (sT0, sKC))
    a("s_lshl_b32 s%d, s%d, 7" % (sT0, sT0))
    a("s_lshr_b32 s%d, s%d, 1" % (sT1, sKC))
    a("s_lshl_b32 s%d, s%d, 8" % (sT1, sT1))
    a("s_or_b32 s%d, s%d, s%d" % (sT0, sT0, sT1))
    a("v_xor_b32 v%d, s%d, v%d" % (XA, sT0, XA0))
    for k in range(1, 4): a("v_xor_b32 v%d, %d, v%d" % (XA + k, k << 5, XA))
    a("s_add_u32 s%d, s%d, 1" % (sKC, sKC))
    a("s_and_b32 s%d, s%d, 7" % (sKC, sKC))
    for k in range(4):
        a("ds_read_b128 %s, v%d" % (v(fb + 8 * k, 4), XA + k))
        for sec in range(2):
            a("ds_read_b64_tr_b16 %s, v%d offset:%d" % (v(fb + 8 * k + 4 + 2 * sec, 2), WA + (slot >> 1), (slot & 1) * 24576 + k * 6144 + sec * 512))

def p1_gemm(a, swapped, pre_barrier, post_barrier):
    a("s_mov_b32 s%d, s%d" % (sKC, sROT))
    a.stamp(3)
    pre_barrier(0)
    a("s_barrier")
    a.stamp(4)
    p1_reads(a, 0)
    post_barrier(0)
    for i in range(8):
        if i < 7:
            pre_barrier(i + 1)
            a("s_barrier")
            if i == 3: a.stamp(5)
            p1_reads(a, i + 1)
            post_barrier(i + 1)
        else:
            a("s_waitcnt lgkmcnt(0)")
            a("s_barrier")
            a.stamp(6)
        fb = FB1[i % 2]
        for k in range(4):
            c = "0" if (i == 0 and k == 0) else v(ACC1, 16)
            x, w = v(fb + 8 * k, 4), v(fb + 8 * k + 4, 4)
            a("v_mfma_f32_32x32x16_bf16 %s, %s, %s, %s" % ((v(ACC1, 16), x, w, c) if swapped else (v(ACC1, 16), w, x, c)))

def p1_tile_ids(a):
    a("s_and_b32 s%d, s%d, 2" % (sT0, sW))
    a("s_lshl_b32 s%d, s%d, 2" % (sT1, sNG))
    a("s_add_u32 s%d, s%d, s%d" % (sT0, sT0, sT1))
    a("s_and_b32 s%d, s%d, 1" % (sT1, sW))
    a("s_lshl_b32 s%d, s%d, 1" % (sT2, sMT))
    a("s_add_u32 s%d, s%d, s%d" % (sT1, sT1, sT2))
    a("s_lshl_b32 s%d, s%d, 10" % (sT3, sT0))
    a("s_and_b32 s%d, s%d, 7" % (sT2, sT1))
    a("s_lshl_b32 s%d, s%d, 8" % (sT2, sT2))
    a("s_add_u32 s%d, s%d, s%d" % (sT3, sT3, sT2))
    a("s_lshr_b32 s%d, s%d, 3" % (sT2, sT1))
    a("s_lshl_b32 s%d, s%d, 3" % (sT2, sT2))
    a("s_add_u32 s%d, s%d, s%d" % (sT3, sT3, sT2))
    a("s_add_u32 s%d, s%d, %d" % (sT3, sT3, FQ_OFF))

def role_a(a):
    sONE = 47; sXO = 48; sXE = 50; sFXO = 51
    srd(a, SA, P_X, 2 * MB)
    p1_ids(a)
    a("v_lshrrev_b32 v4, 4, v2")
    a("v_and_b32 v5, 15, v2")
    a("v_lshlrev_b32 v6, 10, v4")
    a("v_lshl_add_u32 v6, v5, 4, v6")
    a("s_lshl_b32 s%d, s%d, 16" % (sXO, sMT))
    a("s_lshl_b32 s%d, s%d, 13" % (sT0, sW))
    a("s_add_u32 s%d, s%d, s%d" % (sXO, sXO, sT0))
    a("s_add_u32 s%d, s%d, 4096" % (sXO + 1, sXO))
    XR = 64
    for g in range(2):
        for p in range(4):
            a.vmem("buffer_load_dwordx4 %s, v6, %s, s%d offen offset:%d" % (v(XR + g * 16 + p * 4, 4), s(SA, 4), sXO + g, p * 256), "x%d" % g)
    a.stamp(1)
    a("s_barrier")
    a("s_mov_b32 s%d, 0x3f803f80" % sONE)
    a("v_xor_b32 v9, v5, v4")
    a("v_lshlrev_b32 v10, 10, v4")
    a("v_lshl_add_u32 v9, v9, 4, v10")
    a("s_and_b32 s%d, s%d, 1" % (sT1, sW))
    a("s_lshl_b32 s%d, s%d, 7" % (sT1, sT1))
    a("v_xor_b32 v9, s%d, v9" % sT1)
    a("v_add_u32 v9, s%d, v9" % sT0)
    a("v_xor_b32 v10, 64, v9")
    p1_addrs(a)
    for g in range(2):
        a.wait_vm("x%d" % g)
        if g == 0: a.stamp(2)
        for i in range(16):
            r = XR + g * 16 + i
            k = 2 * g + (i & 1)
            a("v_dot2_f32_bf16 v%d, v%d, s%d, %s" % (32 + k, r, sONE, "0" if i < 2 else "v%d" % (32 + k)))
            a("v_dot2_f32_bf16 v%d, v%d, v%d, %s" % (36 + k, r, r, "0" if i < 2 else "v%d" % (36 + k)))
    a.nop(3)
    a("v_add_f32 v32, v32, v33"); a("v_add_f32 v33, v34, v35"); a("v_add_f32 v36, v36, v37"); a("v_add_f32 v37, v38, v39")
    a.nop(1)
    for sh in (8, 4, 2, 1):
        for k in (32, 33, 36, 37):
            a("v_add_f32_dpp v%d, v%d, v%d row_ror:%d row_mask:0xf bank_mask:0xf" % (k, k, k, sh))
    def bf16r(r):
        a("v_cvt_pk_bf16_f32 v%d, v%d, v%d" % (r, r, r))
        a("v_and_b32 v%d, 0xffff0000, v%d" % (r, r))
    G = range(2)
    for g in G: a("v_mul_f32 v%d, 0x3b000000, v%d" % (32 + g, 32 + g))
    for g in G: a("v_mul_f32 v%d, v%d, v%d" % (40 + g, 32 + g, 32 + g))
    for g in G: a("v_mul_f32 v%d, 0x3b000000, v%d" % (36 + g, 36 + g))
    for g in G: a("v_sub_f32 v%d, v%d, v%d" % (36 + g, 36 + g, 40 + g))
    for g in G: a("v_max_f32 v%d, 0, v%d" % (36 + g, 36 + g))
    for g in G: bf16r(32 + g)
    for g in G: bf16r(36 + g)
    for g in G: a("v_add_f32 v%d, 0x3727c5ac, v%d" % (36 + g, 36 + g))
    for g in G: bf16r(36 + g)
    for g in G: a("v_sqrt_f32 v%d, v%d" % (36 + g, 36 + g))
    a.nop(1)
    for g in G: bf16r(36 + g)
    for g in G: a("v_rcp_f32 v%d, v%d" % (36 + g, 36 + g))
    a.nop(1)
    for g in G: a("v_mul_f32_e64 v%d, -v%d, v%d" % (32 + g, 32 + g, 36 + g))
    for g in G:
        for p in range(4):
            for i in range(4):
                r = XR + g * 16 + p * 4 + i
                t = 44 + 2 * i
                a("v_lshlrev_b32 v%d, 16, v%d" % (t, r))
                a("v_and_b32 v%d, 0xffff0000, v%d" % (t + 1, r))
                a("v_fma_f32 v%d, v%d, v%d, v%d" % (t, t, 36 + g, 32 + g))
                a("v_fma_f32 v%d, v%d, v%d, v%d" % (t + 1, t + 1, 36 + g, 32 + g))
                a("v_cvt_pk_bf16_f32 v%d, v%d, v%d" % (r, t, t + 1))
            a("ds_write_b128 v%d, %s offset:%d" % (9 + g, v(XR + g * 16 + p * 4, 4), g * 4096 + p * 256))
    a("s_lshl_b32 s%d, s%d, 2" % (sT0, sNG))
    a("s_lshr_b32 s%d, s%d, 1" % (sT1, sW))
    a("s_add_u32 s%d, s%d, s%d" % (sT0, sT0, sT1))
    a("s_lshl_b32 s%d, s%d, 5" % (sT1, sT0))
    a("v_xor_b32 v27, s%d, v%d" % (sT1, XA0))
    a("s_lshl_b32 s%d, s%d, 1" % (sT2, sMT))
    a("s_and_b32 s%d, s%d, 1" % (sT1, sW))
    a("s_add_u32 s%d, s%d, s%d" % (sT2, sT2, sT1))
    a("s_lshl_b32 s%d, s%d, 5" % (sT2, sT2))
    a("s_add_u32 s%d, s%d, s%d" % (sT2, sT2, sT0))
    a("s_lshl_b32 s%d, s%d, 10" % (sXE, sT2))
    a("s_lshl_b32 s%d, s%d, 3" % (sFXO, sT2))
    a("s_add_u32 s%d, s%d, %d" % (sFXO, sFXO, FX_OFF))
    def pre(i):
        a("s_waitcnt lgkmcnt(0)")
        if i == 1: a("buffer_store_dwordx4 v[28:31], v3, %s, s%d offen %s" % (s(SWS, 4), sXE, SC))
        if i == 4: set_flag(a, sFXO, 3)
    def post(i):
        if i == 0: a("ds_read_b128 v[28:31], v27")
    p1_gemm(a, False, pre, post)
    a("v_mov_b32 v44, %d" % LDS_CNT)
    a("v_mov_b32 v4, 0"); a("v_mov_b32 v5, 0"); a("v_mov_b32 v6, 0"); a("v_mov_b32 v7, 0")
    a("ds_write_b128 v44, v[4:7]")
    a("ds_write_b64 v44, v[4:5] offset:16")
    p1_tile_ids(a)
    sD0, sD1, sSCL = 48, 49, 47
    a("s_lshl_b32 s%d, s%d, 16" % (sD0, sT0))
    a("s_lshl_b32 s%d, s%d, 10" % (sT2, sT1))
    a("s_add_u32 s%d, s%d, s%d" % (sD0, sD0, sT2))
    a("s_lshr_b32 s%d, s%d, 2" % (sT2, sW))
    a("s_lshl_b32 s%d, s%d, s%d" % (sD0, sD0, sT2))
    a("s_lshl_b32 s%d, 65536, s%d" % (sD1, sT2))
    a("s_lshl_b32 s%d, %d, s%d" % (sT0, QF_OFF, sT2))
    a("s_add_u32 s%d, s%d, s%d" % (sD0, sD0, sT0))
    a("s_add_u32 s%d, s%d, s%d" % (sD1, sD1, sD0))
    a("s_cmp_eq_u32 s%d, 0" % sT2)
    a("s_cselect_b32 s%d, 0x%x, 1.0" % (sSCL, QSCALE))
    a("s_cselect_b32 s%d, 128, 0" % sT2)
    a("s_add_u32 s%d, s%d, s%d" % (sT3, sT3, sT2))
    a("v_mov_b32 v8, s%d" % sSCL)
    a("s_waitcnt lgkmcnt(0)")
    a("s_barrier")
    for i in range(16): a("v_mul_f32 v%d, v8, v%d" % (ACC1 + i, ACC1 + i))
    for i in range(8): a("v_cvt_pk_bf16_f32 v%d, v%d, v%d" % (64 + i, ACC1 + 2 * i, ACC1 + 2 * i + 1))
    a("buffer_store_dwordx4 v[64:67], v3, %s, s%d offen %s" % (s(SWS, 4), sD0, SC))
    a("buffer_store_dwordx4 v[68:71], v3, %s, s%d offen %s" % (s(SWS, 4), sD1, SC))
    sFQ = 50
    a("s_mov_b32 s%d, s%d" % (sFQ, sT3))

    sHEAD, sQT, sKV, sCNT, sTGT, sWO, sCH, sSL = 43, 44, 45, 46, 47, 48, 49, 51
    sVM = 52; sKVB = 54; sQ0 = 55; sQ1 = 56
    a("s_lshl_b32 s%d, s%d, 2" % (sHEAD, sXCD))
    a("s_lshr_b32 s%d, s%d, 3" % (sT2, sJ))
    a("s_add_u32 s%d, s%d, s%d" % (sHEAD, sHEAD, sT2))
    a("s_and_b32 s%d, s%d, 7" % (sCH, sJ))
    a("s_lshl_b32 s%d, s%d, 3" % (sQT, sCH))
    a("s_and_b32 s%d, s%d, 3" % (sT0, sW))
    a("s_lshl_b32 s%d, s%d, 1" % (sT0, sT0))
    a("s_add_u32 s%d, s%d, s%d" % (sQT, sQT, sT0))
    a("s_lshr_b32 s%d, s%d, 2" % (sT1, sW))
    a("s_add_u32 s%d, s%d, s%d" % (sQT, sQT, sT1))
    a("s_lshl_b32 s%d, s%d, 11" % (sWO, sW))
    a("s_lshl_b32 s%d, s%d, 17" % (sKVB, sHEAD))
    a("s_add_u32 s%d, s%d, %d" % (sKVB, sKVB, KV_OFF))
    a("s_add_u32 s%d, s%d, s%d" % (sKV, sKVB, sWO))
    a("s_lshl_b32 s%d, s%d, 16" % (sQ0, sHEAD))
    a("s_lshl_b32 s%d, s%d, 10" % (sT2, sQT))
    a("s_add_u32 s%d, s%d, s%d" % (sQ0, sQ0, sT2))
    a("s_add_u32 s%d, s%d, %d" % (sQ0, sQ0, QF_OFF))
    a("s_xor_b32 s%d, s%d, 1024" % (sQ1, sQ0))
    a("v_lshlrev_b32 v10, 3, v2")
    a("s_lshl_b32 s%d, s%d, 8" % (sT2, sW))
    a("v_add_u32 v10, s%d, v10" % sT2)
    a("s_lshl_b32 s%d, s%d, 8" % (sT0, sT0))
    a("s_lshl_b32 s%d, s%d, 3" % (sT2, sCH))
    a("s_add_u32 s%d, s%d, s%d" % (sT0, sT0, sT2))
    a("s_add_u32 s%d, s%d, %d" % (sT0, sT0, (128 - 16 * 256) & 0xffffffff))
    a("s_mov_b64 exec, 0x30000")
    a("v_lshlrev_b32 v10, 8, v2")
    a("v_add_u32 v10, s%d, v10" % sT0)
    a("s_mov_b64 exec, -1")
    a("s_lshr_b32 s%d, s%d, 1" % (sT3, sHEAD))
    a("s_lshl_b32 s%d, s%d, 11" % (sT3, sT3))
    a("s_add_u32 s%d, s%d, %d" % (sT3, sT3, FQ_OFF))
    a("s_lshl_b32 s%d, s%d, 14" % (sCH, sCH))
    a("s_mov_b32 s%d, s%d" % (sSL, sWO))
    a("s_mov_b32 s%d, 0x0000ffff" % sVM)
    a("s_mov_b32 s%d, 0x0000ffff" % (sVM + 1))
    KA, VA, VCN, VONE, VP = 8, 9, 44, 45, 46
    Q = [4, 112]; KF = [12, 16]; VF = [20, 28]; P = 36; S = [48, 64]; O = [80, 96]
    a("s_lshl_b32 s%d, s%d, 13" % (sT1, sT1))
    a("v_add_u32 v%d, s%d, v3" % (KA, sT1))
    a("v_and_b32 v11, 15, v2")
    a("v_lshlrev_b32 v11, 4, v11")
    a("v_lshl_add_u32 v116, v14, 8, v11")
    a("v_add_u32 v%d, s%d, v116" % (VA, sT1))
    a("v_mov_b32 v%d, 1" % VONE)
    a("v_mov_b32 v11, 0")
    a("s_mov_b32 s%d, 0x00110000" % sT1)
    a("s_mov_b32 s%d, 0x00110000" % sT2)
    a("s_mov_b64 exec, s[%d:%d]" % (sT1, sT2))
    a("v_mov_b32 v11, 0x3f803f80")
    a("s_mov_b64 exec, -1")
    for i in range(16): a("v_mov_b32 v%d, v11" % (VF[0] + i))
    for i in range(32): a("v_mov_b32 v%d, 0" % (O[0] + i))
    for i in range(4): a("v_mov_b32 v%d, 0" % (P + 4 + i))
    a.stamp(7)
    set_flag(a, sFQ, 3)
    a.stamp(8)
    poll(a, 10, sT3, 18, 12, "L_a_poll")
    a.stamp(9)
    def dma():
        a("s_mov_b32 m0, s%d" % sSL)
        a("s_add_u32 s%d, s%d, s%d" % (sT0, sKV, sCH))
        a("buffer_load_dwordx4 v3, %s, s%d offen sc1 lds" % (s(SWS, 4), sT0))
        a("buffer_load_dwordx4 v3, %s, s%d offen offset:1024 sc1 lds" % (s(SWS, 4), sT0))
        a("s_add_u32 s%d, s%d, 16384" % (sSL, sSL))
        a("s_and_b32 s%d, s%d, 0xffff" % (sSL, sSL))
        a("s_add_u32 s%d, s%d, 16384" % (sCH, sCH))
        a("s_and_b32 s%d, s%d, 0x1ffff" % (sCH, sCH))
    dma()
    a("buffer_load_dwordx4 %s, v3, %s, s%d offen sc1" % (v(Q[0], 4), s(SWS, 4), sQ0))
    a("buffer_load_dwordx4 %s, v3, %s, s%d offen sc1" % (v(Q[1], 4), s(SWS, 4), sQ1))
    dma(); dma()
    def rdK(kt): a("ds_read_b128 %s, v%d offset:%d" % (v(KF[kt % 2], 4), KA, (kt % 4) * 2048))
    def rdV(kt):
        a("s_mov_b64 exec, %s" % s(sVM, 2))
        a("ds_read_b128 %s, v%d offset:%d" % (v(VF[kt % 2], 4), VA, (kt % 4) * 2048 + 1024))
        a("ds_read_b128 %s, v%d offset:%d" % (v(VF[kt % 2] + 4, 4), VA, (kt % 4) * 2048 + 1536))
        a("s_mov_b64 exec, -1")
    def mfS(u): a("v_mfma_f32_32x32x16_bf16 %s, %s, %s, 0" % (v(S[u % 2], 16), v(KF[(u >> 1) % 2], 4), v(Q[u % 2], 4)))
    def mfPV(u, j): a("v_mfma_f32_32x32x16_bf16 %s, %s, %s, %s" % (v(O[u % 2], 16), v(VF[(u >> 1) % 2] + 4 * j, 4), v(P + 4 * j, 4), v(O[u % 2], 16)))
    a("s_waitcnt vmcnt(2)")
    arrive(a, VCN, VONE, 0)
    spin(a, VCN, VP, 0, sT0, "8", "L_a_first")
    rdK(0); rdV(0); rdK(1)
    a("s_mov_b32 s%d, 0" % sCNT)
    a("s_mov_b32 s%d, 8" % sTGT)
    a("s_waitcnt lgkmcnt(3)")
    mfS(0)
    a.stamp(10)
    a.nop(10)
    a.label("L_at_loop")
    for u in range(8):
        Sx = S[u % 2]
        e = lambda i: a("v_exp_f32 v%d, v%d" % (Sx + i, Sx + i))
        cv = lambda i: a("v_cvt_pk_bf16_f32 v%d, v%d, v%d" % (P + i, Sx + 2 * i, Sx + 2 * i + 1))
        if u % 2 == 0: a("s_waitcnt lgkmcnt(0)")
        mfS(u + 1)
        e(0)
        if u == 4: a("v_readfirstlane_b32 s%d, v%d" % (sT0, VP))
        e(1)
        if u == 4:
            a("s_cmp_ge_u32 s%d, s%d" % (sT0, sTGT))
            a("s_cbranch_scc0 L_at_slow")
            a.label("L_at_back")
        e(2); e(3)
        mfPV(u - 1, 1)
        if u % 2 == 0:
            rdK(u // 2 + 2); rdV(u // 2 + 1)
        cv(0); e(4)
        if u == 3:
            a("ds_read_b32 v%d, v%d" % (VP, VCN))
            a("v_add_u32 v%d, 16384, v%d" % (KA, KA))
            a("v_and_b32 v%d, 0xffff, v%d" % (KA, KA))
        if u == 5:
            a("v_add_u32 v%d, 16384, v%d" % (VA, VA))
            a("v_and_b32 v%d, 0xffff, v%d" % (VA, VA))
            a("s_cmp_ge_u32 s%d, 5" % sCNT)
            a("s_cbranch_scc1 L_at_nodma")
            dma()
            a.label("L_at_nodma")
        if u == 6:
            a("s_waitcnt vmcnt(2)")
            a("s_cmp_ge_u32 s%d, 5" % sCNT)
            a("s_cbranch_scc0 L_at_w2")
            a("s_waitcnt vmcnt(0)")
            a.label("L_at_w2")
            arrive(a, VCN, VONE, 0)
        cv(1); e(5); e(6); e(7); cv(2); e(8); cv(3); e(9); e(10)
        mfPV(u, 0)
        e(11); e(12); cv(4); e(13); cv(5); e(14); e(15); cv(6)
        if u == 7:
            a("s_add_u32 s%d, s%d, 8" % (sTGT, sTGT))
            a("s_add_u32 s%d, s%d, 1" % (sCNT, sCNT))
            a("s_cmp_lt_u32 s%d, 8" % sCNT)
        cv(7)
    a("s_cbranch_scc1 L_at_loop")
    a.nop(1)
    mfPV(7, 1)
    a.stamp(11)
    a("s_lshl_b32 s%d, s%d, 12" % (sT0, sW))
    a("s_add_u32 s%d, s%d, 16384" % (sT0, sT0))
    a("v_add_u32 v10, s%d, v3" % sT0)
    a("v_xor_b32 v11, 0xc000, v10")
    a("s_and_b32 s%d, s%d, 3" % (sT1, sW))
    a("s_lshl_b32 s%d, s%d, 2" % (sT1, sT1))
    a("v_add_u32 v%d, s%d, v%d" % (VCN, sT1, VCN))
    a("s_mul_i32 s%d, s%d, %d" % (sT2, sQT, A2_TT))
    a("s_lshl_b32 s%d, s%d, 10" % (sT1, sHEAD))
    a("s_add_u32 s%d, s%d, s%d" % (sT2, sT2, sT1))
    a("s_add_u32 s%d, s%d, %d" % (sT2, sT2, A2_OFF))
    a("s_lshl_b32 s%d, s%d, 8" % (sT3, sQT))
    a("s_lshl_b32 s%d, s%d, 3" % (sT1, sHEAD))
    a("s_add_u32 s%d, s%d, s%d" % (sT3, sT3, sT1))
    a("s_add_u32 s%d, s%d, %d" % (sT3, sT3, FO_OFF))
    a("ds_write_b128 v10, %s" % v(O[1], 4))
    a("ds_write_b128 v10, %s offset:1024" % v(O[1] + 4, 4))
    a("ds_write_b32 v10, v%d offset:2048" % (O[1] + 8))
    a("s_waitcnt lgkmcnt(0)")
    arrive(a, VCN, VONE, 8)
    spin(a, VCN, VP, 8, sT0, "2", "L_a_pair")
    a("ds_read_b128 %s, v11" % v(S[0], 4))
    a("ds_read_b128 %s, v11 offset:1024" % v(S[0] + 4, 4))
    a("ds_read_b32 v%d, v11 offset:2048" % (S[0] + 8))
    a("s_waitcnt lgkmcnt(0)")
    for i in range(9): a("v_add_f32 v%d, v%d, v%d" % (O[0] + i, O[0] + i, S[0] + i))
    a("v_cmp_nle_f32 vcc, 0x21800000, v%d" % (O[0] + 8))
    a("s_nop 1")
    a("s_mov_b64 s[%d:%d], vcc" % (sVM + 4, sVM + 5))
    a("v_cmp_nge_f32 vcc, 0x5d800000, v%d" % (O[0] + 8))
    a("s_nop 1")
    a("s_or_b64 vcc, vcc, s[%d:%d]" % (sVM + 4, sVM + 5))
    a("s_cbranch_vccnz L_a_fallback")
    a.label("L_a_fin")
    a.stamp(12)
    a("v_rcp_f32 v10, v%d" % (O[0] + 8))
    a.nop(1)
    for i in range(8): a("v_mul_f32 v%d, v%d, v10" % (O[0] + i, O[0] + i))
    for i in range(4): a("v_cvt_pk_bf16_f32 v%d, v%d, v%d" % (P + i, O[0] + 2 * i, O[0] + 2 * i + 1))
    a("buffer_store_dwordx4 %s, v3, %s, s%d offen %s" % (v(P, 4), s(SWS, 4), sT2, SC))
    set_flag(a, sT3, 3)
    a.stamp(13)
    a.stamp_flush(0, SWS, sW, 12)
    a("s_endpgm")
    a.label("L_at_slow")
    spin(a, VCN, VP, 0, sT0, "s%d" % sTGT, "L_at_spin")
    a("s_branch L_at_back")
    a.label("L_a_fallback")
    C = O[1]; S0 = S[0]
    a("v_mov_b32 v10, 0xff800000")
    a("s_mov_b32 s%d, s%d" % (sT0, sKVB))
    a("s_mov_b32 s%d, 64" % sCNT)
    a.label("L_fb1")
    a("buffer_load_dwordx4 %s, v3, %s, s%d offen sc1" % (v(KF[0], 4), s(SWS, 4), sT0))
    a("s_waitcnt vmcnt(0)")
    a("v_mfma_f32_32x32x16_bf16 %s, %s, %s, 0" % (v(S0, 16), v(KF[0], 4), v(Q[0], 4)))
    a.nop(12)
    for i in range(0, 16, 2): a("v_max3_f32 v10, v10, v%d, v%d" % (S0 + i, S0 + i + 1))
    a("s_add_u32 s%d, s%d, 2048" % (sT0, sT0))
    a("s_sub_u32 s%d, s%d, 1" % (sCNT, sCNT))
    a("s_cmp_lg_u32 s%d, 0" % sCNT)
    a("s_cbranch_scc1 L_fb1")
    a("v_mov_b32 v11, v10")
    a.nop(2)
    a("v_permlane32_swap_b32 v10, v11")
    a("v_max_f32 v10, v10, v11")
    for i in range(16): a("v_sub_f32 v%d, 0, v10" % (C + i))
    for i in range(16): a("v_mov_b32 v%d, 0" % (O[0] + i))
    a("s_mov_b32 s%d, s%d" % (sT0, sKVB))
    a("s_mov_b32 s%d, 64" % sCNT)
    a.label("L_fb2")
    a("buffer_load_dwordx4 %s, v3, %s, s%d offen sc1" % (v(KF[0], 4), s(SWS, 4), sT0))
    a("s_mov_b64 exec, %s" % s(sVM, 2))
    a("buffer_load_dwordx4 %s, v116, %s, s%d offen offset:1024 sc1" % (v(VF[0], 4), s(SWS, 4), sT0))
    a("buffer_load_dwordx4 %s, v116, %s, s%d offen offset:1536 sc1" % (v(VF[0] + 4, 4), s(SWS, 4), sT0))
    a("s_mov_b64 exec, -1")
    a("s_waitcnt vmcnt(0)")
    a("v_mfma_f32_32x32x16_bf16 %s, %s, %s, %s" % (v(S0, 16), v(KF[0], 4), v(Q[0], 4), v(C, 16)))
    a.nop(12)
    for i in range(16): a("v_exp_f32 v%d, v%d" % (S0 + i, S0 + i))
    a.nop(1)
    for i in range(8): a("v_cvt_pk_bf16_f32 v%d, v%d, v%d" % (P + i, S0 + 2 * i, S0 + 2 * i + 1))
    a.nop(2)
    for j in range(2): a("v_mfma_f32_32x32x16_bf16 %s, %s, %s, %s" % (v(O[0], 16), v(VF[0] + 4 * j, 4), v(P + 4 * j, 4), v(O[0], 16)))
    a("s_add_u32 s%d, s%d, 2048" % (sT0, sT0))
    a("s_sub_u32 s%d, s%d, 1" % (sCNT, sCNT))
    a("s_cmp_lg_u32 s%d, 0" % sCNT)
    a("s_cbranch_scc1 L_fb2")
    a.nop(12)
    a("s_branch L_a_fin")

def role_f(a):
    sF = 47
    a("s_sub_u32 s%d, s%d, 8" % (sF, sW))
    srd(a, SA, P_WQKV, 512 * 3072)
    p1_ids(a)
    sWO, sM0, sKD = 48, 49, 50
    a("v_lshrrev_b32 v6, 3, v2")
    a("v_and_b32 v7, 7, v2")
    a("v_lshlrev_b32 v8, 1, v6")
    a("v_and_b32 v8, 4, v8")
    a("v_xor_b32 v7, v7, v8")
    a("v_mul_u32_u24 v8, 3072, v6")
    a("v_lshl_add_u32 v8, v7, 4, v8")
    a("s_mul_i32 s%d, s%d, %d" % (sWO, sF, 16 * 3072))
    a("s_lshl_b32 s%d, s%d, 7" % (sT0, sNG))
    a("s_add_u32 s%d, s%d, s%d" % (sWO, sWO, sT0))
    a("s_mul_i32 s%d, s%d, 6144" % (sM0, sF))
    a("s_add_u32 s%d, s%d, %d" % (sM0, sM0, LDS_W1))
    a("s_mov_b32 s%d, s%d" % (sKD, sROT))
    def dma1(i):
        slot = i % 4
        a("s_mul_i32 s%d, s%d, %d" % (sT2, sKD, 64 * 3072))
        a("s_add_u32 s%d, s%d, s%d" % (sT2, sT2, sWO))
        for hh in range(2):
            a("s_add_u32 m0, s%d, %d" % (sM0, slot * 24576 + hh * 3072))
            if hh: a("s_add_u32 s%d, s%d, %d" % (sT2, sT2, 8 * 3072))
            else: a("s_add_u32 s%d, s%d, 1" % (sKD, sKD))
            for m in range(3):
                a.vmem("buffer_load_dwordx4 v8, %s, s%d offen offset:%d lds" % (s(SA, 4), sT2, m * 1024), "w%d" % i)
        a("s_and_b32 s%d, s%d, 7" % (sKD, sKD))
    a("s_barrier")
    a.stamp(1)
    for i in range(4): dma1(i)
    a.stamp(2)
    p1_addrs(a)
    def pre(i): a.wait_vm("w%d" % i, "lgkmcnt(0)")
    def post(i):
        if i >= 1 and i + 3 < 8: dma1(i + 3)
    p1_gemm(a, True, pre, post)
    p1_tile_ids(a)
    sD0, sFQ = 51, 52
    a("s_lshl_b32 s%d, s%d, 17" % (sD0, sT0))
    a("s_lshl_b32 s%d, s%d, 11" % (sT2, sT1))
    a("s_add_u32 s%d, s%d, s%d" % (sD0, sD0, sT2))
    a("s_add_u32 s%d, s%d, %d" % (sD0, sD0, KV_OFF))
    a("s_add_u32 s%d, s%d, 64" % (sFQ, sT3))
    a("v_and_b32 v27, 16, v2")
    a("v_lshlrev_b32 v27, 13, v27")
    a("v_lshl_add_u32 v27, v14, 8, v27")
    a("v_and_b32 v28, 15, v2")
    a("v_lshl_add_u32 v27, v28, 4, v27")
    a("s_barrier")
    for i in range(8): a("v_cvt_pk_bf16_f32 v%d, v%d, v%d" % (64 + i, ACC1 + 2 * i, ACC1 + 2 * i + 1))
    a("buffer_store_dwordx4 v[64:67], v27, %s, s%d offen offset:1024 %s" % (s(SWS, 4), sD0, SC))
    a("buffer_store_dwordx4 v[68:71], v27, %s, s%d offen offset:1536 %s" % (s(SWS, 4), sD0, SC))
    sMT1, sNJ, sXO, sWO, sM0, sKC1, sIT, sTGT, sSLW, sSLR, sKX, sXC = 43, 44, 45, 48, 49, 46, 50, 51, 53, 54, 55, 56
    sEX = 58
    a("s_lshr_b32 s%d, s%d, 2" % (sMT1, sXCD))
    a("s_lshl_b32 s%d, s%d, 3" % (sMT1, sMT1))
    a("s_and_b32 s%d, s%d, 7" % (sKC1, sJ))
    a("s_add_u32 s%d, s%d, s%d" % (sMT1, sMT1, sKC1))
    a("s_and_b32 s%d, s%d, 3" % (sNJ, sXCD))
    a("s_lshl_b32 s%d, s%d, 2" % (sNJ, sNJ))
    a("s_lshr_b32 s%d, s%d, 3" % (sT2, sJ))
    a("s_add_u32 s%d, s%d, s%d" % (sNJ, sNJ, sT2))
    a("s_lshl_b32 s%d, s%d, 1" % (sT2, sT2))
    a("s_add_u32 s%d, s%d, s%d" % (sKC1, sKC1, sT2))
    a("s_and_b32 s%d, s%d, 7" % (sKC1, sKC1))
    a("s_mov_b32 s%d, s%d" % (sKX, sKC1))
    a("v_mul_u32_u24 v5, 4682, v2")
    a("v_lshrrev_b32 v5, 16, v5")
    a("v_mul_u32_u24 v5, %d, v5" % (3584 - 224))
    a("v_add_u32 v4, v5, v3")
    a("s_lshl_b32 s%d, s%d, 2" % (sT0, sMT1))
    a("s_add_u32 s%d, s%d, s%d" % (sT0, sT0, sF))
    a("s_lshl_b32 s%d, s%d, 15" % (sXO, sT0))
    a("s_lshl_b32 s%d, s%d, 8" % (sT3, sT0))
    a("s_add_u32 s%d, s%d, %d" % (sT3, sT3, FX_OFF))
    a("s_and_b32 s%d, s%d, 1" % (sT1, sF))
    a("s_mul_i32 s%d, s%d, %d" % (sWO, sT1, 32 * 3584))
    a("s_mul_i32 s%d, s%d, 224" % (sT2, sNJ))
    a("s_add_u32 s%d, s%d, s%d" % (sWO, sWO, sT2))
    a("s_mul_i32 s%d, s%d, 7168" % (sM0, sT1))
    a("s_lshr_b32 s%d, s%d, 1" % (sT2, sF))
    a("s_mul_i32 s%d, s%d, %d" % (sT2, sT2, UPOFF))
    a("s_add_u32 s%d, s%d, s%d" % (sM0, sM0, sT2))
    a("s_add_u32 s%d, s%d, %d" % (sM0, sM0, LDS_F))
    a("s_cmp_ge_u32 s%d, 2" % sF)
    a("s_cselect_b32 s%d, s%d, s%d" % (P_WG, P_WU, P_WG))
    a("s_cselect_b32 s%d, s%d, s%d" % (P_WG + 1, P_WU + 1, P_WG + 1))
    srd(a, SA, P_WG, 512 * 3584)
    srd(a, SB, P_WS, WS_BYTES)
    a("s_mov_b32 s%d, -1" % sEX)
    a("s_mov_b32 s%d, 0x00ffffff" % (sEX + 1))
    a("s_mov_b32 s%d, 0" % sSLW)
    def dma(guard=None):
        a("s_mul_i32 s%d, s%d, %d" % (sT0, sKC1, 64 * 3584))
        a("s_add_u32 s%d, s%d, s%d" % (sT0, sT0, sWO))
        if guard is not None:
            a("s_cmp_lt_u32 s%d, %d" % (sIT, guard))
            a("s_cselect_b32 s%d, s%d, 0" % (SA + 2, SA + 2))
        a("s_add_u32 s%d, s%d, s%d" % (sT1, sM0, sSLW))
        a("s_mov_b64 exec, %s" % s(sEX, 2))
        for i in range(8):
            a("s_add_u32 m0, s%d, %d" % (sT1, i * 896))
            if i: a("s_add_u32 s%d, s%d, %d" % (sT0, sT0, 4 * 3584))
            else: a("s_nop 0")
            a("buffer_load_dwordx4 v4, %s, s%d offen lds" % (s(SA, 4), sT0))
        a("s_mov_b64 exec, -1")
        a("s_add_u32 s%d, s%d, 1" % (sKC1, sKC1))
        a("s_and_b32 s%d, s%d, 7" % (sKC1, sKC1))
        a("s_add_u32 s%d, s%d, %d" % (sSLW, sSLW, FSLOT))
        a("s_cmp_eq_u32 s%d, %d" % (sSLW, FNS * FSLOT))
        a("s_cselect_b32 s%d, 0, s%d" % (sSLW, sSLW))
    XR = 8; FB = [24, 40]; ACC = 52
    TA0, TA, VCN, VONE = 5, 6, 164, 1
    def xoff(guard=None):
        a("s_lshl_b32 s%d, s%d, 12" % (sXC, sKX))
        a("s_add_u32 s%d, s%d, s%d" % (sXC, sXC, sXO))
        if guard is not None:
            a("s_cmp_lt_u32 s%d, %d" % (sIT, guard))
            a("s_cselect_b32 s%d, s%d, 0" % (SB + 2, SB + 2))
        a("s_add_u32 s%d, s%d, 1" % (sKX, sKX))
        a("s_and_b32 s%d, s%d, 7" % (sKX, sKX))
    def xld(i): a("buffer_load_dwordx4 %s, v3, %s, s%d offen offset:%d sc1" % (v(XR + 4 * i, 4), s(SB, 4), sXC, i * 1024))
    a("v_bfe_u32 v5, v2, 2, 2")
    a("v_lshl_add_u32 v5, v14, 3, v5")
    a("v_mul_u32_u24 v5, 224, v5")
    a("v_and_b32 v6, 3, v2")
    a("v_lshl_add_u32 v5, v6, 3, v5")
    a("v_bfe_u32 v6, v2, 4, 1")
    a("v_mul_u32_u24 v6, %d, v6" % UPOFF)
    a("v_add_u32 v5, v5, v6")
    a("v_add_u32 v%d, %d, v5" % (TA0, LDS_F))
    a("v_mov_b32 v%d, v%d" % (TA, TA0))
    a("v_mov_b32 v%d, %d" % (VCN, LDS_CNT))
    a("v_mov_b32 v%d, 1" % VONE)
    a("v_lshlrev_b32 v165, 3, v2")
    set_flag(a, sFQ, 3)
    a.stamp(7)
    poll(a, 165, sT3, 32, 8, "L_f_pollx")
    a.stamp(8)
    dma(); dma()
    xoff()
    for i in range(4): xld(i)
    for i in range(112): a("v_mov_b32 v%d, 0" % (ACC + i))
    a("s_mov_b32 s%d, 0" % sIT)
    a("s_mov_b32 s%d, 0" % sSLR)
    a("s_mov_b32 s%d, 4" % sTGT)
    a("s_setprio 2")
    def tiles(hf): return range(0, 4) if hf == 0 else range(4, 7)
    def reads(u):
        s4, hf = u // 2, u % 2
        n = 0
        for t in tiles(hf):
            for sec in range(2):
                a("ds_read_b64_tr_b16 %s, v%d offset:%d" % (v(FB[hf] + (t % 4) * 4 + sec * 2, 2), TA, s4 * 3584 + sec * 896 + t * 32))
                n += 1
        return n
    a("s_waitcnt vmcnt(12)")
    arrive(a, VCN, VONE, 4)
    a.stamp(9)
    a.label("L_f_loop")
    spin(a, VCN, 0, 4, sT0, "s%d" % sTGT, "L_f_spin")
    reads(0)
    dma(6)
    xoff(7)
    for u in range(8):
        s4, hf = u // 2, u % 2
        if u < 7:
            n = reads(u + 1)
            a("s_waitcnt lgkmcnt(%d)%s" % (n, " vmcnt(11)" if hf == 0 else ""))
        else:
            a("s_waitcnt lgkmcnt(0)")
            arrive(a, VCN, VONE, 4)
            a("s_add_u32 s%d, s%d, %d" % (sSLR, sSLR, FSLOT))
            a("s_cmp_eq_u32 s%d, %d" % (sSLR, FNS * FSLOT))
            a("s_cselect_b32 s%d, 0, s%d" % (sSLR, sSLR))
            a("v_add_u32 v%d, s%d, v%d" % (TA, sSLR, TA0))
        for t in tiles(hf):
            a("v_mfma_f32_32x32x16_bf16 %s, %s, %s, %s" % (v(ACC + 16 * t, 16), v(FB[hf] + (t % 4) * 4, 4), v(XR + 4 * s4, 4), v(ACC + 16 * t, 16)))
        if hf == 1: xld(s4)
    a("s_add_u32 s%d, s%d, 4" % (sTGT, sTGT))
    a("s_add_u32 s%d, s%d, 1" % (sIT, sIT))
    a("s_cmp_lt_u32 s%d, 8" % sIT)
    a("s_cbranch_scc1 L_f_loop")
    a.stamp(10)
    sH0, sH1, sFH = 48, 49, 50
    a("s_lshr_b32 s%d, s%d, 15" % (sT2, sXO))
    a("s_mul_i32 s%d, s%d, %d" % (sH0, sT2, A2_TT))
    a("s_mul_i32 s%d, s%d, 7168" % (sT1, sNJ))
    a("s_add_u32 s%d, s%d, s%d" % (sH0, sH0, sT1))
    a("s_add_u32 s%d, s%d, %d" % (sH0, sH0, A2_OFF + 32 * 1024))
    a("s_add_u32 s%d, s%d, 4096" % (sH1, sH0))
    a("s_lshl_b32 s%d, s%d, 7" % (sFH, sT2))
    a("s_lshl_b32 s%d, s%d, 3" % (sT1, sNJ))
    a("s_add_u32 s%d, s%d, s%d" % (sFH, sFH, sT1))
    a("s_add_u32 s%d, s%d, %d" % (sFH, sFH, FH_OFF))
    a("s_waitcnt vmcnt(0)")
    arrive(a, VCN, VONE, 4)
    sMT2, sNT, sWB, sA0, sA1, sGW, sGA, sLB = 43, 44, 45, 46, 53, 54, 55, 56
    a("s_lshl_b32 s%d, s%d, 2" % (sMT2, sXCD))
    a("s_and_b32 s%d, s%d, 3" % (sT2, sJ))
    a("s_add_u32 s%d, s%d, s%d" % (sMT2, sMT2, sT2))
    a("s_lshr_b32 s%d, s%d, 2" % (sNT, sJ))
    srd(a, SA, P_WD, 1792 * 1024)
    srd(a, SB, P_WO, 512 * 1024)
    a("v_lshrrev_b32 v8, 3, v2")
    a("v_lshlrev_b32 v8, 10, v8")
    a("v_lshl_add_u32 v8, v7, 4, v8")
    for i in range(1, 4): a("v_add_u32 v%d, %d, v8" % (8 + i, i * 7168))
    a("s_lshl_b32 s%d, s%d, 7" % (sWB, sNT))
    a("s_mul_i32 s%d, s%d, %d" % (sLB, sF, F2REG))
    a("s_add_u32 s%d, s%d, %d" % (sLB, sLB, LDS_F))
    a("s_mul_i32 s%d, s%d, 3" % (sGW, sT2))
    a("s_add_u32 s%d, s%d, s%d" % (sGW, sGW, sNT))
    a("s_sub_u32 s%d, s%d, 14" % (sT2, sGW))
    a("s_cmp_ge_u32 s%d, 14" % sGW)
    a("s_cselect_b32 s%d, s%d, s%d" % (sGW, sT2, sGW))
    a("s_mov_b32 s%d, s%d" % (sGA, sGW))
    a("s_lshl_b32 s%d, s%d, 1" % (sT0, sMT2))
    a("s_and_b32 s%d, s%d, 1" % (sT1, sF))
    a("s_add_u32 s%d, s%d, s%d" % (sT1, sT0, sT1))
    a("s_mul_i32 s%d, s%d, %d" % (sA0, sT1, A2_TT))
    a("s_xor_b32 s%d, s%d, 1" % (sT1, sT1))
    a("s_mul_i32 s%d, s%d, %d" % (sA1, sT1, A2_TT))
    a("s_add_u32 s%d, s%d, %d" % (sA0, sA0, A2_OFF))
    a("s_add_u32 s%d, s%d, %d" % (sA1, sA1, A2_OFF))
    a.vm = []
    def adv(sg):
        a("s_add_u32 s%d, s%d, 1" % (sg, sg))
        a("s_cmp_eq_u32 s%d, 14" % sg)
        a("s_cselect_b32 s%d, 0, s%d" % (sg, sg))
    def w2(g):
        a("s_add_u32 m0, s%d, %d" % (sLB, (g % 5) * 4096))
        if g < 14:
            a("s_mul_i32 s%d, s%d, 14" % (sT0, sF))
            a("s_add_u32 s%d, s%d, s%d" % (sT0, sT0, sGW))
            a("s_lshl_b32 s%d, s%d, 15" % (sT0, sT0))
            adv(sGW); sr = SA
        else:
            a("s_lshl_b32 s%d, s%d, 17" % (sT0, sF))
            a("s_add_u32 s%d, s%d, %d" % (sT0, sT0, (g - 14) * 32768)); sr = SB
        a("s_add_u32 s%d, s%d, s%d" % (sT0, sT0, sWB))
        for i in range(4):
            a.vmem("buffer_load_dwordx4 v%d, %s, s%d offen offset:%d lds" % (8 + i, s(sr, 4), sT0, i * 1024), "W%d" % g)
    AB = 96
    def a2(g):
        if g < 14:
            a("s_mul_i32 s%d, s%d, 14" % (sT0, sF))
            a("s_add_u32 s%d, s%d, s%d" % (sT0, sT0, sGA))
            a("s_lshl_b32 s%d, s%d, 11" % (sT0, sT0))
            a("s_add_u32 s%d, s%d, 32768" % (sT0, sT0))
            adv(sGA)
        else:
            a("s_lshl_b32 s%d, s%d, 13" % (sT0, sF))
            a("s_add_u32 s%d, s%d, %d" % (sT0, sT0, (g - 14) * 2048))
        a("s_add_u32 s%d, s%d, s%d" % (sT1, sT0, sA1))
        a("s_add_u32 s%d, s%d, s%d" % (sT0, sT0, sA0))
        for ks in range(2):
            for tb in range(2):
                a.vmem("buffer_load_dwordx4 %s, v3, %s, s%d offen offset:%d sc1" % (v(AB + (g % 4) * 16 + ks * 8 + tb * 4, 4), s(SWS, 4), sT0 + tb, ks * 1024), "A%d" % g)
    a("s_add_u32 s%d, s%d, 4" % (sTGT, sTGT))
    spin(a, VCN, 0, 4, sT0, "s%d" % sTGT, "L_f_spin2")
    for g in range(4): w2(g)
    a("v_mov_b32 v4, 0x%x" % f2u(C1))
    for t in range(7):
        G = ACC + 16 * t; U = G + 8; T = 24 + (t % 2) * 12
        for i in range(8): a("v_mul_f32 v%d, v%d, v%d" % (T + i, G + i, G + i))
        for i in range(8): a("v_fmamk_f32 v%d, v%d, 0x%x, v4" % (T + i, T + i, f2u(C2)))
        for i in range(8): a("v_mul_f32 v%d, v%d, v%d" % (T + i, T + i, G + i))
        for i in range(8): a("v_exp_f32 v%d, v%d" % (T + i, T + i))
        for i in range(8): a("v_mul_f32 v%d, v%d, v%d" % (G + i, G + i, U + i))
        for i in range(8): a("v_add_f32 v%d, 1.0, v%d" % (T + i, T + i))
        for i in range(8): a("v_rcp_f32 v%d, v%d" % (T + i, T + i))
        a.nop(1)
        for i in range(8): a("v_mul_f32 v%d, v%d, v%d" % (G + i, G + i, T + i))
        for i in range(4): a("v_cvt_pk_bf16_f32 v%d, v%d, v%d" % (T + 8 + i, G + 2 * i, G + 2 * i + 1))
        a("buffer_store_dwordx4 %s, v3, %s, s%d offen offset:%d %s" % (v(T + 8, 4), s(SWS, 4), sH0 if t < 4 else sH1, (t % 4) * 1024, SC))
    a("v_lshrrev_b32 v14, 5, v2")
    a("v_bfe_u32 v4, v2, 2, 2")
    a("v_and_b32 v5, 1, v2")
    a("v_lshlrev_b32 v5, 4, v5")
    a("v_and_b32 v6, 2, v2")
    a("v_lshl_add_u32 v5, v6, 2, v5")
    a("v_and_b32 v6, 16, v2")
    a("v_lshl_add_u32 v5, v6, 1, v5")
    a("s_and_b32 s%d, s%d, 2" % (sT2, sF))
    a("s_lshl_b32 s%d, s%d, 5" % (sT2, sT2))
    a("v_add_u32 v5, s%d, v5" % sT2)
    a("v_lshlrev_b32 v6, 5, v4")
    a("v_and_b32 v6, 64, v6")
    a("v_xor_b32 v5, v5, v6")
    a("v_lshl_add_u32 v4, v14, 2, v4")
    a("v_lshl_add_u32 v5, v4, 7, v5")
    a("v_xor_b32 v6, 64, v5")
    a("v_add_u32 v12, s%d, v5" % sLB)
    a("v_add_u32 v13, s%d, v6" % sLB)
    a("v_lshrrev_b32 v4, 2, v2")
    a("v_and_b32 v5, 3, v2")
    a("v_lshlrev_b32 v5, 3, v5")
    a("v_lshl_add_u32 v15, v4, 7, v5")
    a("s_lshl_b32 s%d, s%d, 8" % (sT3, sMT2))
    a("s_lshl_b32 s%d, s%d, 5" % (sT2, sF))
    a("s_add_u32 s%d, s%d, s%d" % (sT3, sT3, sT2))
    a("s_add_u32 s%d, s%d, %d" % (sT3, sT3, FH_OFF))
    set_flag(a, sFH, 3)
    a.stamp(11)
    poll(a, 15, sT3, 8, 16, "L_f_pollh")
    a.stamp(12)
    a.vm = []
    ACC2 = 32
    WF = 16
    def rd2(g, ks):
        for ci in range(2):
            for sec in range(2):
                a("ds_read_b64_tr_b16 %s, v%d offset:%d" % (v(WF + ks * 8 + ci * 4 + sec * 2, 2), 12 + ci, (g % 5) * 4096 + ks * 2048 + sec * 1024))
    def comp(g):
        rd2(g, 0); rd2(g, 1)
        for ks in range(2):
            a("s_waitcnt lgkmcnt(%d)" % (4 if ks == 0 else 0))
            for ci in range(2):
                for ti in range(2):
                    d = v(ACC2 + (ci * 2 + ti) * 16, 16)
                    a("v_mfma_f32_32x32x16_bf16 %s, %s, %s, %s" % (d, v(WF + ks * 8 + ci * 4, 4), v(AB + (g % 4) * 16 + ks * 8 + ti * 4, 4), "0" if (g == 0 and ks == 0) else d))
    for g in range(3): a2(g)
    for g in range(14):
        if g + 3 < 14: a2(g + 3)
        w2(g + 4)
        a.wait_vm("A%d" % g)
        if a.vm_count_after("W%d" % g) is not None: a.wait_vm("W%d" % g)
        comp(g)
    srd(a, SA, P_X, 2 * MB)
    srd(a, SB, P_OUT, 2 * MB)
    sXS = 48
    a("s_lshl_b32 s%d, s%d, 1" % (sT0, sMT2))
    a("s_and_b32 s%d, s%d, 1" % (sT1, sF))
    a("s_add_u32 s%d, s%d, s%d" % (sT0, sT0, sT1))
    a("s_lshl_b32 s%d, s%d, 15" % (sXS, sT0))
    a("s_add_u32 s%d, s%d, s%d" % (sXS, sXS, sWB))
    a("s_and_b32 s%d, s%d, 2" % (sT2, sF))
    a("s_lshl_b32 s%d, s%d, 5" % (sT2, sT2))
    a("s_add_u32 s%d, s%d, s%d" % (sXS, sXS, sT2))
    a("v_and_b32 v4, 31, v2")
    a("v_lshlrev_b32 v4, 10, v4")
    a("v_lshl_add_u32 v4, v14, 4, v4")
    a("buffer_load_dwordx4 v[8:11], v4, %s, s%d offen" % (s(SA, 4), sXS))
    a("buffer_load_dwordx4 v[160:163], v4, %s, s%d offen offset:32" % (s(SA, 4), sXS))
    a("v_lshrrev_b32 v5, 3, v2")
    a("v_and_b32 v6, 7, v2")
    a("v_lshlrev_b32 v6, 3, v6")
    a("v_lshl_add_u32 v15, v5, 8, v6")
    a("s_lshl_b32 s%d, s%d, 9" % (sT3, sMT2))
    a("s_lshl_b32 s%d, s%d, 6" % (sT2, sF))
    a("s_add_u32 s%d, s%d, s%d" % (sT3, sT3, sT2))
    a("s_add_u32 s%d, s%d, %d" % (sT3, sT3, FO_OFF))
    a("s_setprio 0")
    a.stamp(13)
    poll(a, 15, sT3, 16, 16, "L_f_pollo")
    a.stamp(14)
    a.vm = []
    for g in range(14, 18): a2(g)
    for g in range(14, 18):
        a.wait_vm("A%d" % g)
        comp(g)
    a("v_add_u32 v5, s%d, v3" % sLB)
    for sl in range(1, 4):
        a("s_xor_b32 s%d, s%d, %d" % (sT0, sF, sl))
        a("s_mul_i32 s%d, s%d, %d" % (sT0, sT0, F2REG))
        a("s_add_u32 s%d, s%d, %d" % (sT0, sT0, LDS_F + (sl - 1) * 4096))
        a("v_add_u32 v%d, s%d, v3" % (15 + sl, sT0))
    a.nop(2)
    for sl in range(1, 4):
        for q in range(4):
            a("ds_write_b128 v5, %s offset:%d" % (v(ACC2 + sl * 16 + 4 * q, 4), (sl - 1) * 4096 + q * 1024))
    a("s_waitcnt lgkmcnt(0)")
    arrive(a, VCN, VONE, 4)
    a("s_add_u32 s%d, s%d, 4" % (sTGT, sTGT))
    for i in range(4):
        a("v_lshlrev_b32 v%d, 16, v%d" % (96 + 2 * i, 8 + i))
        a("v_and_b32 v%d, 0xffff0000, v%d" % (97 + 2 * i, 8 + i))
        a("v_lshlrev_b32 v%d, 16, v%d" % (104 + 2 * i, 160 + i))
        a("v_and_b32 v%d, 0xffff0000, v%d" % (105 + 2 * i, 160 + i))
    for i in range(16): a("v_add_f32 v%d, v%d, v%d" % (ACC2 + i, ACC2 + i, 96 + i))
    spin(a, VCN, 0, 4, sT0, "s%d" % sTGT, "L_f_spin3")
    for sl in range(1, 4):
        for q in range(4):
            a("ds_read_b128 %s, v%d offset:%d" % (v(ACC2 + sl * 16 + 4 * q, 4), 15 + sl, q * 1024))
    for sl in range(1, 4):
        a("s_waitcnt lgkmcnt(%d)" % (12 - 4 * sl))
        for i in range(16): a("v_add_f32 v%d, v%d, v%d" % (ACC2 + i, ACC2 + i, ACC2 + 16 * sl + i))
    for i in range(8): a("v_cvt_pk_bf16_f32 v%d, v%d, v%d" % (96 + i, ACC2 + 2 * i, ACC2 + 2 * i + 1))
    a("buffer_store_dwordx4 v[96:99], v4, %s, s%d offen" % (s(SB, 4), sXS))
    a("buffer_store_dwordx4 v[100:103], v4, %s, s%d offen offset:32" % (s(SB, 4), sXS))
    a("s_add_u32 s%d, s2, s%d" % (sT0, sF))
    a("s_cmp_lg_u32 s%d, 0" % sT0)
    a("s_cbranch_scc1 L_f_noep")
    a("s_mov_b32 s%d, %d" % (sT0, EPOCH_OFF))
    a("s_mov_b64 exec, 1")
    a("buffer_store_dword v%d, v3, %s, s%d offen" % (VTAG, s(SWS, 4), sT0))
    a("s_mov_b64 exec, -1")
    a.label("L_f_noep")
    a.stamp_flush(0, SWS, sW, 12)
    a("s_endpgm")

def gen_all(name):
    a = Asm()
    a("s_cmp_ge_u32 s2, 256")
    a("s_cbranch_scc1 L_end")
    a.stamp(0)
    a("s_load_dwordx16 s[4:19], s[0:1], 0")
    a("s_load_dwordx4 s[20:23], s[0:1], 64")
    a("v_lshrrev_b32 v1, 6, v0")
    a("v_and_b32 v2, 63, v0")
    a("v_readfirstlane_b32 s%d, v1" % sW)
    a("v_lshlrev_b32 v3, 4, v2")
    a("s_and_b32 s%d, s2, 7" % sXCD)
    a("s_lshr_b32 s%d, s2, 3" % sJ)
    a("s_waitcnt lgkmcnt(0)")
    a("s_add_u32 s62, s%d, %d" % (P_WS, EPOCH_OFF))
    a("s_addc_u32 s63, s%d, 0" % (P_WS + 1))
    a("s_load_dword s%d, s[62:63], 0" % sTAG)
    srd(a, SWS, P_WS, WS_BYTES)
    a("s_cmp_ge_u32 s%d, 8" % sW)
    a("s_cbranch_scc1 L_role_f")
    return a

def tagsetup(a):
    a("s_waitcnt lgkmcnt(0)")
    a("s_add_u32 s%d, s%d, 1" % (sTAG, sTAG))
    a("s_xor_b32 s%d, s%d, 0x%x" % (sTAG + 1, sTAG, TAGX))
    a("v_mov_b32 v%d, s%d" % (VTAG, sTAG))
    a("v_mov_b32 v%d, s%d" % (VTAG + 1, sTAG + 1))

def gen_kernel(name):
    a = gen_all(name)
    global p1_addrs
    orig = p1_addrs
    def wrapped(x):
        orig(x); tagsetup(x)
    p1_addrs = wrapped
    role_a(a)
    a.label("L_role_f")
    a.vm = []
    role_f(a)
    p1_addrs = orig
    a.label("L_end")
    a("s_endpgm")
    return dict(name=name, asm=a, vgpr=168, grid=(256, 1, 1), block=(768, 1, 1), lds=LDS_TOTAL)
```

```python
from common import *
from layout import *
import struct
def f2u(x): return struct.unpack("<I", struct.pack("<f", x))[0]
import math
C1 = -2.0 * math.log2(math.e) * math.sqrt(2.0 / math.pi)
C2 = C1 * 0.044715

def gen_gu(name="gu_kernel"):
    a = Asm()
    NSLOT = 4; SLOT = 28800; UPOFF = 14464
    SWW, SWS = 12, 16
    sMT, sNJ, sW, sT0, sT1, sT2 = 24, 25, 26, 27, 28, 29
    sXO, sWO, sM0 = 30, 31, 32
    a("s_cmp_ge_u32 s2, 256")
    a("s_cbranch_scc1 L_gu_end")
    a.stamp(0)
    a("s_load_dwordx4 s[4:7], s[0:1], %d" % KA_WG)
    a("s_load_dwordx2 s[8:9], s[0:1], %d" % KA_WS)
    a("v_lshrrev_b32 v1, 6, v0")
    a("v_and_b32 v2, 63, v0")
    a("v_readfirstlane_b32 s%d, v1" % sW)
    a("s_and_b32 s%d, s2, 7" % sT0)
    a("s_lshr_b32 s%d, s2, 3" % sT1)
    a("s_lshr_b32 s%d, s%d, 2" % (sMT, sT0))
    a("s_lshl_b32 s%d, s%d, 3" % (sMT, sMT))
    a("s_and_b32 s%d, s%d, 7" % (sT2, sT1))
    a("s_add_u32 s%d, s%d, s%d" % (sMT, sMT, sT2))
    a("s_and_b32 s%d, s%d, 3" % (sNJ, sT0))
    a("s_lshl_b32 s%d, s%d, 2" % (sNJ, sNJ))
    a("s_lshr_b32 s%d, s%d, 3" % (sT2, sT1))
    a("s_add_u32 s%d, s%d, s%d" % (sNJ, sNJ, sT2))
    a("v_lshlrev_b32 v3, 4, v2")
    for i in range(7):
        a("v_add_u32 v4, %d, v2" % (64 * i))
        a("v_mul_u32_u24 v5, 4682, v4")
        a("v_lshrrev_b32 v5, 16, v5")
        a("v_mul_u32_u24 v6, %d, v5" % (3584 - 224))
        a("v_lshl_add_u32 v6, v4, 4, v6")
        a("v_subrev_u32 v%d, %d, v6" % (8 + i, (i % 4) * 1024))
    a("s_lshl_b32 s%d, s%d, 2" % (sT0, sMT))
    a("s_add_u32 s%d, s%d, s%d" % (sT0, sT0, sW))
    a("s_lshl_b32 s%d, s%d, 15" % (sXO, sT0))
    a("s_and_b32 s%d, s%d, 1" % (sT1, sW))
    a("s_mul_i32 s%d, s%d, %d" % (sWO, sT1, 32 * 3584))
    a("s_mul_i32 s%d, s%d, 224" % (sT2, sNJ))
    a("s_add_u32 s%d, s%d, s%d" % (sWO, sWO, sT2))
    a("s_mul_i32 s%d, s%d, 7168" % (sM0, sT1))
    a("s_lshr_b32 s%d, s%d, 1" % (sT2, sW))
    a("s_mul_i32 s%d, s%d, %d" % (sT2, sT2, UPOFF))
    a("s_add_u32 s%d, s%d, s%d" % (sM0, sM0, sT2))
    a("s_waitcnt lgkmcnt(0)")
    a("s_cmp_ge_u32 s%d, 2" % sW)
    a("s_cselect_b32 s4, s6, s4")
    a("s_cselect_b32 s5, s7, s5")
    srd(a, SWW, 4, 512 * 3584); srd(a, SWS, 8, WS_BYTES)
    def dma_chunk(kc):
        slot = kc % NSLOT
        a("s_add_u32 s%d, s%d, %d" % (sT0, sWO, kc * 64 * 3584))
        for i in range(7):
            if i % 4 == 0:
                a("s_add_u32 m0, s%d, %d" % (sM0, slot * SLOT + i * 1024))
                a.nop(1)
            a.vmem("buffer_load_dwordx4 v%d, %s, s%d offen offset:%d lds" % (8 + i, s(SWW, 4), sT0, (i % 4) * 1024), "w%d" % kc)
    XR = 32
    def x_chunk(kc):
        a("s_add_u32 s%d, s%d, %d" % (sT1, sXO, kc * 4096))
        for i in range(4):
            a.vmem("buffer_load_dwordx4 %s, v3, %s, s%d offen offset:%d" % (v(XR + (kc % NSLOT) * 16 + 4 * i, 4), s(SWS, 4), sT1, i * 1024), "w%d" % kc)
    for kc in range(NSLOT):
        x_chunk(kc); dma_chunk(kc)
    a("v_bfe_u32 v4, v2, 2, 2")
    a("v_lshrrev_b32 v5, 5, v2")
    a("v_lshl_add_u32 v4, v5, 3, v4")
    a("v_mul_u32_u24 v4, 224, v4")
    a("v_and_b32 v5, 3, v2")
    a("v_lshl_add_u32 v4, v5, 3, v4")
    a("v_bfe_u32 v5, v2, 4, 1")
    a("v_mul_u32_u24 v5, %d, v5" % UPOFF)
    a("v_add_u32 v16, v4, v5")
    a("v_add_u32 v17, %d, v16" % (2 * SLOT))
    ACC = 128
    FB = [96, 112]
    units = [(sg, hf) for sg in range(32) for hf in range(2)]
    def tiles(hf): return range(0, 4) if hf == 0 else range(4, 7)
    def reads(u):
        sg, hf = units[u]
        kc, s4 = sg // 4, sg % 4
        slot = kc % NSLOT
        n = 0
        for t in tiles(hf):
            for sec in range(2):
                a("ds_read_b64_tr_b16 %s, v%d offset:%d" % (v(FB[hf] + (t % 4) * 4 + sec * 2, 2), 16 + (slot >> 1), (slot & 1) * SLOT + s4 * 3584 + sec * 896 + t * 32))
                n += 1
        return n
    a.stamp(1)
    a.wait_vm("w0")
    a("s_barrier")
    a.stamp(2)
    reads(0)
    for u in range(64):
        sg, hf = units[u]; kc = sg // 4
        if u + 1 < 64:
            if (u + 1) % 8 == 0:
                a.wait_vm("w%d" % (kc + 1), "lgkmcnt(0)")
                a("s_barrier")
                reads(u + 1)
                if kc + NSLOT < 8: dma_chunk(kc + NSLOT)
            else:
                n = reads(u + 1)
                a("s_waitcnt lgkmcnt(%d)" % n)
        else:
            a("s_waitcnt lgkmcnt(0)")
        if u == 31: a.stamp(3)
        xf = XR + (kc % NSLOT) * 16 + (sg % 4) * 4
        for t in tiles(hf):
            c = "0" if sg == 0 else v(ACC + 16 * t, 16)
            a("v_mfma_f32_32x32x16_bf16 %s, %s, %s, %s" % (v(ACC + 16 * t, 16), v(FB[hf] + (t % 4) * 4, 4), v(xf, 4), c))
        if (u + 1) % 8 == 0 and kc + NSLOT < 8: x_chunk(kc + NSLOT)
    a.stamp(4)
    a("s_lshr_b32 s%d, s%d, 15" % (sT0, sXO))
    a("s_mul_i32 s%d, s%d, %d" % (sT0, sT0, A2_TT))
    a("s_mul_i32 s%d, s%d, 7168" % (sT1, sNJ))
    a("s_add_u32 s%d, s%d, s%d" % (sT0, sT0, sT1))
    a("s_add_u32 s%d, s%d, %d" % (sT0, sT0, A2_OFF + 32 * 1024))
    a("s_add_u32 s%d, s%d, 4096" % (sT1, sT0))
    a("v_mov_b32 v20, 0x%x" % f2u(C1))
    a.nop(6)
    for t in range(7):
        G = ACC + 16 * t; U = G + 8; T = 32 + (t % 2) * 16
        for i in range(8): a("v_mul_f32 v%d, v%d, v%d" % (T + i, G + i, G + i))
        for i in range(8): a("v_fmamk_f32 v%d, v%d, 0x%x, v20" % (T + i, T + i, f2u(C2)))
        for i in range(8): a("v_mul_f32 v%d, v%d, v%d" % (T + i, T + i, G + i))
        for i in range(8): a("v_exp_f32 v%d, v%d" % (T + i, T + i))
        for i in range(8): a("v_mul_f32 v%d, v%d, v%d" % (G + i, G + i, U + i))
        for i in range(8): a("v_add_f32 v%d, 1.0, v%d" % (T + i, T + i))
        for i in range(8): a("v_rcp_f32 v%d, v%d" % (T + i, T + i))
        a.nop(1)
        for i in range(8): a("v_mul_f32 v%d, v%d, v%d" % (G + i, G + i, T + i))
        for i in range(4): a("v_cvt_pk_bf16_f32 v%d, v%d, v%d" % (T + 8 + i, G + 2 * i, G + 2 * i + 1))
        a("buffer_store_dwordx4 %s, v3, %s, s%d offen offset:%d" % (v(T + 8, 4), s(SWS, 4), sT0 if t < 4 else sT1, (t % 4) * 1024))
    a.stamp(5)
    if Asm.diag: a("s_waitcnt vmcnt(0)")
    a.stamp(6); a.stamp_flush(1, SWS, sW, 4)
    a.label("L_gu_end")
    a("s_endpgm")
    return dict(name=name, asm=a, vgpr=240, grid=(256, 1, 1), block=(256, 1, 1), lds=NSLOT * SLOT)
```

```python
from common import *
from layout import *
from kgu import f2u, C1, C2

FL_OFF = 32 * MB
EPOCH_OFF = FL_OFF
FX_OFF = FL_OFF + 0x10000
FQ_OFF = FL_OFF + 0x20000
FH_OFF = FL_OFF + 0x30000
FO_OFF = FL_OFF + 0x40000
TAGX = 0x5bd1e995

P1SLOT = 32768; P1X = 24576
LDS_F = 69632
FSLOT = 28800; UPOFF = 14464; FNS = 3
F2REG = 20480
LDS_CNT = LDS_F + FNS * FSLOT
LDS_ST = LDS_CNT + 128
LDS_TOTAL = 163840

P_X, P_WQKV, P_WO, P_WG, P_WU, P_WD, P_OUT, P_WS = 4, 6, 8, 12, 14, 16, 18, 22
SWS, SA, SB = 24, 28, 32
sW = 36
sT0, sT1, sT2, sT3 = 37, 38, 39, 40
sXCD, sJ = 41, 42
sMT, sNG = 43, 44
sTAG = 60
sSPIN = 62
sONE = 3
VTAG = 166
SC = "sc0 sc1"
OPT = dict(early=1, f2gate=0, prio3=2, nof=0, f1depth=3, kvrot=0, fs=7, psleep=2, vprio=1, p1diag=0, prio=0, prio2=2, dma0=7, f1grp=1, f2pace=1, gate=0, sc=0, pk=0)

_stamp = Asm.stamp
def stamp_gate(self, i, force=False):
    if OPT["p1diag"] and not force and i not in (0, 15): return
    _stamp(self, i)
Asm.stamp = stamp_gate
def bar(a, i):
    if OPT["p1diag"] and i < 7: a.stamp(1 + 2 * i, True)
    a("s_barrier")
    if OPT["p1diag"] and i < 7: a.stamp(2 + 2 * i, True)

def tr(a, vr):
    if not OPT["p1diag"]: return
    a("s_memtime s[98:99]")
    a("s_waitcnt lgkmcnt(0)")
    a("s_sub_u32 s98, s98, s96")
    a("s_mov_b32 m0, s100")
    a("s_add_u32 s100, s100, 1")
    a("v_writelane_b32 v%d, s98, m0" % vr)
def tr_dump(a, vr, vtmp):
    if not OPT["p1diag"]: return
    a("s_mul_i32 s100, s2, 12")
    a("s_add_u32 s100, s100, s%d" % sW)
    a("s_lshl_b32 s100, s100, 8")
    a("s_add_u32 s100, s100, %d" % (66 << 20))
    a("v_lshlrev_b32 v%d, 2, v2" % vtmp)
    a("buffer_store_dword v%d, v%d, %s, s100 offen" % (vr, vtmp, s(SWS, 4)))

def arrive(a, vaddr, vone, off):
    a("s_mov_b64 exec, 1")
    a("ds_add_u32 v%d, v%d offset:%d" % (vaddr, vone, off))
    a("s_mov_b64 exec, -1")

def spin(a, vaddr, vp, off, stmp, target, name):
    a("s_mov_b32 s%d, 0x200000" % sSPIN)
    a.label(name)
    a("ds_read_b32 v%d, v%d offset:%d" % (vp, vaddr, off))
    a("s_waitcnt lgkmcnt(0)")
    a("v_readfirstlane_b32 s%d, v%d" % (stmp, vp))
    a("s_nop 0")
    a("s_cmp_ge_u32 s%d, %s" % (stmp, target))
    a("s_cbranch_scc1 %s_ok" % name)
    a("s_sleep %d" % (8 if name == "L_f_nofw" else 1))
    a("s_sub_u32 s%d, s%d, 1" % (sSPIN, sSPIN))
    a("s_cbranch_scc0 %s" % name)
    a.label(name + "_ok")

def sc(): return "sc1" if OPT["sc"] else "sc0 sc1"

def set_flag(a, soff, vz, lanes=1):
    a("s_waitcnt vmcnt(0)")
    a("s_mov_b64 exec, %d" % ((1 << lanes) - 1))
    a("buffer_store_dwordx2 %s, v%d, %s, s%d offen %s" % (v(VTAG, 2), vz, s(SWS, 4), soff, sc()))
    a("s_mov_b64 exec, -1")

def last_flag(a, vcn, vone, vp, off, n, soff, skip):
    a("s_waitcnt vmcnt(0)")
    a("s_mov_b64 exec, 1")
    a("ds_add_rtn_u32 v%d, v%d, v%d offset:%d" % (vp, vcn, vone, off))
    a("s_waitcnt lgkmcnt(0)")
    a("v_readfirstlane_b32 s%d, v%d" % (sT0, vp))
    a("s_mov_b64 exec, -1")
    a("s_cmp_lg_u32 s%d, %d" % (sT0, n - 1))
    a("s_cbranch_scc1 %s" % skip)
    a("s_mov_b64 exec, 1")
    a("buffer_store_dwordx2 %s, v3, %s, s%d offen %s" % (v(VTAG, 2), s(SWS, 4), soff, sc()))
    a("s_mov_b64 exec, -1")

def poll(a, voff, soff, nl, vp, name):
    a("s_mov_b32 s%d, 0x20000" % sSPIN)
    assert nl <= 32
    a("s_mov_b32 exec_lo, 0x%x" % ((1 << nl) - 1))
    a("s_mov_b32 exec_hi, 0")
    a.label(name)
    a("buffer_load_dwordx2 %s, v%d, %s, s%d offen sc1" % (v(vp, 2), voff, s(SWS, 4), soff))
    a("s_waitcnt vmcnt(0)")
    a("v_cmp_ne_u64 vcc, %s, %s" % (s(sTAG, 2), v(vp, 2)))
    a("s_sub_u32 s%d, s%d, 1" % (sSPIN, sSPIN))
    a("s_cbranch_scc1 %s_ok" % name)
    a("s_cbranch_vccz %s_ok" % name)
    a("s_sleep %d" % OPT["psleep"])
    a("s_branch %s" % name)
    a.label(name + "_ok")
    a("s_mov_b64 exec, -1")

def tagsetup(a):
    a("s_waitcnt lgkmcnt(0)")
    a("s_add_u32 s%d, s%d, 1" % (sTAG, sTAG))
    a("s_xor_b32 s%d, s%d, 0x%x" % (sTAG + 1, sTAG, TAGX))
    a("v_mov_b32 v%d, s%d" % (VTAG, sTAG))
    a("v_mov_b32 v%d, s%d" % (VTAG + 1, sTAG + 1))

def bf16r(a, r):
    a("v_cvt_pk_bf16_f32 v%d, v%d, v%d" % (r, r, r))
    a("v_and_b32 v%d, 0xffff0000, v%d" % (r, r))

def ln_final(a, sm, sq, tmp):
    a("v_mul_f32 v%d, 0x3b000000, v%d" % (sm, sm))
    a("v_mul_f32 v%d, 0x3b000000, v%d" % (sq, sq))
    a("v_fma_f32 v%d, -v%d, v%d, v%d" % (sq, sm, sm, sq))
    a("v_max_f32 v%d, 0, v%d" % (sq, sq))
    bf16r(a, sq)
    bf16r(a, sm)
    a("v_add_f32 v%d, 0x3727c5ac, v%d" % (sq, sq))
    bf16r(a, sq)
    a("v_sqrt_f32 v%d, v%d" % (sq, sq))
    a.nop(1)
    bf16r(a, sq)
    a("v_rcp_f32 v%d, v%d" % (sq, sq))
    a.nop(1)

def xsum(a, r, t, kind):
    a("v_mov_b32 v%d, v%d" % (t, r))
    a.nop(2)
    a("v_permlane%d_swap_b32 v%d, v%d" % (kind, r, t))
    a("v_add_f32 v%d, v%d, v%d" % (r, r, t))

XB, XA, WB, WA = 12, 13, 17, 18
FR = 116; ACC1 = 48
def role_a(a):
    sD0, sD1, sFQ, sSCL = 45, 46, 47, 48
    sHEAD, sQT, sKV, sCH, sSL, sKVB, sQ0, sPOLL, sKH = 49, 50, 51, 52, 53, 54, 55, 56, 57
    sVM = 58
    sCNT, sTGT = 45, 46
    sSO, sI = 28, 29
    KA, VA, VCN, VONE, VP, VLO = 8, 9, 44, 45, 46, 47
    Q = [4, 112]; KF = [12, 16]; VF = [20, 28]; P = 36; S = [48, 64]; O = [80, 96]
    VST, VFL, VSA, VRA = 19, 112, 113, 114
    XS = 160; LDS_XS = LDS_F + 2 * FSLOT; XP = 1056; sXE = 30
    a("s_lshr_b32 s%d, s%d, 2" % (sT1, sNG))
    a("s_lshl1_add_u32 s%d, s%d, s%d" % (sT1, sMT, sT1))
    a("s_lshl3_add_u32 s%d, s%d, s%d" % (sXE, sT1, sW))
    a("s_lshl_b32 s%d, s%d, 12" % (sXE, sXE))
    a("s_and_b32 s%d, s%d, 3" % (sT1, sNG))
    a("s_lshl_b32 s%d, s%d, 7" % (sT1, sT1))
    a("s_add_u32 s%d, s%d, s%d" % (sXE, sXE, sT1))
    a("s_mul_i32 s%d, s%d, %d" % (sT0, sW, XP))
    a("s_add_u32 s%d, s%d, %d" % (sT0, sT0, LDS_XS))
    a("v_add_u32 v132, s%d, v3" % sT0)
    a("v_and_b32 v4, 7, v2")
    a("v_lshrrev_b32 v5, 3, v2")
    a("v_lshlrev_b32 v134, 4, v4")
    a("v_lshl_add_u32 v134, v5, 9, v134")
    a("v_mul_u32_u24 v133, %d, v4" % XP)
    a("v_lshl_add_u32 v133, v5, 4, v133")
    a("s_lshl_b32 s%d, s%d, 7" % (sT0, sW))
    a("s_add_u32 s%d, s%d, %d" % (sT0, sT0, LDS_XS))
    a("v_add_u32 v133, s%d, v133" % sT0)
    a("v_and_b32 v4, 31, v2")
    a("v_lshrrev_b32 v5, 5, v2")
    a("v_bfe_u32 v6, v2, 1, 3")
    a("v_xor_b32 v6, v6, v5")
    a("v_lshlrev_b32 v6, 4, v6")
    a("v_lshl_add_u32 v%d, v4, 7, v6" % XB)
    a("s_lshr_b32 s%d, s%d, 1" % (sT0, sW))
    a("s_min_u32 s%d, s%d, 2" % (sT1, sT0))
    a("s_sub_u32 s%d, s%d, s%d" % (sT2, sT0, sT1))
    a("s_lshl_b32 s%d, s%d, 12" % (sT3, sT2))
    a("s_add_u32 s%d, s%d, %d" % (sT3, sT3, P1X))
    a("v_add_u32 v%d, s%d, v%d" % (XB, sT3, XB))
    a("v_bfe_u32 v6, v2, 2, 2")
    a("v_and_b32 v7, 3, v2")
    a("v_lshlrev_b32 v7, 3, v7")
    a("v_and_b32 v13, 16, v2")
    a("v_lshl_add_u32 v7, v13, 1, v7")
    a("s_and_b32 s%d, s%d, 1" % (sT0, sW))
    a("s_lshl_b32 s%d, s%d, 6" % (sT3, sT0))
    a("v_add_u32 v7, s%d, v7" % sT3)
    a("v_lshlrev_b32 v14, 5, v6")
    a("v_and_b32 v14, 64, v14")
    a("v_xor_b32 v7, v7, v14")
    a("v_lshl_add_u32 v7, v6, 7, v7")
    a("v_mul_u32_u24 v14, 3072, v5")
    a("s_lshl_b32 s%d, s%d, 10" % (sT3, sT1))
    a("v_add3_u32 v%d, v7, v14, s%d" % (WB, sT3))
    a("s_lshl_b32 s%d, s%d, 7" % (sT3, sT2))
    a("s_add_u32 s%d, s%d, %d" % (sT3, sT3, LDS_ST))
    a("v_lshl_add_u32 v%d, v4, 2, s%d" % (VSA, sT3))
    a("v_lshl_add_u32 v%d, v5, 4, s%d" % (VRA, sT3))
    a("v_and_b32 v6, 15, v2")
    a("v_lshlrev_b32 v6, 4, v6")
    a("v_lshl_add_u32 v%d, v5, 8, v6" % VLO)
    a("s_lshl1_add_u32 s%d, s%d, s%d" % (sT0, sNG, sT0))
    a("s_lshl1_add_u32 s%d, s%d, s%d" % (sT2, sMT, sT2))
    a("s_lshl_b32 s%d, s%d, 17" % (sD0, sT0))
    a("s_lshl_b32 s%d, s%d, 10" % (sT3, sT2))
    a("s_add_u32 s%d, s%d, s%d" % (sD0, sD0, sT3))
    a("s_add_u32 s%d, s%d, %d" % (sD0, sD0, QF_OFF))
    a("s_min_u32 s%d, s%d, 1" % (sT3, sT1))
    a("s_lshl_b32 s%d, s%d, s%d" % (sD0, sD0, sT3))
    a("s_lshl_b32 s%d, 65536, s%d" % (sD1, sT3))
    a("s_add_u32 s%d, s%d, s%d" % (sD1, sD1, sD0))
    a("s_lshl_b32 s%d, 1024, s%d" % (sKH, sT3))
    a("v_add_u32 v%d, s%d, v3" % (VST, sKH))
    a("v_lshl_add_u32 v115, v13, 13, v%d" % VLO)
    a("s_cmp_eq_u32 s%d, 0" % sT1)
    a("s_cselect_b32 s%d, 0x%x, 1.0" % (sSCL, QSCALE))
    a("s_lshl_b32 s%d, s%d, 5" % (sFQ, sNG))
    a("s_add_u32 s%d, s%d, s%d" % (sFQ, sFQ, sMT))
    a("s_lshl_b32 s%d, s%d, %d" % (sFQ, sFQ, OPT["fs"]))
    a("s_add_u32 s%d, s%d, %d" % (sFQ, sFQ, FQ_OFF))
    a("s_lshr_b32 s%d, s%d, 3" % (sT2, sJ))
    a("s_lshl2_add_u32 s%d, s%d, s%d" % (sHEAD, sXCD, sT2))
    a("s_and_b32 s%d, s%d, 7" % (sCH, sJ))
    a("s_and_b32 s%d, s%d, 3" % (sT0, sW))
    a("s_lshl_b32 s%d, s%d, 1" % (sT0, sT0))
    a("s_lshl3_add_u32 s%d, s%d, s%d" % (sQT, sCH, sT0))
    a("s_lshr_b32 s%d, s%d, 2" % (sKH, sW))
    a("s_add_u32 s%d, s%d, s%d" % (sQT, sQT, sKH))
    a("s_lshl_b32 s%d, s%d, 11" % (sSL, sW))
    a("s_lshl_b32 s%d, s%d, 17" % (sKVB, sHEAD))
    a("s_add_u32 s%d, s%d, %d" % (sKVB, sKVB, KV_OFF))
    a("s_add_u32 s%d, s%d, s%d" % (sKV, sKVB, sSL))
    a("s_lshl_b32 s%d, s%d, 16" % (sQ0, sHEAD))
    a("s_lshl_b32 s%d, s%d, 10" % (sT2, sQT))
    a("s_add_u32 s%d, s%d, s%d" % (sQ0, sQ0, sT2))
    a("s_add_u32 s%d, s%d, %d" % (sQ0, sQ0, QF_OFF))
    a("v_lshlrev_b32 v10, %d, v2" % OPT["fs"])
    a("v_mov_b32 v6, 0")
    a("s_mov_b32 exec_lo, 0x00110000")
    a("s_mov_b32 exec_hi, 0x00110000")
    a("v_mov_b32 v6, s%d" % sONE)
    a("s_mov_b64 exec, -1")
    a("v_mov_b32 v7, v6")
    a("s_lshl_b32 s%d, s%d, %d" % (sPOLL, sXCD, 5 + OPT["fs"]))
    a("s_add_u32 s%d, s%d, %d" % (sPOLL, sPOLL, FQ_OFF))
    if OPT["kvrot"]: a("s_lshl_b32 s%d, s%d, 14" % (sCH, sCH))
    else: a("s_mov_b32 s%d, 0" % sCH)
    a("s_mov_b32 s%d, 0x0000ffff" % sVM)
    a("s_mov_b32 s%d, 0x0000ffff" % (sVM + 1))
    a("s_lshl_b32 s%d, s%d, 13" % (sKH, sKH))
    a("v_add_u32 v%d, s%d, v3" % (KA, sKH))
    a("v_add_u32 v%d, s%d, v%d" % (VA, sKH, VLO))
    a("v_mov_b32 v%d, 1" % VONE)
    a("v_mov_b32 v%d, %d" % (VCN, LDS_CNT))
    for i in range(0, 16, 2): a("v_mov_b64 %s, v[6:7]" % v(VF[0] + i, 2))
    for i in range(36, 44, 2): a("v_mov_b64 %s, 0" % v(i, 2))
    for i in range(48, 112, 2): a("v_mov_b64 %s, 0" % v(i, 2))
    a("v_mov_b64 v[4:5], 0")
    a("v_mov_b64 v[6:7], 0")
    a("s_mov_b32 exec_lo, 0x00f0000f")
    a("s_mov_b32 exec_hi, 0xf0000f00")
    for i in range(4, 8): a("v_mov_b32 v%d, s%d" % (i, sONE))
    a("s_mov_b64 exec, -1")
    a("ds_write_b128 v%d, v[48:51]" % VCN)
    a("ds_write_b128 v%d, v[48:51] offset:16" % VCN)
    a("ds_write_b128 v%d, v[48:51] offset:32" % VCN)
    a("s_mov_b32 s%d, 0" % sSO)
    a("s_mov_b32 s%d, 8" % sI)
    def addrs():
        a("v_add_u32 v%d, s%d, v%d" % (XA, sSO, XB))
        a("v_add_u32 v%d, s%d, v%d" % (WA, sSO, WB))
        for k in range(1, 4): a("v_xor_b32 v%d, %d, v%d" % (XA + k, k << 5, XA))
        a("s_add_u32 s%d, s%d, %d" % (sSO, sSO, P1SLOT))
        a("s_cmp_eq_u32 s%d, %d" % (sSO, 3 * P1SLOT))
        a("s_cselect_b32 s%d, 0, s%d" % (sSO, sSO))
    addrs()
    a.stamp(1)
    a("s_waitcnt vmcnt(0)")
    L0, L1 = 116, 117
    for i in range(4):
        a("v_dot2_f32_bf16 v%d, v%d, s%d, %s" % (L0, XS + i, sONE, "0" if i == 0 else "v%d" % L0))
        a("v_dot2_f32_bf16 v%d, v%d, v%d, %s" % (L1, XS + i, XS + i, "0" if i == 0 else "v%d" % L1))
    for q in range(4):
        a("v_lshlrev_b32 v%d, 16, v%d" % (120 + 2 * q, XS + q))
        a("v_and_b32 v%d, 0xffff0000, v%d" % (121 + 2 * q, XS + q))
    for sh in (8, 4, 2, 1):
        a("v_add_f32_dpp v%d, v%d, v%d row_ror:%d row_mask:0xf bank_mask:0xf" % (L0, L0, L0, sh))
        a("v_add_f32_dpp v%d, v%d, v%d row_ror:%d row_mask:0xf bank_mask:0xf" % (L1, L1, L1, sh))
        a.nop(1)
    for kind in (16, 32):
        a("v_mov_b64 v[118:119], v[116:117]")
        a.nop(2)
        a("v_permlane%d_swap_b32 v116, v118" % kind)
        a("v_permlane%d_swap_b32 v117, v119" % kind)
        a("v_add_f32 v116, v116, v118")
        a("v_add_f32 v117, v117, v119")
    ln_final(a, L0, L1, 118)
    a("v_mul_f32_e64 v%d, -v%d, v%d" % (L0, L0, L1))
    for q in range(8): a("v_fma_f32 v%d, v%d, v%d, v%d" % (120 + q, 120 + q, L1, L0))
    for q in range(4): a("v_cvt_pk_bf16_f32 v%d, v%d, v%d" % (128 + q, 120 + 2 * q, 121 + 2 * q))
    a("ds_write_b128 v132, v[128:131]")
    tagsetup(a)
    a.stamp(2)
    tr(a, 164)
    a("s_barrier")
    tr(a, 164)
    a.stamp(3)
    a("ds_read_b128 v[128:131], v133")
    for i in range(FR + 24, FR + 48, 2): a("v_mov_b64 %s, 0" % v(i, 2))
    a("s_waitcnt lgkmcnt(0)")
    a("buffer_store_dwordx4 v[128:131], v134, %s, s%d offen %s" % (s(SWS, 4), sXE, sc()))
    a("s_cmp_ge_u32 s%d, 4" % sW)
    a("s_cbranch_scc1 L_p1_v0")
    def wread(k, dst):
        for sec in range(2):
            a("ds_read_b64_tr_b16 %s, v%d offset:%d" % (v(dst + 2 * sec, 2), WA, k * 6144 + sec * 512))
    def xread(k, dst, tb): a("ds_read_b128 %s, v%d offset:%d" % (v(dst, 4), XA + k, tb * 4096))
    def lsum(d, r): a("v_mfma_f32_16x16x32_bf16 %s, v[4:7], %s, %s" % (v(d, 4), v(r, 4), v(d, 4)))
    def csfrag():
        a("v_cvt_pk_bf16_f32 v37, v36, v36")
        a("v_and_b32 v37, 0xffff0000, v37")
        a("v_sub_f32 v37, v36, v37")
        a("v_cvt_pk_bf16_f32 v80, v36, v37")
    def loop_end(lab):
        a("s_sub_u32 s%d, s%d, 1" % (sI, sI))
        a("s_cmp_eq_u32 s%d, 0" % sI)
        a("s_cbranch_scc1 %s_x" % lab)
        a("s_cmp_lg_u32 s%d, 6" % sI)
        a("s_cbranch_scc1 %s_b" % lab)
        a("s_waitcnt vmcnt(0)")
        a.label(lab + "_b")
        tr(a, 164)
        a("s_barrier")
        tr(a, 164)
        a("s_branch %s" % lab)
        a.label(lab + "_x")
    def cap(fn, *args):
        n = len(a.lines); fn(*args); out = a.lines[n:]; del a.lines[n:]; return out
    def weave(mm, rd):
        for l in mm:
            a(l)
            if l.startswith("v_mfma"):
                for _ in range(2):
                    if rd: a(rd.pop(0))
    def body(rdf, mmf, n):
        rd = cap(rdf, 0) + cap(rdf, 1)
        weave(cap(mmf, 2), rd)
        rd += cap(rdf, 2)
        weave(cap(mmf, 3), rd)
        left = len(rd)
        rd += cap(rdf, 3)
        issued = 3 * n - left
        a("s_waitcnt lgkmcnt(%d)" % (issued - n))
        weave(cap(mmf, 0), rd)
        for l in rd: a(l)
        a("s_waitcnt lgkmcnt(%d)" % (2 * n))
        mm1 = cap(mmf, 1)
        a(mm1[0]); addrs()
        for l in mm1[1:]: a(l)
        a("s_waitcnt lgkmcnt(0)")
    def qk_rd(k): wread(k, FR + 12 * k); xread(k, FR + 12 * k + 4, 0); xread(k, FR + 12 * k + 8, 1)
    def qk_mm(k):
        f = FR + 12 * k
        lsum(36, f)
        for tb in range(2):
            d = v(ACC1 + 16 * tb, 16)
            a("v_mfma_f32_32x32x16_bf16 %s, %s, %s, %s" % (d, v(f, 4), v(f + 4 + 4 * tb, 4), d))
    a.label("L_p1_qk")
    body(qk_rd, qk_mm, 4)
    loop_end("L_p1_qk")
    qk_mm(2); qk_mm(3)
    a.stamp(4)
    a.nop(6)
    csfrag()
    a("s_barrier")
    a.stamp(5)
    a("ds_read_b32 v84, v%d" % VSA)
    a("ds_read_b32 v88, v%d offset:128" % VSA)
    a("ds_read_b32 v36, v%d offset:256" % VSA)
    a("ds_read_b32 v38, v%d offset:384" % VSA)
    a("s_waitcnt lgkmcnt(2)")
    for tb in range(2):
        d = v(ACC1 + 16 * tb, 16)
        a("v_mfma_f32_32x32x16_bf16 %s, v[80:83], %s, %s" % (d, v(84 + 4 * tb, 4), d))
    a("s_waitcnt lgkmcnt(0)")
    a("v_mul_f32 v36, s%d, v36" % sSCL)
    a("v_mul_f32 v38, s%d, v38" % sSCL)
    a("v_mov_b32 v88, 0")
    a.nop(8)
    for tb in range(2):
        A0 = ACC1 + 16 * tb
        for i in range(0, 16, 2): a("v_pk_mul_f32 %s, %s, %s op_sel_hi:[1,0]" % (v(A0 + i, 2), v(A0 + i, 2), v(36 + 2 * tb, 2)))
        for i in range(8): a("v_cvt_pk_bf16_f32 v%d, v%d, v%d" % (FR + 8 * tb + i, A0 + 2 * i, A0 + 2 * i + 1))
        a("buffer_store_dwordx4 %s, v%d, %s, s%d offen %s" % (v(FR + 8 * tb, 4), VST if tb else 3, s(SWS, 4), sD0, sc()))
        a("buffer_store_dwordx4 %s, v%d, %s, s%d offen %s" % (v(FR + 8 * tb + 4, 4), VST if tb else 3, s(SWS, 4), sD1, sc()))
    a("s_branch L_p1_done")
    a.label("L_p1_v0")
    if OPT["vprio"]: a("s_setprio 1")
    def v_rd(k): xread(k, FR + 8 * k + 4, 0); wread(k, FR + 8 * k)
    def v_mm(k):
        f = FR + 8 * k; d = v(ACC1, 16)
        lsum(148, f + 4)
        for j in range(4):
            t = 154 + 2 * (j & 1)
            a("v_lshlrev_b32 v%d, 16, v%d" % (t, f + 4 + j))
            a("v_and_b32 v%d, 0xffff0000, v%d" % (t + 1, f + 4 + j))
            if j == 0: lsum(36, f)
            a("v_fmac_f32 v152, v%d, v%d" % (t, t))
            a("v_fmac_f32 v153, v%d, v%d" % (t + 1, t + 1))
            if j == 0: a("v_mfma_f32_32x32x16_bf16 %s, %s, %s, %s" % (d, v(f + 4, 4), v(f, 4), d))
    for i in range(FR + 16, FR + 24, 2): a("v_mov_b64 %s, 0" % v(i, 2))
    a.nop(2)
    a.label("L_p1_v")
    body(v_rd, v_mm, 3)
    loop_end("L_p1_v")
    v_mm(2); v_mm(3)
    a.stamp(4)
    a("v_add_f32 v4, v152, v153")
    a("v_add_f32 v5, v152, v153")
    a.nop(1)
    a("v_permlane32_swap_b32 v148, v149")
    a("v_permlane32_swap_b32 v4, v5")
    a("v_add_f32 v38, v148, v149")
    a("v_add_f32 v4, v4, v5")
    ln_final(a, 38, 4, 5)
    a("v_cvt_pk_bf16_f32 v84, -v38, -v38")
    a("ds_write_b32 v%d, v4 offset:256" % VSA)
    a("ds_write_b32 v%d, v84" % VSA)
    csfrag()
    a("s_waitcnt lgkmcnt(0)")
    a("s_barrier")
    a.stamp(5)
    a("v_mfma_f32_32x32x16_bf16 %s, v[84:87], v[80:83], %s" % (v(ACC1, 16), v(ACC1, 16)))
    for q in range(4): a("ds_read_b128 %s, v%d offset:%d" % (v(ACC1 + 16 + 4 * q, 4), VRA, 256 + 32 * q))
    a.nop(8)
    a("s_waitcnt lgkmcnt(0)")
    for i in range(0, 16, 2): a("v_pk_mul_f32 %s, %s, %s" % (v(ACC1 + i, 2), v(ACC1 + i, 2), v(ACC1 + 16 + i, 2)))
    for i in range(8): a("v_cvt_pk_bf16_f32 v%d, v%d, v%d" % (FR + i, ACC1 + 2 * i, ACC1 + 2 * i + 1))
    a("buffer_store_dwordx4 %s, v115, %s, s%d offen offset:1024 %s" % (v(FR, 4), s(SWS, 4), sD0, sc()))
    a("buffer_store_dwordx4 %s, v115, %s, s%d offen offset:1536 %s" % (v(FR + 4, 4), s(SWS, 4), sD0, sc()))
    a.label("L_p1_done")
    tr(a, 164)
    tr_dump(a, 164, 165)
    if OPT["vprio"]: a("s_setprio 0")
    a.stamp(6)
    a("v_mov_b32 v80, 0")
    a("v_mov_b32 v84, 0")
    if Asm.diag: a("s_waitcnt vmcnt(0)")
    a.stamp(7)
    last_flag(a, VCN, VONE, VP, 24, 8, sFQ, "L_a_wait")
    poll(a, 10, sPOLL, 32, 12, "L_a_poll")
    arrive(a, VCN, VONE, 28)
    a.label("L_a_wait")
    spin(a, VCN, VP, 28, sT0, "1", "L_a_go")
    a.stamp(9)
    def dma():
        a("s_mov_b32 m0, s%d" % sSL)
        a("s_add_u32 s%d, s%d, s%d" % (sT0, sKV, sCH))
        a("buffer_load_dwordx4 v3, %s, s%d offen sc1 lds" % (s(SWS, 4), sT0))
        a("buffer_load_dwordx4 v3, %s, s%d offen offset:1024 sc1 lds" % (s(SWS, 4), sT0))
        a("s_add_u32 s%d, s%d, 16384" % (sSL, sSL))
        a("s_and_b32 s%d, s%d, 0xffff" % (sSL, sSL))
        a("s_add_u32 s%d, s%d, 16384" % (sCH, sCH))
        a("s_and_b32 s%d, s%d, 0x1ffff" % (sCH, sCH))
    dma()
    a("s_xor_b32 s%d, s%d, 1024" % (sT1, sQ0))
    a("buffer_load_dwordx4 %s, v3, %s, s%d offen sc1" % (v(Q[0], 4), s(SWS, 4), sQ0))
    a("buffer_load_dwordx4 %s, v3, %s, s%d offen sc1" % (v(Q[1], 4), s(SWS, 4), sT1))
    dma()
    def rdK(kt): a("ds_read_b128 %s, v%d offset:%d" % (v(KF[kt % 2], 4), KA, (kt % 4) * 2048))
    def rdV(kt):
        a("s_mov_b64 exec, %s" % s(sVM, 2))
        a("ds_read_b128 %s, v%d offset:%d" % (v(VF[kt % 2], 4), VA, (kt % 4) * 2048 + 1024))
        a("ds_read_b128 %s, v%d offset:%d" % (v(VF[kt % 2] + 4, 4), VA, (kt % 4) * 2048 + 1536))
        a("s_mov_b64 exec, -1")
    def mfS(u): a("v_mfma_f32_32x32x16_bf16 %s, %s, %s, 0" % (v(S[u % 2], 16), v(KF[(u >> 1) % 2], 4), v(Q[u % 2], 4)))
    def mfPV(u, j): a("v_mfma_f32_32x32x16_bf16 %s, %s, %s, %s" % (v(O[u % 2], 16), v(VF[(u >> 1) % 2] + 4 * j, 4), v(P + 4 * j, 4), v(O[u % 2], 16)))
    a("s_waitcnt vmcnt(2)")
    arrive(a, VCN, VONE, 0)
    dma()
    spin(a, VCN, VP, 0, sT0, "8", "L_a_first")
    rdK(0); rdV(0); rdK(1)
    a("s_mov_b32 s%d, 0" % sCNT)
    a("s_mov_b32 s%d, 16" % sTGT)
    a("s_waitcnt lgkmcnt(3)")
    mfS(0)
    a("s_waitcnt vmcnt(2)")
    arrive(a, VCN, VONE, 0)
    a.stamp(10)
    a.nop(10)
    a.label("L_at_loop")
    for u in range(8):
        Sx = S[u % 2]
        e = lambda i: a("v_exp_f32 v%d, v%d" % (Sx + i, Sx + i))
        cv = lambda i: a("v_cvt_pk_bf16_f32 v%d, v%d, v%d" % (P + i, Sx + 2 * i, Sx + 2 * i + 1))
        if u % 2 == 0: a("s_waitcnt lgkmcnt(0)")
        mfS(u + 1)
        e(0)
        if u == 4: a("v_readfirstlane_b32 s%d, v%d" % (sT0, VP))
        e(1)
        if u == 4:
            a("s_cmp_ge_u32 s%d, s%d" % (sT0, sTGT))
            a("s_cbranch_scc0 L_at_slow")
            a.label("L_at_back")
        e(2); e(3)
        mfPV(u - 1, 1)
        if u % 2 == 0:
            rdK(u // 2 + 2); rdV(u // 2 + 1)
        cv(0); e(4)
        if u == 3:
            a("ds_read_b32 v%d, v%d" % (VP, VCN))
            a("v_add_u32 v%d, 16384, v%d" % (KA, KA))
            a("v_and_b32 v%d, 0xffff, v%d" % (KA, KA))
        if u == 5:
            a("v_add_u32 v%d, 16384, v%d" % (VA, VA))
            a("v_and_b32 v%d, 0xffff, v%d" % (VA, VA))
            a("s_cmp_ge_u32 s%d, 5" % sCNT)
            a("s_cbranch_scc1 L_at_nodma")
            dma()
            a.label("L_at_nodma")
        if u == 6:
            a("s_waitcnt vmcnt(2)")
            a("s_cmp_ge_u32 s%d, 5" % sCNT)
            a("s_cbranch_scc0 L_at_w2")
            a("s_waitcnt vmcnt(0)")
            a.label("L_at_w2")
            arrive(a, VCN, VONE, 0)
        cv(1); e(5); e(6); e(7); cv(2); e(8); cv(3); e(9); e(10)
        mfPV(u, 0)
        e(11); e(12); cv(4); e(13); cv(5); e(14); e(15); cv(6)
        if u == 7:
            a("s_add_u32 s%d, s%d, 8" % (sTGT, sTGT))
            a("s_add_u32 s%d, s%d, 1" % (sCNT, sCNT))
            a("s_cmp_lt_u32 s%d, 8" % sCNT)
        cv(7)
    a("s_cbranch_scc1 L_at_loop")
    a.nop(1)
    mfPV(7, 1)
    a.stamp(11)
    a("s_lshl_b32 s%d, s%d, 12" % (sT0, sW))
    a("s_add_u32 s%d, s%d, 16384" % (sT0, sT0))
    a("v_add_u32 v10, s%d, v3" % sT0)
    a("v_xor_b32 v11, 0xc000, v10")
    a("s_and_b32 s%d, s%d, 3" % (sT1, sW))
    a("s_lshl_b32 s%d, s%d, 2" % (sKH, sT1))
    a("s_mul_i32 s%d, s%d, %d" % (sT2, sQT, A2_TT))
    a("s_lshl_b32 s%d, s%d, 10" % (sT1, sHEAD))
    a("s_add_u32 s%d, s%d, s%d" % (sT2, sT2, sT1))
    a("s_add_u32 s%d, s%d, %d" % (sT2, sT2, A2_OFF))
    a("s_lshr_b32 s%d, s%d, 3" % (sT3, sQT))
    a("s_lshl_b32 s%d, s%d, 5" % (sT3, sT3))
    a("s_add_u32 s%d, s%d, s%d" % (sT3, sT3, sHEAD))
    a("s_lshl_b32 s%d, s%d, %d" % (sT3, sT3, OPT["fs"]))
    a("s_add_u32 s%d, s%d, %d" % (sT3, sT3, FO_OFF))
    a("ds_write_b128 v10, %s" % v(O[1], 4))
    a("ds_write_b128 v10, %s offset:1024" % v(O[1] + 4, 4))
    a("ds_write_b32 v10, v%d offset:2048" % (O[1] + 8))
    a("s_waitcnt lgkmcnt(0)")
    a("v_add_u32 v12, s%d, v%d" % (sKH, VCN))
    arrive(a, 12, VONE, 8)
    spin(a, 12, VP, 8, sT0, "2", "L_a_pair")
    a("ds_read_b128 %s, v11" % v(S[0], 4))
    a("ds_read_b128 %s, v11 offset:1024" % v(S[0] + 4, 4))
    a("ds_read_b32 v%d, v11 offset:2048" % (S[0] + 8))
    a("s_waitcnt lgkmcnt(0)")
    for i in range(8, -1, -1): a("v_add_f32 v%d, v%d, v%d" % (O[0] + i, O[0] + i, S[0] + i))
    a("v_cmp_nle_f32 vcc, 0x21800000, v%d" % (O[0] + 8))
    a("s_nop 1")
    a("s_mov_b64 s[56:57], vcc")
    a("v_cmp_nge_f32 vcc, 0x5d800000, v%d" % (O[0] + 8))
    a("s_nop 1")
    a("s_or_b64 vcc, vcc, s[56:57]")
    a("s_cbranch_vccnz L_a_fallback")
    a.label("L_a_fin")
    a.stamp(12)
    a("v_rcp_f32 v10, v%d" % (O[0] + 8))
    a.nop(1)
    for i in range(8): a("v_mul_f32 v%d, v%d, v10" % (O[0] + i, O[0] + i))
    for i in range(4): a("v_cvt_pk_bf16_f32 v%d, v%d, v%d" % (P + i, O[0] + 2 * i, O[0] + 2 * i + 1))
    a("buffer_store_dwordx4 %s, v3, %s, s%d offen %s" % (v(P, 4), s(SWS, 4), sT2, sc()))
    last_flag(a, VCN, VONE, VP, 32, 8, sT3, "L_a_exit")
    a.label("L_a_exit")
    a.stamp(13)
    a.stamp_flush(0, SWS, sW, 12)
    a("s_endpgm")
    a.label("L_at_slow")
    spin(a, VCN, VP, 0, sT0, "s%d" % sTGT, "L_at_spin")
    a("s_branch L_at_back")
    a.label("L_a_fallback")
    C = O[1]; S0 = S[0]
    a("v_mov_b32 v10, 0xff800000")
    a("s_mov_b32 s%d, s%d" % (sT0, sKVB))
    a("s_mov_b32 s%d, 64" % sCNT)
    a.label("L_fb1")
    a("buffer_load_dwordx4 %s, v3, %s, s%d offen sc1" % (v(KF[0], 4), s(SWS, 4), sT0))
    a("s_waitcnt vmcnt(0)")
    a("v_mfma_f32_32x32x16_bf16 %s, %s, %s, 0" % (v(S0, 16), v(KF[0], 4), v(Q[0], 4)))
    a.nop(12)
    for i in range(0, 16, 2): a("v_max3_f32 v10, v10, v%d, v%d" % (S0 + i, S0 + i + 1))
    a("s_add_u32 s%d, s%d, 2048" % (sT0, sT0))
    a("s_sub_u32 s%d, s%d, 1" % (sCNT, sCNT))
    a("s_cmp_lg_u32 s%d, 0" % sCNT)
    a("s_cbranch_scc1 L_fb1")
    a("v_mov_b32 v11, v10")
    a.nop(2)
    a("v_permlane32_swap_b32 v10, v11")
    a("v_max_f32 v10, v10, v11")
    for i in range(16): a("v_sub_f32 v%d, 0, v10" % (C + i))
    for i in range(16): a("v_mov_b32 v%d, 0" % (O[0] + i))
    a("s_mov_b32 s%d, s%d" % (sT0, sKVB))
    a("s_mov_b32 s%d, 64" % sCNT)
    a.label("L_fb2")
    a("buffer_load_dwordx4 %s, v3, %s, s%d offen sc1" % (v(KF[0], 4), s(SWS, 4), sT0))
    a("s_mov_b64 exec, %s" % s(sVM, 2))
    a("buffer_load_dwordx4 %s, v47, %s, s%d offen offset:1024 sc1" % (v(VF[0], 4), s(SWS, 4), sT0))
    a("buffer_load_dwordx4 %s, v47, %s, s%d offen offset:1536 sc1" % (v(VF[0] + 4, 4), s(SWS, 4), sT0))
    a("s_mov_b64 exec, -1")
    a("s_waitcnt vmcnt(0)")
    a("v_mfma_f32_32x32x16_bf16 %s, %s, %s, %s" % (v(S0, 16), v(KF[0], 4), v(Q[0], 4), v(C, 16)))
    a.nop(12)
    for i in range(16): a("v_exp_f32 v%d, v%d" % (S0 + i, S0 + i))
    a.nop(1)
    for i in range(8): a("v_cvt_pk_bf16_f32 v%d, v%d, v%d" % (P + i, S0 + 2 * i, S0 + 2 * i + 1))
    a.nop(2)
    for j in range(2): a("v_mfma_f32_32x32x16_bf16 %s, %s, %s, %s" % (v(O[0], 16), v(VF[0] + 4 * j, 4), v(P + 4 * j, 4), v(O[0], 16)))
    a("s_add_u32 s%d, s%d, 2048" % (sT0, sT0))
    a("s_sub_u32 s%d, s%d, 1" % (sCNT, sCNT))
    a("s_cmp_lg_u32 s%d, 0" % sCNT)
    a("s_cbranch_scc1 L_fb2")
    a.nop(12)
    a("s_branch L_a_fin")

def role_f(a):
    sF = 47
    sMT1, sNJ, sXO, sWO, sM0, sKC1, sIT, sTGT, sSLW, sSLR, sKX, sXC = 43, 44, 45, 48, 49, 46, 50, 51, 53, 54, 55, 56
    sEX = 58; sFXP = 52; SG = 12
    XR = 8; FB = [24, 40]; ACC = 52
    TA0, TA, VCN, VONE = 5, 6, 164, 1
    def f1_setup():
        a("s_lshr_b32 s%d, s%d, 2" % (sMT1, sXCD))
        a("s_and_b32 s%d, s%d, 7" % (sKC1, sJ))
        a("s_lshl3_add_u32 s%d, s%d, s%d" % (sMT1, sMT1, sKC1))
        a("s_and_b32 s%d, s%d, 3" % (sNJ, sXCD))
        a("s_lshr_b32 s%d, s%d, 3" % (sT2, sJ))
        a("s_lshl2_add_u32 s%d, s%d, s%d" % (sNJ, sNJ, sT2))
        a("s_lshl1_add_u32 s%d, s%d, s%d" % (sKC1, sT2, sKC1))
        a("s_and_b32 s%d, s%d, 7" % (sKC1, sKC1))
        a("s_mov_b32 s%d, s%d" % (sKX, sKC1))
        a("v_mul_u32_u24 v5, 4682, v2")
        a("v_lshrrev_b32 v5, 16, v5")
        a("v_mul_u32_u24 v5, %d, v5" % (3584 - 224))
        a("v_add_u32 v4, v5, v3")
        a("s_lshl2_add_u32 s%d, s%d, s%d" % (sT0, sMT1, sF))
        a("s_lshl_b32 s%d, s%d, 15" % (sXO, sT0))
        a("s_lshl_b32 s%d, s%d, %d" % (sFXP, sT0, 2 + OPT["fs"]))
        a("s_add_u32 s%d, s%d, %d" % (sFXP, sFXP, FX_OFF))
        a("s_and_b32 s%d, s%d, 1" % (sT1, sF))
        a("s_mul_i32 s%d, s%d, %d" % (sWO, sT1, 32 * 3584))
        a("s_mul_i32 s%d, s%d, 224" % (sT2, sNJ))
        a("s_add_u32 s%d, s%d, s%d" % (sWO, sWO, sT2))
        a("s_mul_i32 s%d, s%d, 7168" % (sM0, sT1))
        a("s_lshr_b32 s%d, s%d, 1" % (sT2, sF))
        a("s_mul_i32 s%d, s%d, %d" % (sT2, sT2, UPOFF))
        a("s_add_u32 s%d, s%d, s%d" % (sM0, sM0, sT2))
        a("s_add_u32 s%d, s%d, %d" % (sM0, sM0, LDS_F))
        a("s_cmp_ge_u32 s%d, 2" % sF)
        a("s_cselect_b32 s%d, s%d, s%d" % (P_WG, P_WU, P_WG))
        a("s_cselect_b32 s%d, s%d, s%d" % (P_WG + 1, P_WU + 1, P_WG + 1))
        srd(a, SG, P_WG, 512 * 3584)
        a("s_mov_b32 s%d, -1" % sEX)
        a("s_mov_b32 s%d, 0x00ffffff" % (sEX + 1))
        a("s_mov_b32 s%d, %d" % (sSLW, FSLOT))
        a("s_mov_b32 s%d, %d" % (sSLR, FSLOT))
        a("v_lshrrev_b32 v6, 5, v2")
        a("v_bfe_u32 v5, v2, 2, 2")
        a("v_lshl_add_u32 v5, v6, 3, v5")
        a("v_mul_u32_u24 v5, 224, v5")
        a("v_and_b32 v6, 3, v2")
        a("v_lshl_add_u32 v5, v6, 3, v5")
        a("v_bfe_u32 v6, v2, 4, 1")
        a("v_mul_u32_u24 v6, %d, v6" % UPOFF)
        a("v_add_u32 v5, v5, v6")
        a("v_add_u32 v%d, %d, v5" % (TA0, LDS_F))
        a("v_add_u32 v%d, %d, v%d" % (TA, FSLOT, TA0))
        a("v_mov_b32 v%d, %d" % (VCN, LDS_CNT))
        a("v_mov_b32 v%d, 1" % VONE)
        a("s_mov_b32 s%d, 0" % sIT)
        a("s_mov_b32 s%d, 4" % sTGT)
    def dma(guard=None):
        a("s_mul_i32 s%d, s%d, %d" % (sT0, sKC1, 64 * 3584))
        a("s_add_u32 s%d, s%d, s%d" % (sT0, sT0, sWO))
        if guard is not None:
            a("s_cmp_lt_u32 s%d, %d" % (sIT, guard))
            a("s_cselect_b32 s%d, s%d, 0" % (SG + 2, SG + 2))
        a("s_add_u32 s%d, s%d, s%d" % (sT1, sM0, sSLW))
        a("s_mov_b64 exec, %s" % s(sEX, 2))
        for i in range(8):
            a("s_add_u32 m0, s%d, %d" % (sT1, i * 896))
            if i: a("s_add_u32 s%d, s%d, %d" % (sT0, sT0, 4 * 3584))
            else: a("s_nop 0")
            a("buffer_load_dwordx4 v4, %s, s%d offen lds" % (s(SG, 4), sT0))
        a("s_mov_b64 exec, -1")
        a("s_add_u32 s%d, s%d, 1" % (sKC1, sKC1))
        a("s_and_b32 s%d, s%d, 7" % (sKC1, sKC1))
        a("s_add_u32 s%d, s%d, %d" % (sSLW, sSLW, FSLOT))
        a("s_cmp_eq_u32 s%d, %d" % (sSLW, FNS * FSLOT))
        a("s_cselect_b32 s%d, 0, s%d" % (sSLW, sSLW))
    def xoff(guard=None):
        a("s_lshl_b32 s%d, s%d, 12" % (sXC, sKX))
        a("s_add_u32 s%d, s%d, s%d" % (sXC, sXC, sXO))
        if guard is not None:
            a("s_cmp_lt_u32 s%d, %d" % (sIT, guard))
            a("s_cselect_b32 s%d, s%d, 0" % (SB + 2, SB + 2))
        a("s_add_u32 s%d, s%d, 1" % (sKX, sKX))
        a("s_and_b32 s%d, s%d, 7" % (sKX, sKX))
    def xld(i): a("buffer_load_dwordx4 %s, v3, %s, s%d offen offset:%d sc1" % (v(XR + 4 * i, 4), s(SB, 4), sXC, i * 1024))

    a("s_sub_u32 s%d, s%d, 8" % (sF, sW))
    a("v_lshrrev_b32 v6, 3, v2")
    a("v_and_b32 v9, 7, v2")
    a("v_lshlrev_b32 v8, 1, v6")
    a("v_and_b32 v8, 4, v8")
    a("v_xor_b32 v7, v9, v8")
    a("s_setprio 3")
    srd(a, SA, P_WQKV, 512 * 3072)
    sW1, sM1, sKD, sX1, sSO, sI, sFXW = 10, 11, 20, 21, 57, 63, 56
    a("v_mul_u32_u24 v8, 3072, v6")
    a("v_lshl_add_u32 v8, v7, 4, v8")
    a("v_lshrrev_b32 v10, 4, v2")
    a("v_xor_b32 v10, v9, v10")
    a("v_lshlrev_b32 v10, 4, v10")
    a("v_lshl_add_u32 v10, v6, 10, v10")
    a("v_xor_b32 v11, 64, v10")
    a("v_add_u32 v11, 7168, v11")
    a("s_mul_i32 s%d, s%d, %d" % (sW1, sF, 16 * 3072))
    a("s_lshl_b32 s%d, s%d, 7" % (sT0, sNG))
    a("s_add_u32 s%d, s%d, s%d" % (sW1, sW1, sT0))
    a("s_mul_i32 s%d, s%d, 6144" % (sM1, sF))
    a("s_lshl2_add_u32 s%d, s%d, s%d" % (sX1, sMT, sF))
    a("s_lshl_b32 s%d, s%d, 14" % (sX1, sX1))
    a("s_lshl_b32 s%d, s%d, 11" % (sT3, sF))
    a("s_add_u32 s%d, s%d, %d" % (sT3, sT3, P1X))
    a("s_lshr_b32 s%d, s%d, 3" % (sKD, sJ))
    a("s_lshl1_add_u32 s%d, s%d, s%d" % (sKD, sKD, sJ))
    a("s_and_b32 s%d, s%d, 7" % (sKD, sKD))
    a("s_mov_b32 s%d, 0" % sSO)
    a("s_mov_b32 s%d, 0" % sI)
    a.stamp(1)
    a.label("L_d_issue")
    a("s_add_u32 m0, s%d, s%d" % (sT3, sSO))
    a("s_lshl_b32 s%d, s%d, 7" % (sT2, sKD))
    a("s_add_u32 s%d, s%d, s%d" % (sT2, sT2, sX1))
    for q in range(2):
        a("buffer_load_dwordx4 v%d, %s, s%d offen offset:%d lds" % (10 + q, s(SB, 4), sT2, q * 1024))
    a("s_mul_i32 s%d, s%d, %d" % (sT2, sKD, 64 * 3072))
    a("s_add_u32 s%d, s%d, s%d" % (sT2, sT2, sW1))
    a("s_add_u32 m0, s%d, s%d" % (sM1, sSO))
    a("s_add_u32 s%d, s%d, 1" % (sKD, sKD))
    for m in range(3): a("buffer_load_dwordx4 v8, %s, s%d offen offset:%d lds" % (s(SA, 4), sT2, m * 1024))
    a("s_add_u32 m0, m0, 3072")
    a("s_add_u32 s%d, s%d, %d" % (sT2, sT2, 8 * 3072))
    for m in range(3): a("buffer_load_dwordx4 v8, %s, s%d offen offset:%d lds" % (s(SA, 4), sT2, m * 1024))
    a("s_and_b32 s%d, s%d, 7" % (sKD, sKD))
    a("s_add_u32 s%d, s%d, %d" % (sSO, sSO, P1SLOT))
    a("s_cmp_eq_u32 s%d, %d" % (sSO, 3 * P1SLOT))
    a("s_cselect_b32 s%d, 0, s%d" % (sSO, sSO))
    a("s_add_u32 s%d, s%d, 1" % (sI, sI))
    a("s_cmp_eq_u32 s%d, 1" % sI)
    a("s_cbranch_scc1 L_d_issue")
    a("s_cmp_eq_u32 s%d, 8" % sI)
    a("s_cbranch_scc1 L_d_done")
    if OPT["early"]:
        a("s_cmp_eq_u32 s%d, 6" % sI)
        a("s_cbranch_scc1 L_d_g0")
        a("s_cmp_eq_u32 s%d, 7" % sI)
        a("s_cbranch_scc1 L_d_w16")
    a("s_cmp_lg_u32 s%d, 2" % sI)
    a("s_cbranch_scc1 L_d_wait")
    a("s_lshl3_add_u32 s%d, s%d, s%d" % (sFXW, sMT, sNG))
    a("s_lshl_b32 s%d, s%d, %d" % (sFXW, sFXW, OPT["fs"]))
    a("s_add_u32 s%d, s%d, %d" % (sFXW, sFXW, FX_OFF))
    f1_setup()
    for i in range(0, 112, 2): a("v_mov_b64 %s, 0" % v(ACC + i, 2))
    tagsetup(a)
    a.stamp(2)
    a.label("L_d_wait")
    a("s_waitcnt vmcnt(8)")
    a.label("L_d_bar")
    a("s_barrier")
    a("s_lshl4_add_u32 s%d, s%d, s%d" % (sT0, sF, sI))
    a("s_cmp_lg_u32 s%d, 4" % sT0)
    a("s_cbranch_scc1 L_d_issue")
    a("s_mov_b64 exec, 1")
    a("buffer_store_dwordx2 %s, v3, %s, s%d offen %s" % (v(VTAG, 2), s(SWS, 4), sFXW, sc()))
    a("s_mov_b64 exec, -1")
    a("s_branch L_d_issue")
    a.label("L_d_g0")
    dma()
    a.label("L_d_w16")
    a("s_waitcnt vmcnt(16)")
    a("s_branch L_d_bar")
    a.label("L_d_done")
    a.stamp(3)
    srd(a, SB, P_WS, WS_BYTES)
    a("v_lshlrev_b32 v165, %d, v2" % OPT["fs"])
    a("s_mov_b64 exec, 15")
    a("buffer_load_dwordx2 v[24:25], v165, %s, s%d offen sc1" % (s(SWS, 4), sFXP))
    a("s_waitcnt vmcnt(9)")
    a("s_barrier")
    a("s_waitcnt vmcnt(0)")
    a("v_cmp_ne_u64 vcc, %s, v[24:25]" % s(sTAG, 2))
    a("s_mov_b64 exec, -1")
    xoff()
    a("s_mov_b32 s%d, vcc_lo" % sI)
    a("s_cbranch_vccnz L_f_late1")
    for i in range(4): xld(i)
    a.label("L_f_late1")
    dma()
    a("s_barrier")
    if not OPT["early"]: a("s_waitcnt vmcnt(0)")
    a.stamp(4)
    a("s_barrier")
    a.stamp(5)
    if OPT["nof"] == 1: a("s_branch L_f_ep")
    a("s_setprio %d" % OPT["prio"])
    a("s_cmp_eq_u32 s%d, 0" % sI)
    a("s_cbranch_scc1 L_f_go")
    poll(a, 165, sFXP, 4, 24, "L_f_pollx")
    for i in range(4): xld(i)
    a.label("L_f_go")
    if not OPT["early"]: dma()
    D = OPT["f1depth"]
    sDN = 57
    a("s_mov_b32 s%d, 0" % sDN)
    def rd(n):
        s4, t = (n // 7) % 4, n % 7
        for sec in range(2):
            a("ds_read_b64_tr_b16 %s, v%d offset:%d" % (v(24 + t * 4 + sec * 2, 2), TA, s4 * 3584 + sec * 896 + t * 32))
    for n in range(D): rd(n)
    a("s_waitcnt vmcnt(0) lgkmcnt(0)")
    a.stamp(9)
    dma_at = {OPT["dma0"] + 2 * j: j for j in range(8)}
    N_DRD, N_DCK, N_RAR, N_RRD, N_RCK = 1, OPT["dma0"] - 1, 10, 27 - D - 4, 27 - D
    vm_after = []
    for n in range(28):
        ops = []
        if n in dma_at: ops.append("d%d" % dma_at[n])
        if n % 7 == 6: ops.append("x%d" % (n // 7))
        vm_after.append(ops)
    flat = [o for ops in vm_after for o in ops]
    def vm_n(op, n):
        return len(flat) - 1 - flat.index(op) + sum(len(o) for o in vm_after[:n])
    lg_after = [[] for _ in range(28)]
    for n in (N_DRD, N_RAR, N_RRD, 27): lg_after[n].append(1)
    a.label("L_f_loop")
    a("s_mul_i32 s%d, s%d, %d" % (sT2, sKC1, 64 * 3584))
    a("s_add_u32 s%d, s%d, s%d" % (sT2, sT2, sWO))
    a("s_cmp_lt_u32 s%d, 6" % sIT)
    a("s_cselect_b32 s%d, s%d, 0" % (SG + 2, SG + 2))
    a("s_add_u32 s%d, s%d, s%d" % (sT3, sM0, sSLW))
    xoff(7)
    for n in range(28):
        s4, t = n // 7, n % 7
        rd(n + D)
        out = 2 * D + sum(len(lg_after[(n - k) % 28]) for k in range(1, D + 1))
        w = "s_waitcnt lgkmcnt(%d)" % out
        if t == 0: w += " vmcnt(%d)" % vm_n("x%d" % s4, n)
        if n == N_RAR: w += " vmcnt(%d)" % vm_n("d7", n)
        if "vmcnt" in w and OPT["p1diag"] == 2: tr(a, 165)
        a(w)
        if "vmcnt" in w and OPT["p1diag"] == 2 and n in (0, 21): tr(a, 165)
        a("v_mfma_f32_32x32x16_bf16 %s, %s, %s, %s" % (v(ACC + 16 * t, 16), v(24 + t * 4, 4), v(XR + 4 * s4, 4), v(ACC + 16 * t, 16)))
        if n == N_DRD: a("ds_read_b32 v0, v%d offset:40" % VCN)
        if n == N_RRD: a("ds_read_b32 v0, v%d offset:4" % VCN)
        if n == N_RAR: arrive(a, VCN, VONE, 4)
        if n == 27: arrive(a, VCN, VONE, 40)
        if n in (N_DCK, N_RCK):
            nm = "L_f_d" if n == N_DCK else "L_f_r"
            a("v_readfirstlane_b32 s%d, v0" % sT0)
            if n == N_RCK:
                a("s_add_u32 s%d, s%d, %d" % (sSLR, sSLR, FSLOT))
                a("s_cmp_eq_u32 s%d, %d" % (sSLR, FNS * FSLOT))
                a("s_cselect_b32 s%d, 0, s%d" % (sSLR, sSLR))
                a("v_add_u32 v%d, s%d, v%d" % (TA, sSLR, TA0))
            else: a("s_nop 0")
            a("s_cmp_ge_u32 s%d, s%d" % (sT0, sDN if n == N_DCK else sTGT))
            a("s_cbranch_scc0 %s_slow" % nm)
            a.label(nm + "_back")
        if n in dma_at:
            j = dma_at[n]
            a("s_add_u32 m0, s%d, %d" % (sT3, j * 896))
            a("s_mov_b64 exec, %s" % s(sEX, 2))
            a("buffer_load_dwordx4 v4, %s, s%d offen lds" % (s(SG, 4), sT2))
            a("s_mov_b64 exec, -1")
            a("s_add_u32 s%d, s%d, %d" % (sT2, sT2, 4 * 3584))
        if t == 6: xld(s4)
    a("s_add_u32 s%d, s%d, 1" % (sKC1, sKC1))
    a("s_and_b32 s%d, s%d, 7" % (sKC1, sKC1))
    a("s_add_u32 s%d, s%d, %d" % (sSLW, sSLW, FSLOT))
    a("s_cmp_eq_u32 s%d, %d" % (sSLW, FNS * FSLOT))
    a("s_cselect_b32 s%d, 0, s%d" % (sSLW, sSLW))
    a("s_add_u32 s%d, s%d, 4" % (sTGT, sTGT))
    a("s_add_u32 s%d, s%d, 4" % (sDN, sDN))
    a("s_add_u32 s%d, s%d, 1" % (sIT, sIT))
    a("s_cmp_lt_u32 s%d, 8" % sIT)
    a("s_cbranch_scc1 L_f_loop")
    a("s_setprio %d" % OPT["prio2"])
    if OPT["p1diag"] == 2:
        tr_dump(a, 165, 0)
        a("s_waitcnt vmcnt(0)")
        a("v_lshlrev_b32 v165, %d, v2" % OPT["fs"])
    a.stamp(10)
    if OPT["nof"] == 2: a("s_branch L_f_ep")
    sH0, sH1, sFH = 48, 49, 50
    a("s_lshr_b32 s%d, s%d, 15" % (sT2, sXO))
    a("s_mul_i32 s%d, s%d, %d" % (sH0, sT2, A2_TT))
    a("s_mul_i32 s%d, s%d, 7168" % (sT1, sNJ))
    a("s_add_u32 s%d, s%d, s%d" % (sH0, sH0, sT1))
    a("s_add_u32 s%d, s%d, %d" % (sH0, sH0, A2_OFF + 32 * 1024))
    a("s_add_u32 s%d, s%d, 4096" % (sH1, sH0))
    a("s_lshl4_add_u32 s%d, s%d, s%d" % (sFH, sMT1, sNJ))
    a("s_lshl_b32 s%d, s%d, %d" % (sFH, sFH, OPT["fs"]))
    a("s_add_u32 s%d, s%d, %d" % (sFH, sFH, FH_OFF))
    a("s_waitcnt vmcnt(0) lgkmcnt(0)")
    arrive(a, VCN, VONE, 40)
    sMT2, sNT, sWB, sA0, sA1, sGW, sGA, sLB = 43, 44, 45, 46, 53, 54, 55, 56
    a("s_and_b32 s%d, s%d, 3" % (sT2, sJ))
    a("s_lshl2_add_u32 s%d, s%d, s%d" % (sMT2, sXCD, sT2))
    a("s_lshr_b32 s%d, s%d, 2" % (sNT, sJ))
    srd(a, SA, P_WD, 1792 * 1024)
    srd(a, SB, P_WO, 512 * 1024)
    a("v_lshrrev_b32 v8, 3, v2")
    a("v_lshlrev_b32 v8, 10, v8")
    a("v_lshl_add_u32 v8, v7, 4, v8")
    for i in range(1, 4): a("v_add_u32 v%d, %d, v8" % (8 + i, i * 7168))
    a("s_lshl_b32 s%d, s%d, 7" % (sWB, sNT))
    a("s_mul_i32 s%d, s%d, %d" % (sLB, sF, F2REG))
    a("s_add_u32 s%d, s%d, %d" % (sLB, sLB, LDS_F))
    a("s_mul_i32 s%d, s%d, 3" % (sGW, sT2))
    a("s_add_u32 s%d, s%d, s%d" % (sGW, sGW, sNT))
    a("s_sub_u32 s%d, s%d, 14" % (sT2, sGW))
    a("s_cmp_ge_u32 s%d, 14" % sGW)
    a("s_cselect_b32 s%d, s%d, s%d" % (sGW, sT2, sGW))
    a("s_mov_b32 s%d, s%d" % (sGA, sGW))
    a("s_and_b32 s%d, s%d, 1" % (sT1, sF))
    a("s_lshl1_add_u32 s%d, s%d, s%d" % (sT1, sMT2, sT1))
    a("s_mul_i32 s%d, s%d, %d" % (sA0, sT1, A2_TT))
    a("s_xor_b32 s%d, s%d, 1" % (sT1, sT1))
    a("s_mul_i32 s%d, s%d, %d" % (sA1, sT1, A2_TT))
    a("s_add_u32 s%d, s%d, %d" % (sA0, sA0, A2_OFF))
    a("s_add_u32 s%d, s%d, %d" % (sA1, sA1, A2_OFF))
    sF14 = 57
    a("s_mul_i32 s%d, s%d, 14" % (sF14, sF))
    a.vm = []
    def adv(sg):
        a("s_add_u32 s%d, s%d, 1" % (sg, sg))
        a("s_cmp_eq_u32 s%d, 14" % sg)
        a("s_cselect_b32 s%d, 0, s%d" % (sg, sg))
    def w2(g):
        a("s_add_u32 m0, s%d, %d" % (sLB, (g % 5) * 4096))
        if g < 14:
            a("s_add_u32 s%d, s%d, s%d" % (sT0, sF14, sGW))
            a("s_lshl_b32 s%d, s%d, 15" % (sT0, sT0))
            adv(sGW); sr = SA
        else:
            a("s_lshl_b32 s%d, s%d, 17" % (sT0, sF))
            a("s_add_u32 s%d, s%d, %d" % (sT0, sT0, (g - 14) * 32768)); sr = SB
        a("s_add_u32 s%d, s%d, s%d" % (sT0, sT0, sWB))
        for i in range(4):
            a.vmem("buffer_load_dwordx4 v%d, %s, s%d offen offset:%d lds" % (8 + i, s(sr, 4), sT0, i * 1024), "W%d" % g)
    AB = 96
    def a2(g):
        if g < 14:
            a("s_add_u32 s%d, s%d, s%d" % (sT0, sF14, sGA))
            a("s_lshl_b32 s%d, s%d, 11" % (sT0, sT0))
            a("s_add_u32 s%d, s%d, 32768" % (sT0, sT0))
            adv(sGA)
        else:
            a("s_lshl_b32 s%d, s%d, 13" % (sT0, sF))
            a("s_add_u32 s%d, s%d, %d" % (sT0, sT0, (g - 14) * 2048))
        a("s_add_u32 s%d, s%d, s%d" % (sT1, sT0, sA1))
        a("s_add_u32 s%d, s%d, s%d" % (sT0, sT0, sA0))
        for ks in range(2):
            for tb in range(2):
                a.vmem("buffer_load_dwordx4 %s, v3, %s, s%d offen offset:%d sc1" % (v(AB + (g % 4) * 16 + ks * 8 + tb * 4, 4), s(SWS, 4), sT0 + tb, ks * 1024), "A%d" % g)
    spin(a, VCN, 0, 40, sT0, "36", "L_f_spin2")
    for g in range(4): w2(g)
    a("v_mov_b32 v12, 0x%x" % f2u(C1))
    a("v_mov_b32 v14, 0x%x" % f2u(C2))
    for t in range(7):
        Gt = ACC + 16 * t; U = Gt + 8; T = 24 + (t % 2) * 12
        if OPT["pk"]:
            R = range(0, 8, 2)
            for i in R: a("v_pk_mul_f32 %s, %s, %s" % (v(T + i, 2), v(Gt + i, 2), v(Gt + i, 2)))
            for i in R: a("v_pk_fma_f32 %s, %s, v[14:15], v[12:13] op_sel_hi:[1,0,0]" % (v(T + i, 2), v(T + i, 2)))
            for i in R: a("v_pk_mul_f32 %s, %s, %s" % (v(T + i, 2), v(T + i, 2), v(Gt + i, 2)))
            for i in range(8): a("v_exp_f32 v%d, v%d" % (T + i, T + i))
            for i in R: a("v_pk_mul_f32 %s, %s, %s" % (v(Gt + i, 2), v(Gt + i, 2), v(U + i, 2)))
            for i in R: a("v_pk_add_f32 %s, %s, 1.0 op_sel_hi:[1,0]" % (v(T + i, 2), v(T + i, 2)))
            for i in range(8): a("v_rcp_f32 v%d, v%d" % (T + i, T + i))
            a.nop(1)
            for i in R: a("v_pk_mul_f32 %s, %s, %s" % (v(Gt + i, 2), v(Gt + i, 2), v(T + i, 2)))
        else:
            for i in range(8): a("v_mul_f32 v%d, v%d, v%d" % (T + i, Gt + i, Gt + i))
            for i in range(8): a("v_fmamk_f32 v%d, v%d, 0x%x, v12" % (T + i, T + i, f2u(C2)))
            for i in range(8): a("v_mul_f32 v%d, v%d, v%d" % (T + i, T + i, Gt + i))
            for i in range(8): a("v_exp_f32 v%d, v%d" % (T + i, T + i))
            for i in range(8): a("v_mul_f32 v%d, v%d, v%d" % (Gt + i, Gt + i, U + i))
            for i in range(8): a("v_add_f32 v%d, 1.0, v%d" % (T + i, T + i))
            for i in range(8): a("v_rcp_f32 v%d, v%d" % (T + i, T + i))
            a.nop(1)
            for i in range(8): a("v_mul_f32 v%d, v%d, v%d" % (Gt + i, Gt + i, T + i))
        for i in range(4): a("v_cvt_pk_bf16_f32 v%d, v%d, v%d" % (T + 8 + i, Gt + 2 * i, Gt + 2 * i + 1))
        a("buffer_store_dwordx4 %s, v3, %s, s%d offen offset:%d %s" % (v(T + 8, 4), s(SWS, 4), sH0 if t < 4 else sH1, (t % 4) * 1024, sc()))
    a("v_lshrrev_b32 v14, 5, v2")
    a("v_bfe_u32 v4, v2, 2, 2")
    a("v_and_b32 v5, 1, v2")
    a("v_lshlrev_b32 v5, 4, v5")
    a("v_and_b32 v6, 2, v2")
    a("v_lshl_add_u32 v5, v6, 2, v5")
    a("v_and_b32 v6, 16, v2")
    a("v_lshl_add_u32 v5, v6, 1, v5")
    a("s_and_b32 s%d, s%d, 2" % (sT2, sF))
    a("s_lshl_b32 s%d, s%d, 5" % (sT2, sT2))
    a("v_add_u32 v5, s%d, v5" % sT2)
    a("v_lshlrev_b32 v6, 5, v4")
    a("v_and_b32 v6, 64, v6")
    a("v_xor_b32 v5, v5, v6")
    a("v_lshl_add_u32 v4, v14, 2, v4")
    a("v_lshl_add_u32 v5, v4, 7, v5")
    a("v_xor_b32 v6, 64, v5")
    a("v_add_u32 v12, s%d, v5" % sLB)
    a("v_add_u32 v13, s%d, v6" % sLB)
    a("s_lshr_b32 s%d, s%d, 1" % (sT3, sMT2))
    a("s_lshl2_add_u32 s%d, s%d, s%d" % (sT3, sT3, sF))
    a("s_lshl_b32 s%d, s%d, %d" % (sT3, sT3, 2 + OPT["fs"]))
    a("s_add_u32 s%d, s%d, %d" % (sT3, sT3, FH_OFF))
    last_flag(a, VCN, VONE, 0, 36, 4, sFH, "L_f_hf")
    a.label("L_f_hf")
    if OPT["nof"] == 3: a("s_branch L_f_ep")
    a.stamp(11)
    poll(a, 165, sT3, 4, 16, "L_f_pollh")
    a.stamp(12)
    a.vm = []
    ACC2 = 32; WF = 16
    def rd2(g, ks, ci):
        for sec in range(2):
            a("ds_read_b64_tr_b16 %s, v%d offset:%d" % (v(WF + ks * 8 + ci * 4 + sec * 2, 2), 12 + ci, (g % 5) * 4096 + ks * 2048 + sec * 1024))
    def mm2(g, ks, ci):
        for ti in range(2):
            d = v(ACC2 + (ci * 2 + ti) * 16, 16)
            a("v_mfma_f32_32x32x16_bf16 %s, %s, %s, %s" % (d, v(WF + ks * 8 + ci * 4, 4), v(AB + (g % 4) * 16 + ks * 8 + ti * 4, 4), "0" if (g == 0 and ks == 0) else d))
    def comp(g, pre=None):
        if OPT["f2pace"] and g < 14:
            if pre: pre()
            for ks in range(2):
                for ci in range(2):
                    rd2(g, ks, ci)
                    a("s_waitcnt lgkmcnt(0)")
                    mm2(g, ks, ci)
            return
        for ks in range(2):
            for ci in range(2): rd2(g, ks, ci)
        if pre: pre()
        for ks in range(2):
            a("s_waitcnt lgkmcnt(%d)" % (4 if ks == 0 else 0))
            for ci in range(2): mm2(g, ks, ci)
    a("s_setprio %d" % OPT["prio3"])
    if OPT["f2gate"]: spin(a, VCN, 0, 0, sT0, "%d" % (16 + 8 * OPT["f2gate"]), "L_f_nofw")
    for g in range(3): a2(g)
    for g in range(14):
        if g + 3 < 14: a2(g + 3)
        w2(g + 4)
        a.wait_vm("A%d" % g)
        if a.vm_count_after("W%d" % g) is not None: a.wait_vm("W%d" % g)
        comp(g)
    srd(a, SA, P_X, 2 * MB)
    srd(a, SB, P_OUT, 2 * MB)
    sXS = 48
    a("s_and_b32 s%d, s%d, 1" % (sT1, sF))
    a("s_lshl1_add_u32 s%d, s%d, s%d" % (sT0, sMT2, sT1))
    a("s_lshl_b32 s%d, s%d, 15" % (sXS, sT0))
    a("s_add_u32 s%d, s%d, s%d" % (sXS, sXS, sWB))
    a("s_and_b32 s%d, s%d, 2" % (sT2, sF))
    a("s_lshl_b32 s%d, s%d, 5" % (sT2, sT2))
    a("s_add_u32 s%d, s%d, s%d" % (sXS, sXS, sT2))
    a("v_and_b32 v4, 31, v2")
    a("v_lshlrev_b32 v4, 10, v4")
    a("v_lshl_add_u32 v4, v14, 4, v4")
    a("buffer_load_dwordx4 v[8:11], v4, %s, s%d offen" % (s(SA, 4), sXS))
    a("buffer_load_dwordx4 v[160:163], v4, %s, s%d offen offset:32" % (s(SA, 4), sXS))
    a("s_lshl2_add_u32 s%d, s%d, s%d" % (sT3, sXCD, sF))
    a("s_lshl_b32 s%d, s%d, %d" % (sT3, sT3, 3 + OPT["fs"]))
    a("s_add_u32 s%d, s%d, %d" % (sT3, sT3, FO_OFF))
    a("s_waitcnt vmcnt(0)")
    for i in range(4):
        a("v_lshlrev_b32 v%d, 16, v%d" % (96 + 2 * i, 8 + i))
        a("v_and_b32 v%d, 0xffff0000, v%d" % (97 + 2 * i, 8 + i))
        a("v_lshlrev_b32 v%d, 16, v%d" % (104 + 2 * i, 160 + i))
        a("v_and_b32 v%d, 0xffff0000, v%d" % (105 + 2 * i, 160 + i))
    for i in range(16): a("v_add_f32 v%d, v%d, v%d" % (ACC2 + i, ACC2 + i, 96 + i))
    a("v_add_u32 v5, s%d, v3" % sLB)
    for sl in range(1, 4):
        a("s_xor_b32 s%d, s%d, %d" % (sT0, sF, sl))
        a("s_mul_i32 s%d, s%d, %d" % (sT0, sT0, F2REG))
        a("s_add_u32 s%d, s%d, %d" % (sT0, sT0, LDS_F + (sl - 1) * 4096))
        a("v_add_u32 v%d, s%d, v3" % (7 + sl, sT0))
    a("s_setprio 0")
    a.stamp(13)
    if OPT["nof"] == 4: a("s_branch L_f_ep")
    poll(a, 165, sT3, 8, 16, "L_f_pollo")
    a.stamp(14)
    a("s_setprio 3")
    a.vm = []
    for g in range(14, 18): a2(g)
    for g in range(14, 18):
        comp(g, lambda: a.wait_vm("A%d" % g))
    a.nop(10)
    for sl in range(1, 4):
        for q in range(4):
            a("ds_write_b128 v5, %s offset:%d" % (v(ACC2 + sl * 16 + 4 * q, 4), (sl - 1) * 4096 + q * 1024))
    a("s_waitcnt lgkmcnt(0)")
    arrive(a, VCN, VONE, 40)
    spin(a, VCN, 0, 40, sT0, "40", "L_f_spin3")
    for sl in range(1, 4):
        for q in range(4):
            a("ds_read_b128 %s, v%d offset:%d" % (v(ACC2 + sl * 16 + 4 * q, 4), 7 + sl, q * 1024))
    for sl in range(1, 4):
        a("s_waitcnt lgkmcnt(%d)" % (12 - 4 * sl))
        for i in range(0, 16, 2): a("v_pk_add_f32 %s, %s, %s" % (v(ACC2 + i, 2), v(ACC2 + i, 2), v(ACC2 + 16 * sl + i, 2)))
    for i in range(8): a("v_cvt_pk_bf16_f32 v%d, v%d, v%d" % (96 + i, ACC2 + 2 * i, ACC2 + 2 * i + 1))
    a("buffer_store_dwordx4 v[96:99], v4, %s, s%d offen" % (s(SB, 4), sXS))
    a("buffer_store_dwordx4 v[100:103], v4, %s, s%d offen offset:32" % (s(SB, 4), sXS))
    a.label("L_f_ep")
    if OPT["nof"]:
        spin(a, VCN, 0, 32, sT0, "8", "L_f_nofw")
    a("s_add_u32 s%d, s2, s%d" % (sT0, sF))
    a("s_cmp_lg_u32 s%d, 0" % sT0)
    a("s_cbranch_scc1 L_f_noep")
    a("s_mov_b32 s%d, %d" % (sT0, EPOCH_OFF))
    a("s_mov_b64 exec, 1")
    a("buffer_store_dword v%d, v3, %s, s%d offen" % (VTAG, s(SWS, 4), sT0))
    a("s_mov_b64 exec, -1")
    a.label("L_f_noep")
    a.stamp_flush(0, SWS, sW, 12)
    a("s_endpgm")
    a.label("L_f_d_slow")
    spin(a, VCN, 0, 40, sT0, "s%d" % sDN, "L_f_dspin")
    a("s_branch L_f_d_back")
    a.label("L_f_r_slow")
    spin(a, VCN, 0, 4, sT0, "s%d" % sTGT, "L_f_rspin")
    a("s_branch L_f_r_back")

def gen_kernel(name):
    a = Asm()
    a.label("L_start")
    a("s_cmp_ge_u32 s2, 256")
    a("s_cbranch_scc1 L_end")
    a.stamp(0)
    if OPT["p1diag"]: a("s_mov_b32 s100, 0")
    a("s_load_dwordx16 s[4:19], s[0:1], 0")
    a("s_load_dwordx4 s[20:23], s[0:1], 64")
    a("s_getpc_b64 s[30:31]")
    a.label("L_pc")
    a("s_lshr_b32 s%d, s2, 3" % sJ)
    a("v_lshrrev_b32 v1, 6, v0")
    a("s_mul_i32 s%d, s%d, 12" % (sT0, sJ))
    a("v_add_lshl_u32 v165, v1, s%d, 7" % sT0)
    a("v_min_u32 v165, (L_end - L_pc), v165")
    a("s_mov_b64 exec, 1")
    a("global_load_dword v165, v165, s[30:31]")
    a("s_mov_b64 exec, -1")
    a("v_and_b32 v2, 63, v0")
    a("v_readfirstlane_b32 s%d, v1" % sW)
    a("v_lshlrev_b32 v3, 4, v2")
    a("s_and_b32 s%d, s2, 7" % sXCD)
    a("s_lshr_b32 s%d, s%d, 1" % (sMT, sXCD))
    a("s_and_b32 s%d, s%d, 7" % (sT0, sJ))
    a("s_lshl3_add_u32 s%d, s%d, s%d" % (sMT, sMT, sT0))
    a("s_and_b32 s%d, s%d, 1" % (sNG, sXCD))
    a("s_lshr_b32 s%d, s%d, 3" % (sT0, sJ))
    a("s_lshl2_add_u32 s%d, s%d, s%d" % (sNG, sNG, sT0))
    a("s_lshl3_add_u32 s%d, s%d, s%d" % (sT0, sMT, sNG))
    a("s_lshl3_add_u32 s%d, s%d, s%d" % (sT0, sT0, sW))
    a("s_lshl_b32 s%d, s%d, 10" % (sT0, sT0))
    a("s_cmp_lt_u32 s%d, 8" % sW)
    a("s_waitcnt lgkmcnt(0)")
    srd(a, SB, P_X, 2 * MB, scc_safe=True)
    a("s_cbranch_scc0 L_norow")
    a("buffer_load_dwordx4 v[160:163], v3, %s, s%d offen" % (s(SB, 4), sT0))
    a.label("L_norow")
    a("s_add_u32 s62, s%d, %d" % (P_WS, EPOCH_OFF))
    a("s_addc_u32 s63, s%d, 0" % (P_WS + 1))
    a("s_load_dword s%d, s[62:63], 0" % sTAG)
    srd(a, SWS, P_WS, WS_BYTES)
    a("s_mov_b32 s%d, 0x3f803f80" % sONE)
    a("s_cmp_lt_u32 s%d, 8" % sW)
    a("s_cbranch_scc1 L_role_a")
    role_f(a)
    a.label("L_role_a")
    a.vm = []
    role_a(a)
    a.label("L_end")
    a("s_endpgm")
    return dict(name=name, asm=a, vgpr=168, grid=(256, 1, 1), block=(768, 1, 1), lds=LDS_TOTAL)
```

```python
from common import *
from layout import *
from kgu import f2u, C1, C2

FL_OFF = 32 * MB
EPOCH_OFF = FL_OFF
FX_OFF = FL_OFF + 0x10000
FQ_OFF = FL_OFF + 0x20000
FH_OFF = FL_OFF + 0x30000
FO_OFF = FL_OFF + 0x40000
TAGX = 0x5bd1e995

LDS_F = 65536
FSLOT = 28800; UPOFF = 14368; FNS = 3
F2REG = 20480
LDS_CNT = LDS_F + FNS * FSLOT
LDS_ST = LDS_CNT + 128
LDS_TOTAL = 163840

P_X, P_WQKV, P_WO, P_WG, P_WU, P_WD, P_OUT, P_WS = 4, 6, 8, 12, 14, 16, 18, 22
SWS, SA, SB = 24, 28, 32
sW = 36
sT0, sT1, sT2, sT3 = 37, 38, 39, 40
sXCD, sJ = 41, 42
sMT, sNG = 43, 44
sTAG = 60
sSPIN = 62
sONE = 3
VTAG = 166
SC = "sc0 sc1"
OPT = dict(touch=0, gper=2, p1diag=0, fs=7, psleep=2, sc=0, vprio=1, prio3=0, f2pace=1, nof=0, pk=1, thr2=2, qflag=6)

_stamp = Asm.stamp
def stamp_gate(self, i, force=False):
    if OPT["p1diag"] and not force and i not in (0, 15): return
    _stamp(self, i)
Asm.stamp = stamp_gate
def bar(a, i):
    if OPT["p1diag"] and i < 7: a.stamp(1 + 2 * i, True)
    a("s_barrier")
    if OPT["p1diag"] and i < 7: a.stamp(2 + 2 * i, True)

def tr(a, vr):
    if not OPT["p1diag"]: return
    a("s_memtime s[98:99]")
    a("s_waitcnt lgkmcnt(0)")
    a("s_sub_u32 s98, s98, s96")
    a("s_mov_b32 m0, s100")
    a("s_add_u32 s100, s100, 1")
    a("v_writelane_b32 v%d, s98, m0" % vr)
def tr_dump(a, vr, vtmp):
    if not OPT["p1diag"]: return
    a("s_mul_i32 s100, s2, 12")
    a("s_add_u32 s100, s100, s%d" % sW)
    a("s_lshl_b32 s100, s100, 8")
    a("s_add_u32 s100, s100, %d" % (66 << 20))
    a("v_lshlrev_b32 v%d, 2, v2" % vtmp)
    a("buffer_store_dword v%d, v%d, %s, s100 offen" % (vr, vtmp, s(SWS, 4)))

def arrive(a, vaddr, vone, off):
    a("s_mov_b64 exec, 1")
    a("ds_add_u32 v%d, v%d offset:%d" % (vaddr, vone, off))
    a("s_mov_b64 exec, -1")

def spin(a, vaddr, vp, off, stmp, target, name):
    a("s_mov_b32 s%d, 0x200000" % sSPIN)
    a.label(name)
    a("ds_read_b32 v%d, v%d offset:%d" % (vp, vaddr, off))
    a("s_waitcnt lgkmcnt(0)")
    a("v_readfirstlane_b32 s%d, v%d" % (stmp, vp))
    a("s_nop 0")
    a("s_cmp_ge_u32 s%d, %s" % (stmp, target))
    a("s_cbranch_scc1 %s_ok" % name)
    a("s_sleep %d" % (8 if name.startswith("L_f_nofw") else 1))
    a("s_sub_u32 s%d, s%d, 1" % (sSPIN, sSPIN))
    a("s_cbranch_scc0 %s" % name)
    a.label(name + "_ok")

def sc(): return "sc1" if OPT["sc"] else "sc0 sc1"

def set_flag(a, soff, vz, lanes=1):
    a("s_waitcnt vmcnt(0)")
    a("s_mov_b64 exec, %d" % ((1 << lanes) - 1))
    a("buffer_store_dwordx2 %s, v%d, %s, s%d offen %s" % (v(VTAG, 2), vz, s(SWS, 4), soff, sc()))
    a("s_mov_b64 exec, -1")

def last_flag(a, vcn, vone, vp, off, n, soff, skip):
    a("s_waitcnt vmcnt(0)")
    a("s_mov_b64 exec, 1")
    a("ds_add_rtn_u32 v%d, v%d, v%d offset:%d" % (vp, vcn, vone, off))
    a("s_waitcnt lgkmcnt(0)")
    a("v_readfirstlane_b32 s%d, v%d" % (sT0, vp))
    a("s_mov_b64 exec, -1")
    a("s_cmp_lg_u32 s%d, %d" % (sT0, n - 1))
    a("s_cbranch_scc1 %s" % skip)
    a("s_mov_b64 exec, 1")
    a("buffer_store_dwordx2 %s, v3, %s, s%d offen %s" % (v(VTAG, 2), s(SWS, 4), soff, sc()))
    a("s_mov_b64 exec, -1")

def poll(a, voff, soff, nl, vp, name):
    a("s_mov_b32 s%d, 0x20000" % sSPIN)
    assert nl <= 32
    a("s_mov_b32 exec_lo, 0x%x" % ((1 << nl) - 1))
    a("s_mov_b32 exec_hi, 0")
    a.label(name)
    a("buffer_load_dwordx2 %s, v%d, %s, s%d offen sc1" % (v(vp, 2), voff, s(SWS, 4), soff))
    a("s_waitcnt vmcnt(0)")
    a("v_cmp_ne_u64 vcc, %s, %s" % (s(sTAG, 2), v(vp, 2)))
    a("s_sub_u32 s%d, s%d, 1" % (sSPIN, sSPIN))
    a("s_cbranch_scc1 %s_ok" % name)
    a("s_cbranch_vccz %s_ok" % name)
    a("s_sleep %d" % OPT["psleep"])
    a("s_branch %s" % name)
    a.label(name + "_ok")
    a("s_mov_b64 exec, -1")

def tagsetup(a):
    a("s_waitcnt lgkmcnt(0)")
    a("s_add_u32 s%d, s%d, 1" % (sTAG, sTAG))
    a("s_xor_b32 s%d, s%d, 0x%x" % (sTAG + 1, sTAG, TAGX))
    a("v_mov_b32 v%d, s%d" % (VTAG, sTAG))
    a("v_mov_b32 v%d, s%d" % (VTAG + 1, sTAG + 1))

def bf16r(a, r):
    a("v_cvt_pk_bf16_f32 v%d, v%d, v%d" % (r, r, r))
    a("v_and_b32 v%d, 0xffff0000, v%d" % (r, r))

def ln_final(a, sm, sq, tmp):
    a("v_mul_f32 v%d, 0x3b000000, v%d" % (sm, sm))
    a("v_mul_f32 v%d, 0x3b000000, v%d" % (sq, sq))
    a("v_fma_f32 v%d, -v%d, v%d, v%d" % (sq, sm, sm, sq))
    a("v_max_f32 v%d, 0, v%d" % (sq, sq))
    bf16r(a, sq)
    bf16r(a, sm)
    a("v_add_f32 v%d, 0x3727c5ac, v%d" % (sq, sq))
    bf16r(a, sq)
    a("v_sqrt_f32 v%d, v%d" % (sq, sq))
    a.nop(1)
    bf16r(a, sq)
    a("v_rcp_f32 v%d, v%d" % (sq, sq))
    a.nop(1)

def xsum(a, r, t, kind):
    a("v_mov_b32 v%d, v%d" % (t, r))
    a.nop(2)
    a("v_permlane%d_swap_b32 v%d, v%d" % (kind, r, t))
    a("v_add_f32 v%d, v%d, v%d" % (r, r, t))

XB, XA, WB, WA = 12, 13, 17, 18
FR = 116; ACC1 = 48
def role_a(a):
    sD0, sD1, sSCL = 45, 46, 48
    sHEAD, sQT, sKV, sCH, sSL, sKVB, sQ0, sKH = 49, 50, 51, 52, 53, 54, 55, 57
    sVM = 58
    sCNT, sTGT = 45, 46
    sSO, sI, sKC = 28, 29, 31
    sH = 12
    KA, VA, VCN, VONE, VP, VLO = 8, 9, 44, 45, 46, 47
    Q = [4, 112]; KF = [12, 16]; VF = [20, 28]; P = 36; S = [48, 64]; O = [80, 96]
    VST, WB2 = 19, 10
    XS = 132
    a("s_mov_b32 s10, s%d" % sT0)
    a("s_mov_b32 s11, s%d" % sT1)
    a("s_bitcmp1_b32 s%d, 1" % sW)
    a("s_cselect_b64 s[16:17], %s, %s" % (s(P_WU, 2), s(P_WG, 2)))
    a("s_and_b32 s47, s%d, 15" % sJ)
    a("s_and_b32 s%d, s%d, 1" % (sT2, sW))
    a("s_lshl1_add_u32 s47, s47, s%d" % sT2)
    a("s_mul_i32 s47, s47, %d" % (16 * 3584))
    a("s_mul_i32 s%d, s%d, 448" % (sT2, sNG))
    a("s_add_u32 s47, s47, s%d" % sT2)
    a("v_lshrrev_b32 v4, 2, v2")
    a("v_mul_u32_u24 v4, 3584, v4")
    a("v_and_b32 v5, 3, v2")
    a("v_lshl_add_u32 v114, v5, 7, v4")
    a("v_lshrrev_b32 v4, 4, v2")
    a("v_and_b32 v5, 15, v2")
    a("v_xor_b32 v5, v5, v4")
    a("v_lshlrev_b32 v4, 10, v4")
    a("v_lshl_add_u32 v116, v5, 4, v4")
    a("s_and_b32 s%d, s%d, 1" % (sT1, sW))
    a("s_lshl_b32 s%d, s%d, 7" % (sT1, sT1))
    a("s_and_b32 s%d, s%d, 0xffff" % (sT0, sT0))
    a("v_xor_b32 v116, s%d, v116" % sT1)
    a("v_add_u32 v116, s%d, v116" % sT0)
    a("v_xor_b32 v117, 64, v116")
    a("v_and_b32 v4, 31, v2")
    a("v_lshrrev_b32 v5, 5, v2")
    a("v_and_b32 v6, 15, v2")
    a("v_xor_b32 v6, v6, v5")
    a("v_lshlrev_b32 v6, 4, v6")
    a("v_lshl_add_u32 v%d, v4, 10, v6" % XB)
    a("s_lshr_b32 s%d, s%d, 1" % (sT0, sW))
    a("s_min_u32 s%d, s%d, 2" % (sT1, sT0))
    a("s_sub_u32 s%d, s%d, s%d" % (sT2, sT0, sT1))
    a("s_lshl_b32 s%d, s%d, 15" % (sT3, sT2))
    a("v_add_u32 v%d, s%d, v%d" % (XB, sT3, XB))
    a("v_bfe_u32 v6, v2, 2, 2")
    a("v_and_b32 v7, 3, v2")
    a("v_lshlrev_b32 v7, 3, v7")
    a("v_lshl_add_u32 v14, v5, 3, v6")
    a("v_mul_u32_u24 v14, 448, v14")
    a("v_bfe_u32 v15, v2, 4, 1")
    a("v_mul_u32_u24 v15, %d, v15" % UPOFF)
    a("v_add3_u32 v%d, v14, v15, v7" % WB2)
    a("v_and_b32 v13, 16, v2")
    a("v_lshl_add_u32 v7, v13, 1, v7")
    a("s_and_b32 s%d, s%d, 1" % (sT0, sW))
    a("s_lshl_b32 s%d, s%d, 6" % (sT3, sT0))
    a("v_add_u32 v7, s%d, v7" % sT3)
    a("v_lshlrev_b32 v14, 5, v6")
    a("v_and_b32 v14, 64, v14")
    a("v_xor_b32 v7, v7, v14")
    a("v_lshl_add_u32 v7, v6, 7, v7")
    a("v_mul_u32_u24 v14, 3072, v5")
    a("s_lshl_b32 s%d, s%d, 10" % (sT3, sT1))
    a("v_add3_u32 v%d, v7, v14, s%d" % (WB, sT3))
    a("v_and_b32 v6, 15, v2")
    a("v_lshlrev_b32 v6, 4, v6")
    a("v_lshl_add_u32 v%d, v5, 8, v6" % VLO)
    a("s_mul_i32 s%d, s%d, 3" % (sT3, sT0))
    a("s_add_u32 s%d, s%d, 8" % (sT3, sT3))
    a("s_lshl_b32 s%d, s%d, 1" % (sKH, sW))
    a("s_cmp_lt_u32 s%d, 4" % sW)
    a("s_cselect_b32 s%d, s%d, s%d" % (sT3, sKH, sT3))
    a("s_cselect_b32 s%d, %d, 0" % (sH + 1, A2_TT - 1024))
    a("s_cselect_b32 s%d, 0, 1024" % (sH + 2))
    a("s_add_u32 s%d, s%d, 1024" % (sH + 1, sH + 1))
    a("s_add_u32 s%d, s%d, 1024" % (sH + 2, sH + 2))
    a("s_lshl_b32 s%d, s%d, 5" % (sKH, sT3))
    a("v_add_u32 v%d, s%d, v%d" % (WB2, sKH, WB2))
    a("s_lshl1_add_u32 s%d, s%d, s%d" % (sT0, sNG, sT0))
    a("s_lshl1_add_u32 s%d, s%d, s%d" % (sT2, sMT, sT2))
    a("s_mul_i32 s%d, s%d, 14" % (sKH, sNG))
    a("s_add_u32 s%d, s%d, s%d" % (sKH, sKH, sT3))
    a("s_lshl_b32 s%d, s%d, 10" % (sKH, sKH))
    a("s_mul_i32 s%d, s%d, %d" % (sH, sT2, A2_TT))
    a("s_add_u32 s%d, s%d, s%d" % (sH, sH, sKH))
    a("s_add_u32 s%d, s%d, %d" % (sH, sH, A2_OFF + 32 * 1024))
    a("s_add_u32 s%d, s%d, s%d" % (sH + 1, sH + 1, sH))
    a("s_add_u32 s%d, s%d, s%d" % (sH + 2, sH + 2, sH))
    a("s_add_u32 s%d, s%d, 1024" % (sH + 3, sH + 1))
    a("s_lshl_b32 s%d, s%d, 17" % (sD0, sT0))
    a("s_lshl_b32 s%d, s%d, 10" % (sT3, sT2))
    a("s_add_u32 s%d, s%d, s%d" % (sD0, sD0, sT3))
    a("s_add_u32 s%d, s%d, %d" % (sD0, sD0, QF_OFF))
    a("s_min_u32 s%d, s%d, 1" % (sT3, sT1))
    a("s_lshl_b32 s%d, s%d, s%d" % (sD0, sD0, sT3))
    a("s_lshl_b32 s%d, 65536, s%d" % (sD1, sT3))
    a("s_add_u32 s%d, s%d, s%d" % (sD1, sD1, sD0))
    a("s_lshl_b32 s%d, 1024, s%d" % (sKH, sT3))
    a("v_add_u32 v%d, s%d, v3" % (VST, sKH))
    a("v_lshl_add_u32 v115, v13, 13, v%d" % VLO)
    a("s_cmp_eq_u32 s%d, 0" % sT1)
    a("s_cselect_b32 s%d, 0x%x, 1.0" % (sSCL, QSCALE))
    a("s_lshr_b32 s%d, s%d, 3" % (sT2, sJ))
    a("s_lshl2_add_u32 s%d, s%d, s%d" % (sHEAD, sXCD, sT2))
    a("s_and_b32 s%d, s%d, 7" % (sCH, sJ))
    a("s_and_b32 s%d, s%d, 3" % (sT0, sW))
    a("s_lshl_b32 s%d, s%d, 1" % (sT0, sT0))
    a("s_lshl3_add_u32 s%d, s%d, s%d" % (sQT, sCH, sT0))
    a("s_lshr_b32 s%d, s%d, 2" % (sKH, sW))
    a("s_add_u32 s%d, s%d, s%d" % (sQT, sQT, sKH))
    a("s_lshl_b32 s%d, s%d, 11" % (sSL, sW))
    a("s_lshl_b32 s%d, s%d, 17" % (sKVB, sHEAD))
    a("s_add_u32 s%d, s%d, %d" % (sKVB, sKVB, KV_OFF))
    a("s_add_u32 s%d, s%d, s%d" % (sKV, sKVB, sSL))
    a("s_lshl_b32 s%d, s%d, 16" % (sQ0, sHEAD))
    a("s_lshl_b32 s%d, s%d, 10" % (sT2, sQT))
    a("s_add_u32 s%d, s%d, s%d" % (sQ0, sQ0, sT2))
    a("s_add_u32 s%d, s%d, %d" % (sQ0, sQ0, QF_OFF))
    a("v_mov_b32 v6, 0")
    a("s_mov_b32 exec_lo, 0x00110000")
    a("s_mov_b32 exec_hi, 0x00110000")
    a("v_mov_b32 v6, s%d" % sONE)
    a("s_mov_b64 exec, -1")
    a("v_mov_b32 v11, v6")
    a("s_mov_b32 s%d, 0" % sCH)
    a("s_mov_b32 s%d, 0x0000ffff" % sVM)
    a("s_mov_b32 s%d, 0x0000ffff" % (sVM + 1))
    a("s_lshl_b32 s%d, s%d, 13" % (sKH, sKH))
    a("v_add_u32 v%d, s%d, v3" % (KA, sKH))
    a("v_add_u32 v%d, s%d, v%d" % (VA, sKH, VLO))
    a("v_mov_b32 v%d, 1" % VONE)
    a("v_mov_b32 v%d, %d" % (VCN, LDS_CNT))
    for i in range(40, 44, 2): a("v_mov_b64 %s, 0" % v(i, 2))
    for i in range(48, 112, 2): a("v_mov_b64 %s, 0" % v(i, 2))
    a("v_mov_b32 v4, s%d" % sSCL)
    a("v_mov_b32 v36, 0x%x" % f2u(C1))
    a("v_mov_b32 v38, 0x%x" % f2u(C2))
    a("ds_write_b128 v%d, v[48:51]" % VCN)
    a("ds_write_b128 v%d, v[48:51] offset:16" % VCN)
    a("ds_write_b128 v%d, v[48:51] offset:32" % VCN)
    a("s_mov_b32 s%d, %d" % (sSO, LDS_F))
    a("s_mov_b32 s%d, 8" % sI)
    a("s_and_b32 s%d, s%d, 7" % (sKC, sJ))
    a("s_lshl_b32 s%d, s%d, 7" % (sKC, sKC))
    def addrs(nk=4, wb=WB):
        a("v_xor_b32 v%d, s%d, v%d" % (XA, sKC, XB))
        a("v_add_u32 v%d, s%d, v%d" % (WA, sSO, wb))
        for k in range(1, nk): a("v_xor_b32 v%d, %d, v%d" % (XA + k, k << 5, XA))
        a("s_add_u32 s%d, s%d, %d" % (sKC, sKC, 32 * nk))
        a("s_and_b32 s%d, s%d, 0x3ff" % (sKC, sKC))
        a("s_add_u32 s%d, s%d, %d" % (sSO, sSO, FSLOT))
        a("s_cmp_eq_u32 s%d, %d" % (sSO, LDS_F + 3 * FSLOT))
        a("s_cselect_b32 s%d, %d, s%d" % (sSO, LDS_F, sSO))
    addrs()
    a("s_cmp_lt_u32 s%d, 4" % sW)
    a("s_cbranch_scc1 L_a_bx")
    for g in range(2):
        for p in range(4):
            a("buffer_load_dwordx4 %s, v164, %s, s%d offen offset:%d" % (v(132 + 16 * g + 4 * p, 4), s(SB, 4), 10 + g, p * 256))
    a.label("L_a_bx")
    srd(a, SB, 16, 512 * 3584)
    a("s_barrier")
    a.stamp(1)
    for g in range(2):
        a("s_waitcnt vmcnt(%d)" % (4 - 4 * g))
        for i in range(16):
            r = XS + 16 * g + i; d = 118 + 2 * g + 4 * (i & 1)
            a("v_dot2_f32_bf16 v%d, v%d, s%d, %s" % (d, r, sONE, "0" if i < 2 else "v%d" % d))
            a("v_dot2_f32_bf16 v%d, v%d, v%d, %s" % (d + 1, r, r, "0" if i < 2 else "v%d" % (d + 1)))
    a.nop(1)
    a("v_pk_add_f32 v[118:119], v[118:119], v[122:123]")
    a.nop(1)
    a("v_pk_add_f32 v[120:121], v[120:121], v[124:125]")
    a.nop(1)
    for sh in (8, 4, 2, 1):
        for k in range(118, 122):
            a("v_add_f32_dpp v%d, v%d, v%d row_ror:%d row_mask:0xf bank_mask:0xf" % (k, k, k, sh))
    n0 = len(a.lines); ln_final(a, 118, 119, 0); l0 = a.lines[n0:]; del a.lines[n0:]
    ln_final(a, 120, 121, 0); l1 = a.lines[n0:]; del a.lines[n0:]
    for x, y in zip(l0, l1):
        if not x.startswith("s_nop"): a(x); a(y)
    a("v_mul_f32_e64 v118, -v118, v119")
    a("v_mul_f32_e64 v120, -v120, v121")
    for g in range(2):
        for p in range(4):
            for q in range(4):
                r = XS + 16 * g + 4 * p + q; t = 122 + 2 * q
                a("v_lshlrev_b32 v%d, 16, v%d" % (t, r))
                a("v_and_b32 v%d, 0xffff0000, v%d" % (t + 1, r))
                a("v_pk_fma_f32 %s, %s, %s, %s op_sel:[0,1,0] op_sel_hi:[1,1,0]" % (v(t, 2), v(t, 2), v(118 + 2 * g, 2), v(118 + 2 * g, 2)))
            for q in range(4):
                a("v_cvt_pk_bf16_f32 v%d, v%d, v%d" % (XS + 16 * g + 4 * p + q, 122 + 2 * q, 123 + 2 * q))
            a("ds_write_b128 v%d, %s offset:%d" % (116 + g, v(XS + 16 * g + 4 * p, 4), g * 4096 + p * 256))
    tagsetup(a)
    a.stamp(2)
    a("s_barrier")
    a.stamp(3)
    a("s_cmp_ge_u32 s%d, 4" % sW)
    a("s_cbranch_scc1 L_p1_v0")
    def wread(k, dst):
        for sec in range(2):
            a("ds_read_b64_tr_b16 %s, v%d offset:%d" % (v(dst + 2 * sec, 2), WA, k * 6144 + sec * 512))
    def xread(k, dst, tb): a("ds_read_b128 %s, v%d offset:%d" % (v(dst, 4), XA + k, tb * 32768))
    def gread(k, dst, t):
        for sec in range(2):
            a("ds_read_b64_tr_b16 %s, v%d offset:%d" % (v(dst + 2 * sec, 2), WA, k * 7168 + sec * 1792 + t * 32))
    def cap(fn, *args):
        n = len(a.lines); fn(*args); out = a.lines[n:]; del a.lines[n:]; return out
    def weave(mm, rd, per):
        for l in mm:
            a(l)
            if l.startswith("v_mfma"):
                for _ in range(per):
                    if rd: a(rd.pop(0))
        for l in rd: a(l)
    def gemm(lab, rdf, mmf, n, per, touch=False):
        for k in range(3): rdf(k)
        a("s_branch %s_m" % lab)
        a.label(lab)
        rd = cap(rdf, 0) + cap(rdf, 1)
        m2 = cap(mmf, 2)
        for l in m2:
            a(l)
            for _ in range(per):
                if rd: a(rd.pop(0))
        weave(cap(mmf, 3), rd + cap(rdf, 2), per)
        a.label(lab + "_m")
        a("s_waitcnt lgkmcnt(%d)" % (2 * n))
        weave(cap(mmf, 0), cap(rdf, 3), per)
        a("s_waitcnt lgkmcnt(%d)" % (2 * n))
        mm1 = cap(mmf, 1)
        a(mm1[0]); addrs()
        for l in mm1[1:]: a(l)
        if touch and OPT["touch"]:
            a("s_add_u32 s%d, s%d, s%d" % (sT0, sI, sW))
            a("s_cmp_lg_u32 s%d, 12" % sT0)
            a("s_cbranch_scc1 %s_nt" % lab)
            a("buffer_load_dword v114, v114, %s, s47 offen" % s(SB, 4))
            a.label(lab + "_nt")
        a("s_sub_u32 s%d, s%d, 1" % (sI, sI))
        a("s_waitcnt lgkmcnt(0)")
        a("s_barrier")
        a("s_cmp_lg_u32 s%d, 0" % sI)
        a("s_cbranch_scc1 %s" % lab)
        a.stamp(4)
        mmf(2); mmf(3)
        a("s_mov_b32 s%d, %d" % (sSO, LDS_F + 2 * FSLOT))
        a("s_and_b32 s%d, s%d, 15" % (sKC, sJ))
        a("s_lshl_b32 s%d, s%d, 6" % (sKC, sKC))
        a("s_mov_b32 s%d, 16" % sI)
        addrs(2, WB2)
    GB = [[132, 148], [116, 20]]
    def gu(lab, rdf, mmf, n):
        a.stamp(5)
        def tail(last=False):
            addrs(2, WB2)
            a("s_sub_u32 s%d, s%d, 1" % (sI, sI))
            if last:
                a("s_cmp_lg_u32 s%d, %d" % (sI, 18 - OPT["qflag"]))
                a("s_cbranch_scc1 %s_b" % lab)
                a("s_waitcnt vmcnt(0)")
                a.label(lab + "_b")
            a("s_waitcnt lgkmcnt(0)")
            tr(a, 165)
            a("s_barrier")
            tr(a, 165)
        a("s_branch %s_m" % lab)
        a.label(lab)
        weave(cap(mmf, 1, 0) + cap(mmf, 1, 1), cap(rdf, 0, 0) + cap(rdf, 0, 1), OPT["gper"])
        a.label(lab + "_m")
        tail()
        weave(cap(mmf, 0, 0) + cap(mmf, 0, 1), cap(rdf, 1, 0) + cap(rdf, 1, 1), OPT["gper"])
        tail(True)
        a("s_cmp_lg_u32 s%d, 0" % sI)
        a("s_cbranch_scc1 %s" % lab)
        a("s_setprio 3")
        mmf(1, 0); mmf(1, 1)
    def qk_rd(k): wread(k, FR + 12 * k); xread(k, FR + 12 * k + 4, 0); xread(k, FR + 12 * k + 8, 1)
    def qk_mm(k):
        f = FR + 12 * k
        for tb in range(2):
            d = v(ACC1 + 16 * tb, 16)
            a("v_mfma_f32_32x32x16_bf16 %s, %s, %s, %s" % (d, v(f, 4), v(f + 4 + 4 * tb, 4), d))
    def g4_rd(p, k):
        b = GB[p][k]
        gread(k, b, 0); xread(k, b + 8, 0); xread(k, b + 12, 1); gread(k, b + 4, 1)
    def g4_mm(p, k):
        b = GB[p][k]
        for fi in range(2):
            for tb in range(2):
                d = v(ACC1 + 16 * (2 * fi + tb), 16)
                a("v_mfma_f32_32x32x16_bf16 %s, %s, %s, %s" % (d, v(b + 4 * fi, 4), v(b + 8 + 4 * tb, 4), d))
    gemm("L_p1_qk", qk_rd, qk_mm, 4, 3)
    g4_rd(0, 0); g4_rd(0, 1)
    for tb in range(2):
        A0 = ACC1 + 16 * tb
        for i in range(0, 16, 2): a("v_pk_mul_f32 %s, %s, v[4:5] op_sel_hi:[1,0]" % (v(A0 + i, 2), v(A0 + i, 2)))
        for i in range(8): a("v_cvt_pk_bf16_f32 v%d, v%d, v%d" % (FR + 8 * tb + i, A0 + 2 * i, A0 + 2 * i + 1))
        a("buffer_store_dwordx4 %s, v%d, %s, s%d offen %s" % (v(FR + 8 * tb, 4), VST if tb else 3, s(SWS, 4), sD0, sc()))
        a("buffer_store_dwordx4 %s, v%d, %s, s%d offen %s" % (v(FR + 8 * tb + 4, 4), VST if tb else 3, s(SWS, 4), sD1, sc()))
        for i in range(0, 16, 2): a("v_mov_b64 %s, 0" % v(A0 + i, 2))
    gu("L_gu4", g4_rd, g4_mm, 6)
    a("s_branch L_p1_done")
    a.label("L_p1_v0")
    if OPT["vprio"]: a("s_setprio 1")
    def v_rd(k): xread(k, FR + 8 * k + 4, 0); wread(k, FR + 8 * k)
    def v_mm(k):
        f = FR + 8 * k; d = v(ACC1, 16)
        a("v_mfma_f32_32x32x16_bf16 %s, %s, %s, %s" % (d, v(f + 4, 4), v(f, 4), d))
    def g3_rd(p, k):
        b = GB[p][k]
        gread(k, b, 0); xread(k, b + 12, 0); gread(k, b + 4, 1); gread(k, b + 8, 2)
    def g3_mm(p, k):
        b = GB[p][k]
        for fi in range(3):
            d = v(ACC1 + 16 * fi, 16)
            a("v_mfma_f32_32x32x16_bf16 %s, %s, %s, %s" % (d, v(b + 4 * fi, 4), v(b + 12, 4), d))
    gemm("L_p1_v", v_rd, v_mm, 3, 4, True)
    g3_rd(0, 0); g3_rd(0, 1)
    for i in range(8): a("v_cvt_pk_bf16_f32 v%d, v%d, v%d" % (FR + i, ACC1 + 2 * i, ACC1 + 2 * i + 1))
    a("buffer_store_dwordx4 %s, v115, %s, s%d offen offset:1024 %s" % (v(FR, 4), s(SWS, 4), sD0, sc()))
    a("buffer_store_dwordx4 %s, v115, %s, s%d offen offset:1536 %s" % (v(FR + 4, 4), s(SWS, 4), sD0, sc()))
    for i in range(0, 16, 2): a("v_mov_b64 %s, 0" % v(ACC1 + i, 2))
    gu("L_gu3", g3_rd, g3_mm, 7)
    a.label("L_p1_done")
    tr_dump(a, 165, 164)
    a.stamp(6)
    def dma():
        a("s_mov_b32 m0, s%d" % sSL)
        a("s_add_u32 s%d, s%d, s%d" % (sT0, sKV, sCH))
        a("buffer_load_dwordx4 v3, %s, s%d offen sc1 lds" % (s(SWS, 4), sT0))
        a("buffer_load_dwordx4 v3, %s, s%d offen offset:1024 sc1 lds" % (s(SWS, 4), sT0))
        a("s_add_u32 s%d, s%d, 16384" % (sSL, sSL))
        a("s_and_b32 s%d, s%d, 0xffff" % (sSL, sSL))
        a("s_add_u32 s%d, s%d, 16384" % (sCH, sCH))
    dma()
    a("s_xor_b32 s%d, s%d, 1024" % (sT1, sQ0))
    a("buffer_load_dwordx4 %s, v3, %s, s%d offen sc1" % (v(Q[0], 4), s(SWS, 4), sQ0))
    a("buffer_load_dwordx4 %s, v3, %s, s%d offen sc1" % (v(Q[1], 4), s(SWS, 4), sT1))
    dma()
    def geglu(t):
        Gt = ACC1 + 16 * t; U = Gt + 8; T = 132 + (t % 2) * 12
        R = range(0, 8, 2)
        for i in R: a("v_pk_mul_f32 %s, %s, %s" % (v(T + i, 2), v(Gt + i, 2), v(Gt + i, 2)))
        for i in R: a("v_pk_fma_f32 %s, %s, v[38:39], v[36:37] op_sel_hi:[1,0,0]" % (v(T + i, 2), v(T + i, 2)))
        for i in R: a("v_pk_mul_f32 %s, %s, %s" % (v(T + i, 2), v(T + i, 2), v(Gt + i, 2)))
        for i in range(8): a("v_exp_f32 v%d, v%d" % (T + i, T + i))
        for i in R: a("v_pk_mul_f32 %s, %s, %s" % (v(Gt + i, 2), v(Gt + i, 2), v(U + i, 2)))
        for i in R: a("v_pk_add_f32 %s, %s, 1.0 op_sel_hi:[1,0]" % (v(T + i, 2), v(T + i, 2)))
        for i in range(8): a("v_rcp_f32 v%d, v%d" % (T + i, T + i))
        a.nop(1)
        for i in R: a("v_pk_mul_f32 %s, %s, %s" % (v(Gt + i, 2), v(Gt + i, 2), v(T + i, 2)))
        for i in range(4): a("v_cvt_pk_bf16_f32 v%d, v%d, v%d" % (T + 8 + i, Gt + 2 * i, Gt + 2 * i + 1))
        a("buffer_store_dwordx4 %s, v3, %s, s%d offen %s" % (v(T + 8, 4), s(SWS, 4), sH + t, sc()))
        if t >= 2:
            for i in range(0, 16, 2): a("v_mov_b64 %s, 0" % v(Gt + i, 2))
    a("v_mov_b32 v10, v11")
    geglu(0)
    for i in range(0, 16, 2): a("v_mov_b64 %s, v[10:11]" % v(VF[0] + i, 2))
    dma()
    geglu(1); geglu(2)
    a("s_cmp_ge_u32 s%d, 4" % sW)
    a("s_cbranch_scc1 L_g_done")
    geglu(3)
    a.label("L_g_done")
    a.stamp(9)
    def rdK(kt): a("ds_read_b128 %s, v%d offset:%d" % (v(KF[kt % 2], 4), KA, (kt % 4) * 2048))
    def rdV(kt):
        a("s_mov_b64 exec, %s" % s(sVM, 2))
        a("ds_read_b128 %s, v%d offset:%d" % (v(VF[kt % 2], 4), VA, (kt % 4) * 2048 + 1024))
        a("ds_read_b128 %s, v%d offset:%d" % (v(VF[kt % 2] + 4, 4), VA, (kt % 4) * 2048 + 1536))
        a("s_mov_b64 exec, -1")
    def mfS(u): a("v_mfma_f32_32x32x16_bf16 %s, %s, %s, 0" % (v(S[u % 2], 16), v(KF[(u >> 1) % 2], 4), v(Q[u % 2], 4)))
    def mfPV(u, j): a("v_mfma_f32_32x32x16_bf16 %s, %s, %s, %s" % (v(O[u % 2], 16), v(VF[(u >> 1) % 2] + 4 * j, 4), v(P + 4 * j, 4), v(O[u % 2], 16)))
    a("s_waitcnt vmcnt(5)")
    arrive(a, VCN, VONE, 0)
    spin(a, VCN, VP, 0, sT0, "8", "L_a_first")
    rdK(0); rdV(0); rdK(1)
    a("s_mov_b32 s%d, 0" % sCNT)
    a("s_mov_b32 s%d, 8" % sTGT)
    a("s_waitcnt lgkmcnt(3)")
    mfS(0)
    a.stamp(10)
    a("s_setprio 0")
    a.nop(9)
    a.label("L_at_loop")
    for u in range(8):
        Sx = S[u % 2]
        e = lambda i: a("v_exp_f32 v%d, v%d" % (Sx + i, Sx + i))
        cv = lambda i: a("v_cvt_pk_bf16_f32 v%d, v%d, v%d" % (P + i, Sx + 2 * i, Sx + 2 * i + 1))
        if u % 2 == 0: a("s_waitcnt lgkmcnt(0)")
        mfS(u + 1)
        e(0)
        if u == 4: a("v_readfirstlane_b32 s%d, v%d" % (sT0, VP))
        e(1)
        if u == 4:
            a("s_cmp_ge_u32 s%d, s%d" % (sT0, sTGT))
            a("s_cbranch_scc0 L_at_slow")
            a.label("L_at_back")
        e(2); e(3)
        mfPV(u - 1, 1)
        if u % 2 == 0:
            rdK(u // 2 + 2); rdV(u // 2 + 1)
        cv(0); e(4)
        if u == 3:
            a("ds_read_b32 v%d, v%d" % (VP, VCN))
            a("v_add_u32 v%d, 16384, v%d" % (KA, KA))
            a("v_and_b32 v%d, 0xffff, v%d" % (KA, KA))
        if u == 5:
            a("v_add_u32 v%d, 16384, v%d" % (VA, VA))
            a("v_and_b32 v%d, 0xffff, v%d" % (VA, VA))
            a("s_cmp_ge_u32 s%d, 5" % sCNT)
            a("s_cbranch_scc1 L_at_nodma")
            a("s_setprio 3")
            dma()
            a("s_setprio 0")
            a.label("L_at_nodma")
        if u == 6:
            a("s_waitcnt vmcnt(2)")
            a("s_cmp_ge_u32 s%d, 5" % sCNT)
            a("s_cbranch_scc0 L_at_w2")
            a("s_waitcnt vmcnt(0)")
            a.label("L_at_w2")
            arrive(a, VCN, VONE, 0)
        cv(1); e(5); e(6); e(7); cv(2); e(8); cv(3); e(9); e(10)
        mfPV(u, 0)
        e(11); e(12); cv(4); e(13); cv(5); e(14); e(15); cv(6)
        if u == 7:
            a("s_add_u32 s%d, s%d, 8" % (sTGT, sTGT))
            a("s_add_u32 s%d, s%d, 1" % (sCNT, sCNT))
            a("s_cmp_lt_u32 s%d, 8" % sCNT)
        cv(7)
    a("s_cbranch_scc1 L_at_loop")
    a.nop(1)
    mfPV(7, 1)
    a.stamp(11)
    a("s_lshl_b32 s%d, s%d, 12" % (sT0, sW))
    a("s_add_u32 s%d, s%d, 16384" % (sT0, sT0))
    a("v_add_u32 v10, s%d, v3" % sT0)
    a("v_xor_b32 v11, 0xc000, v10")
    a("s_and_b32 s%d, s%d, 3" % (sT1, sW))
    a("s_lshl_b32 s%d, s%d, 2" % (sKH, sT1))
    a("s_mul_i32 s%d, s%d, %d" % (sT2, sQT, A2_TT))
    a("s_lshl_b32 s%d, s%d, 10" % (sT1, sHEAD))
    a("s_add_u32 s%d, s%d, s%d" % (sT2, sT2, sT1))
    a("s_add_u32 s%d, s%d, %d" % (sT2, sT2, A2_OFF))
    a("s_lshr_b32 s%d, s%d, 3" % (sT3, sQT))
    a("s_lshl_b32 s%d, s%d, 5" % (sT3, sT3))
    a("s_add_u32 s%d, s%d, s%d" % (sT3, sT3, sHEAD))
    a("s_lshl_b32 s%d, s%d, %d" % (sT3, sT3, OPT["fs"]))
    a("s_add_u32 s%d, s%d, %d" % (sT3, sT3, FO_OFF))
    a("ds_write_b128 v10, %s" % v(O[1], 4))
    a("ds_write_b128 v10, %s offset:1024" % v(O[1] + 4, 4))
    a("ds_write_b32 v10, v%d offset:2048" % (O[1] + 8))
    a("s_waitcnt lgkmcnt(0)")
    a("v_add_u32 v12, s%d, v%d" % (sKH, VCN))
    arrive(a, 12, VONE, 8)
    spin(a, 12, VP, 8, sT0, "2", "L_a_pair")
    a("ds_read_b128 %s, v11" % v(S[0], 4))
    a("ds_read_b128 %s, v11 offset:1024" % v(S[0] + 4, 4))
    a("ds_read_b32 v%d, v11 offset:2048" % (S[0] + 8))
    a("s_waitcnt lgkmcnt(0)")
    for i in range(8, -1, -1): a("v_add_f32 v%d, v%d, v%d" % (O[0] + i, O[0] + i, S[0] + i))
    a("v_cmp_nle_f32 vcc, 0x21800000, v%d" % (O[0] + 8))
    a("s_nop 1")
    a("s_mov_b64 s[56:57], vcc")
    a("v_cmp_nge_f32 vcc, 0x5d800000, v%d" % (O[0] + 8))
    a("s_nop 1")
    a("s_or_b64 vcc, vcc, s[56:57]")
    a("s_cbranch_vccnz L_a_fallback")
    a.label("L_a_fin")
    a("s_setprio 3")
    a.stamp(12)
    a("v_rcp_f32 v10, v%d" % (O[0] + 8))
    a.nop(1)
    for i in range(8): a("v_mul_f32 v%d, v%d, v10" % (O[0] + i, O[0] + i))
    for i in range(4): a("v_cvt_pk_bf16_f32 v%d, v%d, v%d" % (P + i, O[0] + 2 * i, O[0] + 2 * i + 1))
    a("buffer_store_dwordx4 %s, v3, %s, s%d offen %s" % (v(P, 4), s(SWS, 4), sT2, sc()))
    last_flag(a, VCN, VONE, VP, 32, 8, sT3, "L_a_exit")
    a.label("L_a_exit")
    a.stamp(13)
    a.stamp_flush(0, SWS, sW, 12)
    a("s_endpgm")
    a.label("L_at_slow")
    spin(a, VCN, VP, 0, sT0, "s%d" % sTGT, "L_at_spin")
    a("s_branch L_at_back")
    a.label("L_a_fallback")
    C = O[1]; S0 = S[0]
    a("v_mov_b32 v10, 0xff800000")
    a("s_mov_b32 s%d, s%d" % (sT0, sKVB))
    a("s_mov_b32 s%d, 64" % sCNT)
    a.label("L_fb1")
    a("buffer_load_dwordx4 %s, v3, %s, s%d offen sc1" % (v(KF[0], 4), s(SWS, 4), sT0))
    a("s_waitcnt vmcnt(0)")
    a("v_mfma_f32_32x32x16_bf16 %s, %s, %s, 0" % (v(S0, 16), v(KF[0], 4), v(Q[0], 4)))
    a.nop(12)
    for i in range(0, 16, 2): a("v_max3_f32 v10, v10, v%d, v%d" % (S0 + i, S0 + i + 1))
    a("s_add_u32 s%d, s%d, 2048" % (sT0, sT0))
    a("s_sub_u32 s%d, s%d, 1" % (sCNT, sCNT))
    a("s_cmp_lg_u32 s%d, 0" % sCNT)
    a("s_cbranch_scc1 L_fb1")
    a("v_mov_b32 v11, v10")
    a.nop(2)
    a("v_permlane32_swap_b32 v10, v11")
    a("v_max_f32 v10, v10, v11")
    for i in range(16): a("v_sub_f32 v%d, 0, v10" % (C + i))
    for i in range(16): a("v_mov_b32 v%d, 0" % (O[0] + i))
    a("s_mov_b32 s%d, s%d" % (sT0, sKVB))
    a("s_mov_b32 s%d, 64" % sCNT)
    a.label("L_fb2")
    a("buffer_load_dwordx4 %s, v3, %s, s%d offen sc1" % (v(KF[0], 4), s(SWS, 4), sT0))
    a("s_mov_b64 exec, %s" % s(sVM, 2))
    a("buffer_load_dwordx4 %s, v47, %s, s%d offen offset:1024 sc1" % (v(VF[0], 4), s(SWS, 4), sT0))
    a("buffer_load_dwordx4 %s, v47, %s, s%d offen offset:1536 sc1" % (v(VF[0] + 4, 4), s(SWS, 4), sT0))
    a("s_mov_b64 exec, -1")
    a("s_waitcnt vmcnt(0)")
    a("v_mfma_f32_32x32x16_bf16 %s, %s, %s, %s" % (v(S0, 16), v(KF[0], 4), v(Q[0], 4), v(C, 16)))
    a.nop(12)
    for i in range(16): a("v_exp_f32 v%d, v%d" % (S0 + i, S0 + i))
    a.nop(1)
    for i in range(8): a("v_cvt_pk_bf16_f32 v%d, v%d, v%d" % (P + i, S0 + 2 * i, S0 + 2 * i + 1))
    a.nop(2)
    for j in range(2): a("v_mfma_f32_32x32x16_bf16 %s, %s, %s, %s" % (v(O[0], 16), v(VF[0] + 4 * j, 4), v(P + 4 * j, 4), v(O[0], 16)))
    a("s_add_u32 s%d, s%d, 2048" % (sT0, sT0))
    a("s_sub_u32 s%d, s%d, 1" % (sCNT, sCNT))
    a("s_cmp_lg_u32 s%d, 0" % sCNT)
    a("s_cbranch_scc1 L_fb2")
    a.nop(12)
    a("s_branch L_a_fin")

def role_f(a):
    sF = 47; SG = 12
    VCN, VONE = 164, 1
    sW1, sM1, sKD, sSO, sI, sW2, sM2, sFQ, sFH, sPOLL = 10, 11, 20, 21, 48, 49, 50, 51, 52, 58
    a("s_sub_u32 s%d, s%d, 8" % (sF, sW))
    a("s_setprio 3")
    srd(a, SA, P_WQKV, 512 * 3072)
    a("v_lshrrev_b32 v6, 3, v2")
    a("v_and_b32 v9, 7, v2")
    a("v_lshlrev_b32 v8, 1, v6")
    a("v_and_b32 v8, 4, v8")
    a("v_xor_b32 v7, v9, v8")
    a("v_mul_u32_u24 v8, 3072, v6")
    a("v_lshl_add_u32 v8, v7, 4, v8")
    a("s_mul_i32 s%d, s%d, %d" % (sW1, sF, 16 * 3072))
    a("s_lshl_b32 s%d, s%d, 7" % (sT0, sNG))
    a("s_add_u32 s%d, s%d, s%d" % (sW1, sW1, sT0))
    a("s_mul_i32 s%d, s%d, 6144" % (sM1, sF))
    a("s_add_u32 s%d, s%d, %d" % (sM1, sM1, LDS_F))
    a("s_and_b32 s%d, s%d, 7" % (sKD, sJ))
    a("s_mov_b32 s%d, 0" % sSO)
    a("s_mov_b32 s%d, 0" % sI)
    a("s_cmp_ge_u32 s%d, 2" % sF)
    a("s_cselect_b64 %s, %s, %s" % (s(P_WG, 2), s(P_WU, 2), s(P_WG, 2)))
    a("s_cselect_b32 s%d, %d, 0" % (sM2, UPOFF))
    a("s_add_u32 s%d, s%d, %d" % (sM2, sM2, LDS_F))
    srd(a, SG, P_WG, 512 * 3584)
    for i in range(7):
        a("v_add_u32 v4, %d, v2" % (64 * i))
        a("v_mul_u32_u24 v5, 2341, v4")
        a("v_lshrrev_b32 v5, 16, v5")
        a("v_mul_u32_u24 v5, %d, v5" % (3584 - 448))
        a("v_lshl_add_u32 v5, v4, 4, v5")
        a("v_subrev_u32 v%d, %d, v5" % (16 + i, (i % 4) * 1024))
    a("s_and_b32 s%d, s%d, 1" % (sT1, sF))
    a("s_mul_i32 s%d, s%d, %d" % (sW2, sT1, 16 * 3584))
    a("s_mul_i32 s%d, s%d, 448" % (sT2, sNG))
    a("s_add_u32 s%d, s%d, s%d" % (sW2, sW2, sT2))
    a("s_mul_i32 s%d, s%d, 7168" % (sT1, sT1))
    a("s_add_u32 s%d, s%d, s%d" % (sM2, sM2, sT1))
    a("s_lshl_b32 s%d, s%d, 5" % (sFQ, sNG))
    a("s_add_u32 s%d, s%d, s%d" % (sFQ, sFQ, sMT))
    a("s_lshl_b32 s%d, s%d, %d" % (sFQ, sFQ, OPT["fs"]))
    a("s_add_u32 s%d, s%d, %d" % (sFQ, sFQ, FQ_OFF))
    a("s_lshl3_add_u32 s%d, s%d, s%d" % (sFH, sMT, sNG))
    a("s_lshl_b32 s%d, s%d, %d" % (sFH, sFH, OPT["fs"]))
    a("s_add_u32 s%d, s%d, %d" % (sFH, sFH, FH_OFF))
    a("s_lshl_b32 s%d, s%d, %d" % (sPOLL, sXCD, 5 + OPT["fs"]))
    a("s_add_u32 s%d, s%d, %d" % (sPOLL, sPOLL, FQ_OFF))
    a("v_mov_b32 v%d, %d" % (VCN, LDS_CNT))
    a("v_mov_b32 v%d, 1" % VONE)
    tagsetup(a)
    def slot():
        a("s_add_u32 s%d, s%d, %d" % (sSO, sSO, FSLOT))
        a("s_cmp_eq_u32 s%d, %d" % (sSO, 3 * FSLOT))
        a("s_cselect_b32 s%d, 0, s%d" % (sSO, sSO))
        a("s_add_u32 s%d, s%d, 1" % (sI, sI))
    a("s_barrier")
    a.stamp(1)
    a.label("L_d_issue")
    a("s_mul_i32 s%d, s%d, %d" % (sT2, sKD, 64 * 3072))
    a("s_add_u32 s%d, s%d, s%d" % (sT2, sT2, sW1))
    a("s_add_u32 m0, s%d, s%d" % (sM1, sSO))
    a("s_add_u32 s%d, s%d, 1" % (sKD, sKD))
    for m in range(3): a("buffer_load_dwordx4 v8, %s, s%d offen offset:%d lds" % (s(SA, 4), sT2, m * 1024))
    a("s_add_u32 m0, m0, 3072")
    a("s_add_u32 s%d, s%d, %d" % (sT2, sT2, 8 * 3072))
    for m in range(3): a("buffer_load_dwordx4 v8, %s, s%d offen offset:%d lds" % (s(SA, 4), sT2, m * 1024))
    a("s_and_b32 s%d, s%d, 7" % (sKD, sKD))
    slot()
    a("s_cmp_eq_u32 s%d, 1" % sI)
    a("s_cbranch_scc1 L_d_issue")
    a("s_waitcnt vmcnt(6)")
    a("s_barrier")
    a("s_cmp_lg_u32 s%d, 8" % sI)
    a("s_cbranch_scc1 L_d_issue")
    a.stamp(3)
    a("s_and_b32 s%d, s%d, 15" % (sKD, sJ))
    a("s_mov_b32 s%d, 0" % sI)
    a("v_lshlrev_b32 v165, %d, v2" % OPT["fs"])
    a.label("L_g_issue")
    a("s_mul_i32 s%d, s%d, %d" % (sT2, sKD, 32 * 3584))
    a("s_add_u32 m0, s%d, s%d" % (sM2, sSO))
    a("s_add_u32 s%d, s%d, s%d" % (sT2, sT2, sW2))
    for i in range(7):
        if i == 4:
            a("s_add_u32 m0, m0, 4096")
            a("s_add_u32 s%d, s%d, 1" % (sKD, sKD))
        a("buffer_load_dwordx4 v%d, %s, s%d offen offset:%d lds" % (16 + i, s(SG, 4), sT2, (i % 4) * 1024))
    a("s_and_b32 s%d, s%d, 15" % (sKD, sKD))
    slot()
    tr(a, 30)
    a("s_waitcnt vmcnt(7)")
    tr(a, 30)
    a("s_barrier")
    tr(a, 30)
    a("s_lshl_b32 s%d, s%d, 5" % (sT0, sF))
    a("s_add_u32 s%d, s%d, s%d" % (sT0, sT0, sI))
    a("s_cmp_lg_u32 s%d, %d" % (sT0, OPT["qflag"]))
    a("s_cbranch_scc1 L_g_nf")
    a("s_mov_b64 exec, 1")
    a("buffer_store_dwordx2 %s, v3, %s, s%d offen %s" % (v(VTAG, 2), s(SWS, 4), sFQ, sc()))
    a("s_mov_b64 exec, -1")
    a.label("L_g_nf")
    a("s_cmp_lg_u32 s%d, 16" % sI)
    a("s_cbranch_scc1 L_g_issue")
    a.stamp(4)
    a("s_waitcnt vmcnt(0)")
    a("s_barrier")
    a("s_cmp_lg_u32 s%d, 0" % sF)
    a("s_cbranch_scc1 L_f_nopoll")
    poll(a, 165, sPOLL, 32, 24, "L_f_pollq")
    a.label("L_f_nopoll")
    a("s_barrier")
    tr_dump(a, 30, 31)
    a.stamp(5)
    a("s_setprio %d" % OPT["prio3"])
    if OPT["nof"] == 1: a("s_branch L_f_ep")
    sMT2, sNT, sWB, sA0, sA1, sGW, sGA, sLB = 43, 44, 45, 46, 53, 54, 55, 56
    a("s_and_b32 s%d, s%d, 3" % (sT2, sJ))
    a("s_lshl2_add_u32 s%d, s%d, s%d" % (sMT2, sXCD, sT2))
    a("s_lshr_b32 s%d, s%d, 2" % (sNT, sJ))
    srd(a, SA, P_WD, 1792 * 1024)
    srd(a, SB, P_WO, 512 * 1024)
    a("v_lshrrev_b32 v8, 3, v2")
    a("v_lshlrev_b32 v7, 1, v8")
    a("v_and_b32 v7, 4, v7")
    a("v_and_b32 v9, 7, v2")
    a("v_xor_b32 v7, v7, v9")
    a("v_lshlrev_b32 v8, 10, v8")
    a("v_lshl_add_u32 v8, v7, 4, v8")
    for i in range(1, 4): a("v_add_u32 v%d, %d, v8" % (8 + i, i * 7168))
    a("s_lshl_b32 s%d, s%d, 7" % (sWB, sNT))
    a("s_mul_i32 s%d, s%d, %d" % (sLB, sF, F2REG))
    a("s_add_u32 s%d, s%d, %d" % (sLB, sLB, LDS_F))
    a("s_mul_i32 s%d, s%d, 3" % (sGW, sT2))
    a("s_add_u32 s%d, s%d, s%d" % (sGW, sGW, sNT))
    a("s_sub_u32 s%d, s%d, 14" % (sT2, sGW))
    a("s_cmp_ge_u32 s%d, 14" % sGW)
    a("s_cselect_b32 s%d, s%d, s%d" % (sGW, sT2, sGW))
    a("s_mov_b32 s%d, s%d" % (sGA, sGW))
    a("s_and_b32 s%d, s%d, 1" % (sT1, sF))
    a("s_lshl1_add_u32 s%d, s%d, s%d" % (sT1, sMT2, sT1))
    a("s_mul_i32 s%d, s%d, %d" % (sA0, sT1, A2_TT))
    a("s_xor_b32 s%d, s%d, 1" % (sT1, sT1))
    a("s_mul_i32 s%d, s%d, %d" % (sA1, sT1, A2_TT))
    a("s_add_u32 s%d, s%d, %d" % (sA0, sA0, A2_OFF))
    a("s_add_u32 s%d, s%d, %d" % (sA1, sA1, A2_OFF))
    sF14 = 57
    a("s_mul_i32 s%d, s%d, 14" % (sF14, sF))
    a.vm = []
    def adv(sg):
        a("s_add_u32 s%d, s%d, 1" % (sg, sg))
        a("s_cmp_eq_u32 s%d, 14" % sg)
        a("s_cselect_b32 s%d, 0, s%d" % (sg, sg))
    def w2(g):
        a("s_add_u32 m0, s%d, %d" % (sLB, (g % 5) * 4096))
        if g < 14:
            a("s_add_u32 s%d, s%d, s%d" % (sT0, sF14, sGW))
            a("s_lshl_b32 s%d, s%d, 15" % (sT0, sT0))
            adv(sGW); sr = SA
        else:
            a("s_lshl_b32 s%d, s%d, 17" % (sT0, sF))
            a("s_add_u32 s%d, s%d, %d" % (sT0, sT0, (g - 14) * 32768)); sr = SB
        a("s_add_u32 s%d, s%d, s%d" % (sT0, sT0, sWB))
        if OPT["thr2"]: a("s_waitcnt vmcnt(%d)" % OPT["thr2"])
        for i in range(4):
            a.vmem("buffer_load_dwordx4 v%d, %s, s%d offen offset:%d lds" % (8 + i, s(sr, 4), sT0, i * 1024), "W%d" % g)
    AB = 96
    def a2(g):
        if g < 14:
            a("s_add_u32 s%d, s%d, s%d" % (sT0, sF14, sGA))
            a("s_lshl_b32 s%d, s%d, 11" % (sT0, sT0))
            a("s_add_u32 s%d, s%d, 32768" % (sT0, sT0))
            adv(sGA)
        else:
            a("s_lshl_b32 s%d, s%d, 13" % (sT0, sF))
            a("s_add_u32 s%d, s%d, %d" % (sT0, sT0, (g - 14) * 2048))
        a("s_add_u32 s%d, s%d, s%d" % (sT1, sT0, sA1))
        a("s_add_u32 s%d, s%d, s%d" % (sT0, sT0, sA0))
        if OPT["thr2"] and g < 14: a("s_waitcnt vmcnt(%d)" % OPT["thr2"])
        for ks in range(2):
            for tb in range(2):
                a.vmem("buffer_load_dwordx4 %s, v3, %s, s%d offen offset:%d sc1" % (v(AB + (g % 4) * 16 + ks * 8 + tb * 4, 4), s(SWS, 4), sT0 + tb, ks * 1024), "A%d" % g)
    a("v_lshrrev_b32 v14, 5, v2")
    a("v_bfe_u32 v4, v2, 2, 2")
    a("v_and_b32 v5, 1, v2")
    a("v_lshlrev_b32 v5, 4, v5")
    a("v_and_b32 v6, 2, v2")
    a("v_lshl_add_u32 v5, v6, 2, v5")
    a("v_and_b32 v6, 16, v2")
    a("v_lshl_add_u32 v5, v6, 1, v5")
    a("s_and_b32 s%d, s%d, 2" % (sT2, sF))
    a("s_lshl_b32 s%d, s%d, 5" % (sT2, sT2))
    a("v_add_u32 v5, s%d, v5" % sT2)
    a("v_lshlrev_b32 v6, 5, v4")
    a("v_and_b32 v6, 64, v6")
    a("v_xor_b32 v5, v5, v6")
    a("v_lshl_add_u32 v4, v14, 2, v4")
    a("v_lshl_add_u32 v5, v4, 7, v5")
    a("v_xor_b32 v6, 64, v5")
    a("v_add_u32 v12, s%d, v5" % sLB)
    a("v_add_u32 v13, s%d, v6" % sLB)
    a("s_lshl2_add_u32 s%d, s%d, s%d" % (sT3, sMT2, sF))
    a("s_lshl_b32 s%d, s%d, %d" % (sT3, sT3, 1 + OPT["fs"]))
    a("s_add_u32 s%d, s%d, %d" % (sT3, sT3, FH_OFF))
    spin(a, VCN, 0, 0, sT0, "8", "L_f_nofw0")
    for g in range(4): w2(g)
    a("s_cmp_lg_u32 s%d, 0" % sF)
    a("s_cbranch_scc1 L_f_hf")
    spin(a, VCN, 0, 0, sT0, "16", "L_f_nofw1")
    a("s_mov_b64 exec, 1")
    a("buffer_store_dwordx2 %s, v3, %s, s%d offen %s" % (v(VTAG, 2), s(SWS, 4), sFH, sc()))
    a("s_mov_b64 exec, -1")
    a.label("L_f_hf")
    a.stamp(11)
    poll(a, 165, sT3, 2, 16, "L_f_pollh")
    a.stamp(12)
    a.vm = []
    ACC2 = 32; WF = 16
    def rd2(g, ks, ci):
        for sec in range(2):
            a("ds_read_b64_tr_b16 %s, v%d offset:%d" % (v(WF + ks * 8 + ci * 4 + sec * 2, 2), 12 + ci, (g % 5) * 4096 + ks * 2048 + sec * 1024))
    def mm2(g, ks, ci):
        for ti in range(2):
            d = v(ACC2 + (ci * 2 + ti) * 16, 16)
            a("v_mfma_f32_32x32x16_bf16 %s, %s, %s, %s" % (d, v(WF + ks * 8 + ci * 4, 4), v(AB + (g % 4) * 16 + ks * 8 + ti * 4, 4), "0" if (g == 0 and ks == 0) else d))
    def comp(g, pre=None):
        if OPT["f2pace"] and g < 14:
            if pre: pre()
            for ks in range(2):
                for ci in range(2):
                    rd2(g, ks, ci)
                    a("s_waitcnt lgkmcnt(0)")
                    mm2(g, ks, ci)
            return
        for ks in range(2):
            for ci in range(2): rd2(g, ks, ci)
        if pre: pre()
        for ks in range(2):
            a("s_waitcnt lgkmcnt(%d)" % (4 if ks == 0 else 0))
            for ci in range(2): mm2(g, ks, ci)
    for g in range(3): a2(g)
    for g in range(14):
        if g + 3 < 14: a2(g + 3)
        w2(g + 4)
        a.wait_vm("A%d" % g)
        if a.vm_count_after("W%d" % g) is not None: a.wait_vm("W%d" % g)
        comp(g)
    srd(a, SA, P_X, 2 * MB)
    srd(a, SB, P_OUT, 2 * MB)
    sXS = 48
    a("s_and_b32 s%d, s%d, 1" % (sT1, sF))
    a("s_lshl1_add_u32 s%d, s%d, s%d" % (sT0, sMT2, sT1))
    a("s_lshl_b32 s%d, s%d, 15" % (sXS, sT0))
    a("s_add_u32 s%d, s%d, s%d" % (sXS, sXS, sWB))
    a("s_and_b32 s%d, s%d, 2" % (sT2, sF))
    a("s_lshl_b32 s%d, s%d, 5" % (sT2, sT2))
    a("s_add_u32 s%d, s%d, s%d" % (sXS, sXS, sT2))
    a("v_and_b32 v4, 31, v2")
    a("v_lshlrev_b32 v4, 10, v4")
    a("v_lshl_add_u32 v4, v14, 4, v4")
    a("buffer_load_dwordx4 v[8:11], v4, %s, s%d offen" % (s(SA, 4), sXS))
    a("buffer_load_dwordx4 v[160:163], v4, %s, s%d offen offset:32" % (s(SA, 4), sXS))
    a("s_lshl2_add_u32 s%d, s%d, s%d" % (sT3, sXCD, sF))
    a("s_lshl_b32 s%d, s%d, %d" % (sT3, sT3, 3 + OPT["fs"]))
    a("s_add_u32 s%d, s%d, %d" % (sT3, sT3, FO_OFF))
    a("s_waitcnt vmcnt(0)")
    for i in range(4):
        a("v_lshlrev_b32 v%d, 16, v%d" % (96 + 2 * i, 8 + i))
        a("v_and_b32 v%d, 0xffff0000, v%d" % (97 + 2 * i, 8 + i))
        a("v_lshlrev_b32 v%d, 16, v%d" % (104 + 2 * i, 160 + i))
        a("v_and_b32 v%d, 0xffff0000, v%d" % (105 + 2 * i, 160 + i))
    for i in range(16): a("v_add_f32 v%d, v%d, v%d" % (ACC2 + i, ACC2 + i, 96 + i))
    a("v_add_u32 v5, s%d, v3" % sLB)
    for sl in range(1, 4):
        a("s_xor_b32 s%d, s%d, %d" % (sT0, sF, sl))
        a("s_mul_i32 s%d, s%d, %d" % (sT0, sT0, F2REG))
        a("s_add_u32 s%d, s%d, %d" % (sT0, sT0, LDS_F + (sl - 1) * 4096))
        a("v_add_u32 v%d, s%d, v3" % (7 + sl, sT0))
    a("s_setprio 0")
    a.stamp(13)
    if OPT["nof"] == 4: a("s_branch L_f_ep")
    poll(a, 165, sT3, 8, 16, "L_f_pollo")
    a.stamp(14)
    a("s_setprio 3")
    a.vm = []
    for g in range(14, 18): a2(g)
    for g in range(14, 18):
        comp(g, lambda: a.wait_vm("A%d" % g))
    a.nop(10)
    for sl in range(1, 4):
        for q in range(4):
            a("ds_write_b128 v5, %s offset:%d" % (v(ACC2 + sl * 16 + 4 * q, 4), (sl - 1) * 4096 + q * 1024))
    a("s_waitcnt lgkmcnt(0)")
    arrive(a, VCN, VONE, 40)
    spin(a, VCN, 0, 40, sT0, "4", "L_f_spin3")
    for sl in range(1, 4):
        for q in range(4):
            a("ds_read_b128 %s, v%d offset:%d" % (v(ACC2 + sl * 16 + 4 * q, 4), 7 + sl, q * 1024))
    for sl in range(1, 4):
        a("s_waitcnt lgkmcnt(%d)" % (12 - 4 * sl))
        for i in range(0, 16, 2): a("v_pk_add_f32 %s, %s, %s" % (v(ACC2 + i, 2), v(ACC2 + i, 2), v(ACC2 + 16 * sl + i, 2)))
    for i in range(8): a("v_cvt_pk_bf16_f32 v%d, v%d, v%d" % (96 + i, ACC2 + 2 * i, ACC2 + 2 * i + 1))
    a("buffer_store_dwordx4 v[96:99], v4, %s, s%d offen" % (s(SB, 4), sXS))
    a("buffer_store_dwordx4 v[100:103], v4, %s, s%d offen offset:32" % (s(SB, 4), sXS))
    a.label("L_f_ep")
    if OPT["nof"]:
        spin(a, VCN, 0, 32, sT0, "8", "L_f_nofw")
    a("s_add_u32 s%d, s2, s%d" % (sT0, sF))
    a("s_cmp_lg_u32 s%d, 0" % sT0)
    a("s_cbranch_scc1 L_f_noep")
    a("s_mov_b32 s%d, %d" % (sT0, EPOCH_OFF))
    a("s_mov_b64 exec, 1")
    a("buffer_store_dword v%d, v3, %s, s%d offen" % (VTAG, s(SWS, 4), sT0))
    a("s_mov_b64 exec, -1")
    a.label("L_f_noep")
    a.stamp_flush(0, SWS, sW, 12)
    a("s_endpgm")

def gen_kernel(name):
    a = Asm()
    a.label("L_start")
    a("s_cmp_ge_u32 s2, 256")
    a("s_cbranch_scc1 L_end")
    a.stamp(0)
    if OPT["p1diag"]: a("s_mov_b32 s100, 0")
    a("s_load_dwordx16 s[4:19], s[0:1], 0")
    a("s_load_dwordx4 s[20:23], s[0:1], 64")
    a("s_getpc_b64 s[30:31]")
    a.label("L_pc")
    a("s_lshr_b32 s%d, s2, 3" % sJ)
    a("v_lshrrev_b32 v1, 6, v0")
    a("s_mul_i32 s%d, s%d, 12" % (sT0, sJ))
    a("v_add_lshl_u32 v165, v1, s%d, 7" % sT0)
    a("v_min_u32 v165, (L_end - L_pc), v165")
    a("s_mov_b64 exec, 1")
    a("global_load_dword v165, v165, s[30:31]")
    a("s_mov_b64 exec, -1")
    a("v_and_b32 v2, 63, v0")
    a("v_readfirstlane_b32 s%d, v1" % sW)
    a("v_lshlrev_b32 v3, 4, v2")
    a("s_and_b32 s%d, s2, 7" % sXCD)
    a("s_lshr_b32 s%d, s%d, 2" % (sMT, sXCD))
    a("s_and_b32 s%d, s%d, 15" % (sT0, sJ))
    a("s_lshl4_add_u32 s%d, s%d, s%d" % (sMT, sMT, sT0))
    a("s_and_b32 s%d, s%d, 3" % (sNG, sXCD))
    a("s_lshr_b32 s%d, s%d, 4" % (sT0, sJ))
    a("s_lshl1_add_u32 s%d, s%d, s%d" % (sNG, sNG, sT0))
    a("s_lshl_b32 s%d, s%d, 2" % (sT0, sT0))
    a("s_and_b32 s%d, s%d, 4" % (sT0, sT0))
    a("s_xor_b32 s%d, s%d, s%d" % (sT0, sT0, sW))
    a("s_lshl3_add_u32 s%d, s%d, s%d" % (sT0, sMT, sT0))
    a("s_lshl_b32 s%d, s%d, 13" % (sT0, sT0))
    a("s_add_u32 s%d, s%d, 4096" % (sT1, sT0))
    a("v_lshrrev_b32 v164, 4, v2")
    a("v_mul_u32_u24 v164, 768, v164")
    a("v_add_u32 v164, v164, v3")
    a("s_cmp_lt_u32 s%d, 4" % sW)
    a("s_waitcnt lgkmcnt(0)")
    srd(a, SB, P_X, 2 * MB)
    a("s_cbranch_scc0 L_norow")
    for g in range(2):
        for p in range(4):
            a("buffer_load_dwordx4 %s, v164, %s, s%d offen offset:%d" % (v(132 + 16 * g + 4 * p, 4), s(SB, 4), sT0 + g, p * 256))
    a.label("L_norow")
    a("s_add_u32 s62, s%d, %d" % (P_WS, EPOCH_OFF))
    a("s_addc_u32 s63, s%d, 0" % (P_WS + 1))
    a("s_load_dword s%d, s[62:63], 0" % sTAG)
    srd(a, SWS, P_WS, WS_BYTES)
    a("s_mov_b32 s%d, 0x3f803f80" % sONE)
    a("s_cmp_lt_u32 s%d, 8" % sW)
    a("s_cbranch_scc1 L_role_a")
    role_f(a)
    a.label("L_role_a")
    a.vm = []
    role_a(a)
    a.label("L_end")
    a("s_endpgm")
    return dict(name=name, asm=a, vgpr=168, grid=(256, 1, 1), block=(768, 1, 1), lds=LDS_TOTAL)
```

```python
from common import *
from layout import *
from kgu import f2u, C1, C2

FL_OFF = 32 * MB
EPOCH_OFF = FL_OFF
FX_OFF = FL_OFF + 0x10000
FQ_OFF = FL_OFF + 0x20000
FH_OFF = FL_OFF + 0x30000
FO_OFF = FL_OFF + 0x40000
TAGX = 0x5bd1e995

LDS_F = 65536
FSLOT = 28800; UPOFF = 14368; FNS = 3
F2REG = 20480
LDS_CNT = LDS_F + FNS * FSLOT
LDS_ST = LDS_CNT + 128
LDS_TOTAL = 163840

P_X, P_WQKV, P_WO, P_WG, P_WU, P_WD, P_OUT, P_WS = 4, 6, 8, 12, 14, 16, 18, 22
SWS, SA, SB = 24, 28, 32
sW = 36
sT0, sT1, sT2, sT3 = 37, 38, 39, 40
sXCD, sJ = 41, 42
sMT, sNG = 43, 44
sTAG = 60
sSPIN = 62
sONE = 3
VTAG = 166
SC = "sc0 sc1"
OPT = dict(w2at=16, f2gate=0, spf=0, ft=1, touch=0, gper=2, p1diag=0, fs=7, psleep=2, sc=0, vprio=1, prio3=0, f2pace=1, nof=0, pk=1, thr2=2, qflag=6)

_stamp = Asm.stamp
def stamp_gate(self, i, force=False):
    if OPT["p1diag"] and not force and i not in (0, 15): return
    _stamp(self, i)
Asm.stamp = stamp_gate
def bar(a, i):
    if OPT["p1diag"] and i < 7: a.stamp(1 + 2 * i, True)
    a("s_barrier")
    if OPT["p1diag"] and i < 7: a.stamp(2 + 2 * i, True)

def tr(a, vr):
    if not OPT["p1diag"]: return
    a("s_memtime s[98:99]")
    a("s_waitcnt lgkmcnt(0)")
    a("s_sub_u32 s98, s98, s96")
    a("s_mov_b32 m0, s100")
    a("s_add_u32 s100, s100, 1")
    a("v_writelane_b32 v%d, s98, m0" % vr)
def tr_dump(a, vr, vtmp):
    if not OPT["p1diag"]: return
    a("s_mul_i32 s100, s2, 12")
    a("s_add_u32 s100, s100, s%d" % sW)
    a("s_lshl_b32 s100, s100, 8")
    a("s_add_u32 s100, s100, %d" % (66 << 20))
    a("v_lshlrev_b32 v%d, 2, v2" % vtmp)
    a("buffer_store_dword v%d, v%d, %s, s100 offen" % (vr, vtmp, s(SWS, 4)))

def cap0(a, fn, *args):
    n = len(a.lines); fn(*args); out = a.lines[n:]; del a.lines[n:]; return out

def arrive(a, vaddr, vone, off):
    a("s_mov_b64 exec, 1")
    a("ds_add_u32 v%d, v%d offset:%d" % (vaddr, vone, off))
    a("s_mov_b64 exec, -1")

def spin(a, vaddr, vp, off, stmp, target, name):
    a("s_mov_b32 s%d, 0x200000" % sSPIN)
    a.label(name)
    a("ds_read_b32 v%d, v%d offset:%d" % (vp, vaddr, off))
    a("s_waitcnt lgkmcnt(0)")
    a("v_readfirstlane_b32 s%d, v%d" % (stmp, vp))
    a("s_nop 0")
    a("s_cmp_ge_u32 s%d, %s" % (stmp, target))
    a("s_cbranch_scc1 %s_ok" % name)
    a("s_sleep %d" % (8 if name.startswith("L_f_nofw") else 1))
    a("s_sub_u32 s%d, s%d, 1" % (sSPIN, sSPIN))
    a("s_cbranch_scc0 %s" % name)
    a.label(name + "_ok")

def sc(): return "sc1" if OPT["sc"] else "sc0 sc1"

def set_flag(a, soff, vz, lanes=1):
    a("s_waitcnt vmcnt(0)")
    a("s_mov_b64 exec, %d" % ((1 << lanes) - 1))
    a("buffer_store_dwordx2 %s, v%d, %s, s%d offen %s" % (v(VTAG, 2), vz, s(SWS, 4), soff, sc()))
    a("s_mov_b64 exec, -1")

def last_flag(a, vcn, vone, vp, off, n, soff, skip):
    a("s_waitcnt vmcnt(0)")
    a("s_mov_b64 exec, 1")
    a("ds_add_rtn_u32 v%d, v%d, v%d offset:%d" % (vp, vcn, vone, off))
    a("s_waitcnt lgkmcnt(0)")
    a("v_readfirstlane_b32 s%d, v%d" % (sT0, vp))
    a("s_mov_b64 exec, -1")
    a("s_cmp_lg_u32 s%d, %d" % (sT0, n - 1))
    a("s_cbranch_scc1 %s" % skip)
    a("s_mov_b64 exec, 1")
    a("buffer_store_dwordx2 %s, v3, %s, s%d offen %s" % (v(VTAG, 2), s(SWS, 4), soff, sc()))
    a("s_mov_b64 exec, -1")

def poll(a, voff, soff, nl, vp, name):
    a("s_mov_b32 s%d, 0x20000" % sSPIN)
    assert nl <= 32
    a("s_mov_b32 exec_lo, 0x%x" % ((1 << nl) - 1))
    a("s_mov_b32 exec_hi, 0")
    a.label(name)
    a("buffer_load_dwordx2 %s, v%d, %s, s%d offen sc1" % (v(vp, 2), voff, s(SWS, 4), soff))
    a("s_waitcnt vmcnt(0)")
    a("v_cmp_ne_u64 vcc, %s, %s" % (s(sTAG, 2), v(vp, 2)))
    a("s_sub_u32 s%d, s%d, 1" % (sSPIN, sSPIN))
    a("s_cbranch_scc1 %s_ok" % name)
    a("s_cbranch_vccz %s_ok" % name)
    a("s_sleep %d" % OPT["psleep"])
    a("s_branch %s" % name)
    a.label(name + "_ok")
    a("s_mov_b64 exec, -1")

def tagsetup(a):
    a("s_waitcnt lgkmcnt(0)")
    a("s_add_u32 s%d, s%d, 1" % (sTAG, sTAG))
    a("s_xor_b32 s%d, s%d, 0x%x" % (sTAG + 1, sTAG, TAGX))
    a("v_mov_b32 v%d, s%d" % (VTAG, sTAG))
    a("v_mov_b32 v%d, s%d" % (VTAG + 1, sTAG + 1))

def bf16r(a, r):
    a("v_cvt_pk_bf16_f32 v%d, v%d, v%d" % (r, r, r))
    a("v_and_b32 v%d, 0xffff0000, v%d" % (r, r))

def ln_final(a, sm, sq, tmp):
    a("v_mul_f32 v%d, 0x3b000000, v%d" % (sm, sm))
    a("v_mul_f32 v%d, 0x3b000000, v%d" % (sq, sq))
    a("v_fma_f32 v%d, -v%d, v%d, v%d" % (sq, sm, sm, sq))
    a("v_max_f32 v%d, 0, v%d" % (sq, sq))
    bf16r(a, sq)
    bf16r(a, sm)
    a("v_add_f32 v%d, 0x3727c5ac, v%d" % (sq, sq))
    bf16r(a, sq)
    a("v_sqrt_f32 v%d, v%d" % (sq, sq))
    a.nop(1)
    bf16r(a, sq)
    a("v_rcp_f32 v%d, v%d" % (sq, sq))
    a.nop(1)

def xsum(a, r, t, kind):
    a("v_mov_b32 v%d, v%d" % (t, r))
    a.nop(2)
    a("v_permlane%d_swap_b32 v%d, v%d" % (kind, r, t))
    a("v_add_f32 v%d, v%d, v%d" % (r, r, t))

XB, XA, WB, WA = 12, 13, 17, 18
FR = 116; ACC1 = 48
def role_a(a):
    sD0, sD1, sSCL = 45, 46, 48
    sHEAD, sQT, sKV, sCH, sSL, sKVB, sQ0, sKH = 49, 50, 51, 52, 53, 54, 55, 57
    sVM = 58
    sCNT, sTGT = 45, 46
    sSO, sI, sKC = 28, 29, 31
    sH = 12
    KA, VA, VCN, VONE, VP, VLO = 8, 9, 44, 45, 46, 47
    Q = [4, 112]; KF = [12, 16]; VF = [20, 28]; P = 36; S = [48, 64]; O = [80, 96]
    VST, WB2 = 19, 10
    XS = 132
    a("s_setprio 3")
    a("s_mov_b32 s10, s%d" % sT0)
    a("s_mov_b32 s11, s%d" % sT1)
    a("v_lshrrev_b32 v4, 4, v2")
    a("v_and_b32 v5, 15, v2")
    a("v_xor_b32 v5, v5, v4")
    a("v_lshlrev_b32 v4, 10, v4")
    a("v_lshl_add_u32 v116, v5, 4, v4")
    a("s_and_b32 s%d, s%d, 1" % (sT1, sW))
    a("s_lshl_b32 s%d, s%d, 7" % (sT1, sT1))
    a("s_and_b32 s%d, s%d, 0xffff" % (sT0, sT0))
    a("v_xor_b32 v116, s%d, v116" % sT1)
    a("v_add_u32 v116, s%d, v116" % sT0)
    a("v_xor_b32 v117, 64, v116")
    a("v_and_b32 v4, 31, v2")
    a("v_lshrrev_b32 v5, 5, v2")
    a("v_and_b32 v6, 15, v2")
    a("v_xor_b32 v6, v6, v5")
    a("v_lshlrev_b32 v6, 4, v6")
    a("v_lshl_add_u32 v%d, v4, 10, v6" % XB)
    a("s_lshr_b32 s%d, s%d, 1" % (sT0, sW))
    a("s_min_u32 s%d, s%d, 2" % (sT1, sT0))
    a("s_sub_u32 s%d, s%d, s%d" % (sT2, sT0, sT1))
    a("s_lshl_b32 s%d, s%d, 15" % (sT3, sT2))
    a("v_add_u32 v%d, s%d, v%d" % (XB, sT3, XB))
    a("v_bfe_u32 v6, v2, 2, 2")
    a("v_and_b32 v7, 3, v2")
    a("v_lshlrev_b32 v7, 3, v7")
    a("v_lshl_add_u32 v14, v5, 3, v6")
    a("v_mul_u32_u24 v14, 448, v14")
    a("v_bfe_u32 v15, v2, 4, 1")
    a("v_mul_u32_u24 v15, %d, v15" % UPOFF)
    a("v_add3_u32 v%d, v14, v15, v7" % WB2)
    a("v_and_b32 v13, 16, v2")
    a("v_lshl_add_u32 v7, v13, 1, v7")
    a("s_and_b32 s%d, s%d, 1" % (sT0, sW))
    a("s_lshl_b32 s%d, s%d, 6" % (sT3, sT0))
    a("v_add_u32 v7, s%d, v7" % sT3)
    a("v_lshlrev_b32 v14, 5, v6")
    a("v_and_b32 v14, 64, v14")
    a("v_xor_b32 v7, v7, v14")
    a("v_lshl_add_u32 v7, v6, 7, v7")
    a("v_mul_u32_u24 v14, 3072, v5")
    a("s_lshl_b32 s%d, s%d, 10" % (sT3, sT1))
    a("v_add3_u32 v%d, v7, v14, s%d" % (WB, sT3))
    a("v_and_b32 v6, 15, v2")
    a("v_lshlrev_b32 v6, 4, v6")
    a("v_lshl_add_u32 v%d, v5, 8, v6" % VLO)
    a("s_mul_i32 s%d, s%d, 3" % (sT3, sT0))
    a("s_add_u32 s%d, s%d, 8" % (sT3, sT3))
    a("s_lshl_b32 s%d, s%d, 1" % (sKH, sW))
    a("s_cmp_lt_u32 s%d, 4" % sW)
    a("s_cselect_b32 s%d, s%d, s%d" % (sT3, sKH, sT3))
    a("s_cselect_b32 s%d, %d, 0" % (sH + 1, A2_TT - 1024))
    a("s_cselect_b32 s%d, 0, 1024" % (sH + 2))
    a("s_add_u32 s%d, s%d, 1024" % (sH + 1, sH + 1))
    a("s_add_u32 s%d, s%d, 1024" % (sH + 2, sH + 2))
    a("s_lshl_b32 s%d, s%d, 5" % (sKH, sT3))
    a("v_add_u32 v%d, s%d, v%d" % (WB2, sKH, WB2))
    a("s_lshl1_add_u32 s%d, s%d, s%d" % (sT0, sNG, sT0))
    a("s_lshl1_add_u32 s%d, s%d, s%d" % (sT2, sMT, sT2))
    a("s_mul_i32 s%d, s%d, 14" % (sKH, sNG))
    a("s_add_u32 s%d, s%d, s%d" % (sKH, sKH, sT3))
    a("s_lshl_b32 s%d, s%d, 10" % (sKH, sKH))
    a("s_mul_i32 s%d, s%d, %d" % (sH, sT2, A2_TT))
    a("s_add_u32 s%d, s%d, s%d" % (sH, sH, sKH))
    a("s_add_u32 s%d, s%d, %d" % (sH, sH, A2_OFF + 32 * 1024))
    a("s_add_u32 s%d, s%d, s%d" % (sH + 1, sH + 1, sH))
    a("s_add_u32 s%d, s%d, s%d" % (sH + 2, sH + 2, sH))
    a("s_add_u32 s%d, s%d, 1024" % (sH + 3, sH + 1))
    a("s_lshl_b32 s%d, s%d, 17" % (sD0, sT0))
    a("s_lshl_b32 s%d, s%d, 10" % (sT3, sT2))
    a("s_add_u32 s%d, s%d, s%d" % (sD0, sD0, sT3))
    a("s_add_u32 s%d, s%d, %d" % (sD0, sD0, QF_OFF))
    a("s_min_u32 s%d, s%d, 1" % (sT3, sT1))
    a("s_lshl_b32 s%d, s%d, s%d" % (sD0, sD0, sT3))
    a("s_lshl_b32 s%d, 65536, s%d" % (sD1, sT3))
    a("s_add_u32 s%d, s%d, s%d" % (sD1, sD1, sD0))
    a("s_lshl_b32 s%d, 1024, s%d" % (sKH, sT3))
    a("v_add_u32 v%d, s%d, v3" % (VST, sKH))
    a("v_lshl_add_u32 v115, v13, 13, v%d" % VLO)
    a("s_cmp_eq_u32 s%d, 0" % sT1)
    a("s_cselect_b32 s%d, 0x%x, 1.0" % (sSCL, QSCALE))
    def late_setup():
        a("s_lshr_b32 s%d, s%d, 3" % (sT2, sJ))
        a("s_lshl2_add_u32 s%d, s%d, s%d" % (sHEAD, sXCD, sT2))
        a("s_and_b32 s%d, s%d, 7" % (sCH, sJ))
        a("s_and_b32 s%d, s%d, 3" % (sT0, sW))
        a("s_lshl_b32 s%d, s%d, 1" % (sT0, sT0))
        a("s_lshl3_add_u32 s%d, s%d, s%d" % (sQT, sCH, sT0))
        a("s_lshr_b32 s%d, s%d, 2" % (sKH, sW))
        a("s_add_u32 s%d, s%d, s%d" % (sQT, sQT, sKH))
        a("s_lshl_b32 s%d, s%d, 11" % (sSL, sW))
        a("s_lshl_b32 s%d, s%d, 17" % (sKVB, sHEAD))
        a("s_add_u32 s%d, s%d, %d" % (sKVB, sKVB, KV_OFF))
        a("s_add_u32 s%d, s%d, s%d" % (sKV, sKVB, sSL))
        a("s_lshl_b32 s%d, s%d, 16" % (sQ0, sHEAD))
        a("s_lshl_b32 s%d, s%d, 10" % (sT2, sQT))
        a("s_add_u32 s%d, s%d, s%d" % (sQ0, sQ0, sT2))
        a("s_add_u32 s%d, s%d, %d" % (sQ0, sQ0, QF_OFF))
        a("v_mov_b32 v6, 0")
        a("s_mov_b32 exec_lo, 0x00110000")
        a("s_mov_b32 exec_hi, 0x00110000")
        a("v_mov_b32 v6, s%d" % sONE)
        a("s_mov_b64 exec, -1")
        a("v_mov_b32 v11, v6")
        a("s_mov_b32 s%d, 0" % sCH)
        a("s_mov_b32 s%d, 0x0000ffff" % sVM)
        a("s_mov_b32 s%d, 0x0000ffff" % (sVM + 1))
        a("s_lshl_b32 s%d, s%d, 13" % (sKH, sKH))
        a("v_add_u32 v%d, s%d, v3" % (KA, sKH))
        a("v_add_u32 v%d, s%d, v%d" % (VA, sKH, VLO))
        a("v_mov_b32 v%d, 1" % VONE)
        for i in range(40, 44, 2): a("v_mov_b64 %s, 0" % v(i, 2))
        a("v_mov_b32 v36, 0x%x" % f2u(C1))
        a("v_mov_b32 v38, 0x%x" % f2u(C2))
    a("v_mov_b32 v%d, %d" % (VCN, LDS_CNT))
    for i in range(48, 112, 2): a("v_mov_b64 %s, 0" % v(i, 2))
    a("v_mov_b32 v4, s%d" % sSCL)
    a("ds_write_b128 v%d, v[48:51]" % VCN)
    a("ds_write_b128 v%d, v[48:51] offset:16" % VCN)
    a("ds_write_b128 v%d, v[48:51] offset:32" % VCN)
    a("s_mov_b32 s%d, %d" % (sSO, LDS_F))
    a("s_mov_b32 s%d, 8" % sI)
    a("s_and_b32 s%d, s%d, 7" % (sKC, sJ))
    a("s_lshl_b32 s%d, s%d, 7" % (sKC, sKC))
    def addrs(nk=4, wb=WB):
        a("v_xor_b32 v%d, s%d, v%d" % (XA, sKC, XB))
        a("v_add_u32 v%d, s%d, v%d" % (WA, sSO, wb))
        for k in range(1, nk): a("v_xor_b32 v%d, %d, v%d" % (XA + k, k << 5, XA))
        a("s_add_u32 s%d, s%d, %d" % (sKC, sKC, 32 * nk))
        a("s_and_b32 s%d, s%d, 0x3ff" % (sKC, sKC))
        a("s_add_u32 s%d, s%d, %d" % (sSO, sSO, FSLOT))
        a("s_cmp_eq_u32 s%d, %d" % (sSO, LDS_F + 3 * FSLOT))
        a("s_cselect_b32 s%d, %d, s%d" % (sSO, LDS_F, sSO))
    addrs()
    a("s_cmp_lt_u32 s%d, 4" % sW)
    a("s_cbranch_scc1 L_a_bx")
    for g in range(2):
        for p in range(4):
            a("buffer_load_dwordx4 %s, v164, %s, s%d offen offset:%d" % (v(132 + 16 * g + 4 * p, 4), s(SB, 4), 10 + g, p * 256))
    a.label("L_a_bx")
    late_setup()
    tagsetup(a)
    a.stamp(1)
    for g in range(2):
        a("s_waitcnt vmcnt(%d)" % (4 - 4 * g))
        if g == 1: a.stamp(14)
        for i in range(16):
            r = XS + 16 * g + i; d = 20 + 8 * g + 2 * (i & 3)
            a("v_dot2_f32_bf16 v%d, v%d, s%d, %s" % (d, r, sONE, "0" if i < 4 else "v%d" % d))
            a("v_dot2_f32_bf16 v%d, v%d, v%d, %s" % (d + 1, r, r, "0" if i < 4 else "v%d" % (d + 1)))
    a("v_pk_add_f32 v[20:21], v[20:21], v[22:23]")
    a("v_pk_add_f32 v[24:25], v[24:25], v[26:27]")
    a("v_pk_add_f32 v[28:29], v[28:29], v[30:31]")
    a("v_pk_add_f32 v[32:33], v[32:33], v[34:35]")
    a("v_pk_add_f32 v[118:119], v[20:21], v[24:25]")
    a("v_pk_add_f32 v[120:121], v[28:29], v[32:33]")
    def unpack(n):
        for q in range(4):
            r = XS + 4 * n + q; t = 20 + 8 * (n % 2) + 2 * q
            a("v_lshlrev_b32 v%d, 16, v%d" % (t, r))
            a("v_and_b32 v%d, 0xffff0000, v%d" % (t + 1, r))
    fill = cap0(a, unpack, 0) + cap0(a, unpack, 1)
    chain = []
    for sh in (8, 4, 2, 1):
        for k in range(118, 122):
            chain.append("v_add_f32_dpp v%d, v%d, v%d row_ror:%d row_mask:0xf bank_mask:0xf" % (k, k, k, sh))
    l0 = cap0(a, ln_final, a, 118, 119, 0); l1 = cap0(a, ln_final, a, 120, 121, 0)
    a(fill.pop(0))
    for l in chain: a(l)
    for x, y in zip(l0, l1):
        if not x.startswith("s_nop"):
            a(x); a(y)
            if fill: a(fill.pop(0))
    a("v_mul_f32_e64 v118, -v118, v119")
    a("v_mul_f32_e64 v120, -v120, v121")
    for l in fill: a(l)
    for n in range(8):
        g = n // 4; p = n % 4; T = 20 + 8 * (n % 2)
        for q in range(4):
            a("v_pk_fma_f32 %s, %s, %s, %s op_sel:[0,1,0] op_sel_hi:[1,1,0]" % (v(T + 2 * q, 2), v(T + 2 * q, 2), v(118 + 2 * g, 2), v(118 + 2 * g, 2)))
        for q in range(4):
            a("v_cvt_pk_bf16_f32 v%d, v%d, v%d" % (XS + 4 * n + q, T + 2 * q, T + 2 * q + 1))
        a("ds_write_b128 v%d, %s offset:%d" % (116 + g, v(XS + 4 * n, 4), g * 4096 + p * 256))
        if n + 2 < 8: unpack(n + 2)
    a("s_waitcnt lgkmcnt(0)")
    a.stamp(2)
    a("s_barrier")
    a("s_setprio 0")
    a.stamp(3)
    a("s_cmp_ge_u32 s%d, 4" % sW)
    a("s_cbranch_scc1 L_p1_v0")
    def wread(k, dst):
        for sec in range(2):
            a("ds_read_b64_tr_b16 %s, v%d offset:%d" % (v(dst + 2 * sec, 2), WA, k * 6144 + sec * 512))
    def xread(k, dst, tb): a("ds_read_b128 %s, v%d offset:%d" % (v(dst, 4), XA + k, tb * 32768))
    def gread(k, dst, t):
        for sec in range(2):
            a("ds_read_b64_tr_b16 %s, v%d offset:%d" % (v(dst + 2 * sec, 2), WA, k * 7168 + sec * 1792 + t * 32))
    def cap(fn, *args):
        n = len(a.lines); fn(*args); out = a.lines[n:]; del a.lines[n:]; return out
    def weave(mm, rd, per):
        for l in mm:
            a(l)
            if l.startswith("v_mfma"):
                for _ in range(per):
                    if rd: a(rd.pop(0))
        for l in rd: a(l)
    def gemm(lab, rdf, mmf, n, per, touch=False):
        for k in range(3): rdf(k)
        a("s_branch %s_m" % lab)
        a.label(lab)
        rd = cap(rdf, 0) + cap(rdf, 1)
        m2 = cap(mmf, 2)
        for l in m2:
            a(l)
            for _ in range(per):
                if rd: a(rd.pop(0))
        weave(cap(mmf, 3), rd + cap(rdf, 2), per)
        a.label(lab + "_m")
        a("s_waitcnt lgkmcnt(%d)" % (2 * n))
        weave(cap(mmf, 0), cap(rdf, 3), per)
        a("s_waitcnt lgkmcnt(%d)" % (2 * n))
        mm1 = cap(mmf, 1)
        a(mm1[0]); addrs()
        for l in mm1[1:]: a(l)
        a("s_sub_u32 s%d, s%d, 1" % (sI, sI))
        a("s_waitcnt lgkmcnt(0)")
        a("s_barrier")
        a("s_cmp_lg_u32 s%d, 0" % sI)
        a("s_cbranch_scc1 %s" % lab)
        a.stamp(4)
        mmf(2); mmf(3)
        a("s_mov_b32 s%d, %d" % (sSO, LDS_F + 2 * FSLOT))
        a("s_and_b32 s%d, s%d, 15" % (sKC, sJ))
        a("s_lshl_b32 s%d, s%d, 6" % (sKC, sKC))
        a("s_mov_b32 s%d, 16" % sI)
        addrs(2, WB2)
    GB = [[132, 148], [116, 20]]
    def gu(lab, rdf, mmf, n):
        a.stamp(5)
        def tail(last=False):
            addrs(2, WB2)
            a("s_sub_u32 s%d, s%d, 1" % (sI, sI))
            if last:
                a("s_cmp_lg_u32 s%d, %d" % (sI, 18 - OPT["qflag"]))
                a("s_cbranch_scc1 %s_b" % lab)
                a("s_waitcnt vmcnt(0)")
                a.label(lab + "_b")
            a("s_waitcnt lgkmcnt(0)")
            tr(a, 165)
            a("s_barrier")
            tr(a, 165)
        a("s_branch %s_m" % lab)
        a.label(lab)
        weave(cap(mmf, 1, 0) + cap(mmf, 1, 1), cap(rdf, 0, 0) + cap(rdf, 0, 1), OPT["gper"])
        a.label(lab + "_m")
        tail()
        weave(cap(mmf, 0, 0) + cap(mmf, 0, 1), cap(rdf, 1, 0) + cap(rdf, 1, 1), OPT["gper"])
        tail(True)
        a("s_cmp_lg_u32 s%d, 0" % sI)
        a("s_cbranch_scc1 %s" % lab)
        a("s_setprio 3")
        mmf(1, 0); mmf(1, 1)
    def qk_rd(k): wread(k, FR + 12 * k); xread(k, FR + 12 * k + 4, 0); xread(k, FR + 12 * k + 8, 1)
    def qk_mm(k):
        f = FR + 12 * k
        for tb in range(2):
            d = v(ACC1 + 16 * tb, 16)
            a("v_mfma_f32_32x32x16_bf16 %s, %s, %s, %s" % (d, v(f, 4), v(f + 4 + 4 * tb, 4), d))
    def g4_rd(p, k):
        b = GB[p][k]
        gread(k, b, 0); xread(k, b + 8, 0); xread(k, b + 12, 1); gread(k, b + 4, 1)
    def g4_mm(p, k):
        b = GB[p][k]
        for fi in range(2):
            for tb in range(2):
                d = v(ACC1 + 16 * (2 * fi + tb), 16)
                a("v_mfma_f32_32x32x16_bf16 %s, %s, %s, %s" % (d, v(b + 4 * fi, 4), v(b + 8 + 4 * tb, 4), d))
    gemm("L_p1_qk", qk_rd, qk_mm, 4, 3)
    g4_rd(0, 0); g4_rd(0, 1)
    for tb in range(2):
        A0 = ACC1 + 16 * tb
        for i in range(0, 16, 2): a("v_pk_mul_f32 %s, %s, v[4:5] op_sel_hi:[1,0]" % (v(A0 + i, 2), v(A0 + i, 2)))
        for i in range(8): a("v_cvt_pk_bf16_f32 v%d, v%d, v%d" % (FR + 8 * tb + i, A0 + 2 * i, A0 + 2 * i + 1))
        a("buffer_store_dwordx4 %s, v%d, %s, s%d offen %s" % (v(FR + 8 * tb, 4), VST if tb else 3, s(SWS, 4), sD0, sc()))
        a("buffer_store_dwordx4 %s, v%d, %s, s%d offen %s" % (v(FR + 8 * tb + 4, 4), VST if tb else 3, s(SWS, 4), sD1, sc()))
        for i in range(0, 16, 2): a("v_mov_b64 %s, 0" % v(A0 + i, 2))
    gu("L_gu4", g4_rd, g4_mm, 6)
    a("s_branch L_p1_done")
    a.label("L_p1_v0")
    if OPT["vprio"]: a("s_setprio 1")
    def v_rd(k): xread(k, FR + 8 * k + 4, 0); wread(k, FR + 8 * k)
    def v_mm(k):
        f = FR + 8 * k; d = v(ACC1, 16)
        a("v_mfma_f32_32x32x16_bf16 %s, %s, %s, %s" % (d, v(f + 4, 4), v(f, 4), d))
    def g3_rd(p, k):
        b = GB[p][k]
        gread(k, b, 0); xread(k, b + 12, 0); gread(k, b + 4, 1); gread(k, b + 8, 2)
    def g3_mm(p, k):
        b = GB[p][k]
        for fi in range(3):
            d = v(ACC1 + 16 * fi, 16)
            a("v_mfma_f32_32x32x16_bf16 %s, %s, %s, %s" % (d, v(b + 4 * fi, 4), v(b + 12, 4), d))
    gemm("L_p1_v", v_rd, v_mm, 3, 4, True)
    g3_rd(0, 0); g3_rd(0, 1)
    for i in range(8): a("v_cvt_pk_bf16_f32 v%d, v%d, v%d" % (FR + i, ACC1 + 2 * i, ACC1 + 2 * i + 1))
    a("buffer_store_dwordx4 %s, v115, %s, s%d offen offset:1024 %s" % (v(FR, 4), s(SWS, 4), sD0, sc()))
    a("buffer_store_dwordx4 %s, v115, %s, s%d offen offset:1536 %s" % (v(FR + 4, 4), s(SWS, 4), sD0, sc()))
    for i in range(0, 16, 2): a("v_mov_b64 %s, 0" % v(ACC1 + i, 2))
    gu("L_gu3", g3_rd, g3_mm, 7)
    a.label("L_p1_done")
    tr_dump(a, 165, 164)
    a.stamp(6)
    def dma():
        a("s_mov_b32 m0, s%d" % sSL)
        a("s_add_u32 s%d, s%d, s%d" % (sT0, sKV, sCH))
        a("buffer_load_dwordx4 v3, %s, s%d offen sc1 lds" % (s(SWS, 4), sT0))
        a("buffer_load_dwordx4 v3, %s, s%d offen offset:1024 sc1 lds" % (s(SWS, 4), sT0))
        a("s_add_u32 s%d, s%d, 16384" % (sSL, sSL))
        a("s_and_b32 s%d, s%d, 0xffff" % (sSL, sSL))
        a("s_add_u32 s%d, s%d, 16384" % (sCH, sCH))
    dma()
    a("s_xor_b32 s%d, s%d, 1024" % (sT1, sQ0))
    a("buffer_load_dwordx4 %s, v3, %s, s%d offen sc1" % (v(Q[0], 4), s(SWS, 4), sQ0))
    a("buffer_load_dwordx4 %s, v3, %s, s%d offen sc1" % (v(Q[1], 4), s(SWS, 4), sT1))
    dma()
    def geglu(t):
        Gt = ACC1 + 16 * t; U = Gt + 8; T = 132 + (t % 2) * 12
        R = range(0, 8, 2)
        for i in R: a("v_pk_mul_f32 %s, %s, %s" % (v(T + i, 2), v(Gt + i, 2), v(Gt + i, 2)))
        for i in R: a("v_pk_fma_f32 %s, %s, v[38:39], v[36:37] op_sel_hi:[1,0,0]" % (v(T + i, 2), v(T + i, 2)))
        for i in R: a("v_pk_mul_f32 %s, %s, %s" % (v(T + i, 2), v(T + i, 2), v(Gt + i, 2)))
        for i in range(8): a("v_exp_f32 v%d, v%d" % (T + i, T + i))
        for i in R: a("v_pk_mul_f32 %s, %s, %s" % (v(Gt + i, 2), v(Gt + i, 2), v(U + i, 2)))
        for i in R: a("v_pk_add_f32 %s, %s, 1.0 op_sel_hi:[1,0]" % (v(T + i, 2), v(T + i, 2)))
        for i in range(8): a("v_rcp_f32 v%d, v%d" % (T + i, T + i))
        a.nop(1)
        for i in R: a("v_pk_mul_f32 %s, %s, %s" % (v(Gt + i, 2), v(Gt + i, 2), v(T + i, 2)))
        for i in range(4): a("v_cvt_pk_bf16_f32 v%d, v%d, v%d" % (T + 8 + i, Gt + 2 * i, Gt + 2 * i + 1))
        a("buffer_store_dwordx4 %s, v3, %s, s%d offen %s" % (v(T + 8, 4), s(SWS, 4), sH + t, sc()))
        if t >= 2:
            for i in range(0, 16, 2): a("v_mov_b64 %s, 0" % v(Gt + i, 2))
    a("v_mov_b32 v10, v11")
    geglu(0)
    for i in range(0, 16, 2): a("v_mov_b64 %s, v[10:11]" % v(VF[0] + i, 2))
    dma()
    geglu(1); geglu(2)
    a("s_cmp_ge_u32 s%d, 4" % sW)
    a("s_cbranch_scc1 L_g_done")
    geglu(3)
    a.label("L_g_done")
    a.stamp(9)
    def rdK(kt): a("ds_read_b128 %s, v%d offset:%d" % (v(KF[kt % 2], 4), KA, (kt % 4) * 2048))
    def rdV(kt):
        a("s_mov_b64 exec, %s" % s(sVM, 2))
        a("ds_read_b128 %s, v%d offset:%d" % (v(VF[kt % 2], 4), VA, (kt % 4) * 2048 + 1024))
        a("ds_read_b128 %s, v%d offset:%d" % (v(VF[kt % 2] + 4, 4), VA, (kt % 4) * 2048 + 1536))
        a("s_mov_b64 exec, -1")
    def mfS(u): a("v_mfma_f32_32x32x16_bf16 %s, %s, %s, 0" % (v(S[u % 2], 16), v(KF[(u >> 1) % 2], 4), v(Q[u % 2], 4)))
    def mfPV(u, j): a("v_mfma_f32_32x32x16_bf16 %s, %s, %s, %s" % (v(O[u % 2], 16), v(VF[(u >> 1) % 2] + 4 * j, 4), v(P + 4 * j, 4), v(O[u % 2], 16)))
    a("s_waitcnt vmcnt(5)")
    arrive(a, VCN, VONE, 0)
    spin(a, VCN, VP, 0, sT0, "8", "L_a_first")
    rdK(0); rdV(0); rdK(1)
    a("s_mov_b32 s%d, 0" % sCNT)
    a("s_mov_b32 s%d, 8" % sTGT)
    a("s_waitcnt lgkmcnt(3)")
    mfS(0)
    a.stamp(10)
    a("s_setprio 0")
    a.nop(9)
    a.label("L_at_loop")
    for u in range(8):
        Sx = S[u % 2]
        e = lambda i: a("v_exp_f32 v%d, v%d" % (Sx + i, Sx + i))
        cv = lambda i: a("v_cvt_pk_bf16_f32 v%d, v%d, v%d" % (P + i, Sx + 2 * i, Sx + 2 * i + 1))
        if u % 2 == 0: a("s_waitcnt lgkmcnt(0)")
        mfS(u + 1)
        e(0)
        if u == 4: a("v_readfirstlane_b32 s%d, v%d" % (sT0, VP))
        e(1)
        if u == 4:
            a("s_cmp_ge_u32 s%d, s%d" % (sT0, sTGT))
            a("s_cbranch_scc0 L_at_slow")
            a.label("L_at_back")
        e(2); e(3)
        mfPV(u - 1, 1)
        if u % 2 == 0:
            rdK(u // 2 + 2); rdV(u // 2 + 1)
        cv(0); e(4)
        if u == 3:
            a("ds_read_b32 v%d, v%d" % (VP, VCN))
            a("v_add_u32 v%d, 16384, v%d" % (KA, KA))
            a("v_and_b32 v%d, 0xffff, v%d" % (KA, KA))
        if u == 5:
            a("v_add_u32 v%d, 16384, v%d" % (VA, VA))
            a("v_and_b32 v%d, 0xffff, v%d" % (VA, VA))
            a("s_cmp_ge_u32 s%d, 5" % sCNT)
            a("s_cbranch_scc1 L_at_nodma")
            a("s_setprio 3")
            dma()
            a("s_setprio 0")
            a.label("L_at_nodma")
        if u == 6:
            a("s_waitcnt vmcnt(2)")
            a("s_cmp_ge_u32 s%d, 5" % sCNT)
            a("s_cbranch_scc0 L_at_w2")
            a("s_waitcnt vmcnt(0)")
            a.label("L_at_w2")
            arrive(a, VCN, VONE, 0)
        cv(1); e(5); e(6); e(7); cv(2); e(8); cv(3); e(9); e(10)
        mfPV(u, 0)
        e(11); e(12); cv(4); e(13); cv(5); e(14); e(15); cv(6)
        if u == 7:
            a("s_add_u32 s%d, s%d, 8" % (sTGT, sTGT))
            a("s_add_u32 s%d, s%d, 1" % (sCNT, sCNT))
            a("s_cmp_lt_u32 s%d, 8" % sCNT)
        cv(7)
    a("s_cbranch_scc1 L_at_loop")
    a.nop(1)
    mfPV(7, 1)
    a.stamp(11)
    a("s_lshl_b32 s%d, s%d, 12" % (sT0, sW))
    a("s_add_u32 s%d, s%d, 16384" % (sT0, sT0))
    a("v_add_u32 v10, s%d, v3" % sT0)
    a("v_xor_b32 v11, 0xc000, v10")
    a("s_and_b32 s%d, s%d, 3" % (sT1, sW))
    a("s_lshl_b32 s%d, s%d, 2" % (sKH, sT1))
    a("s_mul_i32 s%d, s%d, %d" % (sT2, sQT, A2_TT))
    a("s_lshl_b32 s%d, s%d, 10" % (sT1, sHEAD))
    a("s_add_u32 s%d, s%d, s%d" % (sT2, sT2, sT1))
    a("s_add_u32 s%d, s%d, %d" % (sT2, sT2, A2_OFF))
    a("s_lshr_b32 s%d, s%d, 3" % (sT3, sQT))
    a("s_lshl_b32 s%d, s%d, 5" % (sT3, sT3))
    a("s_add_u32 s%d, s%d, s%d" % (sT3, sT3, sHEAD))
    a("s_lshl_b32 s%d, s%d, %d" % (sT3, sT3, OPT["fs"]))
    a("s_add_u32 s%d, s%d, %d" % (sT3, sT3, FO_OFF))
    a("ds_write_b128 v10, %s" % v(O[1], 4))
    a("ds_write_b128 v10, %s offset:1024" % v(O[1] + 4, 4))
    a("ds_write_b32 v10, v%d offset:2048" % (O[1] + 8))
    a("s_waitcnt lgkmcnt(0)")
    a("v_add_u32 v12, s%d, v%d" % (sKH, VCN))
    arrive(a, 12, VONE, 8)
    spin(a, 12, VP, 8, sT0, "2", "L_a_pair")
    a("ds_read_b128 %s, v11" % v(S[0], 4))
    a("ds_read_b128 %s, v11 offset:1024" % v(S[0] + 4, 4))
    a("ds_read_b32 v%d, v11 offset:2048" % (S[0] + 8))
    a("s_waitcnt lgkmcnt(0)")
    for i in range(8, -1, -1): a("v_add_f32 v%d, v%d, v%d" % (O[0] + i, O[0] + i, S[0] + i))
    a("v_cmp_nle_f32 vcc, 0x21800000, v%d" % (O[0] + 8))
    a("s_nop 1")
    a("s_mov_b64 s[56:57], vcc")
    a("v_cmp_nge_f32 vcc, 0x5d800000, v%d" % (O[0] + 8))
    a("s_nop 1")
    a("s_or_b64 vcc, vcc, s[56:57]")
    a("s_cbranch_vccnz L_a_fallback")
    a.label("L_a_fin")
    a("s_setprio 3")
    a.stamp(12)
    a("v_rcp_f32 v10, v%d" % (O[0] + 8))
    a.nop(1)
    for i in range(8): a("v_mul_f32 v%d, v%d, v10" % (O[0] + i, O[0] + i))
    for i in range(4): a("v_cvt_pk_bf16_f32 v%d, v%d, v%d" % (P + i, O[0] + 2 * i, O[0] + 2 * i + 1))
    a("buffer_store_dwordx4 %s, v3, %s, s%d offen %s" % (v(P, 4), s(SWS, 4), sT2, sc()))
    last_flag(a, VCN, VONE, VP, 32, 8, sT3, "L_a_exit")
    a.label("L_a_exit")
    a.stamp(13)
    a.stamp_flush(0, SWS, sW, 12)
    a("s_endpgm")
    a.label("L_at_slow")
    spin(a, VCN, VP, 0, sT0, "s%d" % sTGT, "L_at_spin")
    a("s_branch L_at_back")
    a.label("L_a_fallback")
    C = O[1]; S0 = S[0]
    a("v_mov_b32 v10, 0xff800000")
    a("s_mov_b32 s%d, s%d" % (sT0, sKVB))
    a("s_mov_b32 s%d, 64" % sCNT)
    a.label("L_fb1")
    a("buffer_load_dwordx4 %s, v3, %s, s%d offen sc1" % (v(KF[0], 4), s(SWS, 4), sT0))
    a("s_waitcnt vmcnt(0)")
    a("v_mfma_f32_32x32x16_bf16 %s, %s, %s, 0" % (v(S0, 16), v(KF[0], 4), v(Q[0], 4)))
    a.nop(12)
    for i in range(0, 16, 2): a("v_max3_f32 v10, v10, v%d, v%d" % (S0 + i, S0 + i + 1))
    a("s_add_u32 s%d, s%d, 2048" % (sT0, sT0))
    a("s_sub_u32 s%d, s%d, 1" % (sCNT, sCNT))
    a("s_cmp_lg_u32 s%d, 0" % sCNT)
    a("s_cbranch_scc1 L_fb1")
    a("v_mov_b32 v11, v10")
    a.nop(2)
    a("v_permlane32_swap_b32 v10, v11")
    a("v_max_f32 v10, v10, v11")
    for i in range(16): a("v_sub_f32 v%d, 0, v10" % (C + i))
    for i in range(16): a("v_mov_b32 v%d, 0" % (O[0] + i))
    a("s_mov_b32 s%d, s%d" % (sT0, sKVB))
    a("s_mov_b32 s%d, 64" % sCNT)
    a.label("L_fb2")
    a("buffer_load_dwordx4 %s, v3, %s, s%d offen sc1" % (v(KF[0], 4), s(SWS, 4), sT0))
    a("s_mov_b64 exec, %s" % s(sVM, 2))
    a("buffer_load_dwordx4 %s, v47, %s, s%d offen offset:1024 sc1" % (v(VF[0], 4), s(SWS, 4), sT0))
    a("buffer_load_dwordx4 %s, v47, %s, s%d offen offset:1536 sc1" % (v(VF[0] + 4, 4), s(SWS, 4), sT0))
    a("s_mov_b64 exec, -1")
    a("s_waitcnt vmcnt(0)")
    a("v_mfma_f32_32x32x16_bf16 %s, %s, %s, %s" % (v(S0, 16), v(KF[0], 4), v(Q[0], 4), v(C, 16)))
    a.nop(12)
    for i in range(16): a("v_exp_f32 v%d, v%d" % (S0 + i, S0 + i))
    a.nop(1)
    for i in range(8): a("v_cvt_pk_bf16_f32 v%d, v%d, v%d" % (P + i, S0 + 2 * i, S0 + 2 * i + 1))
    a.nop(2)
    for j in range(2): a("v_mfma_f32_32x32x16_bf16 %s, %s, %s, %s" % (v(O[0], 16), v(VF[0] + 4 * j, 4), v(P + 4 * j, 4), v(O[0], 16)))
    a("s_add_u32 s%d, s%d, 2048" % (sT0, sT0))
    a("s_sub_u32 s%d, s%d, 1" % (sCNT, sCNT))
    a("s_cmp_lg_u32 s%d, 0" % sCNT)
    a("s_cbranch_scc1 L_fb2")
    a.nop(12)
    a("s_branch L_a_fin")

def role_f(a):
    sF = 47; SG = 12
    VCN, VONE = 164, 1
    sW1, sM1, sKD, sSO, sI, sW2, sM2, sFQ, sFH, sPOLL = 10, 11, 20, 21, 48, 49, 50, 51, 52, 58
    a("s_sub_u32 s%d, s%d, 8" % (sF, sW))
    a("s_setprio 2")
    srd(a, SA, P_WQKV, 512 * 3072)
    a("v_lshrrev_b32 v6, 3, v2")
    a("v_and_b32 v9, 7, v2")
    a("v_lshlrev_b32 v8, 1, v6")
    a("v_and_b32 v8, 4, v8")
    a("v_xor_b32 v7, v9, v8")
    a("v_mul_u32_u24 v8, 3072, v6")
    a("v_lshl_add_u32 v8, v7, 4, v8")
    a("s_mul_i32 s%d, s%d, %d" % (sW1, sF, 16 * 3072))
    a("s_lshl_b32 s%d, s%d, 7" % (sT0, sNG))
    a("s_add_u32 s%d, s%d, s%d" % (sW1, sW1, sT0))
    a("s_mul_i32 s%d, s%d, 6144" % (sM1, sF))
    a("s_add_u32 s%d, s%d, %d" % (sM1, sM1, LDS_F))
    a("s_and_b32 s%d, s%d, 7" % (sKD, sJ))
    a("s_mov_b32 s%d, 0" % sSO)
    a("s_mov_b32 s%d, 0" % sI)
    a("s_cmp_ge_u32 s%d, 2" % sF)
    a("s_cselect_b64 %s, %s, %s" % (s(P_WG, 2), s(P_WU, 2), s(P_WG, 2)))
    a("s_cselect_b32 s%d, %d, 0" % (sM2, UPOFF))
    a("s_add_u32 s%d, s%d, %d" % (sM2, sM2, LDS_F))
    srd(a, SG, P_WG, 512 * 3584)
    for i in range(7):
        a("v_add_u32 v4, %d, v2" % (64 * i))
        a("v_mul_u32_u24 v5, 2341, v4")
        a("v_lshrrev_b32 v5, 16, v5")
        a("v_mul_u32_u24 v5, %d, v5" % (3584 - 448))
        a("v_lshl_add_u32 v5, v4, 4, v5")
        a("v_subrev_u32 v%d, %d, v5" % (16 + i, (i % 4) * 1024))
    a("s_and_b32 s%d, s%d, 1" % (sT1, sF))
    a("s_mul_i32 s%d, s%d, %d" % (sW2, sT1, 16 * 3584))
    a("s_mul_i32 s%d, s%d, 448" % (sT2, sNG))
    a("s_add_u32 s%d, s%d, s%d" % (sW2, sW2, sT2))
    a("s_mul_i32 s%d, s%d, 7168" % (sT1, sT1))
    a("s_add_u32 s%d, s%d, s%d" % (sM2, sM2, sT1))
    def spf():
        if not OPT["spf"]: return
        for r in range(2):
            for q in range(4): a("s_load_dword s53, s[54:55], %d" % (r * 3584 + q * 128))
        a("s_add_u32 s54, s54, %d" % (2 * 3584))
        a("s_addc_u32 s55, s55, 0")
    tagsetup(a)
    a("s_and_b32 s%d, s%d, 15" % (sT0, sJ))
    a("s_mul_i32 s%d, s%d, %d" % (sT0, sT0, 32 * 3584))
    a("s_add_u32 s%d, s%d, s%d" % (sT0, sT0, sW2))
    a("s_mov_b32 s53, s%d" % sT0)
    a("v_lshrrev_b32 v4, 2, v2")
    a("v_mul_u32_u24 v4, 3584, v4")
    a("v_and_b32 v5, 3, v2")
    a("v_lshl_add_u32 v23, v5, 7, v4")
    a("s_lshl_b32 s%d, s%d, 5" % (sFQ, sNG))
    a("s_add_u32 s%d, s%d, s%d" % (sFQ, sFQ, sMT))
    a("s_lshl_b32 s%d, s%d, %d" % (sFQ, sFQ, OPT["fs"]))
    a("s_add_u32 s%d, s%d, %d" % (sFQ, sFQ, FQ_OFF))
    a("s_lshl3_add_u32 s%d, s%d, s%d" % (sFH, sMT, sNG))
    a("s_lshl_b32 s%d, s%d, %d" % (sFH, sFH, OPT["fs"]))
    a("s_add_u32 s%d, s%d, %d" % (sFH, sFH, FH_OFF))
    a("s_lshl_b32 s%d, s%d, %d" % (sPOLL, sXCD, 5 + OPT["fs"]))
    a("s_add_u32 s%d, s%d, %d" % (sPOLL, sPOLL, FQ_OFF))
    a("v_mov_b32 v%d, %d" % (VCN, LDS_CNT))
    a("v_mov_b32 v%d, 1" % VONE)
    def slot():
        a("s_add_u32 s%d, s%d, %d" % (sSO, sSO, FSLOT))
        a("s_cmp_eq_u32 s%d, %d" % (sSO, 3 * FSLOT))
        a("s_cselect_b32 s%d, 0, s%d" % (sSO, sSO))
        a("s_add_u32 s%d, s%d, 1" % (sI, sI))
    a("s_waitcnt vmcnt(0)")
    a.stamp(1)
    a.label("L_d_issue")
    a("s_mul_i32 s%d, s%d, %d" % (sT2, sKD, 64 * 3072))
    a("s_add_u32 s%d, s%d, s%d" % (sT2, sT2, sW1))
    a("s_add_u32 m0, s%d, s%d" % (sM1, sSO))
    a("s_add_u32 s%d, s%d, 1" % (sKD, sKD))
    for m in range(3): a("buffer_load_dwordx4 v8, %s, s%d offen offset:%d lds" % (s(SA, 4), sT2, m * 1024))
    a("s_add_u32 m0, m0, 3072")
    a("s_add_u32 s%d, s%d, %d" % (sT2, sT2, 8 * 3072))
    for m in range(3): a("buffer_load_dwordx4 v8, %s, s%d offen offset:%d lds" % (s(SA, 4), sT2, m * 1024))
    a("s_and_b32 s%d, s%d, 7" % (sKD, sKD))
    slot()
    if OPT["ft"]:
        a("s_cmp_lt_u32 s%d, 3" % sI)
        a("s_cbranch_scc1 L_d_issue")
        a("s_cmp_lg_u32 s%d, 3" % sI)
        a("s_cbranch_scc1 L_d_w")
        a("buffer_load_dword v23, v23, %s, s53 offen" % s(SG, 4))
        a("s_waitcnt vmcnt(13)")
        a("s_barrier")
        a.label("L_d_w")
        a("s_waitcnt vmcnt(7)")
        a("s_cmp_lt_u32 s%d, 5" % sI)
        a("s_cbranch_scc1 L_d_b")
        a("s_waitcnt vmcnt(6)")
        a.label("L_d_b")
    else:
        a("s_cmp_eq_u32 s%d, 1" % sI)
        a("s_cbranch_scc1 L_d_issue")
        a("s_waitcnt vmcnt(6)")
    a("s_barrier")
    a("s_cmp_lg_u32 s%d, 8" % sI)
    a("s_cbranch_scc1 L_d_issue")
    a.stamp(3)
    a("s_waitcnt lgkmcnt(0)") if False else None
    a("s_and_b32 s%d, s%d, 15" % (sKD, sJ))
    a("s_mov_b32 s%d, 0" % sI)
    a("v_lshlrev_b32 v165, %d, v2" % OPT["fs"])
    a.label("L_g_issue")
    a("s_mul_i32 s%d, s%d, %d" % (sT2, sKD, 32 * 3584))
    a("s_add_u32 m0, s%d, s%d" % (sM2, sSO))
    a("s_add_u32 s%d, s%d, s%d" % (sT2, sT2, sW2))
    for i in range(7):
        if i == 4:
            a("s_add_u32 m0, m0, 4096")
            a("s_add_u32 s%d, s%d, 1" % (sKD, sKD))
        a("buffer_load_dwordx4 v%d, %s, s%d offen offset:%d lds" % (16 + i, s(SG, 4), sT2, (i % 4) * 1024))
    a("s_and_b32 s%d, s%d, 15" % (sKD, sKD))
    slot()
    tr(a, 30)
    a("s_waitcnt vmcnt(7)")
    tr(a, 30)
    a("s_barrier")
    tr(a, 30)
    a("s_lshl_b32 s%d, s%d, 5" % (sT0, sF))
    a("s_add_u32 s%d, s%d, s%d" % (sT0, sT0, sI))
    a("s_cmp_lg_u32 s%d, %d" % (sT0, OPT["qflag"]))
    a("s_cbranch_scc1 L_g_nf")
    a("s_mov_b64 exec, 1")
    a("buffer_store_dwordx2 %s, v3, %s, s%d offen %s" % (v(VTAG, 2), s(SWS, 4), sFQ, sc()))
    a("s_mov_b64 exec, -1")
    a.label("L_g_nf")
    a("s_cmp_lg_u32 s%d, 16" % sI)
    a("s_cbranch_scc1 L_g_issue")
    a.stamp(4)
    a("s_waitcnt vmcnt(0) lgkmcnt(0)")
    a("s_barrier")
    a("s_cmp_lg_u32 s%d, 0" % sF)
    a("s_cbranch_scc1 L_f_nopoll")
    poll(a, 165, sPOLL, 32, 24, "L_f_pollq")
    a.label("L_f_nopoll")
    a("s_barrier")
    tr_dump(a, 30, 31)
    a.stamp(5)
    a("s_setprio %d" % OPT["prio3"])
    if OPT["nof"] == 1: a("s_branch L_f_ep")
    sMT2, sNT, sWB, sA0, sA1, sGW, sGA, sLB = 43, 44, 45, 46, 53, 54, 55, 56
    a("s_and_b32 s%d, s%d, 3" % (sT2, sJ))
    a("s_lshl2_add_u32 s%d, s%d, s%d" % (sMT2, sXCD, sT2))
    a("s_lshr_b32 s%d, s%d, 2" % (sNT, sJ))
    srd(a, SA, P_WD, 1792 * 1024)
    srd(a, SB, P_WO, 512 * 1024)
    a("v_lshrrev_b32 v8, 3, v2")
    a("v_lshlrev_b32 v7, 1, v8")
    a("v_and_b32 v7, 4, v7")
    a("v_and_b32 v9, 7, v2")
    a("v_xor_b32 v7, v7, v9")
    a("v_lshlrev_b32 v8, 10, v8")
    a("v_lshl_add_u32 v8, v7, 4, v8")
    for i in range(1, 4): a("v_add_u32 v%d, %d, v8" % (8 + i, i * 7168))
    a("s_lshl_b32 s%d, s%d, 7" % (sWB, sNT))
    a("s_mul_i32 s%d, s%d, %d" % (sLB, sF, F2REG))
    a("s_add_u32 s%d, s%d, %d" % (sLB, sLB, LDS_F))
    a("s_mul_i32 s%d, s%d, 3" % (sGW, sT2))
    a("s_add_u32 s%d, s%d, s%d" % (sGW, sGW, sNT))
    a("s_sub_u32 s%d, s%d, 14" % (sT2, sGW))
    a("s_cmp_ge_u32 s%d, 14" % sGW)
    a("s_cselect_b32 s%d, s%d, s%d" % (sGW, sT2, sGW))
    a("s_mov_b32 s%d, s%d" % (sGA, sGW))
    a("s_and_b32 s%d, s%d, 1" % (sT1, sF))
    a("s_lshl1_add_u32 s%d, s%d, s%d" % (sT1, sMT2, sT1))
    a("s_mul_i32 s%d, s%d, %d" % (sA0, sT1, A2_TT))
    a("s_xor_b32 s%d, s%d, 1" % (sT1, sT1))
    a("s_mul_i32 s%d, s%d, %d" % (sA1, sT1, A2_TT))
    a("s_add_u32 s%d, s%d, %d" % (sA0, sA0, A2_OFF))
    a("s_add_u32 s%d, s%d, %d" % (sA1, sA1, A2_OFF))
    sF14 = 57
    a("s_mul_i32 s%d, s%d, 14" % (sF14, sF))
    a.vm = []
    def adv(sg):
        a("s_add_u32 s%d, s%d, 1" % (sg, sg))
        a("s_cmp_eq_u32 s%d, 14" % sg)
        a("s_cselect_b32 s%d, 0, s%d" % (sg, sg))
    def w2(g):
        a("s_add_u32 m0, s%d, %d" % (sLB, (g % 5) * 4096))
        if g < 14:
            a("s_add_u32 s%d, s%d, s%d" % (sT0, sF14, sGW))
            a("s_lshl_b32 s%d, s%d, 15" % (sT0, sT0))
            adv(sGW); sr = SA
        else:
            a("s_lshl_b32 s%d, s%d, 17" % (sT0, sF))
            a("s_add_u32 s%d, s%d, %d" % (sT0, sT0, (g - 14) * 32768)); sr = SB
        a("s_add_u32 s%d, s%d, s%d" % (sT0, sT0, sWB))
        if OPT["thr2"]: a("s_waitcnt vmcnt(%d)" % OPT["thr2"])
        for i in range(4):
            a.vmem("buffer_load_dwordx4 v%d, %s, s%d offen offset:%d lds" % (8 + i, s(sr, 4), sT0, i * 1024), "W%d" % g)
    AB = 96
    def a2(g):
        if g < 14:
            a("s_add_u32 s%d, s%d, s%d" % (sT0, sF14, sGA))
            a("s_lshl_b32 s%d, s%d, 11" % (sT0, sT0))
            a("s_add_u32 s%d, s%d, 32768" % (sT0, sT0))
            adv(sGA)
        else:
            a("s_lshl_b32 s%d, s%d, 13" % (sT0, sF))
            a("s_add_u32 s%d, s%d, %d" % (sT0, sT0, (g - 14) * 2048))
        a("s_add_u32 s%d, s%d, s%d" % (sT1, sT0, sA1))
        a("s_add_u32 s%d, s%d, s%d" % (sT0, sT0, sA0))
        if OPT["thr2"] and g < 14: a("s_waitcnt vmcnt(%d)" % OPT["thr2"])
        for ks in range(2):
            for tb in range(2):
                a.vmem("buffer_load_dwordx4 %s, v3, %s, s%d offen offset:%d sc1" % (v(AB + (g % 4) * 16 + ks * 8 + tb * 4, 4), s(SWS, 4), sT0 + tb, ks * 1024), "A%d" % g)
    a("v_lshrrev_b32 v14, 5, v2")
    a("v_bfe_u32 v4, v2, 2, 2")
    a("v_and_b32 v5, 1, v2")
    a("v_lshlrev_b32 v5, 4, v5")
    a("v_and_b32 v6, 2, v2")
    a("v_lshl_add_u32 v5, v6, 2, v5")
    a("v_and_b32 v6, 16, v2")
    a("v_lshl_add_u32 v5, v6, 1, v5")
    a("s_and_b32 s%d, s%d, 2" % (sT2, sF))
    a("s_lshl_b32 s%d, s%d, 5" % (sT2, sT2))
    a("v_add_u32 v5, s%d, v5" % sT2)
    a("v_lshlrev_b32 v6, 5, v4")
    a("v_and_b32 v6, 64, v6")
    a("v_xor_b32 v5, v5, v6")
    a("v_lshl_add_u32 v4, v14, 2, v4")
    a("v_lshl_add_u32 v5, v4, 7, v5")
    a("v_xor_b32 v6, 64, v5")
    a("v_add_u32 v12, s%d, v5" % sLB)
    a("v_add_u32 v13, s%d, v6" % sLB)
    a("s_lshl2_add_u32 s%d, s%d, s%d" % (sT3, sMT2, sF))
    a("s_lshl_b32 s%d, s%d, %d" % (sT3, sT3, 1 + OPT["fs"]))
    a("s_add_u32 s%d, s%d, %d" % (sT3, sT3, FH_OFF))
    if OPT["w2at"] == 8:
        spin(a, VCN, 0, 0, sT0, "8", "L_f_nofw0")
        for g in range(4): w2(g)
    spin(a, VCN, 0, 0, sT0, "16", "L_f_nofw1")
    a("s_cmp_lg_u32 s%d, 0" % sF)
    a("s_cbranch_scc1 L_f_hf")
    a("s_mov_b64 exec, 1")
    a("buffer_store_dwordx2 %s, v3, %s, s%d offen %s" % (v(VTAG, 2), s(SWS, 4), sFH, sc()))
    a("s_mov_b64 exec, -1")
    a.label("L_f_hf")
    if OPT["w2at"] != 8:
        for g in range(4): w2(g)
    if OPT["f2gate"]: spin(a, VCN, 0, 0, sT0, "%d" % (8 + 8 * OPT["f2gate"]), "L_f_nofw2")
    a.stamp(11)
    poll(a, 165, sT3, 2, 16, "L_f_pollh")
    a.stamp(12)
    a.vm = []
    ACC2 = 32; WF = 16
    def rd2(g, ks, ci):
        for sec in range(2):
            a("ds_read_b64_tr_b16 %s, v%d offset:%d" % (v(WF + ks * 8 + ci * 4 + sec * 2, 2), 12 + ci, (g % 5) * 4096 + ks * 2048 + sec * 1024))
    def mm2(g, ks, ci):
        for ti in range(2):
            d = v(ACC2 + (ci * 2 + ti) * 16, 16)
            a("v_mfma_f32_32x32x16_bf16 %s, %s, %s, %s" % (d, v(WF + ks * 8 + ci * 4, 4), v(AB + (g % 4) * 16 + ks * 8 + ti * 4, 4), "0" if (g == 0 and ks == 0) else d))
    def comp(g, pre=None):
        if OPT["f2pace"] and g < 14:
            if pre: pre()
            for ks in range(2):
                for ci in range(2):
                    rd2(g, ks, ci)
                    a("s_waitcnt lgkmcnt(0)")
                    mm2(g, ks, ci)
            return
        for ks in range(2):
            for ci in range(2): rd2(g, ks, ci)
        if pre: pre()
        for ks in range(2):
            a("s_waitcnt lgkmcnt(%d)" % (4 if ks == 0 else 0))
            for ci in range(2): mm2(g, ks, ci)
    for g in range(3): a2(g)
    for g in range(14):
        if g + 3 < 14: a2(g + 3)
        w2(g + 4)
        a.wait_vm("A%d" % g)
        if a.vm_count_after("W%d" % g) is not None: a.wait_vm("W%d" % g)
        comp(g)
    srd(a, SA, P_X, 2 * MB)
    srd(a, SB, P_OUT, 2 * MB)
    sXS = 48
    a("s_and_b32 s%d, s%d, 1" % (sT1, sF))
    a("s_lshl1_add_u32 s%d, s%d, s%d" % (sT0, sMT2, sT1))
    a("s_lshl_b32 s%d, s%d, 15" % (sXS, sT0))
    a("s_add_u32 s%d, s%d, s%d" % (sXS, sXS, sWB))
    a("s_and_b32 s%d, s%d, 2" % (sT2, sF))
    a("s_lshl_b32 s%d, s%d, 5" % (sT2, sT2))
    a("s_add_u32 s%d, s%d, s%d" % (sXS, sXS, sT2))
    a("v_and_b32 v4, 31, v2")
    a("v_lshlrev_b32 v4, 10, v4")
    a("v_lshl_add_u32 v4, v14, 4, v4")
    a("buffer_load_dwordx4 v[8:11], v4, %s, s%d offen" % (s(SA, 4), sXS))
    a("buffer_load_dwordx4 v[160:163], v4, %s, s%d offen offset:32" % (s(SA, 4), sXS))
    a("s_lshl2_add_u32 s%d, s%d, s%d" % (sT3, sXCD, sF))
    a("s_lshl_b32 s%d, s%d, %d" % (sT3, sT3, 3 + OPT["fs"]))
    a("s_add_u32 s%d, s%d, %d" % (sT3, sT3, FO_OFF))
    a("s_waitcnt vmcnt(0)")
    for i in range(4):
        a("v_lshlrev_b32 v%d, 16, v%d" % (96 + 2 * i, 8 + i))
        a("v_and_b32 v%d, 0xffff0000, v%d" % (97 + 2 * i, 8 + i))
        a("v_lshlrev_b32 v%d, 16, v%d" % (104 + 2 * i, 160 + i))
        a("v_and_b32 v%d, 0xffff0000, v%d" % (105 + 2 * i, 160 + i))
    for i in range(16): a("v_add_f32 v%d, v%d, v%d" % (ACC2 + i, ACC2 + i, 96 + i))
    a("v_add_u32 v5, s%d, v3" % sLB)
    for sl in range(1, 4):
        a("s_xor_b32 s%d, s%d, %d" % (sT0, sF, sl))
        a("s_mul_i32 s%d, s%d, %d" % (sT0, sT0, F2REG))
        a("s_add_u32 s%d, s%d, %d" % (sT0, sT0, LDS_F + (sl - 1) * 4096))
        a("v_add_u32 v%d, s%d, v3" % (7 + sl, sT0))
    a("s_setprio 0")
    a.stamp(13)
    if OPT["nof"] == 4: a("s_branch L_f_ep")
    poll(a, 165, sT3, 8, 16, "L_f_pollo")
    a.stamp(14)
    a("s_setprio 3")
    a.vm = []
    for g in range(14, 18): a2(g)
    for g in range(14, 18):
        comp(g, lambda: a.wait_vm("A%d" % g))
    a.nop(10)
    for sl in range(1, 4):
        for q in range(4):
            a("ds_write_b128 v5, %s offset:%d" % (v(ACC2 + sl * 16 + 4 * q, 4), (sl - 1) * 4096 + q * 1024))
    a("s_waitcnt lgkmcnt(0)")
    arrive(a, VCN, VONE, 40)
    spin(a, VCN, 0, 40, sT0, "4", "L_f_spin3")
    for sl in range(1, 4):
        for q in range(4):
            a("ds_read_b128 %s, v%d offset:%d" % (v(ACC2 + sl * 16 + 4 * q, 4), 7 + sl, q * 1024))
    for sl in range(1, 4):
        a("s_waitcnt lgkmcnt(%d)" % (12 - 4 * sl))
        for i in range(0, 16, 2): a("v_pk_add_f32 %s, %s, %s" % (v(ACC2 + i, 2), v(ACC2 + i, 2), v(ACC2 + 16 * sl + i, 2)))
    for i in range(8): a("v_cvt_pk_bf16_f32 v%d, v%d, v%d" % (96 + i, ACC2 + 2 * i, ACC2 + 2 * i + 1))
    a("buffer_store_dwordx4 v[96:99], v4, %s, s%d offen" % (s(SB, 4), sXS))
    a("buffer_store_dwordx4 v[100:103], v4, %s, s%d offen offset:32" % (s(SB, 4), sXS))
    a.label("L_f_ep")
    if OPT["nof"]:
        spin(a, VCN, 0, 32, sT0, "8", "L_f_nofw")
    a("s_add_u32 s%d, s2, s%d" % (sT0, sF))
    a("s_cmp_lg_u32 s%d, 0" % sT0)
    a("s_cbranch_scc1 L_f_noep")
    a("s_mov_b32 s%d, %d" % (sT0, EPOCH_OFF))
    a("s_mov_b64 exec, 1")
    a("buffer_store_dword v%d, v3, %s, s%d offen" % (VTAG, s(SWS, 4), sT0))
    a("s_mov_b64 exec, -1")
    a.label("L_f_noep")
    a.stamp_flush(0, SWS, sW, 12)
    a("s_endpgm")

def gen_kernel(name):
    a = Asm()
    a.label("L_start")
    a("s_cmp_ge_u32 s2, 256")
    a("s_cbranch_scc1 L_end")
    a.stamp(0)
    if OPT["p1diag"]: a("s_mov_b32 s100, 0")
    a("s_load_dwordx16 s[4:19], s[0:1], 0")
    a("s_load_dwordx4 s[20:23], s[0:1], 64")
    a("s_getpc_b64 s[30:31]")
    a.label("L_pc")
    a("s_lshr_b32 s%d, s2, 3" % sJ)
    a("v_lshrrev_b32 v1, 6, v0")
    a("s_mul_i32 s%d, s%d, 12" % (sT0, sJ))
    a("v_add_lshl_u32 v165, v1, s%d, 7" % sT0)
    a("v_min_u32 v165, (L_end - L_pc), v165")
    a("s_mov_b64 exec, 1")
    a("global_load_dword v165, v165, s[30:31]")
    a("s_mov_b64 exec, -1")
    a("v_and_b32 v2, 63, v0")
    a("v_readfirstlane_b32 s%d, v1" % sW)
    a("v_lshlrev_b32 v3, 4, v2")
    a("s_and_b32 s%d, s2, 7" % sXCD)
    a("s_lshr_b32 s%d, s%d, 2" % (sMT, sXCD))
    a("s_and_b32 s%d, s%d, 15" % (sT0, sJ))
    a("s_lshl4_add_u32 s%d, s%d, s%d" % (sMT, sMT, sT0))
    a("s_and_b32 s%d, s%d, 3" % (sNG, sXCD))
    a("s_lshr_b32 s%d, s%d, 4" % (sT0, sJ))
    a("s_lshl1_add_u32 s%d, s%d, s%d" % (sNG, sNG, sT0))
    a("s_lshl_b32 s%d, s%d, 2" % (sT0, sT0))
    a("s_and_b32 s%d, s%d, 4" % (sT0, sT0))
    a("s_xor_b32 s%d, s%d, s%d" % (sT0, sT0, sW))
    a("s_lshl3_add_u32 s%d, s%d, s%d" % (sT0, sMT, sT0))
    a("s_lshl_b32 s%d, s%d, 13" % (sT0, sT0))
    a("s_add_u32 s%d, s%d, 4096" % (sT1, sT0))
    a("v_lshrrev_b32 v164, 4, v2")
    a("v_mul_u32_u24 v164, 768, v164")
    a("v_add_u32 v164, v164, v3")
    a("s_cmp_lt_u32 s%d, 4" % sW)
    a("s_waitcnt lgkmcnt(0)")
    srd(a, SB, P_X, 2 * MB)
    a("s_cbranch_scc0 L_norow")
    for g in range(2):
        for p in range(4):
            a("buffer_load_dwordx4 %s, v164, %s, s%d offen offset:%d" % (v(132 + 16 * g + 4 * p, 4), s(SB, 4), sT0 + g, p * 256))
    a.label("L_norow")
    a.stamp(8)
    a("s_add_u32 s62, s%d, %d" % (P_WS, EPOCH_OFF))
    a("s_addc_u32 s63, s%d, 0" % (P_WS + 1))
    a("s_load_dword s%d, s[62:63], 0" % sTAG)
    srd(a, SWS, P_WS, WS_BYTES)
    a("s_mov_b32 s%d, 0x3f803f80" % sONE)
    a("s_cmp_lt_u32 s%d, 8" % sW)
    a("s_cbranch_scc1 L_role_a")
    role_f(a)
    a.label("L_role_a")
    a.vm = []
    role_a(a)
    a.label("L_end")
    a("s_endpgm")
    return dict(name=name, asm=a, vgpr=168, grid=(256, 1, 1), block=(768, 1, 1), lds=LDS_TOTAL)
```

```python
from common import *
from layout import *
from kgu import f2u, C1, C2

FL_OFF = 32 * MB
EPOCH_OFF = FL_OFF
FX_OFF = FL_OFF + 0x10000
FQ_OFF = FL_OFF + 0x20000
FH_OFF = FL_OFF + 0x30000
FO_OFF = FL_OFF + 0x40000
TAGX = 0x5bd1e995

LDS_F = 65536
FSLOT = 28800; UPOFF = 14368; FNS = 3
F2REG = 20480
LDS_CNT = LDS_F + FNS * FSLOT
LDS_ST = LDS_CNT + 128
LDS_TOTAL = 163840

P_X, P_WQKV, P_WO, P_WG, P_WU, P_WD, P_OUT, P_WS = 4, 6, 8, 12, 14, 16, 18, 22
SWS, SA, SB = 24, 28, 32
sW = 36
sT0, sT1, sT2, sT3 = 37, 38, 39, 40
sXCD, sJ = 41, 42
sMT, sNG = 43, 44
sTAG = 60
sSPIN = 62
sONE = 3
VTAG = 166
SC = "sc0 sc1"
OPT = dict(gtail=2, gper3=4, abl=0, map=0, osc=0, grot=15, yprio=0, sched=0, w2at=16, f2gate=0, spf=0, ft=1, touch=0, gper=2, p1diag=0, fs=7, psleep=2, sc=0, vprio=1, prio3=0, f2pace=1, nof=0, pk=1, thr2=2, qflag=6)

_stamp = Asm.stamp
def stamp_gate(self, i, force=False):
    if OPT["p1diag"] and not force and i not in (0, 15): return
    _stamp(self, i)
Asm.stamp = stamp_gate
def bar(a, i):
    if OPT["p1diag"] and i < 7: a.stamp(1 + 2 * i, True)
    a("s_barrier")
    if OPT["p1diag"] and i < 7: a.stamp(2 + 2 * i, True)

def tr(a, vr):
    if not OPT["p1diag"]: return
    a("s_memtime s[98:99]")
    a("s_waitcnt lgkmcnt(0)")
    a("s_sub_u32 s98, s98, s96")
    a("s_mov_b32 m0, s100")
    a("s_add_u32 s100, s100, 1")
    a("v_writelane_b32 v%d, s98, m0" % vr)
def tr_dump(a, vr, vtmp):
    if not OPT["p1diag"]: return
    a("s_mul_i32 s100, s2, 12")
    a("s_add_u32 s100, s100, s%d" % sW)
    a("s_lshl_b32 s100, s100, 8")
    a("s_add_u32 s100, s100, %d" % (66 << 20))
    a("v_lshlrev_b32 v%d, 2, v2" % vtmp)
    a("buffer_store_dword v%d, v%d, %s, s100 offen" % (vr, vtmp, s(SWS, 4)))

def cap0(a, fn, *args):
    n = len(a.lines); fn(*args); out = a.lines[n:]; del a.lines[n:]; return out

def arrive(a, vaddr, vone, off):
    a("s_mov_b64 exec, 1")
    a("ds_add_u32 v%d, v%d offset:%d" % (vaddr, vone, off))
    a("s_mov_b64 exec, -1")

def spin(a, vaddr, vp, off, stmp, target, name):
    a("s_mov_b32 s%d, 0x200000" % sSPIN)
    a.label(name)
    a("ds_read_b32 v%d, v%d offset:%d" % (vp, vaddr, off))
    a("s_waitcnt lgkmcnt(0)")
    a("v_readfirstlane_b32 s%d, v%d" % (stmp, vp))
    a("s_nop 0")
    a("s_cmp_ge_u32 s%d, %s" % (stmp, target))
    a("s_cbranch_scc1 %s_ok" % name)
    a("s_sleep %d" % (8 if name.startswith("L_f_nofw") else 1))
    a("s_sub_u32 s%d, s%d, 1" % (sSPIN, sSPIN))
    a("s_cbranch_scc0 %s" % name)
    a.label(name + "_ok")

def sc(): return "sc1" if OPT["sc"] else "sc0 sc1"

def set_flag(a, soff, vz, lanes=1):
    a("s_waitcnt vmcnt(0)")
    a("s_mov_b64 exec, %d" % ((1 << lanes) - 1))
    a("buffer_store_dwordx2 %s, v%d, %s, s%d offen %s" % (v(VTAG, 2), vz, s(SWS, 4), soff, sc()))
    a("s_mov_b64 exec, -1")

def last_flag(a, vcn, vone, vp, off, n, soff, skip):
    a("s_waitcnt vmcnt(0)")
    a("s_mov_b64 exec, 1")
    a("ds_add_rtn_u32 v%d, v%d, v%d offset:%d" % (vp, vcn, vone, off))
    a("s_waitcnt lgkmcnt(0)")
    a("v_readfirstlane_b32 s%d, v%d" % (sT0, vp))
    a("s_mov_b64 exec, -1")
    a("s_cmp_lg_u32 s%d, %d" % (sT0, n - 1))
    a("s_cbranch_scc1 %s" % skip)
    a("s_mov_b64 exec, 1")
    a("buffer_store_dwordx2 %s, v3, %s, s%d offen %s" % (v(VTAG, 2), s(SWS, 4), soff, sc()))
    a("s_mov_b64 exec, -1")

def poll(a, voff, soff, nl, vp, name):
    a("s_mov_b32 s%d, 0x20000" % sSPIN)
    assert nl <= 32
    a("s_mov_b32 exec_lo, 0x%x" % ((1 << nl) - 1))
    a("s_mov_b32 exec_hi, 0")
    a.label(name)
    a("buffer_load_dwordx2 %s, v%d, %s, s%d offen sc1" % (v(vp, 2), voff, s(SWS, 4), soff))
    a("s_waitcnt vmcnt(0)")
    a("v_cmp_ne_u64 vcc, %s, %s" % (s(sTAG, 2), v(vp, 2)))
    a("s_sub_u32 s%d, s%d, 1" % (sSPIN, sSPIN))
    a("s_cbranch_scc1 %s_ok" % name)
    a("s_cbranch_vccz %s_ok" % name)
    a("s_sleep %d" % OPT["psleep"])
    a("s_branch %s" % name)
    a.label(name + "_ok")
    a("s_mov_b64 exec, -1")

def tagsetup(a):
    a("s_waitcnt lgkmcnt(0)")
    a("s_add_u32 s%d, s%d, 1" % (sTAG, sTAG))
    a("s_xor_b32 s%d, s%d, 0x%x" % (sTAG + 1, sTAG, TAGX))
    a("v_mov_b32 v%d, s%d" % (VTAG, sTAG))
    a("v_mov_b32 v%d, s%d" % (VTAG + 1, sTAG + 1))

def bf16r(a, r):
    a("v_cvt_pk_bf16_f32 v%d, v%d, v%d" % (r, r, r))
    a("v_and_b32 v%d, 0xffff0000, v%d" % (r, r))

def ln_final(a, sm, sq, tmp):
    a("v_mul_f32 v%d, 0x3b000000, v%d" % (sm, sm))
    a("v_mul_f32 v%d, 0x3b000000, v%d" % (sq, sq))
    a("v_fma_f32 v%d, -v%d, v%d, v%d" % (sq, sm, sm, sq))
    a("v_max_f32 v%d, 0, v%d" % (sq, sq))
    bf16r(a, sq)
    bf16r(a, sm)
    a("v_add_f32 v%d, 0x3727c5ac, v%d" % (sq, sq))
    bf16r(a, sq)
    a("v_sqrt_f32 v%d, v%d" % (sq, sq))
    a.nop(1)
    bf16r(a, sq)
    a("v_rcp_f32 v%d, v%d" % (sq, sq))
    a.nop(1)

def xsum(a, r, t, kind):
    a("v_mov_b32 v%d, v%d" % (t, r))
    a.nop(2)
    a("v_permlane%d_swap_b32 v%d, v%d" % (kind, r, t))
    a("v_add_f32 v%d, v%d, v%d" % (r, r, t))

XB, XA, WB, WA = 12, 13, 17, 18
FR = 116; ACC1 = 48
def role_a(a):
    sD0, sD1, sSCL = 45, 46, 48
    sHEAD, sQT, sKV, sCH, sSL, sKVB, sQ0, sKH = 49, 50, 51, 52, 53, 54, 55, 57
    sVM = 58
    sCNT, sTGT = 45, 46
    sSO, sI, sKC = 28, 29, 31
    sH = 12
    KA, VA, VCN, VONE, VP, VLO = 8, 9, 44, 45, 46, 47
    Q = [4, 112]; KF = [12, 16]; VF = [20, 28]; P = 36; S = [48, 64]; O = [80, 96]
    VST, WB2 = 19, 10
    XS = 132
    a("s_setprio 3")
    a("s_mov_b32 s10, s%d" % sT0)
    a("s_mov_b32 s11, s%d" % sT1)
    a("v_lshrrev_b32 v4, 4, v2")
    a("v_and_b32 v5, 15, v2")
    a("v_xor_b32 v5, v5, v4")
    a("v_lshlrev_b32 v4, 10, v4")
    a("v_lshl_add_u32 v116, v5, 4, v4")
    a("s_and_b32 s%d, s%d, 1" % (sT1, sW))
    a("s_lshl_b32 s%d, s%d, 7" % (sT1, sT1))
    a("s_and_b32 s%d, s%d, 0xffff" % (sT0, sT0))
    a("v_xor_b32 v116, s%d, v116" % sT1)
    a("v_add_u32 v116, s%d, v116" % sT0)
    a("v_xor_b32 v117, 64, v116")
    a("v_and_b32 v4, 31, v2")
    a("v_lshrrev_b32 v5, 5, v2")
    a("v_and_b32 v6, 15, v2")
    a("v_xor_b32 v6, v6, v5")
    a("v_lshlrev_b32 v6, 4, v6")
    a("v_lshl_add_u32 v%d, v4, 10, v6" % XB)
    a("s_lshr_b32 s%d, s%d, 1" % (sT0, sW))
    a("s_min_u32 s%d, s%d, 2" % (sT1, sT0))
    a("s_sub_u32 s%d, s%d, s%d" % (sT2, sT0, sT1))
    a("s_lshl_b32 s%d, s%d, 15" % (sT3, sT2))
    a("v_add_u32 v%d, s%d, v%d" % (XB, sT3, XB))
    a("v_bfe_u32 v6, v2, 2, 2")
    a("v_and_b32 v7, 3, v2")
    a("v_lshlrev_b32 v7, 3, v7")
    a("v_lshl_add_u32 v14, v5, 3, v6")
    a("v_mul_u32_u24 v14, 448, v14")
    a("v_bfe_u32 v15, v2, 4, 1")
    a("v_mul_u32_u24 v15, %d, v15" % UPOFF)
    a("v_add3_u32 v%d, v14, v15, v7" % WB2)
    a("v_and_b32 v13, 16, v2")
    a("v_lshl_add_u32 v7, v13, 1, v7")
    a("s_and_b32 s%d, s%d, 1" % (sT0, sW))
    a("s_lshl_b32 s%d, s%d, 6" % (sT3, sT0))
    a("v_add_u32 v7, s%d, v7" % sT3)
    a("v_lshlrev_b32 v14, 5, v6")
    a("v_and_b32 v14, 64, v14")
    a("v_xor_b32 v7, v7, v14")
    a("v_lshl_add_u32 v7, v6, 7, v7")
    a("v_mul_u32_u24 v14, 3072, v5")
    a("s_lshl_b32 s%d, s%d, 10" % (sT3, sT1))
    a("v_add3_u32 v%d, v7, v14, s%d" % (WB, sT3))
    a("v_and_b32 v6, 15, v2")
    a("v_lshlrev_b32 v6, 4, v6")
    a("v_lshl_add_u32 v%d, v5, 8, v6" % VLO)
    a("s_mul_i32 s%d, s%d, 3" % (sT3, sT0))
    a("s_add_u32 s%d, s%d, 8" % (sT3, sT3))
    a("s_lshl_b32 s%d, s%d, 1" % (sKH, sW))
    a("s_cmp_lt_u32 s%d, 4" % sW)
    a("s_cselect_b32 s%d, s%d, s%d" % (sT3, sKH, sT3))
    a("s_cselect_b32 s%d, %d, 0" % (sH + 1, A2_TT - 1024))
    a("s_cselect_b32 s%d, 0, 1024" % (sH + 2))
    a("s_add_u32 s%d, s%d, 1024" % (sH + 1, sH + 1))
    a("s_add_u32 s%d, s%d, 1024" % (sH + 2, sH + 2))
    a("s_lshl_b32 s%d, s%d, 5" % (sKH, sT3))
    a("v_add_u32 v%d, s%d, v%d" % (WB2, sKH, WB2))
    a("s_lshl1_add_u32 s%d, s%d, s%d" % (sT0, sNG, sT0))
    a("s_lshl1_add_u32 s%d, s%d, s%d" % (sT2, sMT, sT2))
    a("s_mul_i32 s%d, s%d, 14" % (sKH, sNG))
    a("s_add_u32 s%d, s%d, s%d" % (sKH, sKH, sT3))
    a("s_lshl_b32 s%d, s%d, 10" % (sKH, sKH))
    a("s_mul_i32 s%d, s%d, %d" % (sH, sT2, A2_TT))
    a("s_add_u32 s%d, s%d, s%d" % (sH, sH, sKH))
    a("s_add_u32 s%d, s%d, %d" % (sH, sH, A2_OFF + 32 * 1024))
    a("s_add_u32 s%d, s%d, s%d" % (sH + 1, sH + 1, sH))
    a("s_add_u32 s%d, s%d, s%d" % (sH + 2, sH + 2, sH))
    a("s_add_u32 s%d, s%d, 1024" % (sH + 3, sH + 1))
    a("s_lshl_b32 s%d, s%d, 17" % (sD0, sT0))
    a("s_lshl_b32 s%d, s%d, 10" % (sT3, sT2))
    a("s_add_u32 s%d, s%d, s%d" % (sD0, sD0, sT3))
    a("s_add_u32 s%d, s%d, %d" % (sD0, sD0, QF_OFF))
    a("s_min_u32 s%d, s%d, 1" % (sT3, sT1))
    a("s_lshl_b32 s%d, s%d, s%d" % (sD0, sD0, sT3))
    a("s_lshl_b32 s%d, 65536, s%d" % (sD1, sT3))
    a("s_add_u32 s%d, s%d, s%d" % (sD1, sD1, sD0))
    a("s_lshl_b32 s%d, 1024, s%d" % (sKH, sT3))
    a("v_add_u32 v%d, s%d, v3" % (VST, sKH))
    a("v_lshl_add_u32 v115, v13, 13, v%d" % VLO)
    a("s_cmp_eq_u32 s%d, 0" % sT1)
    a("s_cselect_b32 s%d, 0x%x, 1.0" % (sSCL, QSCALE))
    def late_setup():
        a("s_lshr_b32 s%d, s%d, 3" % (sT2, sJ))
        a("s_lshl2_add_u32 s%d, s%d, s%d" % (sHEAD, sXCD, sT2))
        a("s_and_b32 s%d, s%d, 7" % (sCH, sJ))
        a("s_and_b32 s%d, s%d, 3" % (sT0, sW))
        a("s_lshl_b32 s%d, s%d, 1" % (sT0, sT0))
        a("s_lshl3_add_u32 s%d, s%d, s%d" % (sQT, sCH, sT0))
        a("s_lshr_b32 s%d, s%d, 2" % (sKH, sW))
        a("s_add_u32 s%d, s%d, s%d" % (sQT, sQT, sKH))
        a("s_lshl_b32 s%d, s%d, 11" % (sSL, sW))
        a("s_lshl_b32 s%d, s%d, 17" % (sKVB, sHEAD))
        a("s_add_u32 s%d, s%d, %d" % (sKVB, sKVB, KV_OFF))
        a("s_add_u32 s%d, s%d, s%d" % (sKV, sKVB, sSL))
        a("s_lshl_b32 s%d, s%d, 16" % (sQ0, sHEAD))
        a("s_lshl_b32 s%d, s%d, 10" % (sT2, sQT))
        a("s_add_u32 s%d, s%d, s%d" % (sQ0, sQ0, sT2))
        a("s_add_u32 s%d, s%d, %d" % (sQ0, sQ0, QF_OFF))
        a("v_mov_b32 v6, 0")
        a("s_mov_b32 exec_lo, 0x00110000")
        a("s_mov_b32 exec_hi, 0x00110000")
        a("v_mov_b32 v6, s%d" % sONE)
        a("s_mov_b64 exec, -1")
        a("v_mov_b32 v11, v6")
        a("s_mov_b32 s%d, 0" % sCH)
        a("s_mov_b32 s%d, 0x0000ffff" % sVM)
        a("s_mov_b32 s%d, 0x0000ffff" % (sVM + 1))
        a("s_lshl_b32 s%d, s%d, 13" % (sKH, sKH))
        a("v_add_u32 v%d, s%d, v3" % (KA, sKH))
        a("v_add_u32 v%d, s%d, v%d" % (VA, sKH, VLO))
        a("v_mov_b32 v%d, 1" % VONE)
        for i in range(40, 44, 2): a("v_mov_b64 %s, 0" % v(i, 2))
        a("v_mov_b32 v36, 0x%x" % f2u(C1))
        a("v_mov_b32 v38, 0x%x" % f2u(C2))
    a("v_mov_b32 v%d, %d" % (VCN, LDS_CNT))
    for i in range(48, 112, 2): a("v_mov_b64 %s, 0" % v(i, 2))
    a("v_mov_b32 v4, s%d" % sSCL)
    a("ds_write_b128 v%d, v[48:51]" % VCN)
    a("ds_write_b128 v%d, v[48:51] offset:16" % VCN)
    a("ds_write_b128 v%d, v[48:51] offset:32" % VCN)
    a("s_mov_b32 s%d, %d" % (sSO, LDS_F))
    a("s_mov_b32 s%d, 8" % sI)
    a("s_and_b32 s%d, s%d, 7" % (sKC, sJ))
    a("s_lshl_b32 s%d, s%d, 7" % (sKC, sKC))
    def addrs(nk=4, wb=WB):
        a("v_xor_b32 v%d, s%d, v%d" % (XA, sKC, XB))
        a("v_add_u32 v%d, s%d, v%d" % (WA, sSO, wb))
        for k in range(1, nk): a("v_xor_b32 v%d, %d, v%d" % (XA + k, k << 5, XA))
        a("s_add_u32 s%d, s%d, %d" % (sKC, sKC, 32 * nk))
        a("s_and_b32 s%d, s%d, 0x3ff" % (sKC, sKC))
        a("s_add_u32 s%d, s%d, %d" % (sSO, sSO, FSLOT))
        a("s_cmp_eq_u32 s%d, %d" % (sSO, LDS_F + 3 * FSLOT))
        a("s_cselect_b32 s%d, %d, s%d" % (sSO, LDS_F, sSO))
    addrs()
    a("s_cmp_lt_u32 s%d, 4" % sW)
    a("s_cbranch_scc1 L_a_bx")
    for g in range(2):
        for p in range(4):
            a("buffer_load_dwordx4 %s, v164, %s, s%d offen offset:%d" % (v(132 + 16 * g + 4 * p, 4), s(SB, 4), 10 + g, p * 256))
    a.label("L_a_bx")
    late_setup()
    tagsetup(a)
    a.stamp(1)
    for g in range(2):
        a("s_waitcnt vmcnt(%d)" % (4 - 4 * g))
        if g == 1: a.stamp(14)
        for i in range(16):
            r = XS + 16 * g + i; d = 20 + 8 * g + 2 * (i & 3)
            a("v_dot2_f32_bf16 v%d, v%d, s%d, %s" % (d, r, sONE, "0" if i < 4 else "v%d" % d))
            a("v_dot2_f32_bf16 v%d, v%d, v%d, %s" % (d + 1, r, r, "0" if i < 4 else "v%d" % (d + 1)))
    a("v_pk_add_f32 v[20:21], v[20:21], v[22:23]")
    a("v_pk_add_f32 v[24:25], v[24:25], v[26:27]")
    a("v_pk_add_f32 v[28:29], v[28:29], v[30:31]")
    a("v_pk_add_f32 v[32:33], v[32:33], v[34:35]")
    a("v_pk_add_f32 v[118:119], v[20:21], v[24:25]")
    a("v_pk_add_f32 v[120:121], v[28:29], v[32:33]")
    def unpack(n):
        for q in range(4):
            r = XS + 4 * n + q; t = 20 + 8 * (n % 2) + 2 * q
            a("v_lshlrev_b32 v%d, 16, v%d" % (t, r))
            a("v_and_b32 v%d, 0xffff0000, v%d" % (t + 1, r))
    fill = cap0(a, unpack, 0) + cap0(a, unpack, 1)
    chain = []
    for sh in (8, 4, 2, 1):
        for k in range(118, 122):
            chain.append("v_add_f32_dpp v%d, v%d, v%d row_ror:%d row_mask:0xf bank_mask:0xf" % (k, k, k, sh))
    l0 = cap0(a, ln_final, a, 118, 119, 0); l1 = cap0(a, ln_final, a, 120, 121, 0)
    a(fill.pop(0))
    for l in chain: a(l)
    for x, y in zip(l0, l1):
        if not x.startswith("s_nop"):
            a(x); a(y)
            if fill: a(fill.pop(0))
    a("v_mul_f32_e64 v118, -v118, v119")
    a("v_mul_f32_e64 v120, -v120, v121")
    for l in fill: a(l)
    for n in range(8):
        g = n // 4; p = n % 4; T = 20 + 8 * (n % 2)
        for q in range(4):
            a("v_pk_fma_f32 %s, %s, %s, %s op_sel:[0,1,0] op_sel_hi:[1,1,0]" % (v(T + 2 * q, 2), v(T + 2 * q, 2), v(118 + 2 * g, 2), v(118 + 2 * g, 2)))
        for q in range(4):
            a("v_cvt_pk_bf16_f32 v%d, v%d, v%d" % (XS + 4 * n + q, T + 2 * q, T + 2 * q + 1))
        a("ds_write_b128 v%d, %s offset:%d" % (116 + g, v(XS + 4 * n, 4), g * 4096 + p * 256))
        if n + 2 < 8: unpack(n + 2)
    a("s_waitcnt lgkmcnt(0)")
    a.stamp(2)
    a("s_barrier")
    a("s_setprio 0")
    a.stamp(3)
    a("s_cmp_ge_u32 s%d, 4" % sW)
    a("s_cbranch_scc1 L_p1_v0")
    def wread(k, dst):
        for sec in range(2):
            a("ds_read_b64_tr_b16 %s, v%d offset:%d" % (v(dst + 2 * sec, 2), WA, k * 6144 + sec * 512))
    def xread(k, dst, tb): a("ds_read_b128 %s, v%d offset:%d" % (v(dst, 4), XA + k, tb * 32768))
    def gread(k, dst, t):
        for sec in range(2):
            a("ds_read_b64_tr_b16 %s, v%d offset:%d" % (v(dst + 2 * sec, 2), WA, k * 7168 + sec * 1792 + t * 32))
    def cap(fn, *args):
        n = len(a.lines); fn(*args); out = a.lines[n:]; del a.lines[n:]; return out
    def weave(mm, rd, per):
        for l in mm:
            a(l)
            if l.startswith("v_mfma"):
                for _ in range(per):
                    if rd: a(rd.pop(0))
        for l in rd: a(l)
    def gemm(lab, rdf, mmf, n, per, touch=False):
        for k in range(3): rdf(k)
        a("s_branch %s_m" % lab)
        a.label(lab)
        rd = cap(rdf, 0) + cap(rdf, 1)
        m2 = cap(mmf, 2)
        for l in m2:
            a(l)
            for _ in range(per):
                if rd: a(rd.pop(0))
        weave(cap(mmf, 3), rd + cap(rdf, 2), per)
        a.label(lab + "_m")
        a("s_waitcnt lgkmcnt(%d)" % (2 * n))
        weave(cap(mmf, 0), cap(rdf, 3), per)
        a("s_waitcnt lgkmcnt(%d)" % (2 * n))
        mm1 = cap(mmf, 1)
        a(mm1[0]); addrs()
        for l in mm1[1:]: a(l)
        a("s_sub_u32 s%d, s%d, 1" % (sI, sI))
        a("s_waitcnt lgkmcnt(0)")
        a("s_barrier")
        a("s_cmp_lg_u32 s%d, 0" % sI)
        a("s_cbranch_scc1 %s" % lab)
        a.stamp(4)
        mmf(2); mmf(3)
        a("s_mov_b32 s%d, %d" % (sSO, LDS_F + 2 * FSLOT))
        a("s_lshl_b32 s%d, s56, 6" % sKC)
        a("s_mov_b32 s%d, 16" % sI)
        addrs(2, WB2)
    GB = [[132, 148], [116, 20]]
    def gu(lab, rdf, mmf, n):
        a.stamp(5)
        def pre():
            addrs(2, WB2)
            a("s_sub_u32 s%d, s%d, 1" % (sI, sI))
        def tail(last=False):
            if last:
                a("s_cmp_lg_u32 s%d, %d" % (sI, 18 - OPT["qflag"]))
                a("s_cbranch_scc1 %s_b" % lab)
                a("s_waitcnt vmcnt(0)")
                a.label(lab + "_b")
            a("s_waitcnt lgkmcnt(0)")
            a("s_barrier")
        def half(p):
            mm = cap(mmf, 1 - p, 0) + cap(mmf, 1 - p, 1)
            k = OPT["gtail"]
            weave(mm[:len(mm) - k], cap(rdf, p, 0) + cap(rdf, p, 1), OPT["gper"] if n == 6 else OPT["gper3"])
            pre()
            for l in mm[len(mm) - k:]: a(l)
        pre()
        a("s_branch %s_m" % lab)
        a.label(lab)
        half(0)
        a.label(lab + "_m")
        tail()
        half(1)
        tail(True)
        a("s_cmp_lg_u32 s%d, 0" % sI)
        a("s_cbranch_scc1 %s" % lab)
        a("s_setprio 3")
        mmf(1, 0); mmf(1, 1)
    def qk_rd(k): wread(k, FR + 12 * k); xread(k, FR + 12 * k + 4, 0); xread(k, FR + 12 * k + 8, 1)
    def qk_mm(k):
        f = FR + 12 * k
        for tb in range(2):
            d = v(ACC1 + 16 * tb, 16)
            a("v_mfma_f32_32x32x16_bf16 %s, %s, %s, %s" % (d, v(f, 4), v(f + 4 + 4 * tb, 4), d))
    def g4_rd(p, k):
        b = GB[p][k]
        gread(k, b, 0); xread(k, b + 8, 0); xread(k, b + 12, 1); gread(k, b + 4, 1)
    def g4_mm(p, k):
        b = GB[p][k]
        for fi in range(2):
            for tb in range(2):
                d = v(ACC1 + 16 * (2 * fi + tb), 16)
                a("v_mfma_f32_32x32x16_bf16 %s, %s, %s, %s" % (d, v(b + 4 * fi, 4), v(b + 8 + 4 * tb, 4), d))
    gemm("L_p1_qk", qk_rd, qk_mm, 4, 3)
    g4_rd(0, 0); g4_rd(0, 1)
    for tb in range(2):
        A0 = ACC1 + 16 * tb
        for i in range(0, 16, 2): a("v_pk_mul_f32 %s, %s, v[4:5] op_sel_hi:[1,0]" % (v(A0 + i, 2), v(A0 + i, 2)))
        for i in range(8): a("v_cvt_pk_bf16_f32 v%d, v%d, v%d" % (FR + 8 * tb + i, A0 + 2 * i, A0 + 2 * i + 1))
        a("buffer_store_dwordx4 %s, v%d, %s, s%d offen %s" % (v(FR + 8 * tb, 4), VST if tb else 3, s(SWS, 4), sD0, sc()))
        a("buffer_store_dwordx4 %s, v%d, %s, s%d offen %s" % (v(FR + 8 * tb + 4, 4), VST if tb else 3, s(SWS, 4), sD1, sc()))
        for i in range(0, 16, 2): a("v_mov_b64 %s, 0" % v(A0 + i, 2))
    gu("L_gu4", g4_rd, g4_mm, 6)
    a("s_branch L_p1_done")
    a.label("L_p1_v0")
    if OPT["vprio"]: a("s_setprio 1")
    def v_rd(k): xread(k, FR + 8 * k + 4, 0); wread(k, FR + 8 * k)
    def v_mm(k):
        f = FR + 8 * k; d = v(ACC1, 16)
        a("v_mfma_f32_32x32x16_bf16 %s, %s, %s, %s" % (d, v(f + 4, 4), v(f, 4), d))
    def g3_rd(p, k):
        b = GB[p][k]
        gread(k, b, 0); xread(k, b + 12, 0); gread(k, b + 4, 1); gread(k, b + 8, 2)
    def g3_mm(p, k):
        b = GB[p][k]
        for fi in range(3):
            d = v(ACC1 + 16 * fi, 16)
            a("v_mfma_f32_32x32x16_bf16 %s, %s, %s, %s" % (d, v(b + 4 * fi, 4), v(b + 12, 4), d))
    gemm("L_p1_v", v_rd, v_mm, 3, 4, True)
    g3_rd(0, 0); g3_rd(0, 1)
    for i in range(8): a("v_cvt_pk_bf16_f32 v%d, v%d, v%d" % (FR + i, ACC1 + 2 * i, ACC1 + 2 * i + 1))
    a("buffer_store_dwordx4 %s, v115, %s, s%d offen offset:1024 %s" % (v(FR, 4), s(SWS, 4), sD0, sc()))
    a("buffer_store_dwordx4 %s, v115, %s, s%d offen offset:1536 %s" % (v(FR + 4, 4), s(SWS, 4), sD0, sc()))
    for i in range(0, 16, 2): a("v_mov_b64 %s, 0" % v(ACC1 + i, 2))
    gu("L_gu3", g3_rd, g3_mm, 7)
    a.label("L_p1_done")
    tr_dump(a, 165, 164)
    a.stamp(6)
    def dma():
        a("s_mov_b32 m0, s%d" % sSL)
        a("s_add_u32 s%d, s%d, s%d" % (sT0, sKV, sCH))
        a("buffer_load_dwordx4 v3, %s, s%d offen sc1 lds" % (s(SWS, 4), sT0))
        a("buffer_load_dwordx4 v3, %s, s%d offen offset:1024 sc1 lds" % (s(SWS, 4), sT0))
        a("s_add_u32 s%d, s%d, 16384" % (sSL, sSL))
        a("s_and_b32 s%d, s%d, 0xffff" % (sSL, sSL))
        a("s_add_u32 s%d, s%d, 16384" % (sCH, sCH))
    dma()
    a("s_xor_b32 s%d, s%d, 1024" % (sT1, sQ0))
    a("buffer_load_dwordx4 %s, v3, %s, s%d offen sc1" % (v(Q[0], 4), s(SWS, 4), sQ0))
    a("buffer_load_dwordx4 %s, v3, %s, s%d offen sc1" % (v(Q[1], 4), s(SWS, 4), sT1))
    dma()
    def geglu(t):
        Gt = ACC1 + 16 * t; U = Gt + 8; T = 132 + (t % 2) * 12
        R = range(0, 8, 2)
        for i in R: a("v_pk_mul_f32 %s, %s, %s" % (v(T + i, 2), v(Gt + i, 2), v(Gt + i, 2)))
        for i in R: a("v_pk_fma_f32 %s, %s, v[38:39], v[36:37] op_sel_hi:[1,0,0]" % (v(T + i, 2), v(T + i, 2)))
        for i in R: a("v_pk_mul_f32 %s, %s, %s" % (v(T + i, 2), v(T + i, 2), v(Gt + i, 2)))
        for i in range(8): a("v_exp_f32 v%d, v%d" % (T + i, T + i))
        for i in R: a("v_pk_mul_f32 %s, %s, %s" % (v(Gt + i, 2), v(Gt + i, 2), v(U + i, 2)))
        for i in R: a("v_pk_add_f32 %s, %s, 1.0 op_sel_hi:[1,0]" % (v(T + i, 2), v(T + i, 2)))
        for i in range(8): a("v_rcp_f32 v%d, v%d" % (T + i, T + i))
        a.nop(1)
        for i in R: a("v_pk_mul_f32 %s, %s, %s" % (v(Gt + i, 2), v(Gt + i, 2), v(T + i, 2)))
        for i in range(4): a("v_cvt_pk_bf16_f32 v%d, v%d, v%d" % (T + 8 + i, Gt + 2 * i, Gt + 2 * i + 1))
        a("buffer_store_dwordx4 %s, v3, %s, s%d offen %s" % (v(T + 8, 4), s(SWS, 4), sH + t, sc()))
        if t >= 2:
            for i in range(0, 16, 2): a("v_mov_b64 %s, 0" % v(Gt + i, 2))
    a("v_mov_b32 v10, v11")
    geglu(0)
    for i in range(0, 16, 2): a("v_mov_b64 %s, v[10:11]" % v(VF[0] + i, 2))
    dma()
    geglu(1); geglu(2)
    a("s_cmp_ge_u32 s%d, 4" % sW)
    a("s_cbranch_scc1 L_g_done")
    geglu(3)
    a.label("L_g_done")
    a.stamp(9)
    def rdK(kt): a("ds_read_b128 %s, v%d offset:%d" % (v(KF[kt % 2], 4), KA, (kt % 4) * 2048))
    def rdV(kt):
        a("s_mov_b64 exec, %s" % s(sVM, 2))
        a("ds_read_b128 %s, v%d offset:%d" % (v(VF[kt % 2], 4), VA, (kt % 4) * 2048 + 1024))
        a("ds_read_b128 %s, v%d offset:%d" % (v(VF[kt % 2] + 4, 4), VA, (kt % 4) * 2048 + 1536))
        a("s_mov_b64 exec, -1")
    def mfS(u): a("v_mfma_f32_32x32x16_bf16 %s, %s, %s, 0" % (v(S[u % 2], 16), v(KF[(u >> 1) % 2], 4), v(Q[u % 2], 4)))
    def mfPV(u, j): a("v_mfma_f32_32x32x16_bf16 %s, %s, %s, %s" % (v(O[u % 2], 16), v(VF[(u >> 1) % 2] + 4 * j, 4), v(P + 4 * j, 4), v(O[u % 2], 16)))
    a("s_waitcnt vmcnt(5)")
    arrive(a, VCN, VONE, 0)
    spin(a, VCN, VP, 0, sT0, "8", "L_a_first")
    rdK(0); rdV(0); rdK(1)
    a("s_mov_b32 s%d, 0" % sCNT)
    a("s_mov_b32 s%d, 8" % sTGT)
    a("s_waitcnt lgkmcnt(3)")
    mfS(0)
    a.stamp(10)
    a("s_setprio 0")
    if OPT["yprio"]:
        a("s_cmp_lt_u32 s%d, 4" % sW)
        a("s_cbranch_scc1 L_at_yp")
        a("s_setprio 1")
        a.label("L_at_yp")
    a.nop(9)
    a.label("L_at_loop")
    for u in range(8):
        Sx = S[u % 2]
        e = lambda i: a("v_exp_f32 v%d, v%d" % (Sx + i, Sx + i))
        cv = lambda i: a("v_cvt_pk_bf16_f32 v%d, v%d, v%d" % (P + i, Sx + 2 * i, Sx + 2 * i + 1))
        if u % 2 == 0: a("s_waitcnt lgkmcnt(0)")
        mfS(u + 1)
        e(0)
        if u == 4: a("v_readfirstlane_b32 s%d, v%d" % (sT0, VP))
        e(1)
        if u == 4:
            a("s_cmp_ge_u32 s%d, s%d" % (sT0, sTGT))
            a("s_cbranch_scc0 L_at_slow")
            a.label("L_at_back")
        e(2); e(3)
        mfPV(u - 1, 1)
        if u % 2 == 0:
            rdK(u // 2 + 2); rdV(u // 2 + 1)
        cv(0); e(4)
        if u == 3:
            a("ds_read_b32 v%d, v%d" % (VP, VCN))
            a("v_add_u32 v%d, 16384, v%d" % (KA, KA))
            a("v_and_b32 v%d, 0xffff, v%d" % (KA, KA))
        if u == 5:
            a("v_add_u32 v%d, 16384, v%d" % (VA, VA))
            a("v_and_b32 v%d, 0xffff, v%d" % (VA, VA))
            a("s_cmp_ge_u32 s%d, 5" % sCNT)
            a("s_cbranch_scc1 L_at_nodma")
            a("s_setprio 3")
            dma()
            a("s_setprio 0")
            if OPT["yprio"]:
                a("s_cmp_lt_u32 s%d, 4" % sW)
                a("s_cbranch_scc1 L_at_nodma")
                a("s_setprio 1")
            a.label("L_at_nodma")
        if u == 6:
            a("s_waitcnt vmcnt(2)")
            a("s_cmp_ge_u32 s%d, 5" % sCNT)
            a("s_cbranch_scc0 L_at_w2")
            a("s_waitcnt vmcnt(0)")
            a.label("L_at_w2")
            arrive(a, VCN, VONE, 0)
        if OPT["sched"] == 0:
            cv(1); e(5); e(6); e(7); cv(2); e(8); cv(3); e(9); e(10)
            mfPV(u, 0)
            e(11); e(12); cv(4); e(13); cv(5); e(14); e(15); cv(6)
        elif OPT["sched"] == 1:
            e(5); e(6); e(7); e(8); cv(1); cv(2); cv(3); e(9); e(10)
            mfPV(u, 0)
            e(11); e(12); e(13); e(14); e(15); cv(4); cv(5); cv(6)
        else:
            cv(1); e(5); e(6); e(7); cv(2); e(8); cv(3); e(9); e(10); e(11); cv(4)
            mfPV(u, 0)
            e(12); e(13); cv(5); e(14); e(15); cv(6)
        if u == 7:
            a("s_add_u32 s%d, s%d, 8" % (sTGT, sTGT))
            a("s_add_u32 s%d, s%d, 1" % (sCNT, sCNT))
            a("s_cmp_lt_u32 s%d, 8" % sCNT)
        cv(7)
    a("s_cbranch_scc1 L_at_loop")
    a.nop(1)
    mfPV(7, 1)
    a.stamp(11)
    a("s_lshl_b32 s%d, s%d, 12" % (sT0, sW))
    a("s_add_u32 s%d, s%d, 16384" % (sT0, sT0))
    a("v_add_u32 v10, s%d, v3" % sT0)
    a("v_xor_b32 v11, 0xc000, v10")
    a("s_and_b32 s%d, s%d, 3" % (sT1, sW))
    a("s_lshl_b32 s%d, s%d, 2" % (sKH, sT1))
    a("s_mul_i32 s%d, s%d, %d" % (sT2, sQT, A2_TT))
    a("s_lshl_b32 s%d, s%d, 10" % (sT1, sHEAD))
    a("s_add_u32 s%d, s%d, s%d" % (sT2, sT2, sT1))
    a("s_add_u32 s%d, s%d, %d" % (sT2, sT2, A2_OFF))
    a("s_lshr_b32 s%d, s%d, 3" % (sT3, sQT))
    a("s_lshl_b32 s%d, s%d, 5" % (sT3, sT3))
    a("s_add_u32 s%d, s%d, s%d" % (sT3, sT3, sHEAD))
    a("s_lshl_b32 s%d, s%d, %d" % (sT3, sT3, OPT["fs"]))
    a("s_add_u32 s%d, s%d, %d" % (sT3, sT3, FO_OFF))
    a("ds_write_b128 v10, %s" % v(O[1], 4))
    a("ds_write_b128 v10, %s offset:1024" % v(O[1] + 4, 4))
    a("ds_write_b32 v10, v%d offset:2048" % (O[1] + 8))
    a("s_waitcnt lgkmcnt(0)")
    a("v_add_u32 v12, s%d, v%d" % (sKH, VCN))
    arrive(a, 12, VONE, 8)
    spin(a, 12, VP, 8, sT0, "2", "L_a_pair")
    a("ds_read_b128 %s, v11" % v(S[0], 4))
    a("ds_read_b128 %s, v11 offset:1024" % v(S[0] + 4, 4))
    a("ds_read_b32 v%d, v11 offset:2048" % (S[0] + 8))
    a("s_waitcnt lgkmcnt(0)")
    for i in range(8, -1, -1): a("v_add_f32 v%d, v%d, v%d" % (O[0] + i, O[0] + i, S[0] + i))
    a("v_cmp_nle_f32 vcc, 0x21800000, v%d" % (O[0] + 8))
    a("s_nop 1")
    a("s_mov_b64 s[56:57], vcc")
    a("v_cmp_nge_f32 vcc, 0x5d800000, v%d" % (O[0] + 8))
    a("s_nop 1")
    a("s_or_b64 vcc, vcc, s[56:57]")
    a("s_cbranch_vccnz L_a_fallback")
    a.label("L_a_fin")
    a("s_setprio 3")
    a.stamp(12)
    a("v_rcp_f32 v10, v%d" % (O[0] + 8))
    a.nop(1)
    for i in range(8): a("v_mul_f32 v%d, v%d, v10" % (O[0] + i, O[0] + i))
    for i in range(4): a("v_cvt_pk_bf16_f32 v%d, v%d, v%d" % (P + i, O[0] + 2 * i, O[0] + 2 * i + 1))
    a("buffer_store_dwordx4 %s, v3, %s, s%d offen %s" % (v(P, 4), s(SWS, 4), sT2, sc()))
    last_flag(a, VCN, VONE, VP, 32, 8, sT3, "L_a_exit")
    a.label("L_a_exit")
    a.stamp(13)
    a.stamp_flush(0, SWS, sW, 12)
    a("s_endpgm")
    a.label("L_at_slow")
    spin(a, VCN, VP, 0, sT0, "s%d" % sTGT, "L_at_spin")
    a("s_branch L_at_back")
    a.label("L_a_fallback")
    C = O[1]; S0 = S[0]
    a("v_mov_b32 v10, 0xff800000")
    a("s_mov_b32 s%d, s%d" % (sT0, sKVB))
    a("s_mov_b32 s%d, 64" % sCNT)
    a.label("L_fb1")
    a("buffer_load_dwordx4 %s, v3, %s, s%d offen sc1" % (v(KF[0], 4), s(SWS, 4), sT0))
    a("s_waitcnt vmcnt(0)")
    a("v_mfma_f32_32x32x16_bf16 %s, %s, %s, 0" % (v(S0, 16), v(KF[0], 4), v(Q[0], 4)))
    a.nop(12)
    for i in range(0, 16, 2): a("v_max3_f32 v10, v10, v%d, v%d" % (S0 + i, S0 + i + 1))
    a("s_add_u32 s%d, s%d, 2048" % (sT0, sT0))
    a("s_sub_u32 s%d, s%d, 1" % (sCNT, sCNT))
    a("s_cmp_lg_u32 s%d, 0" % sCNT)
    a("s_cbranch_scc1 L_fb1")
    a("v_mov_b32 v11, v10")
    a.nop(2)
    a("v_permlane32_swap_b32 v10, v11")
    a("v_max_f32 v10, v10, v11")
    for i in range(16): a("v_sub_f32 v%d, 0, v10" % (C + i))
    for i in range(16): a("v_mov_b32 v%d, 0" % (O[0] + i))
    a("s_mov_b32 s%d, s%d" % (sT0, sKVB))
    a("s_mov_b32 s%d, 64" % sCNT)
    a.label("L_fb2")
    a("buffer_load_dwordx4 %s, v3, %s, s%d offen sc1" % (v(KF[0], 4), s(SWS, 4), sT0))
    a("s_mov_b64 exec, %s" % s(sVM, 2))
    a("buffer_load_dwordx4 %s, v47, %s, s%d offen offset:1024 sc1" % (v(VF[0], 4), s(SWS, 4), sT0))
    a("buffer_load_dwordx4 %s, v47, %s, s%d offen offset:1536 sc1" % (v(VF[0] + 4, 4), s(SWS, 4), sT0))
    a("s_mov_b64 exec, -1")
    a("s_waitcnt vmcnt(0)")
    a("v_mfma_f32_32x32x16_bf16 %s, %s, %s, %s" % (v(S0, 16), v(KF[0], 4), v(Q[0], 4), v(C, 16)))
    a.nop(12)
    for i in range(16): a("v_exp_f32 v%d, v%d" % (S0 + i, S0 + i))
    a.nop(1)
    for i in range(8): a("v_cvt_pk_bf16_f32 v%d, v%d, v%d" % (P + i, S0 + 2 * i, S0 + 2 * i + 1))
    a.nop(2)
    for j in range(2): a("v_mfma_f32_32x32x16_bf16 %s, %s, %s, %s" % (v(O[0], 16), v(VF[0] + 4 * j, 4), v(P + 4 * j, 4), v(O[0], 16)))
    a("s_add_u32 s%d, s%d, 2048" % (sT0, sT0))
    a("s_sub_u32 s%d, s%d, 1" % (sCNT, sCNT))
    a("s_cmp_lg_u32 s%d, 0" % sCNT)
    a("s_cbranch_scc1 L_fb2")
    a.nop(12)
    a("s_branch L_a_fin")

def role_f(a):
    sF = 47; SG = 12
    VCN, VONE = 164, 1
    sW1, sM1, sKD, sSO, sI, sW2, sM2, sFQ, sFH, sPOLL = 10, 11, 20, 21, 48, 49, 50, 51, 52, 58
    a("s_sub_u32 s%d, s%d, 8" % (sF, sW))
    a("s_setprio 2")
    srd(a, SA, P_WQKV, 512 * 3072)
    a("v_lshrrev_b32 v6, 3, v2")
    a("v_and_b32 v9, 7, v2")
    a("v_lshlrev_b32 v8, 1, v6")
    a("v_and_b32 v8, 4, v8")
    a("v_xor_b32 v7, v9, v8")
    a("v_mul_u32_u24 v8, 3072, v6")
    a("v_lshl_add_u32 v8, v7, 4, v8")
    a("s_mul_i32 s%d, s%d, %d" % (sW1, sF, 16 * 3072))
    a("s_lshl_b32 s%d, s%d, 7" % (sT0, sNG))
    a("s_add_u32 s%d, s%d, s%d" % (sW1, sW1, sT0))
    a("s_mul_i32 s%d, s%d, 6144" % (sM1, sF))
    a("s_add_u32 s%d, s%d, %d" % (sM1, sM1, LDS_F))
    a("s_and_b32 s%d, s%d, 7" % (sKD, sJ))
    a("s_mov_b32 s%d, 0" % sSO)
    a("s_mov_b32 s%d, 0" % sI)
    a("s_cmp_ge_u32 s%d, 2" % sF)
    a("s_cselect_b64 %s, %s, %s" % (s(P_WG, 2), s(P_WU, 2), s(P_WG, 2)))
    a("s_cselect_b32 s%d, %d, 0" % (sM2, UPOFF))
    a("s_add_u32 s%d, s%d, %d" % (sM2, sM2, LDS_F))
    srd(a, SG, P_WG, 512 * 3584)
    for i in range(7):
        a("v_add_u32 v4, %d, v2" % (64 * i))
        a("v_mul_u32_u24 v5, 2341, v4")
        a("v_lshrrev_b32 v5, 16, v5")
        a("v_mul_u32_u24 v5, %d, v5" % (3584 - 448))
        a("v_lshl_add_u32 v5, v4, 4, v5")
        a("v_subrev_u32 v%d, %d, v5" % (16 + i, (i % 4) * 1024))
    a("s_and_b32 s%d, s%d, 1" % (sT1, sF))
    a("s_mul_i32 s%d, s%d, %d" % (sW2, sT1, 16 * 3584))
    a("s_mul_i32 s%d, s%d, 448" % (sT2, sNG))
    a("s_add_u32 s%d, s%d, s%d" % (sW2, sW2, sT2))
    a("s_mul_i32 s%d, s%d, 7168" % (sT1, sT1))
    a("s_add_u32 s%d, s%d, s%d" % (sM2, sM2, sT1))
    def spf():
        if not OPT["spf"]: return
        for r in range(2):
            for q in range(4): a("s_load_dword s53, s[54:55], %d" % (r * 3584 + q * 128))
        a("s_add_u32 s54, s54, %d" % (2 * 3584))
        a("s_addc_u32 s55, s55, 0")
    tagsetup(a)
    a("s_mul_i32 s%d, s56, %d" % (sT0, 32 * 3584))
    a("s_add_u32 s%d, s%d, s%d" % (sT0, sT0, sW2))
    a("s_mov_b32 s53, s%d" % sT0)
    a("v_lshrrev_b32 v4, 2, v2")
    a("v_mul_u32_u24 v4, 3584, v4")
    a("v_and_b32 v5, 3, v2")
    a("v_lshl_add_u32 v23, v5, 7, v4")
    a("s_lshl_b32 s%d, s%d, 5" % (sFQ, sNG))
    a("s_add_u32 s%d, s%d, s%d" % (sFQ, sFQ, sMT))
    a("s_lshl_b32 s%d, s%d, %d" % (sFQ, sFQ, OPT["fs"]))
    a("s_add_u32 s%d, s%d, %d" % (sFQ, sFQ, FQ_OFF))
    a("s_lshl3_add_u32 s%d, s%d, s%d" % (sFH, sMT, sNG))
    a("s_lshl_b32 s%d, s%d, %d" % (sFH, sFH, OPT["fs"]))
    a("s_add_u32 s%d, s%d, %d" % (sFH, sFH, FH_OFF))
    a("s_lshl_b32 s%d, s%d, %d" % (sPOLL, sXCD, 5 + OPT["fs"]))
    a("s_add_u32 s%d, s%d, %d" % (sPOLL, sPOLL, FQ_OFF))
    a("v_mov_b32 v%d, %d" % (VCN, LDS_CNT))
    a("v_mov_b32 v%d, 1" % VONE)
    def slot():
        a("s_add_u32 s%d, s%d, %d" % (sSO, sSO, FSLOT))
        a("s_cmp_eq_u32 s%d, %d" % (sSO, 3 * FSLOT))
        a("s_cselect_b32 s%d, 0, s%d" % (sSO, sSO))
        a("s_add_u32 s%d, s%d, 1" % (sI, sI))
    a("s_waitcnt vmcnt(0)")
    a.stamp(1)
    a.label("L_d_issue")
    a("s_mul_i32 s%d, s%d, %d" % (sT2, sKD, 64 * 3072))
    a("s_add_u32 s%d, s%d, s%d" % (sT2, sT2, sW1))
    a("s_add_u32 m0, s%d, s%d" % (sM1, sSO))
    a("s_add_u32 s%d, s%d, 1" % (sKD, sKD))
    for m in range(3): a("buffer_load_dwordx4 v8, %s, s%d offen offset:%d lds" % (s(SA, 4), sT2, m * 1024))
    a("s_add_u32 m0, m0, 3072")
    a("s_add_u32 s%d, s%d, %d" % (sT2, sT2, 8 * 3072))
    for m in range(3): a("buffer_load_dwordx4 v8, %s, s%d offen offset:%d lds" % (s(SA, 4), sT2, m * 1024))
    a("s_and_b32 s%d, s%d, 7" % (sKD, sKD))
    slot()
    if OPT["ft"]:
        a("s_cmp_lt_u32 s%d, 3" % sI)
        a("s_cbranch_scc1 L_d_issue")
        a("s_cmp_lg_u32 s%d, 3" % sI)
        a("s_cbranch_scc1 L_d_w")
        a("buffer_load_dword v23, v23, %s, s53 offen" % s(SG, 4))
        a("s_waitcnt vmcnt(13)")
        a("s_barrier")
        a.label("L_d_w")
        a("s_waitcnt vmcnt(7)")
        a("s_cmp_lt_u32 s%d, 5" % sI)
        a("s_cbranch_scc1 L_d_b")
        a("s_waitcnt vmcnt(6)")
        a.label("L_d_b")
    else:
        a("s_cmp_eq_u32 s%d, 1" % sI)
        a("s_cbranch_scc1 L_d_issue")
        a("s_waitcnt vmcnt(6)")
    a("s_barrier")
    a("s_cmp_lg_u32 s%d, 8" % sI)
    a("s_cbranch_scc1 L_d_issue")
    a.stamp(3)
    a("s_waitcnt lgkmcnt(0)") if False else None
    a("s_mov_b32 s%d, s56" % sKD)
    a("s_mov_b32 s%d, 0" % sI)
    a("v_lshlrev_b32 v165, %d, v2" % OPT["fs"])
    a.label("L_g_issue")
    a("s_mul_i32 s%d, s%d, %d" % (sT2, sKD, 32 * 3584))
    a("s_add_u32 m0, s%d, s%d" % (sM2, sSO))
    a("s_add_u32 s%d, s%d, s%d" % (sT2, sT2, sW2))
    for i in range(7):
        if i == 4:
            a("s_add_u32 m0, m0, 4096")
            a("s_add_u32 s%d, s%d, 1" % (sKD, sKD))
        a("buffer_load_dwordx4 v%d, %s, s%d offen offset:%d lds" % (16 + i, s(SG, 4), sT2, (i % 4) * 1024))
    a("s_and_b32 s%d, s%d, 15" % (sKD, sKD))
    slot()
    tr(a, 30)
    a("s_waitcnt vmcnt(7)")
    tr(a, 30)
    a("s_barrier")
    tr(a, 30)
    a("s_lshl_b32 s%d, s%d, 5" % (sT0, sF))
    a("s_add_u32 s%d, s%d, s%d" % (sT0, sT0, sI))
    a("s_cmp_lg_u32 s%d, %d" % (sT0, OPT["qflag"]))
    a("s_cbranch_scc1 L_g_nf")
    a("s_mov_b64 exec, 1")
    a("buffer_store_dwordx2 %s, v3, %s, s%d offen %s" % (v(VTAG, 2), s(SWS, 4), sFQ, sc()))
    a("s_mov_b64 exec, -1")
    a.label("L_g_nf")
    a("s_cmp_lg_u32 s%d, 16" % sI)
    a("s_cbranch_scc1 L_g_issue")
    a.stamp(4)
    a("s_waitcnt vmcnt(0) lgkmcnt(0)")
    a("s_barrier")
    a("s_cmp_lg_u32 s%d, 0" % sF)
    a("s_cbranch_scc1 L_f_nopoll")
    poll(a, 165, sPOLL, 32, 24, "L_f_pollq")
    a.label("L_f_nopoll")
    a("s_barrier")
    tr_dump(a, 30, 31)
    a.stamp(5)
    a("s_setprio %d" % OPT["prio3"])
    if OPT["nof"] == 1: a("s_branch L_f_ep")
    sMT2, sNT, sWB, sA0, sA1, sGW, sGA, sLB = 43, 44, 45, 46, 53, 54, 55, 56
    a("s_and_b32 s%d, s%d, 3" % (sT2, sJ))
    a("s_lshl2_add_u32 s%d, s%d, s%d" % (sMT2, sXCD, sT2))
    a("s_lshr_b32 s%d, s%d, 2" % (sNT, sJ))
    srd(a, SA, P_WD, 1792 * 1024)
    srd(a, SB, P_WO, 512 * 1024)
    a("v_lshrrev_b32 v8, 3, v2")
    a("v_lshlrev_b32 v7, 1, v8")
    a("v_and_b32 v7, 4, v7")
    a("v_and_b32 v9, 7, v2")
    a("v_xor_b32 v7, v7, v9")
    a("v_lshlrev_b32 v8, 10, v8")
    a("v_lshl_add_u32 v8, v7, 4, v8")
    for i in range(1, 4): a("v_add_u32 v%d, %d, v8" % (8 + i, i * 7168))
    a("s_lshl_b32 s%d, s%d, 7" % (sWB, sNT))
    a("s_mul_i32 s%d, s%d, %d" % (sLB, sF, F2REG))
    a("s_add_u32 s%d, s%d, %d" % (sLB, sLB, LDS_F))
    a("s_mul_i32 s%d, s%d, 3" % (sGW, sT2))
    a("s_add_u32 s%d, s%d, s%d" % (sGW, sGW, sNT))
    a("s_sub_u32 s%d, s%d, 14" % (sT2, sGW))
    a("s_cmp_ge_u32 s%d, 14" % sGW)
    a("s_cselect_b32 s%d, s%d, s%d" % (sGW, sT2, sGW))
    a("s_mov_b32 s%d, s%d" % (sGA, sGW))
    a("s_and_b32 s%d, s%d, 1" % (sT1, sF))
    a("s_lshl1_add_u32 s%d, s%d, s%d" % (sT1, sMT2, sT1))
    a("s_mul_i32 s%d, s%d, %d" % (sA0, sT1, A2_TT))
    a("s_xor_b32 s%d, s%d, 1" % (sT1, sT1))
    a("s_mul_i32 s%d, s%d, %d" % (sA1, sT1, A2_TT))
    a("s_add_u32 s%d, s%d, %d" % (sA0, sA0, A2_OFF))
    a("s_add_u32 s%d, s%d, %d" % (sA1, sA1, A2_OFF))
    sF14 = 57
    a("s_mul_i32 s%d, s%d, 14" % (sF14, sF))
    a.vm = []
    def adv(sg):
        a("s_add_u32 s%d, s%d, 1" % (sg, sg))
        a("s_cmp_eq_u32 s%d, 14" % sg)
        a("s_cselect_b32 s%d, 0, s%d" % (sg, sg))
    def w2(g):
        a("s_add_u32 m0, s%d, %d" % (sLB, (g % 5) * 4096))
        if g < 14:
            a("s_add_u32 s%d, s%d, s%d" % (sT0, sF14, sGW))
            a("s_lshl_b32 s%d, s%d, 15" % (sT0, sT0))
            adv(sGW); sr = SA
        else:
            a("s_lshl_b32 s%d, s%d, 17" % (sT0, sF))
            a("s_add_u32 s%d, s%d, %d" % (sT0, sT0, (g - 14) * 32768)); sr = SB
        a("s_add_u32 s%d, s%d, s%d" % (sT0, sT0, sWB))
        if OPT["thr2"]: a("s_waitcnt vmcnt(%d)" % OPT["thr2"])
        for i in range(4):
            a.vmem("buffer_load_dwordx4 v%d, %s, s%d offen offset:%d lds" % (8 + i, s(sr, 4), sT0, i * 1024), "W%d" % g)
    AB = 96
    def a2(g):
        if g < 14:
            a("s_add_u32 s%d, s%d, s%d" % (sT0, sF14, sGA))
            a("s_lshl_b32 s%d, s%d, 11" % (sT0, sT0))
            a("s_add_u32 s%d, s%d, 32768" % (sT0, sT0))
            adv(sGA)
        else:
            a("s_lshl_b32 s%d, s%d, 13" % (sT0, sF))
            a("s_add_u32 s%d, s%d, %d" % (sT0, sT0, (g - 14) * 2048))
        a("s_add_u32 s%d, s%d, s%d" % (sT1, sT0, sA1))
        a("s_add_u32 s%d, s%d, s%d" % (sT0, sT0, sA0))
        if OPT["thr2"] and g < 14: a("s_waitcnt vmcnt(%d)" % OPT["thr2"])
        for ks in range(2):
            for tb in range(2):
                a.vmem("buffer_load_dwordx4 %s, v3, %s, s%d offen offset:%d sc1" % (v(AB + (g % 4) * 16 + ks * 8 + tb * 4, 4), s(SWS, 4), sT0 + tb, ks * 1024), "A%d" % g)
    a("v_lshrrev_b32 v14, 5, v2")
    a("v_bfe_u32 v4, v2, 2, 2")
    a("v_and_b32 v5, 1, v2")
    a("v_lshlrev_b32 v5, 4, v5")
    a("v_and_b32 v6, 2, v2")
    a("v_lshl_add_u32 v5, v6, 2, v5")
    a("v_and_b32 v6, 16, v2")
    a("v_lshl_add_u32 v5, v6, 1, v5")
    a("s_and_b32 s%d, s%d, 2" % (sT2, sF))
    a("s_lshl_b32 s%d, s%d, 5" % (sT2, sT2))
    a("v_add_u32 v5, s%d, v5" % sT2)
    a("v_lshlrev_b32 v6, 5, v4")
    a("v_and_b32 v6, 64, v6")
    a("v_xor_b32 v5, v5, v6")
    a("v_lshl_add_u32 v4, v14, 2, v4")
    a("v_lshl_add_u32 v5, v4, 7, v5")
    a("v_xor_b32 v6, 64, v5")
    a("v_add_u32 v12, s%d, v5" % sLB)
    a("v_add_u32 v13, s%d, v6" % sLB)
    a("s_lshl2_add_u32 s%d, s%d, s%d" % (sT3, sMT2, sF))
    a("s_lshl_b32 s%d, s%d, %d" % (sT3, sT3, 1 + OPT["fs"]))
    a("s_add_u32 s%d, s%d, %d" % (sT3, sT3, FH_OFF))
    if OPT["w2at"] == 8:
        spin(a, VCN, 0, 0, sT0, "8", "L_f_nofw0")
        for g in range(4): w2(g)
    spin(a, VCN, 0, 0, sT0, "16", "L_f_nofw1")
    a("s_cmp_lg_u32 s%d, 0" % sF)
    a("s_cbranch_scc1 L_f_hf")
    a("s_mov_b64 exec, 1")
    a("buffer_store_dwordx2 %s, v3, %s, s%d offen %s" % (v(VTAG, 2), s(SWS, 4), sFH, sc()))
    a("s_mov_b64 exec, -1")
    a.label("L_f_hf")
    if OPT["w2at"] != 8:
        for g in range(4): w2(g)
    if OPT["f2gate"]: spin(a, VCN, 0, 0, sT0, "%d" % (8 + 8 * OPT["f2gate"]), "L_f_nofw2")
    a.stamp(11)
    poll(a, 165, sT3, 2, 16, "L_f_pollh")
    a.stamp(12)
    a.vm = []
    ACC2 = 32; WF = 16
    def rd2(g, ks, ci):
        for sec in range(2):
            a("ds_read_b64_tr_b16 %s, v%d offset:%d" % (v(WF + ks * 8 + ci * 4 + sec * 2, 2), 12 + ci, (g % 5) * 4096 + ks * 2048 + sec * 1024))
    def mm2(g, ks, ci):
        for ti in range(2):
            d = v(ACC2 + (ci * 2 + ti) * 16, 16)
            a("v_mfma_f32_32x32x16_bf16 %s, %s, %s, %s" % (d, v(WF + ks * 8 + ci * 4, 4), v(AB + (g % 4) * 16 + ks * 8 + ti * 4, 4), "0" if (g == 0 and ks == 0) else d))
    def comp(g, pre=None):
        if OPT["f2pace"] and g < 14:
            if pre: pre()
            for ks in range(2):
                for ci in range(2):
                    rd2(g, ks, ci)
                    a("s_waitcnt lgkmcnt(0)")
                    mm2(g, ks, ci)
            return
        for ks in range(2):
            for ci in range(2): rd2(g, ks, ci)
        if pre: pre()
        for ks in range(2):
            a("s_waitcnt lgkmcnt(%d)" % (4 if ks == 0 else 0))
            for ci in range(2): mm2(g, ks, ci)
    for g in range(3): a2(g)
    for g in range(14):
        if g + 3 < 14: a2(g + 3)
        w2(g + 4)
        a.wait_vm("A%d" % g)
        if a.vm_count_after("W%d" % g) is not None: a.wait_vm("W%d" % g)
        comp(g)
    srd(a, SA, P_X, 2 * MB)
    srd(a, SB, P_OUT, 2 * MB)
    sXS = 48
    a("s_and_b32 s%d, s%d, 1" % (sT1, sF))
    a("s_lshl1_add_u32 s%d, s%d, s%d" % (sT0, sMT2, sT1))
    a("s_lshl_b32 s%d, s%d, 15" % (sXS, sT0))
    a("s_add_u32 s%d, s%d, s%d" % (sXS, sXS, sWB))
    a("s_and_b32 s%d, s%d, 2" % (sT2, sF))
    a("s_lshl_b32 s%d, s%d, 5" % (sT2, sT2))
    a("s_add_u32 s%d, s%d, s%d" % (sXS, sXS, sT2))
    a("v_and_b32 v4, 31, v2")
    a("v_lshlrev_b32 v4, 10, v4")
    a("v_lshl_add_u32 v4, v14, 4, v4")
    a("buffer_load_dwordx4 v[8:11], v4, %s, s%d offen" % (s(SA, 4), sXS))
    a("buffer_load_dwordx4 v[160:163], v4, %s, s%d offen offset:32" % (s(SA, 4), sXS))
    a("s_lshl2_add_u32 s%d, s%d, s%d" % (sT3, sXCD, sF))
    a("s_lshl_b32 s%d, s%d, %d" % (sT3, sT3, 3 + OPT["fs"]))
    a("s_add_u32 s%d, s%d, %d" % (sT3, sT3, FO_OFF))
    a("s_waitcnt vmcnt(0)")
    for i in range(4):
        a("v_lshlrev_b32 v%d, 16, v%d" % (96 + 2 * i, 8 + i))
        a("v_and_b32 v%d, 0xffff0000, v%d" % (97 + 2 * i, 8 + i))
        a("v_lshlrev_b32 v%d, 16, v%d" % (104 + 2 * i, 160 + i))
        a("v_and_b32 v%d, 0xffff0000, v%d" % (105 + 2 * i, 160 + i))
    for i in range(16): a("v_add_f32 v%d, v%d, v%d" % (ACC2 + i, ACC2 + i, 96 + i))
    a("v_add_u32 v5, s%d, v3" % sLB)
    for sl in range(1, 4):
        a("s_xor_b32 s%d, s%d, %d" % (sT0, sF, sl))
        a("s_mul_i32 s%d, s%d, %d" % (sT0, sT0, F2REG))
        a("s_add_u32 s%d, s%d, %d" % (sT0, sT0, LDS_F + (sl - 1) * 4096))
        a("v_add_u32 v%d, s%d, v3" % (7 + sl, sT0))
    a("s_setprio 0")
    a.stamp(13)
    if OPT["nof"] == 4: a("s_branch L_f_ep")
    poll(a, 165, sT3, 8, 16, "L_f_pollo")
    a.stamp(14)
    a("s_setprio 3")
    a.vm = []
    for g in range(14, 18): a2(g)
    for g in range(14, 18):
        comp(g, lambda: a.wait_vm("A%d" % g))
    a.nop(10)
    for sl in range(1, 4):
        for q in range(4):
            a("ds_write_b128 v5, %s offset:%d" % (v(ACC2 + sl * 16 + 4 * q, 4), (sl - 1) * 4096 + q * 1024))
    a("s_waitcnt lgkmcnt(0)")
    arrive(a, VCN, VONE, 40)
    spin(a, VCN, 0, 40, sT0, "4", "L_f_spin3")
    for sl in range(1, 4):
        for q in range(4):
            a("ds_read_b128 %s, v%d offset:%d" % (v(ACC2 + sl * 16 + 4 * q, 4), 7 + sl, q * 1024))
    for sl in range(1, 4):
        a("s_waitcnt lgkmcnt(%d)" % (12 - 4 * sl))
        for i in range(0, 16, 2): a("v_pk_add_f32 %s, %s, %s" % (v(ACC2 + i, 2), v(ACC2 + i, 2), v(ACC2 + 16 * sl + i, 2)))
    for i in range(8): a("v_cvt_pk_bf16_f32 v%d, v%d, v%d" % (96 + i, ACC2 + 2 * i, ACC2 + 2 * i + 1))
    osc = ["", "sc1", "nt"][OPT["osc"]]
    a("buffer_store_dwordx4 v[96:99], v4, %s, s%d offen %s" % (s(SB, 4), sXS, osc))
    a("buffer_store_dwordx4 v[100:103], v4, %s, s%d offen offset:32 %s" % (s(SB, 4), sXS, osc))
    a.label("L_f_ep")
    if OPT["nof"]:
        spin(a, VCN, 0, 32, sT0, "8", "L_f_nofw")
    a("s_add_u32 s%d, s2, s%d" % (sT0, sF))
    a("s_cmp_lg_u32 s%d, 0" % sT0)
    a("s_cbranch_scc1 L_f_noep")
    a("s_mov_b32 s%d, %d" % (sT0, EPOCH_OFF))
    a("s_mov_b64 exec, 1")
    a("buffer_store_dword v%d, v3, %s, s%d offen" % (VTAG, s(SWS, 4), sT0))
    a("s_mov_b64 exec, -1")
    a.label("L_f_noep")
    a.stamp_flush(0, SWS, sW, 12)
    a("s_endpgm")

def gen_kernel(name):
    a = Asm()
    a.label("L_start")
    a("s_cmp_ge_u32 s2, 256")
    a("s_cbranch_scc1 L_end")
    a.stamp(0)
    if OPT["p1diag"]: a("s_mov_b32 s100, 0")
    a("s_load_dwordx16 s[4:19], s[0:1], 0")
    a("s_load_dwordx4 s[20:23], s[0:1], 64")
    a("s_getpc_b64 s[30:31]")
    a.label("L_pc")
    a("s_lshr_b32 s%d, s2, 3" % sJ)
    a("v_lshrrev_b32 v1, 6, v0")
    a("s_mul_i32 s%d, s%d, 12" % (sT0, sJ))
    a("v_add_lshl_u32 v165, v1, s%d, 7" % sT0)
    a("v_min_u32 v165, (L_end - L_pc), v165")
    a("s_mov_b64 exec, 1")
    a("global_load_dword v165, v165, s[30:31]")
    a("s_mov_b64 exec, -1")
    a("v_and_b32 v2, 63, v0")
    a("v_readfirstlane_b32 s%d, v1" % sW)
    a("v_lshlrev_b32 v3, 4, v2")
    a("s_and_b32 s%d, s2, 7" % sXCD)
    lg = {0: 3, 1: 4, 2: 5}[OPT["map"]]
    a("s_lshr_b32 s%d, s%d, %d" % (sMT, sXCD, lg - 2))
    a("s_lshl_b32 s%d, s%d, %d" % (sMT, sMT, lg))
    a("s_and_b32 s%d, s%d, %d" % (sT0, sJ, (1 << lg) - 1))
    a("s_add_u32 s%d, s%d, s%d" % (sMT, sMT, sT0))
    a("s_and_b32 s%d, s%d, %d" % (sNG, sXCD, (1 << (lg - 2)) - 1))
    a("s_lshl_b32 s%d, s%d, %d" % (sNG, sNG, 5 - lg))
    a("s_lshr_b32 s%d, s%d, %d" % (sT0, sJ, lg))
    a("s_add_u32 s%d, s%d, s%d" % (sNG, sNG, sT0))
    if lg == 3: a("s_lshl_b32 s56, s%d, 1" % sJ)
    else: a("s_mov_b32 s56, s%d" % sJ)
    a("s_and_b32 s56, s56, %d" % OPT["grot"])
    a("s_lshl_b32 s%d, s%d, 2" % (sT0, sT0))
    a("s_and_b32 s%d, s%d, 4" % (sT0, sT0))
    a("s_xor_b32 s%d, s%d, s%d" % (sT0, sT0, sW))
    a("s_lshl3_add_u32 s%d, s%d, s%d" % (sT0, sMT, sT0))
    a("s_lshl_b32 s%d, s%d, 13" % (sT0, sT0))
    a("s_add_u32 s%d, s%d, 4096" % (sT1, sT0))
    a("v_lshrrev_b32 v164, 4, v2")
    a("v_mul_u32_u24 v164, 768, v164")
    a("v_add_u32 v164, v164, v3")
    a("s_cmp_lt_u32 s%d, 4" % sW)
    a("s_waitcnt lgkmcnt(0)")
    srd(a, SB, P_X, 2 * MB)
    a("s_cbranch_scc0 L_norow")
    for g in range(2):
        for p in range(4):
            a("buffer_load_dwordx4 %s, v164, %s, s%d offen offset:%d" % (v(132 + 16 * g + 4 * p, 4), s(SB, 4), sT0 + g, p * 256))
    a.label("L_norow")
    a.stamp(8)
    a("s_add_u32 s62, s%d, %d" % (P_WS, EPOCH_OFF))
    a("s_addc_u32 s63, s%d, 0" % (P_WS + 1))
    a("s_load_dword s%d, s[62:63], 0" % sTAG)
    srd(a, SWS, P_WS, WS_BYTES)
    a("s_mov_b32 s%d, 0x3f803f80" % sONE)
    a("s_cmp_lt_u32 s%d, 8" % sW)
    a("s_cbranch_scc1 L_role_a")
    role_f(a)
    a.label("L_role_a")
    a.vm = []
    role_a(a)
    if OPT["abl"]:
        i0 = a.lines.index("L_p1_qk:"); i1 = a.lines.index("L_p1_done:")
        def keep(l):
            if OPT["abl"] & 1 and l.startswith("v_mfma"): return False
            if OPT["abl"] & 4 and l.startswith("ds_read"): return False
            return True
        a.lines[i0:i1] = [l for l in a.lines[i0:i1] if keep(l)]
        if OPT["abl"] & 2:
            i0 = a.lines.index("L_g_issue:"); i1 = a.lines.index("L_g_nf:")
            a.lines[i0:i1] = [l for l in a.lines[i0:i1] if not l.startswith("buffer_load")]
    a.label("L_end")
    a("s_endpgm")
    return dict(name=name, asm=a, vgpr=168, grid=(256, 1, 1), block=(768, 1, 1), lds=LDS_TOTAL)
```

```python
from common import *
from layout import *
from kgu import f2u, C1, C2

FL_OFF = 32 * MB
EPOCH_OFF = FL_OFF
FX_OFF = FL_OFF + 0x10000
FQ_OFF = FL_OFF + 0x20000
FH_OFF = FL_OFF + 0x30000
FO_OFF = FL_OFF + 0x40000
TAGX = 0x5bd1e995

LDS_F = 65536
FSLOT = 28800; UPOFF = 14368; FNS = 3
F2REG = 20480
LDS_CNT = LDS_F + FNS * FSLOT
LDS_ST = LDS_CNT + 128
LDS_TOTAL = 163840

P_X, P_WQKV, P_WO, P_WG, P_WU, P_WD, P_OUT, P_WS = 4, 6, 8, 12, 14, 16, 18, 22
SWS, SA, SB = 24, 28, 32
sW = 36
sT0, sT1, sT2, sT3 = 37, 38, 39, 40
sXCD, sJ = 41, 42
sMT, sNG = 43, 44
sTAG = 60
sSPIN = 62
sONE = 3
VTAG = 166
SC = "sc0 sc1"
OPT = dict(prog=0, gtail=2, gper3=4, abl=0, map=0, osc=0, grot=15, yprio=0, sched=0, w2at=16, f2gate=0, spf=0, ft=1, touch=0, gper=2, p1diag=0, fs=7, psleep=2, sc=0, vprio=1, prio3=0, f2pace=1, nof=0, pk=1, thr2=2, qflag=6)

_stamp = Asm.stamp
def stamp_gate(self, i, force=False):
    if OPT["p1diag"] and not force and i not in (0, 15): return
    _stamp(self, i)
Asm.stamp = stamp_gate
def bar(a, i):
    if OPT["p1diag"] and i < 7: a.stamp(1 + 2 * i, True)
    a("s_barrier")
    if OPT["p1diag"] and i < 7: a.stamp(2 + 2 * i, True)

def tr(a, vr):
    if not OPT["p1diag"]: return
    a("s_memtime s[98:99]")
    a("s_waitcnt lgkmcnt(0)")
    a("s_sub_u32 s98, s98, s96")
    a("s_mov_b32 m0, s100")
    a("s_add_u32 s100, s100, 1")
    a("v_writelane_b32 v%d, s98, m0" % vr)
def tr_dump(a, vr, vtmp):
    if not OPT["p1diag"]: return
    a("s_mul_i32 s100, s2, 12")
    a("s_add_u32 s100, s100, s%d" % sW)
    a("s_lshl_b32 s100, s100, 8")
    a("s_add_u32 s100, s100, %d" % (66 << 20))
    a("v_lshlrev_b32 v%d, 2, v2" % vtmp)
    a("buffer_store_dword v%d, v%d, %s, s100 offen" % (vr, vtmp, s(SWS, 4)))

def cap0(a, fn, *args):
    n = len(a.lines); fn(*args); out = a.lines[n:]; del a.lines[n:]; return out

def arrive(a, vaddr, vone, off):
    a("s_mov_b64 exec, 1")
    a("ds_add_u32 v%d, v%d offset:%d" % (vaddr, vone, off))
    a("s_mov_b64 exec, -1")

def spin(a, vaddr, vp, off, stmp, target, name):
    a("s_mov_b32 s%d, 0x200000" % sSPIN)
    a.label(name)
    a("ds_read_b32 v%d, v%d offset:%d" % (vp, vaddr, off))
    a("s_waitcnt lgkmcnt(0)")
    a("v_readfirstlane_b32 s%d, v%d" % (stmp, vp))
    a("s_nop 0")
    a("s_cmp_ge_u32 s%d, %s" % (stmp, target))
    a("s_cbranch_scc1 %s_ok" % name)
    a("s_sleep %d" % (8 if name.startswith("L_f_nofw") else 1))
    a("s_sub_u32 s%d, s%d, 1" % (sSPIN, sSPIN))
    a("s_cbranch_scc0 %s" % name)
    a.label(name + "_ok")

def sc(): return "sc1" if OPT["sc"] else "sc0 sc1"

def set_flag(a, soff, vz, lanes=1):
    a("s_waitcnt vmcnt(0)")
    a("s_mov_b64 exec, %d" % ((1 << lanes) - 1))
    a("buffer_store_dwordx2 %s, v%d, %s, s%d offen %s" % (v(VTAG, 2), vz, s(SWS, 4), soff, sc()))
    a("s_mov_b64 exec, -1")

def last_flag(a, vcn, vone, vp, off, n, soff, skip):
    a("s_waitcnt vmcnt(0)")
    a("s_mov_b64 exec, 1")
    a("ds_add_rtn_u32 v%d, v%d, v%d offset:%d" % (vp, vcn, vone, off))
    a("s_waitcnt lgkmcnt(0)")
    a("v_readfirstlane_b32 s%d, v%d" % (sT0, vp))
    a("s_mov_b64 exec, -1")
    a("s_cmp_lg_u32 s%d, %d" % (sT0, n - 1))
    a("s_cbranch_scc1 %s" % skip)
    a("s_mov_b64 exec, 1")
    a("buffer_store_dwordx2 %s, v3, %s, s%d offen %s" % (v(VTAG, 2), s(SWS, 4), soff, sc()))
    a("s_mov_b64 exec, -1")

def poll(a, voff, soff, nl, vp, name):
    a("s_mov_b32 s%d, 0x20000" % sSPIN)
    assert nl <= 32
    a("s_mov_b32 exec_lo, 0x%x" % ((1 << nl) - 1))
    a("s_mov_b32 exec_hi, 0")
    a.label(name)
    a("buffer_load_dwordx2 %s, v%d, %s, s%d offen sc1" % (v(vp, 2), voff, s(SWS, 4), soff))
    a("s_waitcnt vmcnt(0)")
    a("v_cmp_ne_u64 vcc, %s, %s" % (s(sTAG, 2), v(vp, 2)))
    a("s_sub_u32 s%d, s%d, 1" % (sSPIN, sSPIN))
    a("s_cbranch_scc1 %s_ok" % name)
    a("s_cbranch_vccz %s_ok" % name)
    a("s_sleep %d" % OPT["psleep"])
    a("s_branch %s" % name)
    a.label(name + "_ok")
    a("s_mov_b64 exec, -1")

def tagsetup(a):
    a("s_waitcnt lgkmcnt(0)")
    a("s_add_u32 s%d, s%d, 1" % (sTAG, sTAG))
    a("s_xor_b32 s%d, s%d, 0x%x" % (sTAG + 1, sTAG, TAGX))
    a("v_mov_b32 v%d, s%d" % (VTAG, sTAG))
    a("v_mov_b32 v%d, s%d" % (VTAG + 1, sTAG + 1))

def bf16r(a, r):
    a("v_cvt_pk_bf16_f32 v%d, v%d, v%d" % (r, r, r))
    a("v_and_b32 v%d, 0xffff0000, v%d" % (r, r))

def ln_final(a, sm, sq, tmp):
    a("v_mul_f32 v%d, 0x3b000000, v%d" % (sm, sm))
    a("v_mul_f32 v%d, 0x3b000000, v%d" % (sq, sq))
    a("v_fma_f32 v%d, -v%d, v%d, v%d" % (sq, sm, sm, sq))
    a("v_max_f32 v%d, 0, v%d" % (sq, sq))
    bf16r(a, sq)
    bf16r(a, sm)
    a("v_add_f32 v%d, 0x3727c5ac, v%d" % (sq, sq))
    bf16r(a, sq)
    a("v_sqrt_f32 v%d, v%d" % (sq, sq))
    a.nop(1)
    bf16r(a, sq)
    a("v_rcp_f32 v%d, v%d" % (sq, sq))
    a.nop(1)

def xsum(a, r, t, kind):
    a("v_mov_b32 v%d, v%d" % (t, r))
    a.nop(2)
    a("v_permlane%d_swap_b32 v%d, v%d" % (kind, r, t))
    a("v_add_f32 v%d, v%d, v%d" % (r, r, t))

XB, XA, WB, WA = 12, 13, 17, 18
FR = 116; ACC1 = 48
def role_a(a):
    sD0, sD1, sSCL = 45, 46, 48
    sHEAD, sQT, sKV, sCH, sSL, sKVB, sQ0, sKH = 49, 50, 51, 52, 53, 54, 55, 57
    sVM = 58
    sCNT, sTGT = 45, 46
    sSO, sI, sKC = 28, 29, 31
    sH = 12
    KA, VA, VCN, VONE, VP, VLO = 8, 9, 44, 45, 46, 47
    Q = [4, 112]; KF = [12, 16]; VF = [20, 28]; P = 36; S = [48, 64]; O = [80, 96]
    VST, WB2 = 19, 10
    XS = 132
    a("s_setprio 3")
    a("s_mov_b32 s10, s%d" % sT0)
    a("s_mov_b32 s11, s%d" % sT1)
    a("v_lshrrev_b32 v4, 4, v2")
    a("v_and_b32 v5, 15, v2")
    a("v_xor_b32 v5, v5, v4")
    a("v_lshlrev_b32 v4, 10, v4")
    a("v_lshl_add_u32 v116, v5, 4, v4")
    a("s_and_b32 s%d, s%d, 3" % (sT1, sW))
    a("s_lshl_b32 s%d, s%d, 6" % (sT1, sT1))
    a("s_and_b32 s%d, s%d, 0xffff" % (sT0, sT0))
    a("v_xor_b32 v116, s%d, v116" % sT1)
    a("v_add_u32 v116, s%d, v116" % sT0)
    a("v_xor_b32 v117, 0x8000, v116")
    a("v_and_b32 v4, 31, v2")
    a("v_lshrrev_b32 v5, 5, v2")
    a("v_and_b32 v6, 15, v2")
    a("v_xor_b32 v6, v6, v5")
    a("v_lshlrev_b32 v6, 4, v6")
    a("v_lshl_add_u32 v%d, v4, 10, v6" % XB)
    a("s_lshr_b32 s%d, s%d, 1" % (sT0, sW))
    a("s_min_u32 s%d, s%d, 2" % (sT1, sT0))
    a("s_sub_u32 s%d, s%d, s%d" % (sT2, sT0, sT1))
    a("s_lshl_b32 s%d, s%d, 15" % (sT3, sT2))
    a("v_add_u32 v%d, s%d, v%d" % (XB, sT3, XB))
    a("v_bfe_u32 v6, v2, 2, 2")
    a("v_and_b32 v7, 3, v2")
    a("v_lshlrev_b32 v7, 3, v7")
    a("v_lshl_add_u32 v14, v5, 3, v6")
    a("v_mul_u32_u24 v14, 448, v14")
    a("v_bfe_u32 v15, v2, 4, 1")
    a("v_mul_u32_u24 v15, %d, v15" % UPOFF)
    a("v_add3_u32 v%d, v14, v15, v7" % WB2)
    a("v_and_b32 v13, 16, v2")
    a("v_lshl_add_u32 v7, v13, 1, v7")
    a("s_and_b32 s%d, s%d, 1" % (sT0, sW))
    a("s_lshl_b32 s%d, s%d, 6" % (sT3, sT0))
    a("v_add_u32 v7, s%d, v7" % sT3)
    a("v_lshlrev_b32 v14, 5, v6")
    a("v_and_b32 v14, 64, v14")
    a("v_xor_b32 v7, v7, v14")
    a("v_lshl_add_u32 v7, v6, 7, v7")
    a("v_mul_u32_u24 v14, 3072, v5")
    a("s_lshl_b32 s%d, s%d, 10" % (sT3, sT1))
    a("v_add3_u32 v%d, v7, v14, s%d" % (WB, sT3))
    a("v_and_b32 v6, 15, v2")
    a("v_lshlrev_b32 v6, 4, v6")
    a("v_lshl_add_u32 v%d, v5, 8, v6" % VLO)
    a("s_mul_i32 s%d, s%d, 3" % (sT3, sT0))
    a("s_add_u32 s%d, s%d, 8" % (sT3, sT3))
    a("s_lshl_b32 s%d, s%d, 1" % (sKH, sW))
    a("s_cmp_lt_u32 s%d, 4" % sW)
    a("s_cselect_b32 s%d, s%d, s%d" % (sT3, sKH, sT3))
    a("s_cselect_b32 s%d, %d, 0" % (sH + 1, A2_TT - 1024))
    a("s_cselect_b32 s%d, 0, 1024" % (sH + 2))
    a("s_add_u32 s%d, s%d, 1024" % (sH + 1, sH + 1))
    a("s_add_u32 s%d, s%d, 1024" % (sH + 2, sH + 2))
    a("s_lshl_b32 s%d, s%d, 5" % (sKH, sT3))
    a("v_add_u32 v%d, s%d, v%d" % (WB2, sKH, WB2))
    a("s_lshl1_add_u32 s%d, s%d, s%d" % (sT0, sNG, sT0))
    a("s_lshl1_add_u32 s%d, s%d, s%d" % (sT2, sMT, sT2))
    a("s_mul_i32 s%d, s%d, 14" % (sKH, sNG))
    a("s_add_u32 s%d, s%d, s%d" % (sKH, sKH, sT3))
    a("s_lshl_b32 s%d, s%d, 10" % (sKH, sKH))
    a("s_mul_i32 s%d, s%d, %d" % (sH, sT2, A2_TT))
    a("s_add_u32 s%d, s%d, s%d" % (sH, sH, sKH))
    a("s_add_u32 s%d, s%d, %d" % (sH, sH, A2_OFF + 32 * 1024))
    a("s_add_u32 s%d, s%d, s%d" % (sH + 1, sH + 1, sH))
    a("s_add_u32 s%d, s%d, s%d" % (sH + 2, sH + 2, sH))
    a("s_add_u32 s%d, s%d, 1024" % (sH + 3, sH + 1))
    a("s_lshl_b32 s%d, s%d, 17" % (sD0, sT0))
    a("s_lshl_b32 s%d, s%d, 10" % (sT3, sT2))
    a("s_add_u32 s%d, s%d, s%d" % (sD0, sD0, sT3))
    a("s_add_u32 s%d, s%d, %d" % (sD0, sD0, QF_OFF))
    a("s_min_u32 s%d, s%d, 1" % (sT3, sT1))
    a("s_lshl_b32 s%d, s%d, s%d" % (sD0, sD0, sT3))
    a("s_lshl_b32 s%d, 65536, s%d" % (sD1, sT3))
    a("s_add_u32 s%d, s%d, s%d" % (sD1, sD1, sD0))
    a("s_lshl_b32 s%d, 1024, s%d" % (sKH, sT3))
    a("v_add_u32 v%d, s%d, v3" % (VST, sKH))
    a("v_lshl_add_u32 v115, v13, 13, v%d" % VLO)
    a("s_cmp_eq_u32 s%d, 0" % sT1)
    a("s_cselect_b32 s%d, 0x%x, 1.0" % (sSCL, QSCALE))
    def late_setup():
        a("s_lshr_b32 s%d, s%d, 3" % (sT2, sJ))
        a("s_lshl2_add_u32 s%d, s%d, s%d" % (sHEAD, sXCD, sT2))
        a("s_and_b32 s%d, s%d, 7" % (sCH, sJ))
        a("s_and_b32 s%d, s%d, 3" % (sT0, sW))
        a("s_lshl_b32 s%d, s%d, 1" % (sT0, sT0))
        a("s_lshl3_add_u32 s%d, s%d, s%d" % (sQT, sCH, sT0))
        a("s_lshr_b32 s%d, s%d, 2" % (sKH, sW))
        a("s_add_u32 s%d, s%d, s%d" % (sQT, sQT, sKH))
        a("s_lshl_b32 s%d, s%d, 11" % (sSL, sW))
        a("s_lshl_b32 s%d, s%d, 17" % (sKVB, sHEAD))
        a("s_add_u32 s%d, s%d, %d" % (sKVB, sKVB, KV_OFF))
        a("s_add_u32 s%d, s%d, s%d" % (sKV, sKVB, sSL))
        a("s_lshl_b32 s%d, s%d, 16" % (sQ0, sHEAD))
        a("s_lshl_b32 s%d, s%d, 10" % (sT2, sQT))
        a("s_add_u32 s%d, s%d, s%d" % (sQ0, sQ0, sT2))
        a("s_add_u32 s%d, s%d, %d" % (sQ0, sQ0, QF_OFF))
        a("v_mov_b32 v6, 0")
        a("s_mov_b32 exec_lo, 0x00110000")
        a("s_mov_b32 exec_hi, 0x00110000")
        a("v_mov_b32 v6, s%d" % sONE)
        a("s_mov_b64 exec, -1")
        a("v_mov_b32 v11, v6")
        a("s_mov_b32 s%d, 0" % sCH)
        a("s_mov_b32 s%d, 0x0000ffff" % sVM)
        a("s_mov_b32 s%d, 0x0000ffff" % (sVM + 1))
        a("s_lshl_b32 s%d, s%d, 13" % (sKH, sKH))
        a("v_add_u32 v%d, s%d, v3" % (KA, sKH))
        a("v_add_u32 v%d, s%d, v%d" % (VA, sKH, VLO))
        a("v_mov_b32 v%d, 1" % VONE)
        for i in range(40, 44, 2): a("v_mov_b64 %s, 0" % v(i, 2))
        a("v_mov_b32 v36, 0x%x" % f2u(C1))
        a("v_mov_b32 v38, 0x%x" % f2u(C2))
    a("v_mov_b32 v%d, %d" % (VCN, LDS_CNT))
    for i in range(48, 112, 2): a("v_mov_b64 %s, 0" % v(i, 2))
    a("v_mov_b32 v4, s%d" % sSCL)
    a("ds_write_b128 v%d, v[48:51]" % VCN)
    a("ds_write_b128 v%d, v[48:51] offset:16" % VCN)
    a("ds_write_b128 v%d, v[48:51] offset:32" % VCN)
    a("s_mov_b32 s%d, %d" % (sSO, LDS_F))
    a("s_mov_b32 s%d, 8" % sI)
    a("s_and_b32 s%d, s%d, 7" % (sKC, sJ))
    a("s_lshl_b32 s%d, s%d, 7" % (sKC, sKC))
    def addrs(nk=4, wb=WB):
        a("v_xor_b32 v%d, s%d, v%d" % (XA, sKC, XB))
        a("v_add_u32 v%d, s%d, v%d" % (WA, sSO, wb))
        for k in range(1, nk): a("v_xor_b32 v%d, %d, v%d" % (XA + k, k << 5, XA))
        a("s_add_u32 s%d, s%d, %d" % (sKC, sKC, 32 * nk))
        a("s_and_b32 s%d, s%d, 0x3ff" % (sKC, sKC))
        a("s_add_u32 s%d, s%d, %d" % (sSO, sSO, FSLOT))
        a("s_cmp_eq_u32 s%d, %d" % (sSO, LDS_F + 3 * FSLOT))
        a("s_cselect_b32 s%d, %d, s%d" % (sSO, LDS_F, sSO))
    addrs()
    for p in range(4):
        a("buffer_load_dwordx4 %s, v164, %s, s11 offen offset:%d" % (v(148 + 4 * p, 4), s(SB, 4), p * 256))
    late_setup()
    tagsetup(a)
    a.stamp(1)
    def unpack(n):
        for q in range(4):
            r = XS + 4 * n + q; t = 20 + 8 * (n % 2) + 2 * q
            a("v_lshlrev_b32 v%d, 16, v%d" % (t, r))
            a("v_and_b32 v%d, 0xffff0000, v%d" % (t + 1, r))
    for g in range(2):
        a("s_waitcnt vmcnt(%d)" % (4 - 4 * g))
        if g == 1: a.stamp(14)
        for i in range(16):
            r = XS + 16 * g + i; d = 120 + 2 * (i & 3)
            a("v_dot2_f32_bf16 v%d, v%d, s%d, %s" % (d, r, sONE, "0" if i < 4 else "v%d" % d))
            a("v_dot2_f32_bf16 v%d, v%d, v%d, %s" % (d + 1, r, r, "0" if i < 4 else "v%d" % (d + 1)))
        fill = cap0(a, unpack, 4 * g) + cap0(a, unpack, 4 * g + 1)
        a("v_pk_add_f32 v[120:121], v[120:121], v[122:123]")
        a(fill.pop(0)); a(fill.pop(0))
        a("v_pk_add_f32 v[124:125], v[124:125], v[126:127]")
        a(fill.pop(0))
        a("v_pk_add_f32 v[118:119], v[120:121], v[124:125]")
        a(fill.pop(0)); a(fill.pop(0))
        for sh in (8, 4, 2, 1):
            for k in (118, 119):
                a("v_add_f32_dpp v%d, v%d, v%d row_ror:%d row_mask:0xf bank_mask:0xf" % (k, k, k, sh))
            a(fill.pop(0))
        for x in cap0(a, ln_final, a, 118, 119, 0):
            if x.startswith("s_nop") and fill: a(fill.pop(0))
            else: a(x)
            if x.startswith("v_cvt") and len(fill) > 2: a(fill.pop(0))
        a("v_mul_f32_e64 v118, -v118, v119")
        for l in fill: a(l)
        for n in range(4 * g, 4 * g + 4):
            p = n % 4; T = 20 + 8 * (n % 2)
            for q in range(4):
                a("v_pk_fma_f32 %s, %s, v[118:119], v[118:119] op_sel:[0,1,0] op_sel_hi:[1,1,0]" % (v(T + 2 * q, 2), v(T + 2 * q, 2)))
            for q in range(4):
                a("v_cvt_pk_bf16_f32 v%d, v%d, v%d" % (XS + 4 * n + q, T + 2 * q, T + 2 * q + 1))
            a("ds_write_b128 v%d, %s offset:%d" % (116 + g, v(XS + 4 * n, 4), p * 256))
            if p + 2 < 4: unpack(n + 2)
    a("s_waitcnt lgkmcnt(0)")
    a.stamp(2)
    a("s_barrier")
    a("s_setprio 0")
    a.stamp(3)
    a("s_cmp_ge_u32 s%d, 4" % sW)
    a("s_cbranch_scc1 L_p1_v0")
    def wread(k, dst):
        for sec in range(2):
            a("ds_read_b64_tr_b16 %s, v%d offset:%d" % (v(dst + 2 * sec, 2), WA, k * 6144 + sec * 512))
    def xread(k, dst, tb): a("ds_read_b128 %s, v%d offset:%d" % (v(dst, 4), XA + k, tb * 32768))
    def gread(k, dst, t):
        for sec in range(2):
            a("ds_read_b64_tr_b16 %s, v%d offset:%d" % (v(dst + 2 * sec, 2), WA, k * 7168 + sec * 1792 + t * 32))
    def cap(fn, *args):
        n = len(a.lines); fn(*args); out = a.lines[n:]; del a.lines[n:]; return out
    def weave(mm, rd, per):
        for l in mm:
            a(l)
            if l.startswith("v_mfma"):
                for _ in range(per):
                    if rd: a(rd.pop(0))
        for l in rd: a(l)
    def gemm(lab, rdf, mmf, n, per, touch=False):
        for k in range(3): rdf(k)
        a("s_branch %s_m" % lab)
        a.label(lab)
        rd = cap(rdf, 0) + cap(rdf, 1)
        m2 = cap(mmf, 2)
        for l in m2:
            a(l)
            for _ in range(per):
                if rd: a(rd.pop(0))
        weave(cap(mmf, 3), rd + cap(rdf, 2), per)
        a.label(lab + "_m")
        a("s_waitcnt lgkmcnt(%d)" % (2 * n))
        weave(cap(mmf, 0), cap(rdf, 3), per)
        a("s_waitcnt lgkmcnt(%d)" % (2 * n))
        mm1 = cap(mmf, 1)
        a(mm1[0]); addrs()
        for l in mm1[1:]: a(l)
        a("s_sub_u32 s%d, s%d, 1" % (sI, sI))
        a("s_waitcnt lgkmcnt(0)")
        a("s_barrier")
        a("s_cmp_lg_u32 s%d, 0" % sI)
        a("s_cbranch_scc1 %s" % lab)
        a.stamp(4)
        mmf(2); mmf(3)
        a("s_mov_b32 s%d, %d" % (sSO, LDS_F + 2 * FSLOT))
        a("s_lshl_b32 s%d, s56, 6" % sKC)
        a("s_mov_b32 s%d, 16" % sI)
        addrs(2, WB2)
    GB = [[132, 148], [116, 20]]
    def gu(lab, rdf, mmf, n):
        a.stamp(5)
        def pre():
            addrs(2, WB2)
            a("s_sub_u32 s%d, s%d, 1" % (sI, sI))
        def tail(last=False):
            if last:
                a("s_cmp_lg_u32 s%d, %d" % (sI, 18 - OPT["qflag"]))
                a("s_cbranch_scc1 %s_b" % lab)
                a("s_waitcnt vmcnt(0)")
                a.label(lab + "_b")
            a("s_waitcnt lgkmcnt(0)")
            a("s_barrier")
        def half(p):
            mm = cap(mmf, 1 - p, 0) + cap(mmf, 1 - p, 1)
            k = OPT["gtail"]
            weave(mm[:len(mm) - k], cap(rdf, p, 0) + cap(rdf, p, 1), OPT["gper"] if n == 6 else OPT["gper3"])
            pre()
            for l in mm[len(mm) - k:]: a(l)
        pre()
        a("s_branch %s_m" % lab)
        a.label(lab)
        half(0)
        a.label(lab + "_m")
        tail()
        half(1)
        tail(True)
        a("s_cmp_lg_u32 s%d, 0" % sI)
        a("s_cbranch_scc1 %s" % lab)
        a("s_setprio 3")
        mmf(1, 0); mmf(1, 1)
    def qk_rd(k): wread(k, FR + 12 * k); xread(k, FR + 12 * k + 4, 0); xread(k, FR + 12 * k + 8, 1)
    def qk_mm(k):
        f = FR + 12 * k
        for tb in range(2):
            d = v(ACC1 + 16 * tb, 16)
            a("v_mfma_f32_32x32x16_bf16 %s, %s, %s, %s" % (d, v(f, 4), v(f + 4 + 4 * tb, 4), d))
    def g4_rd(p, k):
        b = GB[p][k]
        gread(k, b, 0); xread(k, b + 8, 0); xread(k, b + 12, 1); gread(k, b + 4, 1)
    def g4_mm(p, k):
        b = GB[p][k]
        for fi in range(2):
            for tb in range(2):
                d = v(ACC1 + 16 * (2 * fi + tb), 16)
                a("v_mfma_f32_32x32x16_bf16 %s, %s, %s, %s" % (d, v(b + 4 * fi, 4), v(b + 8 + 4 * tb, 4), d))
    gemm("L_p1_qk", qk_rd, qk_mm, 4, 3)
    g4_rd(0, 0); g4_rd(0, 1)
    for tb in range(2):
        A0 = ACC1 + 16 * tb
        for i in range(0, 16, 2): a("v_pk_mul_f32 %s, %s, v[4:5] op_sel_hi:[1,0]" % (v(A0 + i, 2), v(A0 + i, 2)))
        for i in range(8): a("v_cvt_pk_bf16_f32 v%d, v%d, v%d" % (FR + 8 * tb + i, A0 + 2 * i, A0 + 2 * i + 1))
        a("buffer_store_dwordx4 %s, v%d, %s, s%d offen %s" % (v(FR + 8 * tb, 4), VST if tb else 3, s(SWS, 4), sD0, sc()))
        a("buffer_store_dwordx4 %s, v%d, %s, s%d offen %s" % (v(FR + 8 * tb + 4, 4), VST if tb else 3, s(SWS, 4), sD1, sc()))
        for i in range(0, 16, 2): a("v_mov_b64 %s, 0" % v(A0 + i, 2))
    gu("L_gu4", g4_rd, g4_mm, 6)
    a("s_branch L_p1_done")
    a.label("L_p1_v0")
    if OPT["vprio"]: a("s_setprio 1")
    def v_rd(k): xread(k, FR + 8 * k + 4, 0); wread(k, FR + 8 * k)
    def v_mm(k):
        f = FR + 8 * k; d = v(ACC1, 16)
        a("v_mfma_f32_32x32x16_bf16 %s, %s, %s, %s" % (d, v(f + 4, 4), v(f, 4), d))
    def g3_rd(p, k):
        b = GB[p][k]
        gread(k, b, 0); xread(k, b + 12, 0); gread(k, b + 4, 1); gread(k, b + 8, 2)
    def g3_mm(p, k):
        b = GB[p][k]
        for fi in range(3):
            d = v(ACC1 + 16 * fi, 16)
            a("v_mfma_f32_32x32x16_bf16 %s, %s, %s, %s" % (d, v(b + 4 * fi, 4), v(b + 12, 4), d))
    gemm("L_p1_v", v_rd, v_mm, 3, 4, True)
    g3_rd(0, 0); g3_rd(0, 1)
    for i in range(8): a("v_cvt_pk_bf16_f32 v%d, v%d, v%d" % (FR + i, ACC1 + 2 * i, ACC1 + 2 * i + 1))
    a("buffer_store_dwordx4 %s, v115, %s, s%d offen offset:1024 %s" % (v(FR, 4), s(SWS, 4), sD0, sc()))
    a("buffer_store_dwordx4 %s, v115, %s, s%d offen offset:1536 %s" % (v(FR + 4, 4), s(SWS, 4), sD0, sc()))
    for i in range(0, 16, 2): a("v_mov_b64 %s, 0" % v(ACC1 + i, 2))
    gu("L_gu3", g3_rd, g3_mm, 7)
    a.label("L_p1_done")
    tr_dump(a, 165, 164)
    a.stamp(6)
    def dma():
        a("s_mov_b32 m0, s%d" % sSL)
        a("s_add_u32 s%d, s%d, s%d" % (sT0, sKV, sCH))
        a("buffer_load_dwordx4 v3, %s, s%d offen sc1 lds" % (s(SWS, 4), sT0))
        a("buffer_load_dwordx4 v3, %s, s%d offen offset:1024 sc1 lds" % (s(SWS, 4), sT0))
        a("s_add_u32 s%d, s%d, 16384" % (sSL, sSL))
        a("s_and_b32 s%d, s%d, 0xffff" % (sSL, sSL))
        a("s_add_u32 s%d, s%d, 16384" % (sCH, sCH))
    dma()
    a("s_xor_b32 s%d, s%d, 1024" % (sT1, sQ0))
    a("buffer_load_dwordx4 %s, v3, %s, s%d offen sc1" % (v(Q[0], 4), s(SWS, 4), sQ0))
    a("buffer_load_dwordx4 %s, v3, %s, s%d offen sc1" % (v(Q[1], 4), s(SWS, 4), sT1))
    dma()
    def geglu(t):
        Gt = ACC1 + 16 * t; U = Gt + 8; T = 132 + (t % 2) * 12
        R = range(0, 8, 2)
        for i in R: a("v_pk_mul_f32 %s, %s, %s" % (v(T + i, 2), v(Gt + i, 2), v(Gt + i, 2)))
        for i in R: a("v_pk_fma_f32 %s, %s, v[38:39], v[36:37] op_sel_hi:[1,0,0]" % (v(T + i, 2), v(T + i, 2)))
        for i in R: a("v_pk_mul_f32 %s, %s, %s" % (v(T + i, 2), v(T + i, 2), v(Gt + i, 2)))
        for i in range(8): a("v_exp_f32 v%d, v%d" % (T + i, T + i))
        for i in R: a("v_pk_mul_f32 %s, %s, %s" % (v(Gt + i, 2), v(Gt + i, 2), v(U + i, 2)))
        for i in R: a("v_pk_add_f32 %s, %s, 1.0 op_sel_hi:[1,0]" % (v(T + i, 2), v(T + i, 2)))
        for i in range(8): a("v_rcp_f32 v%d, v%d" % (T + i, T + i))
        a.nop(1)
        for i in R: a("v_pk_mul_f32 %s, %s, %s" % (v(Gt + i, 2), v(Gt + i, 2), v(T + i, 2)))
        for i in range(4): a("v_cvt_pk_bf16_f32 v%d, v%d, v%d" % (T + 8 + i, Gt + 2 * i, Gt + 2 * i + 1))
        a("buffer_store_dwordx4 %s, v3, %s, s%d offen %s" % (v(T + 8, 4), s(SWS, 4), sH + t, sc()))
        if t >= 2:
            for i in range(0, 16, 2): a("v_mov_b64 %s, 0" % v(Gt + i, 2))
    a("v_mov_b32 v10, v11")
    geglu(0)
    for i in range(0, 16, 2): a("v_mov_b64 %s, v[10:11]" % v(VF[0] + i, 2))
    dma()
    geglu(1); geglu(2)
    a("s_cmp_ge_u32 s%d, 4" % sW)
    a("s_cbranch_scc1 L_g_done")
    geglu(3)
    a.label("L_g_done")
    a.stamp(9)
    def rdK(kt): a("ds_read_b128 %s, v%d offset:%d" % (v(KF[kt % 2], 4), KA, (kt % 4) * 2048))
    def rdV(kt):
        a("s_mov_b64 exec, %s" % s(sVM, 2))
        a("ds_read_b128 %s, v%d offset:%d" % (v(VF[kt % 2], 4), VA, (kt % 4) * 2048 + 1024))
        a("ds_read_b128 %s, v%d offset:%d" % (v(VF[kt % 2] + 4, 4), VA, (kt % 4) * 2048 + 1536))
        a("s_mov_b64 exec, -1")
    def mfS(u): a("v_mfma_f32_32x32x16_bf16 %s, %s, %s, 0" % (v(S[u % 2], 16), v(KF[(u >> 1) % 2], 4), v(Q[u % 2], 4)))
    def mfPV(u, j): a("v_mfma_f32_32x32x16_bf16 %s, %s, %s, %s" % (v(O[u % 2], 16), v(VF[(u >> 1) % 2] + 4 * j, 4), v(P + 4 * j, 4), v(O[u % 2], 16)))
    a("s_waitcnt vmcnt(5)")
    arrive(a, VCN, VONE, 0)
    spin(a, VCN, VP, 0, sT0, "8", "L_a_first")
    rdK(0); rdV(0); rdK(1)
    a("s_mov_b32 s%d, 0" % sCNT)
    a("s_mov_b32 s%d, 8" % sTGT)
    a("s_waitcnt lgkmcnt(3)")
    mfS(0)
    a.stamp(10)
    a("s_setprio 0")
    if OPT["yprio"]:
        a("s_cmp_lt_u32 s%d, 4" % sW)
        a("s_cbranch_scc1 L_at_yp")
        a("s_setprio 1")
        a.label("L_at_yp")
    a.nop(9)
    a.label("L_at_loop")
    for u in range(8):
        Sx = S[u % 2]
        e = lambda i: a("v_exp_f32 v%d, v%d" % (Sx + i, Sx + i))
        cv = lambda i: a("v_cvt_pk_bf16_f32 v%d, v%d, v%d" % (P + i, Sx + 2 * i, Sx + 2 * i + 1))
        if u % 2 == 0: a("s_waitcnt lgkmcnt(0)")
        mfS(u + 1)
        e(0)
        if u == 4: a("v_readfirstlane_b32 s%d, v%d" % (sT0, VP))
        e(1)
        if u == 4:
            a("s_cmp_ge_u32 s%d, s%d" % (sT0, sTGT))
            a("s_cbranch_scc0 L_at_slow")
            a.label("L_at_back")
        e(2); e(3)
        mfPV(u - 1, 1)
        if u % 2 == 0:
            rdK(u // 2 + 2); rdV(u // 2 + 1)
        cv(0); e(4)
        if u == 3:
            a("ds_read_b32 v%d, v%d" % (VP, VCN))
            a("v_add_u32 v%d, 16384, v%d" % (KA, KA))
            a("v_and_b32 v%d, 0xffff, v%d" % (KA, KA))
        if u == 5:
            a("v_add_u32 v%d, 16384, v%d" % (VA, VA))
            a("v_and_b32 v%d, 0xffff, v%d" % (VA, VA))
            a("s_cmp_ge_u32 s%d, 5" % sCNT)
            a("s_cbranch_scc1 L_at_nodma")
            a("s_setprio 3")
            dma()
            a("s_setprio 0")
            if OPT["yprio"]:
                a("s_cmp_lt_u32 s%d, 4" % sW)
                a("s_cbranch_scc1 L_at_nodma")
                a("s_setprio 1")
            a.label("L_at_nodma")
        if u == 6:
            a("s_waitcnt vmcnt(2)")
            a("s_cmp_ge_u32 s%d, 5" % sCNT)
            a("s_cbranch_scc0 L_at_w2")
            a("s_waitcnt vmcnt(0)")
            a.label("L_at_w2")
            arrive(a, VCN, VONE, 0)
        if OPT["sched"] == 0:
            cv(1); e(5); e(6); e(7); cv(2); e(8); cv(3); e(9); e(10)
            mfPV(u, 0)
            e(11); e(12); cv(4); e(13); cv(5); e(14); e(15); cv(6)
        elif OPT["sched"] == 1:
            e(5); e(6); e(7); e(8); cv(1); cv(2); cv(3); e(9); e(10)
            mfPV(u, 0)
            e(11); e(12); e(13); e(14); e(15); cv(4); cv(5); cv(6)
        else:
            cv(1); e(5); e(6); e(7); cv(2); e(8); cv(3); e(9); e(10); e(11); cv(4)
            mfPV(u, 0)
            e(12); e(13); cv(5); e(14); e(15); cv(6)
        if u == 7:
            a("s_add_u32 s%d, s%d, 8" % (sTGT, sTGT))
            a("s_add_u32 s%d, s%d, 1" % (sCNT, sCNT))
            a("s_cmp_lt_u32 s%d, 8" % sCNT)
        cv(7)
    a("s_cbranch_scc1 L_at_loop")
    a.nop(1)
    mfPV(7, 1)
    a.stamp(11)
    a("s_lshl_b32 s%d, s%d, 12" % (sT0, sW))
    a("s_add_u32 s%d, s%d, 16384" % (sT0, sT0))
    a("v_add_u32 v10, s%d, v3" % sT0)
    a("v_xor_b32 v11, 0xc000, v10")
    a("s_and_b32 s%d, s%d, 3" % (sT1, sW))
    a("s_lshl_b32 s%d, s%d, 2" % (sKH, sT1))
    a("s_mul_i32 s%d, s%d, %d" % (sT2, sQT, A2_TT))
    a("s_lshl_b32 s%d, s%d, 10" % (sT1, sHEAD))
    a("s_add_u32 s%d, s%d, s%d" % (sT2, sT2, sT1))
    a("s_add_u32 s%d, s%d, %d" % (sT2, sT2, A2_OFF))
    a("s_lshr_b32 s%d, s%d, 3" % (sT3, sQT))
    a("s_lshl_b32 s%d, s%d, 5" % (sT3, sT3))
    a("s_add_u32 s%d, s%d, s%d" % (sT3, sT3, sHEAD))
    a("s_lshl_b32 s%d, s%d, %d" % (sT3, sT3, OPT["fs"]))
    a("s_add_u32 s%d, s%d, %d" % (sT3, sT3, FO_OFF))
    a("ds_write_b128 v10, %s" % v(O[1], 4))
    a("ds_write_b128 v10, %s offset:1024" % v(O[1] + 4, 4))
    a("ds_write_b32 v10, v%d offset:2048" % (O[1] + 8))
    a("s_waitcnt lgkmcnt(0)")
    a("v_add_u32 v12, s%d, v%d" % (sKH, VCN))
    arrive(a, 12, VONE, 8)
    spin(a, 12, VP, 8, sT0, "2", "L_a_pair")
    a("ds_read_b128 %s, v11" % v(S[0], 4))
    a("ds_read_b128 %s, v11 offset:1024" % v(S[0] + 4, 4))
    a("ds_read_b32 v%d, v11 offset:2048" % (S[0] + 8))
    a("s_waitcnt lgkmcnt(0)")
    for i in range(8, -1, -1): a("v_add_f32 v%d, v%d, v%d" % (O[0] + i, O[0] + i, S[0] + i))
    a("v_cmp_nle_f32 vcc, 0x21800000, v%d" % (O[0] + 8))
    a("s_nop 1")
    a("s_mov_b64 s[56:57], vcc")
    a("v_cmp_nge_f32 vcc, 0x5d800000, v%d" % (O[0] + 8))
    a("s_nop 1")
    a("s_or_b64 vcc, vcc, s[56:57]")
    a("s_cbranch_vccnz L_a_fallback")
    a.label("L_a_fin")
    a("s_setprio 3")
    a.stamp(12)
    a("v_rcp_f32 v10, v%d" % (O[0] + 8))
    a.nop(1)
    for i in range(8): a("v_mul_f32 v%d, v%d, v10" % (O[0] + i, O[0] + i))
    for i in range(4): a("v_cvt_pk_bf16_f32 v%d, v%d, v%d" % (P + i, O[0] + 2 * i, O[0] + 2 * i + 1))
    a("buffer_store_dwordx4 %s, v3, %s, s%d offen %s" % (v(P, 4), s(SWS, 4), sT2, sc()))
    last_flag(a, VCN, VONE, VP, 32, 8, sT3, "L_a_exit")
    a.label("L_a_exit")
    a.stamp(13)
    a.stamp_flush(0, SWS, sW, 12)
    a("s_endpgm")
    a.label("L_at_slow")
    spin(a, VCN, VP, 0, sT0, "s%d" % sTGT, "L_at_spin")
    a("s_branch L_at_back")
    a.label("L_a_fallback")
    C = O[1]; S0 = S[0]
    a("v_mov_b32 v10, 0xff800000")
    a("s_mov_b32 s%d, s%d" % (sT0, sKVB))
    a("s_mov_b32 s%d, 64" % sCNT)
    a.label("L_fb1")
    a("buffer_load_dwordx4 %s, v3, %s, s%d offen sc1" % (v(KF[0], 4), s(SWS, 4), sT0))
    a("s_waitcnt vmcnt(0)")
    a("v_mfma_f32_32x32x16_bf16 %s, %s, %s, 0" % (v(S0, 16), v(KF[0], 4), v(Q[0], 4)))
    a.nop(12)
    for i in range(0, 16, 2): a("v_max3_f32 v10, v10, v%d, v%d" % (S0 + i, S0 + i + 1))
    a("s_add_u32 s%d, s%d, 2048" % (sT0, sT0))
    a("s_sub_u32 s%d, s%d, 1" % (sCNT, sCNT))
    a("s_cmp_lg_u32 s%d, 0" % sCNT)
    a("s_cbranch_scc1 L_fb1")
    a("v_mov_b32 v11, v10")
    a.nop(2)
    a("v_permlane32_swap_b32 v10, v11")
    a("v_max_f32 v10, v10, v11")
    for i in range(16): a("v_sub_f32 v%d, 0, v10" % (C + i))
    for i in range(16): a("v_mov_b32 v%d, 0" % (O[0] + i))
    a("s_mov_b32 s%d, s%d" % (sT0, sKVB))
    a("s_mov_b32 s%d, 64" % sCNT)
    a.label("L_fb2")
    a("buffer_load_dwordx4 %s, v3, %s, s%d offen sc1" % (v(KF[0], 4), s(SWS, 4), sT0))
    a("s_mov_b64 exec, %s" % s(sVM, 2))
    a("buffer_load_dwordx4 %s, v47, %s, s%d offen offset:1024 sc1" % (v(VF[0], 4), s(SWS, 4), sT0))
    a("buffer_load_dwordx4 %s, v47, %s, s%d offen offset:1536 sc1" % (v(VF[0] + 4, 4), s(SWS, 4), sT0))
    a("s_mov_b64 exec, -1")
    a("s_waitcnt vmcnt(0)")
    a("v_mfma_f32_32x32x16_bf16 %s, %s, %s, %s" % (v(S0, 16), v(KF[0], 4), v(Q[0], 4), v(C, 16)))
    a.nop(12)
    for i in range(16): a("v_exp_f32 v%d, v%d" % (S0 + i, S0 + i))
    a.nop(1)
    for i in range(8): a("v_cvt_pk_bf16_f32 v%d, v%d, v%d" % (P + i, S0 + 2 * i, S0 + 2 * i + 1))
    a.nop(2)
    for j in range(2): a("v_mfma_f32_32x32x16_bf16 %s, %s, %s, %s" % (v(O[0], 16), v(VF[0] + 4 * j, 4), v(P + 4 * j, 4), v(O[0], 16)))
    a("s_add_u32 s%d, s%d, 2048" % (sT0, sT0))
    a("s_sub_u32 s%d, s%d, 1" % (sCNT, sCNT))
    a("s_cmp_lg_u32 s%d, 0" % sCNT)
    a("s_cbranch_scc1 L_fb2")
    a.nop(12)
    a("s_branch L_a_fin")

def role_f(a):
    sF = 47; SG = 12
    VCN, VONE = 164, 1
    sW1, sM1, sKD, sSO, sI, sW2, sM2, sFQ, sFH, sPOLL = 10, 11, 20, 21, 48, 49, 50, 51, 52, 58
    a("s_sub_u32 s%d, s%d, 8" % (sF, sW))
    a("s_setprio 2")
    srd(a, SA, P_WQKV, 512 * 3072)
    a("v_lshrrev_b32 v6, 3, v2")
    a("v_and_b32 v9, 7, v2")
    a("v_lshlrev_b32 v8, 1, v6")
    a("v_and_b32 v8, 4, v8")
    a("v_xor_b32 v7, v9, v8")
    a("v_mul_u32_u24 v8, 3072, v6")
    a("v_lshl_add_u32 v8, v7, 4, v8")
    a("s_mul_i32 s%d, s%d, %d" % (sW1, sF, 16 * 3072))
    a("s_lshl_b32 s%d, s%d, 7" % (sT0, sNG))
    a("s_add_u32 s%d, s%d, s%d" % (sW1, sW1, sT0))
    a("s_mul_i32 s%d, s%d, 6144" % (sM1, sF))
    a("s_add_u32 s%d, s%d, %d" % (sM1, sM1, LDS_F))
    a("s_and_b32 s%d, s%d, 7" % (sKD, sJ))
    a("s_mov_b32 s%d, 0" % sSO)
    a("s_mov_b32 s%d, 0" % sI)
    a("s_cmp_ge_u32 s%d, 2" % sF)
    a("s_cselect_b64 %s, %s, %s" % (s(P_WG, 2), s(P_WU, 2), s(P_WG, 2)))
    a("s_cselect_b32 s%d, %d, 0" % (sM2, UPOFF))
    a("s_add_u32 s%d, s%d, %d" % (sM2, sM2, LDS_F))
    srd(a, SG, P_WG, 512 * 3584)
    for i in range(7):
        a("v_add_u32 v4, %d, v2" % (64 * i))
        a("v_mul_u32_u24 v5, 2341, v4")
        a("v_lshrrev_b32 v5, 16, v5")
        a("v_mul_u32_u24 v5, %d, v5" % (3584 - 448))
        a("v_lshl_add_u32 v5, v4, 4, v5")
        a("v_subrev_u32 v%d, %d, v5" % (16 + i, (i % 4) * 1024))
    a("s_and_b32 s%d, s%d, 1" % (sT1, sF))
    a("s_mul_i32 s%d, s%d, %d" % (sW2, sT1, 16 * 3584))
    a("s_mul_i32 s%d, s%d, 448" % (sT2, sNG))
    a("s_add_u32 s%d, s%d, s%d" % (sW2, sW2, sT2))
    a("s_mul_i32 s%d, s%d, 7168" % (sT1, sT1))
    a("s_add_u32 s%d, s%d, s%d" % (sM2, sM2, sT1))
    def spf():
        if not OPT["spf"]: return
        for r in range(2):
            for q in range(4): a("s_load_dword s53, s[54:55], %d" % (r * 3584 + q * 128))
        a("s_add_u32 s54, s54, %d" % (2 * 3584))
        a("s_addc_u32 s55, s55, 0")
    tagsetup(a)
    a("s_mul_i32 s%d, s56, %d" % (sT0, 32 * 3584))
    a("s_add_u32 s%d, s%d, s%d" % (sT0, sT0, sW2))
    a("s_mov_b32 s53, s%d" % sT0)
    a("v_lshrrev_b32 v4, 2, v2")
    a("v_mul_u32_u24 v4, 3584, v4")
    a("v_and_b32 v5, 3, v2")
    a("v_lshl_add_u32 v23, v5, 7, v4")
    a("s_lshl_b32 s%d, s%d, 5" % (sFQ, sNG))
    a("s_add_u32 s%d, s%d, s%d" % (sFQ, sFQ, sMT))
    a("s_lshl_b32 s%d, s%d, %d" % (sFQ, sFQ, OPT["fs"]))
    a("s_add_u32 s%d, s%d, %d" % (sFQ, sFQ, FQ_OFF))
    a("s_lshl3_add_u32 s%d, s%d, s%d" % (sFH, sMT, sNG))
    a("s_lshl_b32 s%d, s%d, %d" % (sFH, sFH, OPT["fs"]))
    a("s_add_u32 s%d, s%d, %d" % (sFH, sFH, FH_OFF))
    a("s_lshl_b32 s%d, s%d, %d" % (sPOLL, sXCD, 5 + OPT["fs"]))
    a("s_add_u32 s%d, s%d, %d" % (sPOLL, sPOLL, FQ_OFF))
    a("v_mov_b32 v%d, %d" % (VCN, LDS_CNT))
    a("v_mov_b32 v%d, 1" % VONE)
    def slot():
        a("s_add_u32 s%d, s%d, %d" % (sSO, sSO, FSLOT))
        a("s_cmp_eq_u32 s%d, %d" % (sSO, 3 * FSLOT))
        a("s_cselect_b32 s%d, 0, s%d" % (sSO, sSO))
        a("s_add_u32 s%d, s%d, 1" % (sI, sI))
    a("s_waitcnt vmcnt(0)")
    a.stamp(1)
    a.label("L_d_issue")
    a("s_mul_i32 s%d, s%d, %d" % (sT2, sKD, 64 * 3072))
    a("s_add_u32 s%d, s%d, s%d" % (sT2, sT2, sW1))
    a("s_add_u32 m0, s%d, s%d" % (sM1, sSO))
    a("s_add_u32 s%d, s%d, 1" % (sKD, sKD))
    for m in range(3): a("buffer_load_dwordx4 v8, %s, s%d offen offset:%d lds" % (s(SA, 4), sT2, m * 1024))
    a("s_add_u32 m0, m0, 3072")
    a("s_add_u32 s%d, s%d, %d" % (sT2, sT2, 8 * 3072))
    for m in range(3): a("buffer_load_dwordx4 v8, %s, s%d offen offset:%d lds" % (s(SA, 4), sT2, m * 1024))
    a("s_and_b32 s%d, s%d, 7" % (sKD, sKD))
    slot()
    if OPT["ft"]:
        a("s_cmp_lt_u32 s%d, 3" % sI)
        a("s_cbranch_scc1 L_d_issue")
        a("s_cmp_lg_u32 s%d, 3" % sI)
        a("s_cbranch_scc1 L_d_w")
        a("buffer_load_dword v23, v23, %s, s53 offen" % s(SG, 4))
        a("s_waitcnt vmcnt(13)")
        a("s_barrier")
        a.label("L_d_w")
        a("s_waitcnt vmcnt(7)")
        a("s_cmp_lt_u32 s%d, 5" % sI)
        a("s_cbranch_scc1 L_d_b")
        a("s_waitcnt vmcnt(6)")
        a.label("L_d_b")
    else:
        a("s_cmp_eq_u32 s%d, 1" % sI)
        a("s_cbranch_scc1 L_d_issue")
        a("s_waitcnt vmcnt(6)")
    a("s_barrier")
    a("s_cmp_lg_u32 s%d, 8" % sI)
    a("s_cbranch_scc1 L_d_issue")
    a.stamp(3)
    a("s_waitcnt lgkmcnt(0)") if False else None
    a("s_mov_b32 s%d, s56" % sKD)
    a("s_mov_b32 s%d, 0" % sI)
    a("v_lshlrev_b32 v165, %d, v2" % OPT["fs"])
    a.label("L_g_issue")
    a("s_mul_i32 s%d, s%d, %d" % (sT2, sKD, 32 * 3584))
    a("s_add_u32 m0, s%d, s%d" % (sM2, sSO))
    a("s_add_u32 s%d, s%d, s%d" % (sT2, sT2, sW2))
    for i in range(7):
        if i == 4:
            a("s_add_u32 m0, m0, 4096")
            a("s_add_u32 s%d, s%d, 1" % (sKD, sKD))
        a("buffer_load_dwordx4 v%d, %s, s%d offen offset:%d lds" % (16 + i, s(SG, 4), sT2, (i % 4) * 1024))
    a("s_and_b32 s%d, s%d, 15" % (sKD, sKD))
    slot()
    tr(a, 30)
    a("s_waitcnt vmcnt(7)")
    tr(a, 30)
    a("s_barrier")
    tr(a, 30)
    a("s_lshl_b32 s%d, s%d, 5" % (sT0, sF))
    a("s_add_u32 s%d, s%d, s%d" % (sT0, sT0, sI))
    a("s_cmp_lg_u32 s%d, %d" % (sT0, OPT["qflag"]))
    a("s_cbranch_scc1 L_g_nf")
    a("s_mov_b64 exec, 1")
    a("buffer_store_dwordx2 %s, v3, %s, s%d offen %s" % (v(VTAG, 2), s(SWS, 4), sFQ, sc()))
    a("s_mov_b64 exec, -1")
    a.label("L_g_nf")
    a("s_cmp_lg_u32 s%d, 16" % sI)
    a("s_cbranch_scc1 L_g_issue")
    a.stamp(4)
    a("s_waitcnt vmcnt(0) lgkmcnt(0)")
    a("s_barrier")
    a("s_cmp_lg_u32 s%d, 0" % sF)
    a("s_cbranch_scc1 L_f_nopoll")
    poll(a, 165, sPOLL, 32, 24, "L_f_pollq")
    a.label("L_f_nopoll")
    a("s_barrier")
    tr_dump(a, 30, 31)
    a.stamp(5)
    a("s_setprio %d" % OPT["prio3"])
    if OPT["nof"] == 1: a("s_branch L_f_ep")
    sMT2, sNT, sWB, sA0, sA1, sGW, sGA, sLB = 43, 44, 45, 46, 53, 54, 55, 56
    a("s_and_b32 s%d, s%d, 3" % (sT2, sJ))
    a("s_lshl2_add_u32 s%d, s%d, s%d" % (sMT2, sXCD, sT2))
    a("s_lshr_b32 s%d, s%d, 2" % (sNT, sJ))
    srd(a, SA, P_WD, 1792 * 1024)
    srd(a, SB, P_WO, 512 * 1024)
    a("v_lshrrev_b32 v8, 3, v2")
    a("v_lshlrev_b32 v7, 1, v8")
    a("v_and_b32 v7, 4, v7")
    a("v_and_b32 v9, 7, v2")
    a("v_xor_b32 v7, v7, v9")
    a("v_lshlrev_b32 v8, 10, v8")
    a("v_lshl_add_u32 v8, v7, 4, v8")
    for i in range(1, 4): a("v_add_u32 v%d, %d, v8" % (8 + i, i * 7168))
    a("s_lshl_b32 s%d, s%d, 7" % (sWB, sNT))
    a("s_mul_i32 s%d, s%d, %d" % (sLB, sF, F2REG))
    a("s_add_u32 s%d, s%d, %d" % (sLB, sLB, LDS_F))
    a("s_mul_i32 s%d, s%d, 3" % (sGW, sT2))
    a("s_add_u32 s%d, s%d, s%d" % (sGW, sGW, sNT))
    a("s_sub_u32 s%d, s%d, 14" % (sT2, sGW))
    a("s_cmp_ge_u32 s%d, 14" % sGW)
    a("s_cselect_b32 s%d, s%d, s%d" % (sGW, sT2, sGW))
    a("s_mov_b32 s%d, s%d" % (sGA, sGW))
    a("s_and_b32 s%d, s%d, 1" % (sT1, sF))
    a("s_lshl1_add_u32 s%d, s%d, s%d" % (sT1, sMT2, sT1))
    a("s_mul_i32 s%d, s%d, %d" % (sA0, sT1, A2_TT))
    a("s_xor_b32 s%d, s%d, 1" % (sT1, sT1))
    a("s_mul_i32 s%d, s%d, %d" % (sA1, sT1, A2_TT))
    a("s_add_u32 s%d, s%d, %d" % (sA0, sA0, A2_OFF))
    a("s_add_u32 s%d, s%d, %d" % (sA1, sA1, A2_OFF))
    sF14 = 57
    a("s_mul_i32 s%d, s%d, 14" % (sF14, sF))
    a.vm = []
    def adv(sg):
        a("s_add_u32 s%d, s%d, 1" % (sg, sg))
        a("s_cmp_eq_u32 s%d, 14" % sg)
        a("s_cselect_b32 s%d, 0, s%d" % (sg, sg))
    def w2(g):
        a("s_add_u32 m0, s%d, %d" % (sLB, (g % 5) * 4096))
        if g < 14:
            a("s_add_u32 s%d, s%d, s%d" % (sT0, sF14, sGW))
            a("s_lshl_b32 s%d, s%d, 15" % (sT0, sT0))
            adv(sGW); sr = SA
        else:
            a("s_lshl_b32 s%d, s%d, 17" % (sT0, sF))
            a("s_add_u32 s%d, s%d, %d" % (sT0, sT0, (g - 14) * 32768)); sr = SB
        a("s_add_u32 s%d, s%d, s%d" % (sT0, sT0, sWB))
        if OPT["thr2"]: a("s_waitcnt vmcnt(%d)" % OPT["thr2"])
        for i in range(4):
            a.vmem("buffer_load_dwordx4 v%d, %s, s%d offen offset:%d lds" % (8 + i, s(sr, 4), sT0, i * 1024), "W%d" % g)
    AB = 96
    def a2(g):
        if g < 14:
            a("s_add_u32 s%d, s%d, s%d" % (sT0, sF14, sGA))
            a("s_lshl_b32 s%d, s%d, 11" % (sT0, sT0))
            a("s_add_u32 s%d, s%d, 32768" % (sT0, sT0))
            adv(sGA)
        else:
            a("s_lshl_b32 s%d, s%d, 13" % (sT0, sF))
            a("s_add_u32 s%d, s%d, %d" % (sT0, sT0, (g - 14) * 2048))
        a("s_add_u32 s%d, s%d, s%d" % (sT1, sT0, sA1))
        a("s_add_u32 s%d, s%d, s%d" % (sT0, sT0, sA0))
        if OPT["thr2"] and g < 14: a("s_waitcnt vmcnt(%d)" % OPT["thr2"])
        for ks in range(2):
            for tb in range(2):
                a.vmem("buffer_load_dwordx4 %s, v3, %s, s%d offen offset:%d sc1" % (v(AB + (g % 4) * 16 + ks * 8 + tb * 4, 4), s(SWS, 4), sT0 + tb, ks * 1024), "A%d" % g)
    a("v_lshrrev_b32 v14, 5, v2")
    a("v_bfe_u32 v4, v2, 2, 2")
    a("v_and_b32 v5, 1, v2")
    a("v_lshlrev_b32 v5, 4, v5")
    a("v_and_b32 v6, 2, v2")
    a("v_lshl_add_u32 v5, v6, 2, v5")
    a("v_and_b32 v6, 16, v2")
    a("v_lshl_add_u32 v5, v6, 1, v5")
    a("s_and_b32 s%d, s%d, 2" % (sT2, sF))
    a("s_lshl_b32 s%d, s%d, 5" % (sT2, sT2))
    a("v_add_u32 v5, s%d, v5" % sT2)
    a("v_lshlrev_b32 v6, 5, v4")
    a("v_and_b32 v6, 64, v6")
    a("v_xor_b32 v5, v5, v6")
    a("v_lshl_add_u32 v4, v14, 2, v4")
    a("v_lshl_add_u32 v5, v4, 7, v5")
    a("v_xor_b32 v6, 64, v5")
    a("v_add_u32 v12, s%d, v5" % sLB)
    a("v_add_u32 v13, s%d, v6" % sLB)
    a("s_lshl2_add_u32 s%d, s%d, s%d" % (sT3, sMT2, sF))
    a("s_lshl_b32 s%d, s%d, %d" % (sT3, sT3, 1 + OPT["fs"]))
    a("s_add_u32 s%d, s%d, %d" % (sT3, sT3, FH_OFF))
    if OPT["w2at"] == 8:
        spin(a, VCN, 0, 0, sT0, "8", "L_f_nofw0")
        for g in range(4): w2(g)
    spin(a, VCN, 0, 0, sT0, "16", "L_f_nofw1")
    a("s_cmp_lg_u32 s%d, 0" % sF)
    a("s_cbranch_scc1 L_f_hf")
    a("s_mov_b64 exec, 1")
    a("buffer_store_dwordx2 %s, v3, %s, s%d offen %s" % (v(VTAG, 2), s(SWS, 4), sFH, sc()))
    a("s_mov_b64 exec, -1")
    a.label("L_f_hf")
    if OPT["w2at"] != 8:
        for g in range(4): w2(g)
    if OPT["f2gate"]: spin(a, VCN, 0, 0, sT0, "%d" % (8 + 8 * OPT["f2gate"]), "L_f_nofw2")
    a.stamp(11)
    poll(a, 165, sT3, 2, 16, "L_f_pollh")
    a.stamp(12)
    a.vm = []
    ACC2 = 32; WF = 16
    def rd2(g, ks, ci):
        for sec in range(2):
            a("ds_read_b64_tr_b16 %s, v%d offset:%d" % (v(WF + ks * 8 + ci * 4 + sec * 2, 2), 12 + ci, (g % 5) * 4096 + ks * 2048 + sec * 1024))
    def mm2(g, ks, ci):
        for ti in range(2):
            d = v(ACC2 + (ci * 2 + ti) * 16, 16)
            a("v_mfma_f32_32x32x16_bf16 %s, %s, %s, %s" % (d, v(WF + ks * 8 + ci * 4, 4), v(AB + (g % 4) * 16 + ks * 8 + ti * 4, 4), "0" if (g == 0 and ks == 0) else d))
    def comp(g, pre=None):
        if OPT["f2pace"] and g < 14:
            if pre: pre()
            for ks in range(2):
                for ci in range(2):
                    rd2(g, ks, ci)
                    a("s_waitcnt lgkmcnt(0)")
                    mm2(g, ks, ci)
            return
        for ks in range(2):
            for ci in range(2): rd2(g, ks, ci)
        if pre: pre()
        for ks in range(2):
            a("s_waitcnt lgkmcnt(%d)" % (4 if ks == 0 else 0))
            for ci in range(2): mm2(g, ks, ci)
    for g in range(3): a2(g)
    for g in range(14):
        if g + 3 < 14: a2(g + 3)
        w2(g + 4)
        a.wait_vm("A%d" % g)
        if a.vm_count_after("W%d" % g) is not None: a.wait_vm("W%d" % g)
        comp(g)
    srd(a, SA, P_X, 2 * MB)
    srd(a, SB, P_OUT, 2 * MB)
    sXS = 48
    a("s_and_b32 s%d, s%d, 1" % (sT1, sF))
    a("s_lshl1_add_u32 s%d, s%d, s%d" % (sT0, sMT2, sT1))
    a("s_lshl_b32 s%d, s%d, 15" % (sXS, sT0))
    a("s_add_u32 s%d, s%d, s%d" % (sXS, sXS, sWB))
    a("s_and_b32 s%d, s%d, 2" % (sT2, sF))
    a("s_lshl_b32 s%d, s%d, 5" % (sT2, sT2))
    a("s_add_u32 s%d, s%d, s%d" % (sXS, sXS, sT2))
    a("v_and_b32 v4, 31, v2")
    a("v_lshlrev_b32 v4, 10, v4")
    a("v_lshl_add_u32 v4, v14, 4, v4")
    a("buffer_load_dwordx4 v[8:11], v4, %s, s%d offen" % (s(SA, 4), sXS))
    a("buffer_load_dwordx4 v[160:163], v4, %s, s%d offen offset:32" % (s(SA, 4), sXS))
    a("s_lshl2_add_u32 s%d, s%d, s%d" % (sT3, sXCD, sF))
    a("s_lshl_b32 s%d, s%d, %d" % (sT3, sT3, 3 + OPT["fs"]))
    a("s_add_u32 s%d, s%d, %d" % (sT3, sT3, FO_OFF))
    a("s_waitcnt vmcnt(0)")
    for i in range(4):
        a("v_lshlrev_b32 v%d, 16, v%d" % (96 + 2 * i, 8 + i))
        a("v_and_b32 v%d, 0xffff0000, v%d" % (97 + 2 * i, 8 + i))
        a("v_lshlrev_b32 v%d, 16, v%d" % (104 + 2 * i, 160 + i))
        a("v_and_b32 v%d, 0xffff0000, v%d" % (105 + 2 * i, 160 + i))
    for i in range(16): a("v_add_f32 v%d, v%d, v%d" % (ACC2 + i, ACC2 + i, 96 + i))
    a("v_add_u32 v5, s%d, v3" % sLB)
    for sl in range(1, 4):
        a("s_xor_b32 s%d, s%d, %d" % (sT0, sF, sl))
        a("s_mul_i32 s%d, s%d, %d" % (sT0, sT0, F2REG))
        a("s_add_u32 s%d, s%d, %d" % (sT0, sT0, LDS_F + (sl - 1) * 4096))
        a("v_add_u32 v%d, s%d, v3" % (7 + sl, sT0))
    a("s_setprio 0")
    a.stamp(13)
    if OPT["nof"] == 4: a("s_branch L_f_ep")
    if not OPT["prog"]:
        poll(a, 165, sT3, 8, 16, "L_f_pollo")
        a.stamp(14)
        a("s_setprio 3")
        a.vm = []
        for g in range(14, 18): a2(g)
        for g in range(14, 18):
            comp(g, lambda: a.wait_vm("A%d" % g))
    else:
        sPEND, sRDY = 49, 50
        a("s_mov_b32 s%d, 0x55" % sPEND)
        a("s_mov_b32 s%d, 0" % sRDY)
        a("s_mov_b32 s%d, 0x20000" % sSPIN)
        a.label("L_o_round")
        for g in range(14, 18):
            a("s_bitcmp1_b32 s%d, %d" % (sRDY, 2 * (g - 14)))
            a("s_cbranch_scc0 L_o_nl%d" % g)
            a2(g)
            a.label("L_o_nl%d" % g)
        a("s_cmp_eq_u32 s%d, 0" % sPEND)
        a("s_cbranch_scc1 L_o_np")
        a("s_mov_b64 exec, 0xff")
        a("buffer_load_dwordx2 v[6:7], v165, %s, s%d offen sc1" % (s(SWS, 4), sT3))
        a("s_mov_b64 exec, -1")
        a.label("L_o_np")
        for g in range(14, 18):
            a("s_bitcmp1_b32 s%d, %d" % (sRDY, 2 * (g - 14)))
            a("s_cbranch_scc0 L_o_nc%d" % g)
            comp(g, lambda: a("s_waitcnt vmcnt(0)"))
            a.label("L_o_nc%d" % g)
        a("s_cmp_eq_u32 s%d, 0" % sPEND)
        a("s_cbranch_scc1 L_o_done")
        a("s_waitcnt vmcnt(0)")
        a("v_cmp_eq_u64 vcc, %s, v[6:7]" % s(sTAG, 2))
        a("s_sub_u32 s%d, s%d, 1" % (sSPIN, sSPIN))
        a("s_cselect_b32 s%d, 0xff, 0" % sT1)
        a("s_or_b32 s%d, vcc_lo, s%d" % (sT0, sT1))
        a("s_lshr_b32 s%d, s%d, 1" % (sT1, sT0))
        a("s_and_b32 s%d, s%d, s%d" % (sT0, sT0, sT1))
        a("s_and_b32 s%d, s%d, s%d" % (sRDY, sT0, sPEND))
        a("s_cbranch_scc1 L_o_some")
        a("s_sleep %d" % OPT["psleep"])
        a.label("L_o_some")
        a("s_andn2_b32 s%d, s%d, s%d" % (sPEND, sPEND, sRDY))
        a("s_branch L_o_round")
        a.label("L_o_done")
        a.stamp(14)
    a.nop(10)
    for sl in range(1, 4):
        for q in range(4):
            a("ds_write_b128 v5, %s offset:%d" % (v(ACC2 + sl * 16 + 4 * q, 4), (sl - 1) * 4096 + q * 1024))
    a("s_waitcnt lgkmcnt(0)")
    arrive(a, VCN, VONE, 40)
    spin(a, VCN, 0, 40, sT0, "4", "L_f_spin3")
    for sl in range(1, 4):
        for q in range(4):
            a("ds_read_b128 %s, v%d offset:%d" % (v(ACC2 + sl * 16 + 4 * q, 4), 7 + sl, q * 1024))
    for sl in range(1, 4):
        a("s_waitcnt lgkmcnt(%d)" % (12 - 4 * sl))
        for i in range(0, 16, 2): a("v_pk_add_f32 %s, %s, %s" % (v(ACC2 + i, 2), v(ACC2 + i, 2), v(ACC2 + 16 * sl + i, 2)))
    for i in range(8): a("v_cvt_pk_bf16_f32 v%d, v%d, v%d" % (96 + i, ACC2 + 2 * i, ACC2 + 2 * i + 1))
    osc = ["", "sc1", "nt"][OPT["osc"]]
    a("buffer_store_dwordx4 v[96:99], v4, %s, s%d offen %s" % (s(SB, 4), sXS, osc))
    a("buffer_store_dwordx4 v[100:103], v4, %s, s%d offen offset:32 %s" % (s(SB, 4), sXS, osc))
    a.label("L_f_ep")
    if OPT["nof"]:
        spin(a, VCN, 0, 32, sT0, "8", "L_f_nofw")
    a("s_add_u32 s%d, s2, s%d" % (sT0, sF))
    a("s_cmp_lg_u32 s%d, 0" % sT0)
    a("s_cbranch_scc1 L_f_noep")
    a("s_mov_b32 s%d, %d" % (sT0, EPOCH_OFF))
    a("s_mov_b64 exec, 1")
    a("buffer_store_dword v%d, v3, %s, s%d offen" % (VTAG, s(SWS, 4), sT0))
    a("s_mov_b64 exec, -1")
    a.label("L_f_noep")
    a.stamp_flush(0, SWS, sW, 12)
    a("s_endpgm")

def gen_kernel(name):
    a = Asm()
    a.label("L_start")
    a("s_cmp_ge_u32 s2, 256")
    a("s_cbranch_scc1 L_end")
    a.stamp(0)
    if OPT["p1diag"]: a("s_mov_b32 s100, 0")
    a("s_load_dwordx16 s[4:19], s[0:1], 0")
    a("s_load_dwordx4 s[20:23], s[0:1], 64")
    a("s_getpc_b64 s[30:31]")
    a.label("L_pc")
    a("s_lshr_b32 s%d, s2, 3" % sJ)
    a("v_lshrrev_b32 v1, 6, v0")
    a("s_mul_i32 s%d, s%d, 12" % (sT0, sJ))
    a("v_add_lshl_u32 v165, v1, s%d, 7" % sT0)
    a("v_min_u32 v165, (L_end - L_pc), v165")
    a("s_mov_b64 exec, 1")
    a("global_load_dword v165, v165, s[30:31]")
    a("s_mov_b64 exec, -1")
    a("v_and_b32 v2, 63, v0")
    a("v_readfirstlane_b32 s%d, v1" % sW)
    a("v_lshlrev_b32 v3, 4, v2")
    a("s_and_b32 s%d, s2, 7" % sXCD)
    lg = {0: 3, 1: 4, 2: 5}[OPT["map"]]
    a("s_lshr_b32 s%d, s%d, %d" % (sMT, sXCD, lg - 2))
    a("s_lshl_b32 s%d, s%d, %d" % (sMT, sMT, lg))
    a("s_and_b32 s%d, s%d, %d" % (sT0, sJ, (1 << lg) - 1))
    a("s_add_u32 s%d, s%d, s%d" % (sMT, sMT, sT0))
    a("s_and_b32 s%d, s%d, %d" % (sNG, sXCD, (1 << (lg - 2)) - 1))
    a("s_lshl_b32 s%d, s%d, %d" % (sNG, sNG, 5 - lg))
    a("s_lshr_b32 s%d, s%d, %d" % (sT0, sJ, lg))
    a("s_add_u32 s%d, s%d, s%d" % (sNG, sNG, sT0))
    if lg == 3: a("s_lshl_b32 s56, s%d, 1" % sJ)
    else: a("s_mov_b32 s56, s%d" % sJ)
    a("s_and_b32 s56, s56, %d" % OPT["grot"])
    a("s_and_b32 s%d, s%d, 1" % (sT0, sT0))
    a("s_lshl3_add_u32 s%d, s%d, s%d" % (sT0, sT0, sW))
    a("s_lshl4_add_u32 s%d, s%d, s%d" % (sT0, sMT, sT0))
    a("s_lshl_b32 s%d, s%d, 12" % (sT0, sT0))
    a("s_xor_b32 s%d, s%d, 32768" % (sT1, sT0))
    a("v_lshrrev_b32 v164, 4, v2")
    a("v_mul_u32_u24 v164, 768, v164")
    a("v_add_u32 v164, v164, v3")
    a("s_cmp_lt_u32 s%d, 8" % sW)
    a("s_waitcnt lgkmcnt(0)")
    srd(a, SB, P_X, 2 * MB)
    a("s_cbranch_scc0 L_norow")
    for p in range(4):
        a("buffer_load_dwordx4 %s, v164, %s, s%d offen offset:%d" % (v(132 + 4 * p, 4), s(SB, 4), sT0, p * 256))
    a.label("L_norow")
    a.stamp(8)
    a("s_add_u32 s62, s%d, %d" % (P_WS, EPOCH_OFF))
    a("s_addc_u32 s63, s%d, 0" % (P_WS + 1))
    a("s_load_dword s%d, s[62:63], 0" % sTAG)
    srd(a, SWS, P_WS, WS_BYTES)
    a("s_mov_b32 s%d, 0x3f803f80" % sONE)
    a("s_cmp_lt_u32 s%d, 8" % sW)
    a("s_cbranch_scc1 L_role_a")
    role_f(a)
    a.label("L_role_a")
    a.vm = []
    role_a(a)
    if OPT["abl"]:
        i0 = a.lines.index("L_p1_qk:"); i1 = a.lines.index("L_p1_done:")
        def keep(l):
            if OPT["abl"] & 1 and l.startswith("v_mfma"): return False
            if OPT["abl"] & 4 and l.startswith("ds_read"): return False
            return True
        a.lines[i0:i1] = [l for l in a.lines[i0:i1] if keep(l)]
        if OPT["abl"] & 2:
            i0 = a.lines.index("L_g_issue:"); i1 = a.lines.index("L_g_nf:")
            a.lines[i0:i1] = [l for l in a.lines[i0:i1] if not l.startswith("buffer_load")]
    a.label("L_end")
    a("s_endpgm")
    return dict(name=name, asm=a, vgpr=168, grid=(256, 1, 1), block=(768, 1, 1), lds=LDS_TOTAL)
```

```python
from common import *
from layout import *
from kgu import f2u, C1, C2

FL_OFF = 32 * MB
EPOCH_OFF = FL_OFF
FX_OFF = FL_OFF + 0x10000
FQ_OFF = FL_OFF + 0x20000
FH_OFF = FL_OFF + 0x30000
FO_OFF = FL_OFF + 0x40000
TAGX = 0x5bd1e995

LDS_F = 65536
FSLOT = 28800; UPOFF = 14368; FNS = 3
F2REG = 20480
LDS_CNT = LDS_F + FNS * FSLOT
LDS_ST = LDS_CNT + 128
LDS_TOTAL = 163840

P_X, P_WQKV, P_WO, P_WG, P_WU, P_WD, P_OUT, P_WS = 4, 6, 8, 12, 14, 16, 18, 22
SWS, SA, SB = 24, 28, 32
sW = 36
sT0, sT1, sT2, sT3 = 37, 38, 39, 40
sXCD, sJ = 41, 42
sMT, sNG = 43, 44
sTAG = 60
sSPIN = 62
sONE = 3
VTAG = 166
SC = "sc0 sc1"
OPT = dict(ldf=0, hp=1, prog=0, gtail=2, gper3=4, abl=0, map=0, osc=0, grot=15, yprio=0, sched=0, w2at=16, f2gate=0, spf=0, ft=1, touch=0, gper=2, p1diag=0, fs=7, psleep=2, sc=0, vprio=1, prio3=0, f2pace=1, nof=0, pk=1, thr2=2, qflag=6)

_stamp = Asm.stamp
def stamp_gate(self, i, force=False):
    if OPT["p1diag"] and not force and i not in (0, 15): return
    _stamp(self, i)
Asm.stamp = stamp_gate
def bar(a, i):
    if OPT["p1diag"] and i < 7: a.stamp(1 + 2 * i, True)
    a("s_barrier")
    if OPT["p1diag"] and i < 7: a.stamp(2 + 2 * i, True)

def tr(a, vr):
    if not OPT["p1diag"]: return
    a("s_memtime s[98:99]")
    a("s_waitcnt lgkmcnt(0)")
    a("s_sub_u32 s98, s98, s96")
    a("s_mov_b32 m0, s100")
    a("s_add_u32 s100, s100, 1")
    a("v_writelane_b32 v%d, s98, m0" % vr)
def tr_dump(a, vr, vtmp):
    if not OPT["p1diag"]: return
    a("s_mul_i32 s100, s2, 12")
    a("s_add_u32 s100, s100, s%d" % sW)
    a("s_lshl_b32 s100, s100, 8")
    a("s_add_u32 s100, s100, %d" % (66 << 20))
    a("v_lshlrev_b32 v%d, 2, v2" % vtmp)
    a("buffer_store_dword v%d, v%d, %s, s100 offen" % (vr, vtmp, s(SWS, 4)))

def cap0(a, fn, *args):
    n = len(a.lines); fn(*args); out = a.lines[n:]; del a.lines[n:]; return out

def arrive(a, vaddr, vone, off):
    a("s_mov_b64 exec, 1")
    a("ds_add_u32 v%d, v%d offset:%d" % (vaddr, vone, off))
    a("s_mov_b64 exec, -1")

def spin(a, vaddr, vp, off, stmp, target, name):
    a("s_mov_b32 s%d, 0x200000" % sSPIN)
    a.label(name)
    a("ds_read_b32 v%d, v%d offset:%d" % (vp, vaddr, off))
    a("s_waitcnt lgkmcnt(0)")
    a("v_readfirstlane_b32 s%d, v%d" % (stmp, vp))
    a("s_nop 0")
    a("s_cmp_ge_u32 s%d, %s" % (stmp, target))
    a("s_cbranch_scc1 %s_ok" % name)
    a("s_sleep %d" % (8 if name.startswith("L_f_nofw") else 1))
    a("s_sub_u32 s%d, s%d, 1" % (sSPIN, sSPIN))
    a("s_cbranch_scc0 %s" % name)
    a.label(name + "_ok")

def sc(): return "sc1" if OPT["sc"] else "sc0 sc1"

def set_flag(a, soff, vz, lanes=1):
    a("s_waitcnt vmcnt(0)")
    a("s_mov_b64 exec, %d" % ((1 << lanes) - 1))
    a("buffer_store_dwordx2 %s, v%d, %s, s%d offen %s" % (v(VTAG, 2), vz, s(SWS, 4), soff, sc()))
    a("s_mov_b64 exec, -1")

def last_flag(a, vcn, vone, vp, off, n, soff, skip):
    a("s_waitcnt vmcnt(0)")
    a("s_mov_b64 exec, 1")
    a("ds_add_rtn_u32 v%d, v%d, v%d offset:%d" % (vp, vcn, vone, off))
    a("s_waitcnt lgkmcnt(0)")
    a("v_readfirstlane_b32 s%d, v%d" % (sT0, vp))
    a("s_mov_b64 exec, -1")
    a("s_cmp_lg_u32 s%d, %d" % (sT0, n - 1))
    a("s_cbranch_scc1 %s" % skip)
    a("s_mov_b64 exec, 1")
    a("buffer_store_dwordx2 %s, v3, %s, s%d offen %s" % (v(VTAG, 2), s(SWS, 4), soff, sc()))
    a("s_mov_b64 exec, -1")

def poll(a, voff, soff, nl, vp, name):
    a("s_mov_b32 s%d, 0x20000" % sSPIN)
    assert nl <= 32
    a("s_mov_b32 exec_lo, 0x%x" % ((1 << nl) - 1))
    a("s_mov_b32 exec_hi, 0")
    a.label(name)
    a("buffer_load_dwordx2 %s, v%d, %s, s%d offen sc1" % (v(vp, 2), voff, s(SWS, 4), soff))
    a("s_waitcnt vmcnt(0)")
    a("v_cmp_ne_u64 vcc, %s, %s" % (s(sTAG, 2), v(vp, 2)))
    a("s_sub_u32 s%d, s%d, 1" % (sSPIN, sSPIN))
    a("s_cbranch_scc1 %s_ok" % name)
    a("s_cbranch_vccz %s_ok" % name)
    a("s_sleep %d" % OPT["psleep"])
    a("s_branch %s" % name)
    a.label(name + "_ok")
    a("s_mov_b64 exec, -1")

def tagsetup(a):
    a("s_waitcnt lgkmcnt(0)")
    a("s_add_u32 s%d, s%d, 1" % (sTAG, sTAG))
    a("s_xor_b32 s%d, s%d, 0x%x" % (sTAG + 1, sTAG, TAGX))
    a("v_mov_b32 v%d, s%d" % (VTAG, sTAG))
    a("v_mov_b32 v%d, s%d" % (VTAG + 1, sTAG + 1))

def bf16r(a, r):
    a("v_cvt_pk_bf16_f32 v%d, v%d, v%d" % (r, r, r))
    a("v_and_b32 v%d, 0xffff0000, v%d" % (r, r))

def ln_final(a, sm, sq, tmp):
    a("v_mul_f32 v%d, 0x3b000000, v%d" % (sm, sm))
    a("v_mul_f32 v%d, 0x3b000000, v%d" % (sq, sq))
    a("v_fma_f32 v%d, -v%d, v%d, v%d" % (sq, sm, sm, sq))
    a("v_max_f32 v%d, 0, v%d" % (sq, sq))
    bf16r(a, sq)
    bf16r(a, sm)
    a("v_add_f32 v%d, 0x3727c5ac, v%d" % (sq, sq))
    bf16r(a, sq)
    a("v_sqrt_f32 v%d, v%d" % (sq, sq))
    a.nop(1)
    bf16r(a, sq)
    a("v_rcp_f32 v%d, v%d" % (sq, sq))
    a.nop(1)

def xsum(a, r, t, kind):
    a("v_mov_b32 v%d, v%d" % (t, r))
    a.nop(2)
    a("v_permlane%d_swap_b32 v%d, v%d" % (kind, r, t))
    a("v_add_f32 v%d, v%d, v%d" % (r, r, t))

XB, XA, WB, WA = 12, 13, 17, 18
FR = 116; ACC1 = 48
def role_a(a):
    sD0, sD1, sSCL = 45, 46, 48
    sHEAD, sQT, sKV, sCH, sSL, sKVB, sQ0, sKH = 49, 50, 51, 52, 53, 54, 55, 57
    sVM = 58
    sCNT, sTGT = 45, 46
    sSO, sI, sKC = 28, 29, 31
    sH = 12
    KA, VA, VCN, VONE, VP, VLO = 8, 9, 44, 45, 46, 47
    Q = [4, 112]; KF = [12, 16]; VF = [20, 28]; P = 36; S = [48, 64]; O = [80, 96]
    VST, WB2 = 19, 10
    XS = 132
    a("s_setprio 3")
    a("s_mov_b32 s10, s%d" % sT0)
    a("s_mov_b32 s11, s%d" % sT1)
    a("v_lshrrev_b32 v4, 4, v2")
    a("v_and_b32 v5, 15, v2")
    a("v_xor_b32 v5, v5, v4")
    a("v_lshlrev_b32 v4, 10, v4")
    a("v_lshl_add_u32 v116, v5, 4, v4")
    a("s_and_b32 s%d, s%d, 3" % (sT1, sW))
    a("s_lshl_b32 s%d, s%d, 6" % (sT1, sT1))
    a("s_and_b32 s%d, s%d, 0xffff" % (sT0, sT0))
    a("v_xor_b32 v116, s%d, v116" % sT1)
    a("v_add_u32 v116, s%d, v116" % sT0)
    a("v_xor_b32 v117, 0x8000, v116")
    a("v_and_b32 v4, 31, v2")
    a("v_lshrrev_b32 v5, 5, v2")
    a("v_and_b32 v6, 15, v2")
    a("v_xor_b32 v6, v6, v5")
    a("v_lshlrev_b32 v6, 4, v6")
    a("v_lshl_add_u32 v%d, v4, 10, v6" % XB)
    a("s_lshr_b32 s%d, s%d, 1" % (sT0, sW))
    a("s_min_u32 s%d, s%d, 2" % (sT1, sT0))
    a("s_sub_u32 s%d, s%d, s%d" % (sT2, sT0, sT1))
    a("s_lshl_b32 s%d, s%d, 15" % (sT3, sT2))
    a("v_add_u32 v%d, s%d, v%d" % (XB, sT3, XB))
    a("v_bfe_u32 v6, v2, 2, 2")
    a("v_and_b32 v7, 3, v2")
    a("v_lshlrev_b32 v7, 3, v7")
    a("v_lshl_add_u32 v14, v5, 3, v6")
    a("v_mul_u32_u24 v14, 448, v14")
    a("v_bfe_u32 v15, v2, 4, 1")
    a("v_mul_u32_u24 v15, %d, v15" % UPOFF)
    a("v_add3_u32 v%d, v14, v15, v7" % WB2)
    a("v_and_b32 v13, 16, v2")
    a("v_lshl_add_u32 v7, v13, 1, v7")
    a("s_and_b32 s%d, s%d, 1" % (sT0, sW))
    a("s_lshl_b32 s%d, s%d, 6" % (sT3, sT0))
    a("v_add_u32 v7, s%d, v7" % sT3)
    a("v_lshlrev_b32 v14, 5, v6")
    a("v_and_b32 v14, 64, v14")
    a("v_xor_b32 v7, v7, v14")
    a("v_lshl_add_u32 v7, v6, 7, v7")
    a("v_mul_u32_u24 v14, 3072, v5")
    a("s_lshl_b32 s%d, s%d, 10" % (sT3, sT1))
    a("v_add3_u32 v%d, v7, v14, s%d" % (WB, sT3))
    a("v_and_b32 v6, 15, v2")
    a("v_lshlrev_b32 v6, 4, v6")
    a("v_lshl_add_u32 v%d, v5, 8, v6" % VLO)
    a("s_mul_i32 s%d, s%d, 3" % (sT3, sT0))
    a("s_add_u32 s%d, s%d, 8" % (sT3, sT3))
    a("s_lshl_b32 s%d, s%d, 1" % (sKH, sW))
    a("s_cmp_lt_u32 s%d, 4" % sW)
    a("s_cselect_b32 s%d, s%d, s%d" % (sT3, sKH, sT3))
    a("s_cselect_b32 s%d, %d, 0" % (sH + 1, A2_TT - 1024))
    a("s_cselect_b32 s%d, 0, 1024" % (sH + 2))
    a("s_add_u32 s%d, s%d, 1024" % (sH + 1, sH + 1))
    a("s_add_u32 s%d, s%d, 1024" % (sH + 2, sH + 2))
    a("s_lshl_b32 s%d, s%d, 5" % (sKH, sT3))
    a("v_add_u32 v%d, s%d, v%d" % (WB2, sKH, WB2))
    a("s_lshl1_add_u32 s%d, s%d, s%d" % (sT0, sNG, sT0))
    a("s_lshl1_add_u32 s%d, s%d, s%d" % (sT2, sMT, sT2))
    a("s_mul_i32 s%d, s%d, 14" % (sKH, sNG))
    a("s_add_u32 s%d, s%d, s%d" % (sKH, sKH, sT3))
    a("s_lshl_b32 s%d, s%d, 10" % (sKH, sKH))
    a("s_mul_i32 s%d, s%d, %d" % (sH, sT2, A2_TT))
    a("s_add_u32 s%d, s%d, s%d" % (sH, sH, sKH))
    a("s_add_u32 s%d, s%d, %d" % (sH, sH, A2_OFF + 32 * 1024))
    a("s_add_u32 s%d, s%d, s%d" % (sH + 1, sH + 1, sH))
    a("s_add_u32 s%d, s%d, s%d" % (sH + 2, sH + 2, sH))
    a("s_add_u32 s%d, s%d, 1024" % (sH + 3, sH + 1))
    a("s_lshl_b32 s%d, s%d, 17" % (sD0, sT0))
    a("s_lshl_b32 s%d, s%d, 10" % (sT3, sT2))
    a("s_add_u32 s%d, s%d, s%d" % (sD0, sD0, sT3))
    a("s_add_u32 s%d, s%d, %d" % (sD0, sD0, QF_OFF))
    a("s_min_u32 s%d, s%d, 1" % (sT3, sT1))
    a("s_lshl_b32 s%d, s%d, s%d" % (sD0, sD0, sT3))
    a("s_lshl_b32 s%d, 65536, s%d" % (sD1, sT3))
    a("s_add_u32 s%d, s%d, s%d" % (sD1, sD1, sD0))
    a("s_lshl_b32 s%d, 1024, s%d" % (sKH, sT3))
    a("v_add_u32 v%d, s%d, v3" % (VST, sKH))
    a("v_lshl_add_u32 v115, v13, 13, v%d" % VLO)
    a("s_cmp_eq_u32 s%d, 0" % sT1)
    a("s_cselect_b32 s%d, 0x%x, 1.0" % (sSCL, QSCALE))
    def late_setup():
        a("s_lshr_b32 s%d, s%d, 3" % (sT2, sJ))
        a("s_lshl2_add_u32 s%d, s%d, s%d" % (sHEAD, sXCD, sT2))
        a("s_and_b32 s%d, s%d, 7" % (sCH, sJ))
        a("s_and_b32 s%d, s%d, 3" % (sT0, sW))
        a("s_lshl_b32 s%d, s%d, 1" % (sT0, sT0))
        a("s_lshl3_add_u32 s%d, s%d, s%d" % (sQT, sCH, sT0))
        a("s_lshr_b32 s%d, s%d, 2" % (sKH, sW))
        a("s_add_u32 s%d, s%d, s%d" % (sQT, sQT, sKH))
        a("s_lshl_b32 s%d, s%d, 11" % (sSL, sW))
        a("s_lshl_b32 s%d, s%d, 17" % (sKVB, sHEAD))
        a("s_add_u32 s%d, s%d, %d" % (sKVB, sKVB, KV_OFF))
        a("s_add_u32 s%d, s%d, s%d" % (sKV, sKVB, sSL))
        a("s_lshl_b32 s%d, s%d, 16" % (sQ0, sHEAD))
        a("s_lshl_b32 s%d, s%d, 10" % (sT2, sQT))
        a("s_add_u32 s%d, s%d, s%d" % (sQ0, sQ0, sT2))
        a("s_add_u32 s%d, s%d, %d" % (sQ0, sQ0, QF_OFF))
        a("v_mov_b32 v6, 0")
        a("s_mov_b32 exec_lo, 0x00110000")
        a("s_mov_b32 exec_hi, 0x00110000")
        a("v_mov_b32 v6, s%d" % sONE)
        a("s_mov_b64 exec, -1")
        a("v_mov_b32 v11, v6")
        a("s_mov_b32 s%d, 0" % sCH)
        a("s_mov_b32 s%d, 0x0000ffff" % sVM)
        a("s_mov_b32 s%d, 0x0000ffff" % (sVM + 1))
        a("s_lshl_b32 s%d, s%d, 13" % (sKH, sKH))
        a("v_add_u32 v%d, s%d, v3" % (KA, sKH))
        a("v_add_u32 v%d, s%d, v%d" % (VA, sKH, VLO))
        a("v_mov_b32 v%d, 1" % VONE)
        for i in range(40, 44, 2): a("v_mov_b64 %s, 0" % v(i, 2))
        a("v_mov_b32 v36, 0x%x" % f2u(C1))
        a("v_mov_b32 v38, 0x%x" % f2u(C2))
    a("v_mov_b32 v%d, %d" % (VCN, LDS_CNT))
    for i in range(48, 112, 2): a("v_mov_b64 %s, 0" % v(i, 2))
    a("v_mov_b32 v4, s%d" % sSCL)
    a("ds_write_b128 v%d, v[48:51]" % VCN)
    a("ds_write_b128 v%d, v[48:51] offset:16" % VCN)
    a("ds_write_b128 v%d, v[48:51] offset:32" % VCN)
    a("s_mov_b32 s%d, %d" % (sSO, LDS_F))
    a("s_mov_b32 s%d, 8" % sI)
    a("s_and_b32 s%d, s%d, 7" % (sKC, sJ))
    a("s_lshl_b32 s%d, s%d, 7" % (sKC, sKC))
    def addrs(nk=4, wb=WB):
        a("v_xor_b32 v%d, s%d, v%d" % (XA, sKC, XB))
        a("v_add_u32 v%d, s%d, v%d" % (WA, sSO, wb))
        for k in range(1, nk): a("v_xor_b32 v%d, %d, v%d" % (XA + k, k << 5, XA))
        a("s_add_u32 s%d, s%d, %d" % (sKC, sKC, 32 * nk))
        a("s_and_b32 s%d, s%d, 0x3ff" % (sKC, sKC))
        a("s_add_u32 s%d, s%d, %d" % (sSO, sSO, FSLOT))
        a("s_cmp_eq_u32 s%d, %d" % (sSO, LDS_F + 3 * FSLOT))
        a("s_cselect_b32 s%d, %d, s%d" % (sSO, LDS_F, sSO))
    addrs()
    for p in range(4):
        a("buffer_load_dwordx4 %s, v164, %s, s11 offen offset:%d" % (v(148 + 4 * p, 4), s(SB, 4), p * 256))
    late_setup()
    tagsetup(a)
    a.stamp(1)
    def unpack(n):
        for q in range(4):
            r = XS + 4 * n + q; t = 20 + 8 * (n % 2) + 2 * q
            a("v_lshlrev_b32 v%d, 16, v%d" % (t, r))
            a("v_and_b32 v%d, 0xffff0000, v%d" % (t + 1, r))
    for g in range(2):
        a("s_waitcnt vmcnt(%d)" % (4 - 4 * g))
        if g == 1: a.stamp(14)
        for i in range(16):
            r = XS + 16 * g + i; d = 120 + 2 * (i & 3)
            a("v_dot2_f32_bf16 v%d, v%d, s%d, %s" % (d, r, sONE, "0" if i < 4 else "v%d" % d))
            a("v_dot2_f32_bf16 v%d, v%d, v%d, %s" % (d + 1, r, r, "0" if i < 4 else "v%d" % (d + 1)))
        fill = cap0(a, unpack, 4 * g) + cap0(a, unpack, 4 * g + 1)
        a("v_pk_add_f32 v[120:121], v[120:121], v[122:123]")
        a(fill.pop(0)); a(fill.pop(0))
        a("v_pk_add_f32 v[124:125], v[124:125], v[126:127]")
        a(fill.pop(0))
        a("v_pk_add_f32 v[118:119], v[120:121], v[124:125]")
        a(fill.pop(0)); a(fill.pop(0))
        for sh in (8, 4, 2, 1):
            for k in (118, 119):
                a("v_add_f32_dpp v%d, v%d, v%d row_ror:%d row_mask:0xf bank_mask:0xf" % (k, k, k, sh))
            a(fill.pop(0))
        for x in cap0(a, ln_final, a, 118, 119, 0):
            if x.startswith("s_nop") and fill: a(fill.pop(0))
            else: a(x)
            if x.startswith("v_cvt") and len(fill) > 2: a(fill.pop(0))
        a("v_mul_f32_e64 v118, -v118, v119")
        for l in fill: a(l)
        for n in range(4 * g, 4 * g + 4):
            p = n % 4; T = 20 + 8 * (n % 2)
            for q in range(4):
                a("v_pk_fma_f32 %s, %s, v[118:119], v[118:119] op_sel:[0,1,0] op_sel_hi:[1,1,0]" % (v(T + 2 * q, 2), v(T + 2 * q, 2)))
            for q in range(4):
                a("v_cvt_pk_bf16_f32 v%d, v%d, v%d" % (XS + 4 * n + q, T + 2 * q, T + 2 * q + 1))
            a("ds_write_b128 v%d, %s offset:%d" % (116 + g, v(XS + 4 * n, 4), p * 256))
            if p + 2 < 4: unpack(n + 2)
    a("s_waitcnt lgkmcnt(0)")
    a.stamp(2)
    a("s_barrier")
    a("s_setprio 0")
    a.stamp(3)
    a("s_cmp_ge_u32 s%d, 4" % sW)
    a("s_cbranch_scc1 L_p1_v0")
    def wread(k, dst):
        for sec in range(2):
            a("ds_read_b64_tr_b16 %s, v%d offset:%d" % (v(dst + 2 * sec, 2), WA, k * 6144 + sec * 512))
    def xread(k, dst, tb): a("ds_read_b128 %s, v%d offset:%d" % (v(dst, 4), XA + k, tb * 32768))
    def gread(k, dst, t):
        for sec in range(2):
            a("ds_read_b64_tr_b16 %s, v%d offset:%d" % (v(dst + 2 * sec, 2), WA, k * 7168 + sec * 1792 + t * 32))
    def cap(fn, *args):
        n = len(a.lines); fn(*args); out = a.lines[n:]; del a.lines[n:]; return out
    def weave(mm, rd, per):
        for l in mm:
            a(l)
            if l.startswith("v_mfma"):
                for _ in range(per):
                    if rd: a(rd.pop(0))
        for l in rd: a(l)
    def gemm(lab, rdf, mmf, n, per, touch=False):
        for k in range(3): rdf(k)
        a("s_branch %s_m" % lab)
        a.label(lab)
        rd = cap(rdf, 0) + cap(rdf, 1)
        m2 = cap(mmf, 2)
        for l in m2:
            a(l)
            for _ in range(per):
                if rd: a(rd.pop(0))
        weave(cap(mmf, 3), rd + cap(rdf, 2), per)
        a.label(lab + "_m")
        a("s_waitcnt lgkmcnt(%d)" % (2 * n))
        weave(cap(mmf, 0), cap(rdf, 3), per)
        a("s_waitcnt lgkmcnt(%d)" % (2 * n))
        mm1 = cap(mmf, 1)
        a(mm1[0]); addrs()
        for l in mm1[1:]: a(l)
        a("s_sub_u32 s%d, s%d, 1" % (sI, sI))
        a("s_waitcnt lgkmcnt(0)")
        a("s_barrier")
        a("s_cmp_lg_u32 s%d, 0" % sI)
        a("s_cbranch_scc1 %s" % lab)
        a.stamp(4)
        mmf(2); mmf(3)
        a("s_mov_b32 s%d, %d" % (sSO, LDS_F + 2 * FSLOT))
        a("s_lshl_b32 s%d, s56, 6" % sKC)
        a("s_mov_b32 s%d, 16" % sI)
        addrs(2, WB2)
    GB = [[132, 148], [116, 20]]
    def gu(lab, rdf, mmf, n):
        a.stamp(5)
        def pre():
            addrs(2, WB2)
            a("s_sub_u32 s%d, s%d, 1" % (sI, sI))
        def tail(last=False):
            if last:
                a("s_cmp_lg_u32 s%d, %d" % (sI, 18 - OPT["qflag"]))
                a("s_cbranch_scc1 %s_b" % lab)
                a("s_waitcnt vmcnt(0)")
                a.label(lab + "_b")
            a("s_waitcnt lgkmcnt(0)")
            a("s_barrier")
        def half(p):
            mm = cap(mmf, 1 - p, 0) + cap(mmf, 1 - p, 1)
            k = OPT["gtail"]
            weave(mm[:len(mm) - k], cap(rdf, p, 0) + cap(rdf, p, 1), OPT["gper"] if n == 6 else OPT["gper3"])
            pre()
            for l in mm[len(mm) - k:]: a(l)
        pre()
        a("s_branch %s_m" % lab)
        a.label(lab)
        half(0)
        a.label(lab + "_m")
        tail()
        half(1)
        tail(True)
        a("s_cmp_lg_u32 s%d, 0" % sI)
        a("s_cbranch_scc1 %s" % lab)
        a("s_setprio 3")
        mmf(1, 0); mmf(1, 1)
    def qk_rd(k): wread(k, FR + 12 * k); xread(k, FR + 12 * k + 4, 0); xread(k, FR + 12 * k + 8, 1)
    def qk_mm(k):
        f = FR + 12 * k
        for tb in range(2):
            d = v(ACC1 + 16 * tb, 16)
            a("v_mfma_f32_32x32x16_bf16 %s, %s, %s, %s" % (d, v(f, 4), v(f + 4 + 4 * tb, 4), d))
    def g4_rd(p, k):
        b = GB[p][k]
        gread(k, b, 0); xread(k, b + 8, 0); xread(k, b + 12, 1); gread(k, b + 4, 1)
    def g4_mm(p, k):
        b = GB[p][k]
        for fi in range(2):
            for tb in range(2):
                d = v(ACC1 + 16 * (2 * fi + tb), 16)
                a("v_mfma_f32_32x32x16_bf16 %s, %s, %s, %s" % (d, v(b + 4 * fi, 4), v(b + 8 + 4 * tb, 4), d))
    gemm("L_p1_qk", qk_rd, qk_mm, 4, 3)
    g4_rd(0, 0); g4_rd(0, 1)
    for tb in range(2):
        A0 = ACC1 + 16 * tb
        for i in range(0, 16, 2): a("v_pk_mul_f32 %s, %s, v[4:5] op_sel_hi:[1,0]" % (v(A0 + i, 2), v(A0 + i, 2)))
        for i in range(8): a("v_cvt_pk_bf16_f32 v%d, v%d, v%d" % (FR + 8 * tb + i, A0 + 2 * i, A0 + 2 * i + 1))
        a("buffer_store_dwordx4 %s, v%d, %s, s%d offen %s" % (v(FR + 8 * tb, 4), VST if tb else 3, s(SWS, 4), sD0, sc()))
        a("buffer_store_dwordx4 %s, v%d, %s, s%d offen %s" % (v(FR + 8 * tb + 4, 4), VST if tb else 3, s(SWS, 4), sD1, sc()))
        for i in range(0, 16, 2): a("v_mov_b64 %s, 0" % v(A0 + i, 2))
    gu("L_gu4", g4_rd, g4_mm, 6)
    a("s_branch L_p1_done")
    a.label("L_p1_v0")
    if OPT["vprio"]: a("s_setprio 1")
    def v_rd(k): xread(k, FR + 8 * k + 4, 0); wread(k, FR + 8 * k)
    def v_mm(k):
        f = FR + 8 * k; d = v(ACC1, 16)
        a("v_mfma_f32_32x32x16_bf16 %s, %s, %s, %s" % (d, v(f + 4, 4), v(f, 4), d))
    def g3_rd(p, k):
        b = GB[p][k]
        gread(k, b, 0); xread(k, b + 12, 0); gread(k, b + 4, 1); gread(k, b + 8, 2)
    def g3_mm(p, k):
        b = GB[p][k]
        for fi in range(3):
            d = v(ACC1 + 16 * fi, 16)
            a("v_mfma_f32_32x32x16_bf16 %s, %s, %s, %s" % (d, v(b + 4 * fi, 4), v(b + 12, 4), d))
    gemm("L_p1_v", v_rd, v_mm, 3, 4, True)
    g3_rd(0, 0); g3_rd(0, 1)
    for i in range(8): a("v_cvt_pk_bf16_f32 v%d, v%d, v%d" % (FR + i, ACC1 + 2 * i, ACC1 + 2 * i + 1))
    a("buffer_store_dwordx4 %s, v115, %s, s%d offen offset:1024 %s" % (v(FR, 4), s(SWS, 4), sD0, sc()))
    a("buffer_store_dwordx4 %s, v115, %s, s%d offen offset:1536 %s" % (v(FR + 4, 4), s(SWS, 4), sD0, sc()))
    for i in range(0, 16, 2): a("v_mov_b64 %s, 0" % v(ACC1 + i, 2))
    gu("L_gu3", g3_rd, g3_mm, 7)
    a.label("L_p1_done")
    tr_dump(a, 165, 164)
    a.stamp(6)
    def dma():
        a("s_mov_b32 m0, s%d" % sSL)
        a("s_add_u32 s%d, s%d, s%d" % (sT0, sKV, sCH))
        a("buffer_load_dwordx4 v3, %s, s%d offen sc1 lds" % (s(SWS, 4), sT0))
        a("buffer_load_dwordx4 v3, %s, s%d offen offset:1024 sc1 lds" % (s(SWS, 4), sT0))
        a("s_add_u32 s%d, s%d, 16384" % (sSL, sSL))
        a("s_and_b32 s%d, s%d, 0xffff" % (sSL, sSL))
        a("s_add_u32 s%d, s%d, 16384" % (sCH, sCH))
    dma()
    a("s_xor_b32 s%d, s%d, 1024" % (sT1, sQ0))
    a("buffer_load_dwordx4 %s, v3, %s, s%d offen sc1" % (v(Q[0], 4), s(SWS, 4), sQ0))
    a("buffer_load_dwordx4 %s, v3, %s, s%d offen sc1" % (v(Q[1], 4), s(SWS, 4), sT1))
    dma()
    def geglu(t):
        Gt = ACC1 + 16 * t; U = Gt + 8; T = 132 + (t % 2) * 12
        R = range(0, 8, 2)
        for i in R: a("v_pk_mul_f32 %s, %s, %s" % (v(T + i, 2), v(Gt + i, 2), v(Gt + i, 2)))
        for i in R: a("v_pk_fma_f32 %s, %s, v[38:39], v[36:37] op_sel_hi:[1,0,0]" % (v(T + i, 2), v(T + i, 2)))
        for i in R: a("v_pk_mul_f32 %s, %s, %s" % (v(T + i, 2), v(T + i, 2), v(Gt + i, 2)))
        for i in range(8): a("v_exp_f32 v%d, v%d" % (T + i, T + i))
        for i in R: a("v_pk_mul_f32 %s, %s, %s" % (v(Gt + i, 2), v(Gt + i, 2), v(U + i, 2)))
        for i in R: a("v_pk_add_f32 %s, %s, 1.0 op_sel_hi:[1,0]" % (v(T + i, 2), v(T + i, 2)))
        for i in range(8): a("v_rcp_f32 v%d, v%d" % (T + i, T + i))
        a.nop(1)
        for i in R: a("v_pk_mul_f32 %s, %s, %s" % (v(Gt + i, 2), v(Gt + i, 2), v(T + i, 2)))
        for i in range(4): a("v_cvt_pk_bf16_f32 v%d, v%d, v%d" % (T + 8 + i, Gt + 2 * i, Gt + 2 * i + 1))
        a("buffer_store_dwordx4 %s, v3, %s, s%d offen %s" % (v(T + 8, 4), s(SWS, 4), sH + t, sc()))
        if t >= 2:
            for i in range(0, 16, 2): a("v_mov_b64 %s, 0" % v(Gt + i, 2))
    a("v_mov_b32 v10, v11")
    geglu(0)
    for i in range(0, 16, 2): a("v_mov_b64 %s, v[10:11]" % v(VF[0] + i, 2))
    dma()
    geglu(1); geglu(2)
    a("s_cmp_ge_u32 s%d, 4" % sW)
    a("s_cbranch_scc1 L_g_done")
    geglu(3)
    a.label("L_g_done")
    a.stamp(9)
    def rdK(kt): a("ds_read_b128 %s, v%d offset:%d" % (v(KF[kt % 2], 4), KA, (kt % 4) * 2048))
    def rdV(kt):
        a("s_mov_b64 exec, %s" % s(sVM, 2))
        a("ds_read_b128 %s, v%d offset:%d" % (v(VF[kt % 2], 4), VA, (kt % 4) * 2048 + 1024))
        a("ds_read_b128 %s, v%d offset:%d" % (v(VF[kt % 2] + 4, 4), VA, (kt % 4) * 2048 + 1536))
        a("s_mov_b64 exec, -1")
    def mfS(u): a("v_mfma_f32_32x32x16_bf16 %s, %s, %s, 0" % (v(S[u % 2], 16), v(KF[(u >> 1) % 2], 4), v(Q[u % 2], 4)))
    def mfPV(u, j): a("v_mfma_f32_32x32x16_bf16 %s, %s, %s, %s" % (v(O[u % 2], 16), v(VF[(u >> 1) % 2] + 4 * j, 4), v(P + 4 * j, 4), v(O[u % 2], 16)))
    a("s_waitcnt vmcnt(5)")
    arrive(a, VCN, VONE, 0)
    spin(a, VCN, VP, 0, sT0, "8", "L_a_first")
    rdK(0); rdV(0); rdK(1)
    a("s_mov_b32 s%d, 0" % sCNT)
    a("s_mov_b32 s%d, 8" % sTGT)
    a("s_waitcnt lgkmcnt(3)")
    mfS(0)
    a.stamp(10)
    a("s_setprio 0")
    if OPT["yprio"]:
        a("s_cmp_lt_u32 s%d, 4" % sW)
        a("s_cbranch_scc1 L_at_yp")
        a("s_setprio 1")
        a.label("L_at_yp")
    a.nop(9)
    a.label("L_at_loop")
    for u in range(8):
        Sx = S[u % 2]
        e = lambda i: a("v_exp_f32 v%d, v%d" % (Sx + i, Sx + i))
        cv = lambda i: a("v_cvt_pk_bf16_f32 v%d, v%d, v%d" % (P + i, Sx + 2 * i, Sx + 2 * i + 1))
        if OPT["hp"] == 1 and u in (0, 4): a("s_setprio %d" % (1 if u == 0 else 0))
        if OPT["hp"] == 2 and u % 2 == 0: a("s_setprio %d" % (1 if u % 4 == 2 else 0))
        if OPT["hp"] == 3: a("s_setprio %d" % (1 if u % 2 == 0 else 0))
        if OPT["hp"] == 4 and u in (0, 2, 4): a("s_setprio %d" % (2 - u // 2))
        if u % 2 == 0: a("s_waitcnt lgkmcnt(0)")
        mfS(u + 1)
        e(0)
        if u == 4: a("v_readfirstlane_b32 s%d, v%d" % (sT0, VP))
        e(1)
        if u == 4:
            a("s_cmp_ge_u32 s%d, s%d" % (sT0, sTGT))
            a("s_cbranch_scc0 L_at_slow")
            a.label("L_at_back")
        e(2); e(3)
        mfPV(u - 1, 1)
        if u % 2 == 0:
            rdK(u // 2 + 2); rdV(u // 2 + 1)
        cv(0); e(4)
        if u == 3:
            a("ds_read_b32 v%d, v%d" % (VP, VCN))
            a("v_add_u32 v%d, 16384, v%d" % (KA, KA))
            a("v_and_b32 v%d, 0xffff, v%d" % (KA, KA))
        if u == 5:
            a("v_add_u32 v%d, 16384, v%d" % (VA, VA))
            a("v_and_b32 v%d, 0xffff, v%d" % (VA, VA))
            a("s_cmp_ge_u32 s%d, 5" % sCNT)
            a("s_cbranch_scc1 L_at_nodma")
            a("s_setprio 3")
            dma()
            a("s_setprio 0")
            if OPT["yprio"]:
                a("s_cmp_lt_u32 s%d, 4" % sW)
                a("s_cbranch_scc1 L_at_nodma")
                a("s_setprio 1")
            a.label("L_at_nodma")
        if u == 6:
            a("s_waitcnt vmcnt(2)")
            a("s_cmp_ge_u32 s%d, 5" % sCNT)
            a("s_cbranch_scc0 L_at_w2")
            a("s_waitcnt vmcnt(0)")
            a.label("L_at_w2")
            arrive(a, VCN, VONE, 0)
        if OPT["sched"] == 0:
            cv(1); e(5); e(6); e(7); cv(2); e(8); cv(3); e(9); e(10)
            mfPV(u, 0)
            e(11); e(12); cv(4); e(13); cv(5); e(14); e(15); cv(6)
        elif OPT["sched"] == 1:
            e(5); e(6); e(7); e(8); cv(1); cv(2); cv(3); e(9); e(10)
            mfPV(u, 0)
            e(11); e(12); e(13); e(14); e(15); cv(4); cv(5); cv(6)
        else:
            cv(1); e(5); e(6); e(7); cv(2); e(8); cv(3); e(9); e(10); e(11); cv(4)
            mfPV(u, 0)
            e(12); e(13); cv(5); e(14); e(15); cv(6)
        if u == 7:
            a("s_add_u32 s%d, s%d, 8" % (sTGT, sTGT))
            a("s_add_u32 s%d, s%d, 1" % (sCNT, sCNT))
            a("s_cmp_lt_u32 s%d, 8" % sCNT)
        cv(7)
    a("s_cbranch_scc1 L_at_loop")
    a.nop(1)
    mfPV(7, 1)
    a.stamp(11)
    a("s_lshl_b32 s%d, s%d, 12" % (sT0, sW))
    a("s_add_u32 s%d, s%d, 16384" % (sT0, sT0))
    a("v_add_u32 v10, s%d, v3" % sT0)
    a("v_xor_b32 v11, 0xc000, v10")
    a("s_and_b32 s%d, s%d, 3" % (sT1, sW))
    a("s_lshl_b32 s%d, s%d, 2" % (sKH, sT1))
    a("s_mul_i32 s%d, s%d, %d" % (sT2, sQT, A2_TT))
    a("s_lshl_b32 s%d, s%d, 10" % (sT1, sHEAD))
    a("s_add_u32 s%d, s%d, s%d" % (sT2, sT2, sT1))
    a("s_add_u32 s%d, s%d, %d" % (sT2, sT2, A2_OFF))
    a("s_lshr_b32 s%d, s%d, 3" % (sT3, sQT))
    a("s_lshl_b32 s%d, s%d, 5" % (sT3, sT3))
    a("s_add_u32 s%d, s%d, s%d" % (sT3, sT3, sHEAD))
    a("s_lshl_b32 s%d, s%d, %d" % (sT3, sT3, OPT["fs"]))
    a("s_add_u32 s%d, s%d, %d" % (sT3, sT3, FO_OFF))
    a("ds_write_b128 v10, %s" % v(O[1], 4))
    a("ds_write_b128 v10, %s offset:1024" % v(O[1] + 4, 4))
    a("ds_write_b32 v10, v%d offset:2048" % (O[1] + 8))
    a("s_waitcnt lgkmcnt(0)")
    a("v_add_u32 v12, s%d, v%d" % (sKH, VCN))
    arrive(a, 12, VONE, 8)
    spin(a, 12, VP, 8, sT0, "2", "L_a_pair")
    a("ds_read_b128 %s, v11" % v(S[0], 4))
    a("ds_read_b128 %s, v11 offset:1024" % v(S[0] + 4, 4))
    a("ds_read_b32 v%d, v11 offset:2048" % (S[0] + 8))
    a("s_waitcnt lgkmcnt(0)")
    for i in range(8, -1, -1): a("v_add_f32 v%d, v%d, v%d" % (O[0] + i, O[0] + i, S[0] + i))
    a("v_cmp_nle_f32 vcc, 0x21800000, v%d" % (O[0] + 8))
    a("s_nop 1")
    a("s_mov_b64 s[56:57], vcc")
    a("v_cmp_nge_f32 vcc, 0x5d800000, v%d" % (O[0] + 8))
    a("s_nop 1")
    a("s_or_b64 vcc, vcc, s[56:57]")
    a("s_cbranch_vccnz L_a_fallback")
    a.label("L_a_fin")
    a("s_setprio 3")
    a.stamp(12)
    a("v_rcp_f32 v10, v%d" % (O[0] + 8))
    a.nop(1)
    for i in range(8): a("v_mul_f32 v%d, v%d, v10" % (O[0] + i, O[0] + i))
    for i in range(4): a("v_cvt_pk_bf16_f32 v%d, v%d, v%d" % (P + i, O[0] + 2 * i, O[0] + 2 * i + 1))
    a("buffer_store_dwordx4 %s, v3, %s, s%d offen %s" % (v(P, 4), s(SWS, 4), sT2, sc()))
    last_flag(a, VCN, VONE, VP, 32, 8, sT3, "L_a_exit")
    a.label("L_a_exit")
    a.stamp(13)
    a.stamp_flush(0, SWS, sW, 12)
    a("s_endpgm")
    a.label("L_at_slow")
    spin(a, VCN, VP, 0, sT0, "s%d" % sTGT, "L_at_spin")
    a("s_branch L_at_back")
    a.label("L_a_fallback")
    C = O[1]; S0 = S[0]
    a("v_mov_b32 v10, 0xff800000")
    a("s_mov_b32 s%d, s%d" % (sT0, sKVB))
    a("s_mov_b32 s%d, 64" % sCNT)
    a.label("L_fb1")
    a("buffer_load_dwordx4 %s, v3, %s, s%d offen sc1" % (v(KF[0], 4), s(SWS, 4), sT0))
    a("s_waitcnt vmcnt(0)")
    a("v_mfma_f32_32x32x16_bf16 %s, %s, %s, 0" % (v(S0, 16), v(KF[0], 4), v(Q[0], 4)))
    a.nop(12)
    for i in range(0, 16, 2): a("v_max3_f32 v10, v10, v%d, v%d" % (S0 + i, S0 + i + 1))
    a("s_add_u32 s%d, s%d, 2048" % (sT0, sT0))
    a("s_sub_u32 s%d, s%d, 1" % (sCNT, sCNT))
    a("s_cmp_lg_u32 s%d, 0" % sCNT)
    a("s_cbranch_scc1 L_fb1")
    a("v_mov_b32 v11, v10")
    a.nop(2)
    a("v_permlane32_swap_b32 v10, v11")
    a("v_max_f32 v10, v10, v11")
    for i in range(16): a("v_sub_f32 v%d, 0, v10" % (C + i))
    for i in range(16): a("v_mov_b32 v%d, 0" % (O[0] + i))
    a("s_mov_b32 s%d, s%d" % (sT0, sKVB))
    a("s_mov_b32 s%d, 64" % sCNT)
    a.label("L_fb2")
    a("buffer_load_dwordx4 %s, v3, %s, s%d offen sc1" % (v(KF[0], 4), s(SWS, 4), sT0))
    a("s_mov_b64 exec, %s" % s(sVM, 2))
    a("buffer_load_dwordx4 %s, v47, %s, s%d offen offset:1024 sc1" % (v(VF[0], 4), s(SWS, 4), sT0))
    a("buffer_load_dwordx4 %s, v47, %s, s%d offen offset:1536 sc1" % (v(VF[0] + 4, 4), s(SWS, 4), sT0))
    a("s_mov_b64 exec, -1")
    a("s_waitcnt vmcnt(0)")
    a("v_mfma_f32_32x32x16_bf16 %s, %s, %s, %s" % (v(S0, 16), v(KF[0], 4), v(Q[0], 4), v(C, 16)))
    a.nop(12)
    for i in range(16): a("v_exp_f32 v%d, v%d" % (S0 + i, S0 + i))
    a.nop(1)
    for i in range(8): a("v_cvt_pk_bf16_f32 v%d, v%d, v%d" % (P + i, S0 + 2 * i, S0 + 2 * i + 1))
    a.nop(2)
    for j in range(2): a("v_mfma_f32_32x32x16_bf16 %s, %s, %s, %s" % (v(O[0], 16), v(VF[0] + 4 * j, 4), v(P + 4 * j, 4), v(O[0], 16)))
    a("s_add_u32 s%d, s%d, 2048" % (sT0, sT0))
    a("s_sub_u32 s%d, s%d, 1" % (sCNT, sCNT))
    a("s_cmp_lg_u32 s%d, 0" % sCNT)
    a("s_cbranch_scc1 L_fb2")
    a.nop(12)
    a("s_branch L_a_fin")

def role_f(a):
    sF = 47; SG = 12
    VCN, VONE = 164, 1
    sW1, sM1, sKD, sSO, sI, sW2, sM2, sFQ, sFH, sPOLL = 10, 11, 20, 21, 48, 49, 50, 51, 52, 58
    a("s_sub_u32 s%d, s%d, 8" % (sF, sW))
    a("s_setprio 2")
    srd(a, SA, P_WQKV, 512 * 3072)
    a("v_lshrrev_b32 v6, 3, v2")
    a("v_and_b32 v9, 7, v2")
    a("v_lshlrev_b32 v8, 1, v6")
    a("v_and_b32 v8, 4, v8")
    a("v_xor_b32 v7, v9, v8")
    a("v_mul_u32_u24 v8, 3072, v6")
    a("v_lshl_add_u32 v8, v7, 4, v8")
    a("s_mul_i32 s%d, s%d, %d" % (sW1, sF, 16 * 3072))
    a("s_lshl_b32 s%d, s%d, 7" % (sT0, sNG))
    a("s_add_u32 s%d, s%d, s%d" % (sW1, sW1, sT0))
    a("s_mul_i32 s%d, s%d, 6144" % (sM1, sF))
    a("s_add_u32 s%d, s%d, %d" % (sM1, sM1, LDS_F))
    a("s_and_b32 s%d, s%d, 7" % (sKD, sJ))
    a("s_mov_b32 s%d, 0" % sSO)
    a("s_mov_b32 s%d, 0" % sI)
    a("s_cmp_ge_u32 s%d, 2" % sF)
    a("s_cselect_b64 %s, %s, %s" % (s(P_WG, 2), s(P_WU, 2), s(P_WG, 2)))
    a("s_cselect_b32 s%d, %d, 0" % (sM2, UPOFF))
    a("s_add_u32 s%d, s%d, %d" % (sM2, sM2, LDS_F))
    srd(a, SG, P_WG, 512 * 3584)
    for i in range(7):
        a("v_add_u32 v4, %d, v2" % (64 * i))
        a("v_mul_u32_u24 v5, 2341, v4")
        a("v_lshrrev_b32 v5, 16, v5")
        a("v_mul_u32_u24 v5, %d, v5" % (3584 - 448))
        a("v_lshl_add_u32 v5, v4, 4, v5")
        a("v_subrev_u32 v%d, %d, v5" % (16 + i, (i % 4) * 1024))
    a("s_and_b32 s%d, s%d, 1" % (sT1, sF))
    a("s_mul_i32 s%d, s%d, %d" % (sW2, sT1, 16 * 3584))
    a("s_mul_i32 s%d, s%d, 448" % (sT2, sNG))
    a("s_add_u32 s%d, s%d, s%d" % (sW2, sW2, sT2))
    a("s_mul_i32 s%d, s%d, 7168" % (sT1, sT1))
    a("s_add_u32 s%d, s%d, s%d" % (sM2, sM2, sT1))
    def spf():
        if not OPT["spf"]: return
        for r in range(2):
            for q in range(4): a("s_load_dword s53, s[54:55], %d" % (r * 3584 + q * 128))
        a("s_add_u32 s54, s54, %d" % (2 * 3584))
        a("s_addc_u32 s55, s55, 0")
    tagsetup(a)
    a("s_mul_i32 s%d, s56, %d" % (sT0, 32 * 3584))
    a("s_add_u32 s%d, s%d, s%d" % (sT0, sT0, sW2))
    a("s_mov_b32 s53, s%d" % sT0)
    a("v_lshrrev_b32 v4, 2, v2")
    a("v_mul_u32_u24 v4, 3584, v4")
    a("v_and_b32 v5, 3, v2")
    a("v_lshl_add_u32 v23, v5, 7, v4")
    a("s_lshl_b32 s%d, s%d, 5" % (sFQ, sNG))
    a("s_add_u32 s%d, s%d, s%d" % (sFQ, sFQ, sMT))
    a("s_lshl_b32 s%d, s%d, %d" % (sFQ, sFQ, OPT["fs"]))
    a("s_add_u32 s%d, s%d, %d" % (sFQ, sFQ, FQ_OFF))
    a("s_lshl3_add_u32 s%d, s%d, s%d" % (sFH, sMT, sNG))
    a("s_lshl_b32 s%d, s%d, %d" % (sFH, sFH, OPT["fs"]))
    a("s_add_u32 s%d, s%d, %d" % (sFH, sFH, FH_OFF))
    a("s_lshl_b32 s%d, s%d, %d" % (sPOLL, sXCD, 5 + OPT["fs"]))
    a("s_add_u32 s%d, s%d, %d" % (sPOLL, sPOLL, FQ_OFF))
    a("v_mov_b32 v%d, %d" % (VCN, LDS_CNT))
    a("v_mov_b32 v%d, 1" % VONE)
    def slot():
        a("s_add_u32 s%d, s%d, %d" % (sSO, sSO, FSLOT))
        a("s_cmp_eq_u32 s%d, %d" % (sSO, 3 * FSLOT))
        a("s_cselect_b32 s%d, 0, s%d" % (sSO, sSO))
        a("s_add_u32 s%d, s%d, 1" % (sI, sI))
    a("s_waitcnt vmcnt(0)")
    a.stamp(1)
    a.label("L_d_issue")
    a("s_mul_i32 s%d, s%d, %d" % (sT2, sKD, 64 * 3072))
    a("s_add_u32 s%d, s%d, s%d" % (sT2, sT2, sW1))
    a("s_add_u32 m0, s%d, s%d" % (sM1, sSO))
    a("s_add_u32 s%d, s%d, 1" % (sKD, sKD))
    for m in range(3): a("buffer_load_dwordx4 v8, %s, s%d offen offset:%d lds" % (s(SA, 4), sT2, m * 1024))
    a("s_add_u32 m0, m0, 3072")
    a("s_add_u32 s%d, s%d, %d" % (sT2, sT2, 8 * 3072))
    for m in range(3): a("buffer_load_dwordx4 v8, %s, s%d offen offset:%d lds" % (s(SA, 4), sT2, m * 1024))
    a("s_and_b32 s%d, s%d, 7" % (sKD, sKD))
    slot()
    if OPT["ft"]:
        a("s_cmp_lt_u32 s%d, 3" % sI)
        a("s_cbranch_scc1 L_d_issue")
        a("s_cmp_lg_u32 s%d, 3" % sI)
        a("s_cbranch_scc1 L_d_w")
        a("buffer_load_dword v23, v23, %s, s53 offen" % s(SG, 4))
        a("s_waitcnt vmcnt(13)")
        a("s_barrier")
        a.label("L_d_w")
        a("s_waitcnt vmcnt(7)")
        a("s_cmp_lt_u32 s%d, 5" % sI)
        a("s_cbranch_scc1 L_d_b")
        a("s_waitcnt vmcnt(6)")
        a.label("L_d_b")
    else:
        a("s_cmp_eq_u32 s%d, 1" % sI)
        a("s_cbranch_scc1 L_d_issue")
        a("s_waitcnt vmcnt(6)")
    a("s_barrier")
    a("s_cmp_lg_u32 s%d, 8" % sI)
    a("s_cbranch_scc1 L_d_issue")
    a.stamp(3)
    a("s_waitcnt lgkmcnt(0)") if False else None
    a("s_mov_b32 s%d, s56" % sKD)
    a("s_mov_b32 s%d, 0" % sI)
    a("v_lshlrev_b32 v165, %d, v2" % OPT["fs"])
    a.label("L_g_issue")
    a("s_mul_i32 s%d, s%d, %d" % (sT2, sKD, 32 * 3584))
    a("s_add_u32 m0, s%d, s%d" % (sM2, sSO))
    a("s_add_u32 s%d, s%d, s%d" % (sT2, sT2, sW2))
    for i in range(7):
        if i == 4:
            a("s_add_u32 m0, m0, 4096")
            a("s_add_u32 s%d, s%d, 1" % (sKD, sKD))
        a("buffer_load_dwordx4 v%d, %s, s%d offen offset:%d lds" % (16 + i, s(SG, 4), sT2, (i % 4) * 1024))
    a("s_and_b32 s%d, s%d, 15" % (sKD, sKD))
    slot()
    tr(a, 30)
    a("s_waitcnt vmcnt(7)")
    tr(a, 30)
    a("s_barrier")
    tr(a, 30)
    a("s_lshl_b32 s%d, s%d, 5" % (sT0, sF))
    a("s_add_u32 s%d, s%d, s%d" % (sT0, sT0, sI))
    a("s_cmp_lg_u32 s%d, %d" % (sT0, OPT["qflag"]))
    a("s_cbranch_scc1 L_g_nf")
    a("s_mov_b64 exec, 1")
    a("buffer_store_dwordx2 %s, v3, %s, s%d offen %s" % (v(VTAG, 2), s(SWS, 4), sFQ, sc()))
    a("s_mov_b64 exec, -1")
    a.label("L_g_nf")
    a("s_cmp_lg_u32 s%d, 16" % sI)
    a("s_cbranch_scc1 L_g_issue")
    a.stamp(4)
    a("s_waitcnt vmcnt(0) lgkmcnt(0)")
    a("s_barrier")
    a("s_cmp_lg_u32 s%d, 0" % sF)
    a("s_cbranch_scc1 L_f_nopoll")
    poll(a, 165, sPOLL, 32, 24, "L_f_pollq")
    a.label("L_f_nopoll")
    a("s_barrier")
    tr_dump(a, 30, 31)
    a.stamp(5)
    a("s_setprio %d" % OPT["prio3"])
    if OPT["nof"] == 1: a("s_branch L_f_ep")
    sMT2, sNT, sWB, sA0, sA1, sGW, sGA, sLB = 43, 44, 45, 46, 53, 54, 55, 56
    a("s_and_b32 s%d, s%d, 3" % (sT2, sJ))
    a("s_lshl2_add_u32 s%d, s%d, s%d" % (sMT2, sXCD, sT2))
    a("s_lshr_b32 s%d, s%d, 2" % (sNT, sJ))
    srd(a, SA, P_WD, 1792 * 1024)
    srd(a, SB, P_WO, 512 * 1024)
    a("v_lshrrev_b32 v8, 3, v2")
    a("v_lshlrev_b32 v7, 1, v8")
    a("v_and_b32 v7, 4, v7")
    a("v_and_b32 v9, 7, v2")
    a("v_xor_b32 v7, v7, v9")
    a("v_lshlrev_b32 v8, 10, v8")
    a("v_lshl_add_u32 v8, v7, 4, v8")
    for i in range(1, 4): a("v_add_u32 v%d, %d, v8" % (8 + i, i * 7168))
    a("s_lshl_b32 s%d, s%d, 7" % (sWB, sNT))
    a("s_mul_i32 s%d, s%d, %d" % (sLB, sF, F2REG))
    a("s_add_u32 s%d, s%d, %d" % (sLB, sLB, LDS_F))
    a("s_mul_i32 s%d, s%d, 3" % (sGW, sT2))
    a("s_add_u32 s%d, s%d, s%d" % (sGW, sGW, sNT))
    a("s_sub_u32 s%d, s%d, 14" % (sT2, sGW))
    a("s_cmp_ge_u32 s%d, 14" % sGW)
    a("s_cselect_b32 s%d, s%d, s%d" % (sGW, sT2, sGW))
    a("s_mov_b32 s%d, s%d" % (sGA, sGW))
    a("s_and_b32 s%d, s%d, 1" % (sT1, sF))
    a("s_lshl1_add_u32 s%d, s%d, s%d" % (sT1, sMT2, sT1))
    a("s_mul_i32 s%d, s%d, %d" % (sA0, sT1, A2_TT))
    a("s_xor_b32 s%d, s%d, 1" % (sT1, sT1))
    a("s_mul_i32 s%d, s%d, %d" % (sA1, sT1, A2_TT))
    a("s_add_u32 s%d, s%d, %d" % (sA0, sA0, A2_OFF))
    a("s_add_u32 s%d, s%d, %d" % (sA1, sA1, A2_OFF))
    sF14 = 57
    a("s_mul_i32 s%d, s%d, 14" % (sF14, sF))
    a.vm = []
    def adv(sg):
        a("s_add_u32 s%d, s%d, 1" % (sg, sg))
        a("s_cmp_eq_u32 s%d, 14" % sg)
        a("s_cselect_b32 s%d, 0, s%d" % (sg, sg))
    def w2(g):
        a("s_add_u32 m0, s%d, %d" % (sLB, (g % 5) * 4096))
        if g < 14:
            a("s_add_u32 s%d, s%d, s%d" % (sT0, sF14, sGW))
            a("s_lshl_b32 s%d, s%d, 15" % (sT0, sT0))
            adv(sGW); sr = SA
        else:
            a("s_lshl_b32 s%d, s%d, 17" % (sT0, sF))
            a("s_add_u32 s%d, s%d, %d" % (sT0, sT0, (g - 14) * 32768)); sr = SB
        a("s_add_u32 s%d, s%d, s%d" % (sT0, sT0, sWB))
        if OPT["thr2"]: a("s_waitcnt vmcnt(%d)" % OPT["thr2"])
        for i in range(4):
            a.vmem("buffer_load_dwordx4 v%d, %s, s%d offen offset:%d lds" % (8 + i, s(sr, 4), sT0, i * 1024), "W%d" % g)
    AB = 96
    def a2(g):
        if g < 14:
            a("s_add_u32 s%d, s%d, s%d" % (sT0, sF14, sGA))
            a("s_lshl_b32 s%d, s%d, 11" % (sT0, sT0))
            a("s_add_u32 s%d, s%d, 32768" % (sT0, sT0))
            adv(sGA)
        else:
            a("s_lshl_b32 s%d, s%d, 13" % (sT0, sF))
            a("s_add_u32 s%d, s%d, %d" % (sT0, sT0, (g - 14) * 2048))
        a("s_add_u32 s%d, s%d, s%d" % (sT1, sT0, sA1))
        a("s_add_u32 s%d, s%d, s%d" % (sT0, sT0, sA0))
        if OPT["thr2"] and g < 14: a("s_waitcnt vmcnt(%d)" % OPT["thr2"])
        for ks in range(2):
            for tb in range(2):
                a.vmem("buffer_load_dwordx4 %s, v3, %s, s%d offen offset:%d sc1" % (v(AB + (g % 4) * 16 + ks * 8 + tb * 4, 4), s(SWS, 4), sT0 + tb, ks * 1024), "A%d" % g)
    a("v_lshrrev_b32 v14, 5, v2")
    a("v_bfe_u32 v4, v2, 2, 2")
    a("v_and_b32 v5, 1, v2")
    a("v_lshlrev_b32 v5, 4, v5")
    a("v_and_b32 v6, 2, v2")
    a("v_lshl_add_u32 v5, v6, 2, v5")
    a("v_and_b32 v6, 16, v2")
    a("v_lshl_add_u32 v5, v6, 1, v5")
    a("s_and_b32 s%d, s%d, 2" % (sT2, sF))
    a("s_lshl_b32 s%d, s%d, 5" % (sT2, sT2))
    a("v_add_u32 v5, s%d, v5" % sT2)
    a("v_lshlrev_b32 v6, 5, v4")
    a("v_and_b32 v6, 64, v6")
    a("v_xor_b32 v5, v5, v6")
    a("v_lshl_add_u32 v4, v14, 2, v4")
    a("v_lshl_add_u32 v5, v4, 7, v5")
    a("v_xor_b32 v6, 64, v5")
    a("v_add_u32 v12, s%d, v5" % sLB)
    a("v_add_u32 v13, s%d, v6" % sLB)
    a("s_lshl2_add_u32 s%d, s%d, s%d" % (sT3, sMT2, sF))
    a("s_lshl_b32 s%d, s%d, %d" % (sT3, sT3, 1 + OPT["fs"]))
    a("s_add_u32 s%d, s%d, %d" % (sT3, sT3, FH_OFF))
    if OPT["w2at"] == 8:
        spin(a, VCN, 0, 0, sT0, "8", "L_f_nofw0")
        for g in range(4): w2(g)
    spin(a, VCN, 0, 0, sT0, "16", "L_f_nofw1")
    a("s_cmp_lg_u32 s%d, 0" % sF)
    a("s_cbranch_scc1 L_f_hf")
    a("s_mov_b64 exec, 1")
    a("buffer_store_dwordx2 %s, v3, %s, s%d offen %s" % (v(VTAG, 2), s(SWS, 4), sFH, sc()))
    a("s_mov_b64 exec, -1")
    a.label("L_f_hf")
    if OPT["w2at"] != 8:
        for g in range(4): w2(g)
    if OPT["f2gate"]: spin(a, VCN, 0, 0, sT0, "%d" % (8 + 8 * OPT["f2gate"]), "L_f_nofw2")
    a.stamp(11)
    poll(a, 165, sT3, 2, 16, "L_f_pollh")
    a.stamp(12)
    a.vm = []
    ACC2 = 32; WF = 16
    def rd2(g, ks, ci):
        for sec in range(2):
            a("ds_read_b64_tr_b16 %s, v%d offset:%d" % (v(WF + ks * 8 + ci * 4 + sec * 2, 2), 12 + ci, (g % 5) * 4096 + ks * 2048 + sec * 1024))
    def mm2(g, ks, ci):
        for ti in range(2):
            d = v(ACC2 + (ci * 2 + ti) * 16, 16)
            a("v_mfma_f32_32x32x16_bf16 %s, %s, %s, %s" % (d, v(WF + ks * 8 + ci * 4, 4), v(AB + (g % 4) * 16 + ks * 8 + ti * 4, 4), "0" if (g == 0 and ks == 0) else d))
    def comp(g, pre=None):
        if OPT["f2pace"] and g < 14:
            if pre: pre()
            for ks in range(2):
                for ci in range(2):
                    rd2(g, ks, ci)
                    a("s_waitcnt lgkmcnt(0)")
                    mm2(g, ks, ci)
            return
        for ks in range(2):
            for ci in range(2): rd2(g, ks, ci)
        if pre: pre()
        for ks in range(2):
            a("s_waitcnt lgkmcnt(%d)" % (4 if ks == 0 else 0))
            for ci in range(2): mm2(g, ks, ci)
    for g in range(3): a2(g)
    for g in range(14):
        if g + 3 < 14: a2(g + 3)
        w2(g + 4)
        a.wait_vm("A%d" % g)
        if a.vm_count_after("W%d" % g) is not None: a.wait_vm("W%d" % g)
        comp(g)
    srd(a, SA, P_X, 2 * MB)
    srd(a, SB, P_OUT, 2 * MB)
    sXS = 48
    a("s_and_b32 s%d, s%d, 1" % (sT1, sF))
    a("s_lshl1_add_u32 s%d, s%d, s%d" % (sT0, sMT2, sT1))
    a("s_lshl_b32 s%d, s%d, 15" % (sXS, sT0))
    a("s_add_u32 s%d, s%d, s%d" % (sXS, sXS, sWB))
    a("s_and_b32 s%d, s%d, 2" % (sT2, sF))
    a("s_lshl_b32 s%d, s%d, 5" % (sT2, sT2))
    a("s_add_u32 s%d, s%d, s%d" % (sXS, sXS, sT2))
    a("v_and_b32 v4, 31, v2")
    a("v_lshlrev_b32 v4, 10, v4")
    a("v_lshl_add_u32 v4, v14, 4, v4")
    a("buffer_load_dwordx4 v[8:11], v4, %s, s%d offen" % (s(SA, 4), sXS))
    a("buffer_load_dwordx4 v[160:163], v4, %s, s%d offen offset:32" % (s(SA, 4), sXS))
    a("s_lshl2_add_u32 s%d, s%d, s%d" % (sT3, sXCD, sF))
    a("s_lshl_b32 s%d, s%d, %d" % (sT3, sT3, 3 + OPT["fs"]))
    a("s_add_u32 s%d, s%d, %d" % (sT3, sT3, FO_OFF))
    a("s_waitcnt vmcnt(0)")
    for i in range(4):
        a("v_lshlrev_b32 v%d, 16, v%d" % (96 + 2 * i, 8 + i))
        a("v_and_b32 v%d, 0xffff0000, v%d" % (97 + 2 * i, 8 + i))
        a("v_lshlrev_b32 v%d, 16, v%d" % (104 + 2 * i, 160 + i))
        a("v_and_b32 v%d, 0xffff0000, v%d" % (105 + 2 * i, 160 + i))
    for i in range(16): a("v_add_f32 v%d, v%d, v%d" % (ACC2 + i, ACC2 + i, 96 + i))
    a("v_add_u32 v5, s%d, v3" % sLB)
    for sl in range(1, 4):
        a("s_xor_b32 s%d, s%d, %d" % (sT0, sF, sl))
        a("s_mul_i32 s%d, s%d, %d" % (sT0, sT0, F2REG))
        a("s_add_u32 s%d, s%d, %d" % (sT0, sT0, LDS_F + (sl - 1) * 4096))
        a("v_add_u32 v%d, s%d, v3" % (7 + sl, sT0))
    a("s_setprio 0")
    a.stamp(13)
    if OPT["nof"] == 4: a("s_branch L_f_ep")
    if not OPT["prog"]:
        poll(a, 165, sT3, 8, 16, "L_f_pollo")
        a.stamp(14)
        a("s_setprio 3")
        a.vm = []
        for g in range(14, 18): a2(g)
        for g in range(14, 18):
            comp(g, lambda: a.wait_vm("A%d" % g))
    else:
        sPEND, sRDY = 49, 50
        a("s_mov_b32 s%d, 0x55" % sPEND)
        a("s_mov_b32 s%d, 0" % sRDY)
        a("s_mov_b32 s%d, 0x20000" % sSPIN)
        a.label("L_o_round")
        for g in range(14, 18):
            a("s_bitcmp1_b32 s%d, %d" % (sRDY, 2 * (g - 14)))
            a("s_cbranch_scc0 L_o_nl%d" % g)
            a2(g)
            a.label("L_o_nl%d" % g)
        a("s_cmp_eq_u32 s%d, 0" % sPEND)
        a("s_cbranch_scc1 L_o_np")
        a("s_mov_b64 exec, 0xff")
        a("buffer_load_dwordx2 v[6:7], v165, %s, s%d offen sc1" % (s(SWS, 4), sT3))
        a("s_mov_b64 exec, -1")
        a.label("L_o_np")
        for g in range(14, 18):
            a("s_bitcmp1_b32 s%d, %d" % (sRDY, 2 * (g - 14)))
            a("s_cbranch_scc0 L_o_nc%d" % g)
            comp(g, lambda: a("s_waitcnt vmcnt(0)"))
            a.label("L_o_nc%d" % g)
        a("s_cmp_eq_u32 s%d, 0" % sPEND)
        a("s_cbranch_scc1 L_o_done")
        a("s_waitcnt vmcnt(0)")
        a("v_cmp_eq_u64 vcc, %s, v[6:7]" % s(sTAG, 2))
        a("s_sub_u32 s%d, s%d, 1" % (sSPIN, sSPIN))
        a("s_cselect_b32 s%d, 0xff, 0" % sT1)
        a("s_or_b32 s%d, vcc_lo, s%d" % (sT0, sT1))
        a("s_lshr_b32 s%d, s%d, 1" % (sT1, sT0))
        a("s_and_b32 s%d, s%d, s%d" % (sT0, sT0, sT1))
        a("s_and_b32 s%d, s%d, s%d" % (sRDY, sT0, sPEND))
        a("s_cbranch_scc1 L_o_some")
        a("s_sleep %d" % OPT["psleep"])
        a.label("L_o_some")
        a("s_andn2_b32 s%d, s%d, s%d" % (sPEND, sPEND, sRDY))
        a("s_branch L_o_round")
        a.label("L_o_done")
        a.stamp(14)
    a.nop(10)
    for sl in range(1, 4):
        for q in range(4):
            a("ds_write_b128 v5, %s offset:%d" % (v(ACC2 + sl * 16 + 4 * q, 4), (sl - 1) * 4096 + q * 1024))
    a("s_waitcnt lgkmcnt(0)")
    arrive(a, VCN, VONE, 40)
    spin(a, VCN, 0, 40, sT0, "4", "L_f_spin3")
    for sl in range(1, 4):
        for q in range(4):
            a("ds_read_b128 %s, v%d offset:%d" % (v(ACC2 + sl * 16 + 4 * q, 4), 7 + sl, q * 1024))
    for sl in range(1, 4):
        a("s_waitcnt lgkmcnt(%d)" % (12 - 4 * sl))
        for i in range(0, 16, 2): a("v_pk_add_f32 %s, %s, %s" % (v(ACC2 + i, 2), v(ACC2 + i, 2), v(ACC2 + 16 * sl + i, 2)))
    for i in range(8): a("v_cvt_pk_bf16_f32 v%d, v%d, v%d" % (96 + i, ACC2 + 2 * i, ACC2 + 2 * i + 1))
    osc = ["", "sc1", "nt"][OPT["osc"]]
    a("buffer_store_dwordx4 v[96:99], v4, %s, s%d offen %s" % (s(SB, 4), sXS, osc))
    a("buffer_store_dwordx4 v[100:103], v4, %s, s%d offen offset:32 %s" % (s(SB, 4), sXS, osc))
    a.label("L_f_ep")
    if OPT["nof"]:
        spin(a, VCN, 0, 32, sT0, "8", "L_f_nofw")
    a("s_add_u32 s%d, s2, s%d" % (sT0, sF))
    a("s_cmp_lg_u32 s%d, 0" % sT0)
    a("s_cbranch_scc1 L_f_noep")
    a("s_mov_b32 s%d, %d" % (sT0, EPOCH_OFF))
    a("s_mov_b64 exec, 1")
    a("buffer_store_dword v%d, v3, %s, s%d offen" % (VTAG, s(SWS, 4), sT0))
    a("s_mov_b64 exec, -1")
    a.label("L_f_noep")
    a.stamp_flush(0, SWS, sW, 12)
    a("s_endpgm")

def gen_kernel(name):
    a = Asm()
    a.label("L_start")
    a("s_cmp_ge_u32 s2, 256")
    a("s_cbranch_scc1 L_end")
    a.stamp(0)
    if OPT["p1diag"]: a("s_mov_b32 s100, 0")
    a("s_load_dwordx16 s[4:19], s[0:1], 0")
    a("s_load_dwordx4 s[20:23], s[0:1], 64")
    a("s_getpc_b64 s[30:31]")
    a.label("L_pc")
    a("s_lshr_b32 s%d, s2, 3" % sJ)
    a("v_lshrrev_b32 v1, 6, v0")
    a("s_mul_i32 s%d, s%d, 12" % (sT0, sJ))
    a("v_add_lshl_u32 v165, v1, s%d, 7" % sT0)
    a("v_min_u32 v165, (L_end - L_pc), v165")
    a("s_mov_b64 exec, 1")
    a("global_load_dword v165, v165, s[30:31]")
    a("s_mov_b64 exec, -1")
    a("v_and_b32 v2, 63, v0")
    a("v_readfirstlane_b32 s%d, v1" % sW)
    a("v_lshlrev_b32 v3, 4, v2")
    a("s_and_b32 s%d, s2, 7" % sXCD)
    lg = {0: 3, 1: 4, 2: 5}[OPT["map"]]
    a("s_lshr_b32 s%d, s%d, %d" % (sMT, sXCD, lg - 2))
    a("s_lshl_b32 s%d, s%d, %d" % (sMT, sMT, lg))
    a("s_and_b32 s%d, s%d, %d" % (sT0, sJ, (1 << lg) - 1))
    a("s_add_u32 s%d, s%d, s%d" % (sMT, sMT, sT0))
    a("s_and_b32 s%d, s%d, %d" % (sNG, sXCD, (1 << (lg - 2)) - 1))
    a("s_lshl_b32 s%d, s%d, %d" % (sNG, sNG, 5 - lg))
    a("s_lshr_b32 s%d, s%d, %d" % (sT0, sJ, lg))
    a("s_add_u32 s%d, s%d, s%d" % (sNG, sNG, sT0))
    if lg == 3: a("s_lshl_b32 s56, s%d, 1" % sJ)
    else: a("s_mov_b32 s56, s%d" % sJ)
    a("s_and_b32 s56, s56, %d" % OPT["grot"])
    a("s_and_b32 s%d, s%d, 1" % (sT0, sT0))
    a("s_lshl3_add_u32 s%d, s%d, s%d" % (sT0, sT0, sW))
    a("s_lshl4_add_u32 s%d, s%d, s%d" % (sT0, sMT, sT0))
    a("s_lshl_b32 s%d, s%d, 12" % (sT0, sT0))
    a("s_xor_b32 s%d, s%d, 32768" % (sT1, sT0))
    a("v_lshrrev_b32 v164, 4, v2")
    a("v_mul_u32_u24 v164, 768, v164")
    a("v_add_u32 v164, v164, v3")
    a("s_cmp_lt_u32 s%d, 8" % sW)
    a("s_waitcnt lgkmcnt(0)")
    srd(a, SB, P_X, 2 * MB)
    a("s_cbranch_scc0 L_norow")
    for p in range(4):
        a("buffer_load_dwordx4 %s, v164, %s, s%d offen offset:%d" % (v(132 + 4 * p, 4), s(SB, 4), sT0, p * 256))
    a.label("L_norow")
    a.stamp(8)
    a("s_add_u32 s62, s%d, %d" % (P_WS, EPOCH_OFF))
    a("s_addc_u32 s63, s%d, 0" % (P_WS + 1))
    a("s_load_dword s%d, s[62:63], 0" % sTAG)
    srd(a, SWS, P_WS, WS_BYTES)
    a("s_mov_b32 s%d, 0x3f803f80" % sONE)
    a("s_cmp_lt_u32 s%d, 8" % sW)
    a("s_cbranch_scc1 L_role_a")
    role_f(a)
    if OPT["ldf"]:
        fl = ["", "sc1", "nt", "sc0"][OPT["ldf"]]
        a.lines = [l[:-4] + " %s lds" % fl if (l.endswith(" lds") and "sc1" not in l) else l for l in a.lines]
    a.label("L_role_a")
    a.vm = []
    role_a(a)
    if OPT["abl"]:
        i0 = a.lines.index("L_p1_qk:"); i1 = a.lines.index("L_p1_done:")
        def keep(l):
            if OPT["abl"] & 1 and l.startswith("v_mfma"): return False
            if OPT["abl"] & 4 and l.startswith("ds_read"): return False
            return True
        a.lines[i0:i1] = [l for l in a.lines[i0:i1] if keep(l)]
        if OPT["abl"] & 2:
            i0 = a.lines.index("L_g_issue:"); i1 = a.lines.index("L_g_nf:")
            a.lines[i0:i1] = [l for l in a.lines[i0:i1] if not l.startswith("buffer_load")]
    a.label("L_end")
    a("s_endpgm")
    return dict(name=name, asm=a, vgpr=168, grid=(256, 1, 1), block=(768, 1, 1), lds=LDS_TOTAL)
```

```python
from common import *
from layout import *
from kgu import f2u, C1, C2

FL_OFF = 32 * MB
EPOCH_OFF = FL_OFF
FX_OFF = FL_OFF + 0x10000
FQ_OFF = FL_OFF + 0x20000
FH_OFF = FL_OFF + 0x30000
FO_OFF = FL_OFF + 0x40000
TAGX = 0x5bd1e995

LDS_F = 65536
FSLOT = 28800; UPOFF = 14368; FNS = 3
F2REG = 20480
LDS_CNT = LDS_F + FNS * FSLOT
LDS_ST = LDS_CNT + 128
LDS_TOTAL = 163840

P_X, P_WQKV, P_WO, P_WG, P_WU, P_WD, P_OUT, P_WS = 4, 6, 8, 12, 14, 16, 18, 22
SWS, SA, SB = 24, 28, 32
sW = 36
sT0, sT1, sT2, sT3 = 37, 38, 39, 40
sXCD, sJ = 41, 42
sMT, sNG = 43, 44
sTAG = 60
sSPIN = 62
sONE = 3
VTAG = 166
SC = "sc0 sc1"
OPT = dict(probe=0, ldf=0, hp=4, prog=0, gtail=2, gper3=4, abl=0, map=0, osc=0, grot=15, yprio=0, sched=0, w2at=16, f2gate=0, spf=0, ft=1, touch=0, gper=2, p1diag=0, fs=7, psleep=2, sc=0, vprio=1, prio3=0, f2pace=1, nof=0, pk=1, thr2=2, qflag=6)

_stamp = Asm.stamp
def stamp_gate(self, i, force=False):
    if OPT["p1diag"] and not force and i not in (0, 15): return
    _stamp(self, i)
Asm.stamp = stamp_gate
def bar(a, i):
    if OPT["p1diag"] and i < 7: a.stamp(1 + 2 * i, True)
    a("s_barrier")
    if OPT["p1diag"] and i < 7: a.stamp(2 + 2 * i, True)

def tr(a, vr):
    if not OPT["p1diag"]: return
    a("s_memtime s[98:99]")
    a("s_waitcnt lgkmcnt(0)")
    a("s_sub_u32 s98, s98, s96")
    a("s_mov_b32 m0, s100")
    a("s_add_u32 s100, s100, 1")
    a("v_writelane_b32 v%d, s98, m0" % vr)
def tr_dump(a, vr, vtmp):
    if not OPT["p1diag"]: return
    a("s_mul_i32 s100, s2, 12")
    a("s_add_u32 s100, s100, s%d" % sW)
    a("s_lshl_b32 s100, s100, 8")
    a("s_add_u32 s100, s100, %d" % (66 << 20))
    a("v_lshlrev_b32 v%d, 2, v2" % vtmp)
    a("buffer_store_dword v%d, v%d, %s, s100 offen" % (vr, vtmp, s(SWS, 4)))

def cap0(a, fn, *args):
    n = len(a.lines); fn(*args); out = a.lines[n:]; del a.lines[n:]; return out

def arrive(a, vaddr, vone, off):
    a("s_mov_b64 exec, 1")
    a("ds_add_u32 v%d, v%d offset:%d" % (vaddr, vone, off))
    a("s_mov_b64 exec, -1")

def spin(a, vaddr, vp, off, stmp, target, name):
    a("s_mov_b32 s%d, 0x200000" % sSPIN)
    a.label(name)
    a("ds_read_b32 v%d, v%d offset:%d" % (vp, vaddr, off))
    a("s_waitcnt lgkmcnt(0)")
    a("v_readfirstlane_b32 s%d, v%d" % (stmp, vp))
    a("s_nop 0")
    a("s_cmp_ge_u32 s%d, %s" % (stmp, target))
    a("s_cbranch_scc1 %s_ok" % name)
    a("s_sleep %d" % (8 if name.startswith("L_f_nofw") else 1))
    a("s_sub_u32 s%d, s%d, 1" % (sSPIN, sSPIN))
    a("s_cbranch_scc0 %s" % name)
    a.label(name + "_ok")

def sc(): return "sc1" if OPT["sc"] else "sc0 sc1"

def set_flag(a, soff, vz, lanes=1):
    a("s_waitcnt vmcnt(0)")
    a("s_mov_b64 exec, %d" % ((1 << lanes) - 1))
    a("buffer_store_dwordx2 %s, v%d, %s, s%d offen %s" % (v(VTAG, 2), vz, s(SWS, 4), soff, sc()))
    a("s_mov_b64 exec, -1")

def last_flag(a, vcn, vone, vp, off, n, soff, skip):
    a("s_waitcnt vmcnt(0)")
    a("s_mov_b64 exec, 1")
    a("ds_add_rtn_u32 v%d, v%d, v%d offset:%d" % (vp, vcn, vone, off))
    a("s_waitcnt lgkmcnt(0)")
    a("v_readfirstlane_b32 s%d, v%d" % (sT0, vp))
    a("s_mov_b64 exec, -1")
    a("s_cmp_lg_u32 s%d, %d" % (sT0, n - 1))
    a("s_cbranch_scc1 %s" % skip)
    a("s_mov_b64 exec, 1")
    a("buffer_store_dwordx2 %s, v3, %s, s%d offen %s" % (v(VTAG, 2), s(SWS, 4), soff, sc()))
    a("s_mov_b64 exec, -1")

def poll(a, voff, soff, nl, vp, name):
    a("s_mov_b32 s%d, 0x20000" % sSPIN)
    assert nl <= 32
    a("s_mov_b32 exec_lo, 0x%x" % ((1 << nl) - 1))
    a("s_mov_b32 exec_hi, 0")
    a.label(name)
    a("buffer_load_dwordx2 %s, v%d, %s, s%d offen sc1" % (v(vp, 2), voff, s(SWS, 4), soff))
    a("s_waitcnt vmcnt(0)")
    a("v_cmp_ne_u64 vcc, %s, %s" % (s(sTAG, 2), v(vp, 2)))
    a("s_sub_u32 s%d, s%d, 1" % (sSPIN, sSPIN))
    a("s_cbranch_scc1 %s_ok" % name)
    a("s_cbranch_vccz %s_ok" % name)
    a("s_sleep %d" % OPT["psleep"])
    a("s_branch %s" % name)
    a.label(name + "_ok")
    a("s_mov_b64 exec, -1")

def tagsetup(a):
    a("s_waitcnt lgkmcnt(0)")
    a("s_add_u32 s%d, s%d, 1" % (sTAG, sTAG))
    a("s_xor_b32 s%d, s%d, 0x%x" % (sTAG + 1, sTAG, TAGX))
    a("v_mov_b32 v%d, s%d" % (VTAG, sTAG))
    a("v_mov_b32 v%d, s%d" % (VTAG + 1, sTAG + 1))

def bf16r(a, r):
    a("v_cvt_pk_bf16_f32 v%d, v%d, v%d" % (r, r, r))
    a("v_and_b32 v%d, 0xffff0000, v%d" % (r, r))

def ln_final(a, sm, sq, tmp):
    a("v_mul_f32 v%d, 0x3b000000, v%d" % (sm, sm))
    a("v_mul_f32 v%d, 0x3b000000, v%d" % (sq, sq))
    a("v_fma_f32 v%d, -v%d, v%d, v%d" % (sq, sm, sm, sq))
    a("v_max_f32 v%d, 0, v%d" % (sq, sq))
    bf16r(a, sq)
    bf16r(a, sm)
    a("v_add_f32 v%d, 0x3727c5ac, v%d" % (sq, sq))
    bf16r(a, sq)
    a("v_sqrt_f32 v%d, v%d" % (sq, sq))
    a.nop(1)
    bf16r(a, sq)
    a("v_rcp_f32 v%d, v%d" % (sq, sq))
    a.nop(1)

def xsum(a, r, t, kind):
    a("v_mov_b32 v%d, v%d" % (t, r))
    a.nop(2)
    a("v_permlane%d_swap_b32 v%d, v%d" % (kind, r, t))
    a("v_add_f32 v%d, v%d, v%d" % (r, r, t))

XB, XA, WB, WA = 12, 13, 17, 18
FR = 116; ACC1 = 48
def role_a(a):
    sD0, sD1, sSCL = 45, 46, 48
    sHEAD, sQT, sKV, sCH, sSL, sKVB, sQ0, sKH = 49, 50, 51, 52, 53, 54, 55, 57
    sVM = 58
    sCNT, sTGT = 45, 46
    sSO, sI, sKC = 28, 29, 31
    sH = 12
    KA, VA, VCN, VONE, VP, VLO = 8, 9, 44, 45, 46, 47
    Q = [4, 112]; KF = [12, 16]; VF = [20, 28]; P = 36; S = [48, 64]; O = [80, 96]
    VST, WB2 = 19, 10
    XS = 132
    a("s_setprio 3")
    a("s_mov_b32 s10, s%d" % sT0)
    a("s_mov_b32 s11, s%d" % sT1)
    a("v_lshrrev_b32 v4, 4, v2")
    a("v_and_b32 v5, 15, v2")
    a("v_xor_b32 v5, v5, v4")
    a("v_lshlrev_b32 v4, 10, v4")
    a("v_lshl_add_u32 v116, v5, 4, v4")
    a("s_and_b32 s%d, s%d, 3" % (sT1, sW))
    a("s_lshl_b32 s%d, s%d, 6" % (sT1, sT1))
    a("s_and_b32 s%d, s%d, 0xffff" % (sT0, sT0))
    a("v_xor_b32 v116, s%d, v116" % sT1)
    a("v_add_u32 v116, s%d, v116" % sT0)
    a("v_xor_b32 v117, 0x8000, v116")
    a("v_and_b32 v4, 31, v2")
    a("v_lshrrev_b32 v5, 5, v2")
    a("v_and_b32 v6, 15, v2")
    a("v_xor_b32 v6, v6, v5")
    a("v_lshlrev_b32 v6, 4, v6")
    a("v_lshl_add_u32 v%d, v4, 10, v6" % XB)
    a("s_lshr_b32 s%d, s%d, 1" % (sT0, sW))
    a("s_min_u32 s%d, s%d, 2" % (sT1, sT0))
    a("s_sub_u32 s%d, s%d, s%d" % (sT2, sT0, sT1))
    a("s_lshl_b32 s%d, s%d, 15" % (sT3, sT2))
    a("v_add_u32 v%d, s%d, v%d" % (XB, sT3, XB))
    a("v_bfe_u32 v6, v2, 2, 2")
    a("v_and_b32 v7, 3, v2")
    a("v_lshlrev_b32 v7, 3, v7")
    a("v_lshl_add_u32 v14, v5, 3, v6")
    a("v_mul_u32_u24 v14, 448, v14")
    a("v_bfe_u32 v15, v2, 4, 1")
    a("v_mul_u32_u24 v15, %d, v15" % UPOFF)
    a("v_add3_u32 v%d, v14, v15, v7" % WB2)
    a("v_and_b32 v13, 16, v2")
    a("v_lshl_add_u32 v7, v13, 1, v7")
    a("s_and_b32 s%d, s%d, 1" % (sT0, sW))
    a("s_lshl_b32 s%d, s%d, 6" % (sT3, sT0))
    a("v_add_u32 v7, s%d, v7" % sT3)
    a("v_lshlrev_b32 v14, 5, v6")
    a("v_and_b32 v14, 64, v14")
    a("v_xor_b32 v7, v7, v14")
    a("v_lshl_add_u32 v7, v6, 7, v7")
    a("v_mul_u32_u24 v14, 3072, v5")
    a("s_lshl_b32 s%d, s%d, 10" % (sT3, sT1))
    a("v_add3_u32 v%d, v7, v14, s%d" % (WB, sT3))
    a("v_and_b32 v6, 15, v2")
    a("v_lshlrev_b32 v6, 4, v6")
    a("v_lshl_add_u32 v%d, v5, 8, v6" % VLO)
    a("s_mul_i32 s%d, s%d, 3" % (sT3, sT0))
    a("s_add_u32 s%d, s%d, 8" % (sT3, sT3))
    a("s_lshl_b32 s%d, s%d, 1" % (sKH, sW))
    a("s_cmp_lt_u32 s%d, 4" % sW)
    a("s_cselect_b32 s%d, s%d, s%d" % (sT3, sKH, sT3))
    a("s_cselect_b32 s%d, %d, 0" % (sH + 1, A2_TT - 1024))
    a("s_cselect_b32 s%d, 0, 1024" % (sH + 2))
    a("s_add_u32 s%d, s%d, 1024" % (sH + 1, sH + 1))
    a("s_add_u32 s%d, s%d, 1024" % (sH + 2, sH + 2))
    a("s_lshl_b32 s%d, s%d, 5" % (sKH, sT3))
    a("v_add_u32 v%d, s%d, v%d" % (WB2, sKH, WB2))
    a("s_lshl1_add_u32 s%d, s%d, s%d" % (sT0, sNG, sT0))
    a("s_lshl1_add_u32 s%d, s%d, s%d" % (sT2, sMT, sT2))
    a("s_mul_i32 s%d, s%d, 14" % (sKH, sNG))
    a("s_add_u32 s%d, s%d, s%d" % (sKH, sKH, sT3))
    a("s_lshl_b32 s%d, s%d, 10" % (sKH, sKH))
    a("s_mul_i32 s%d, s%d, %d" % (sH, sT2, A2_TT))
    a("s_add_u32 s%d, s%d, s%d" % (sH, sH, sKH))
    a("s_add_u32 s%d, s%d, %d" % (sH, sH, A2_OFF + 32 * 1024))
    a("s_add_u32 s%d, s%d, s%d" % (sH + 1, sH + 1, sH))
    a("s_add_u32 s%d, s%d, s%d" % (sH + 2, sH + 2, sH))
    a("s_add_u32 s%d, s%d, 1024" % (sH + 3, sH + 1))
    a("s_lshl_b32 s%d, s%d, 17" % (sD0, sT0))
    a("s_lshl_b32 s%d, s%d, 10" % (sT3, sT2))
    a("s_add_u32 s%d, s%d, s%d" % (sD0, sD0, sT3))
    a("s_add_u32 s%d, s%d, %d" % (sD0, sD0, QF_OFF))
    a("s_min_u32 s%d, s%d, 1" % (sT3, sT1))
    a("s_lshl_b32 s%d, s%d, s%d" % (sD0, sD0, sT3))
    a("s_lshl_b32 s%d, 65536, s%d" % (sD1, sT3))
    a("s_add_u32 s%d, s%d, s%d" % (sD1, sD1, sD0))
    a("s_lshl_b32 s%d, 1024, s%d" % (sKH, sT3))
    a("v_add_u32 v%d, s%d, v3" % (VST, sKH))
    a("v_lshl_add_u32 v115, v13, 13, v%d" % VLO)
    a("s_cmp_eq_u32 s%d, 0" % sT1)
    a("s_cselect_b32 s%d, 0x%x, 1.0" % (sSCL, QSCALE))
    def late_setup():
        a("s_lshr_b32 s%d, s%d, 3" % (sT2, sJ))
        a("s_lshl2_add_u32 s%d, s%d, s%d" % (sHEAD, sXCD, sT2))
        a("s_and_b32 s%d, s%d, 7" % (sCH, sJ))
        a("s_and_b32 s%d, s%d, 3" % (sT0, sW))
        a("s_lshl_b32 s%d, s%d, 1" % (sT0, sT0))
        a("s_lshl3_add_u32 s%d, s%d, s%d" % (sQT, sCH, sT0))
        a("s_lshr_b32 s%d, s%d, 2" % (sKH, sW))
        a("s_add_u32 s%d, s%d, s%d" % (sQT, sQT, sKH))
        a("s_lshl_b32 s%d, s%d, 11" % (sSL, sW))
        a("s_lshl_b32 s%d, s%d, 17" % (sKVB, sHEAD))
        a("s_add_u32 s%d, s%d, %d" % (sKVB, sKVB, KV_OFF))
        a("s_add_u32 s%d, s%d, s%d" % (sKV, sKVB, sSL))
        a("s_lshl_b32 s%d, s%d, 16" % (sQ0, sHEAD))
        a("s_lshl_b32 s%d, s%d, 10" % (sT2, sQT))
        a("s_add_u32 s%d, s%d, s%d" % (sQ0, sQ0, sT2))
        a("s_add_u32 s%d, s%d, %d" % (sQ0, sQ0, QF_OFF))
        a("v_mov_b32 v6, 0")
        a("s_mov_b32 exec_lo, 0x00110000")
        a("s_mov_b32 exec_hi, 0x00110000")
        a("v_mov_b32 v6, s%d" % sONE)
        a("s_mov_b64 exec, -1")
        a("v_mov_b32 v11, v6")
        a("s_mov_b32 s%d, 0" % sCH)
        a("s_mov_b32 s%d, 0x0000ffff" % sVM)
        a("s_mov_b32 s%d, 0x0000ffff" % (sVM + 1))
        a("s_lshl_b32 s%d, s%d, 13" % (sKH, sKH))
        a("v_add_u32 v%d, s%d, v3" % (KA, sKH))
        a("v_add_u32 v%d, s%d, v%d" % (VA, sKH, VLO))
        a("v_mov_b32 v%d, 1" % VONE)
        for i in range(40, 44, 2): a("v_mov_b64 %s, 0" % v(i, 2))
        a("v_mov_b32 v36, 0x%x" % f2u(C1))
        a("v_mov_b32 v38, 0x%x" % f2u(C2))
    a("v_mov_b32 v%d, %d" % (VCN, LDS_CNT))
    for i in range(48, 112, 2): a("v_mov_b64 %s, 0" % v(i, 2))
    a("v_mov_b32 v4, s%d" % sSCL)
    a("ds_write_b128 v%d, v[48:51]" % VCN)
    a("ds_write_b128 v%d, v[48:51] offset:16" % VCN)
    a("ds_write_b128 v%d, v[48:51] offset:32" % VCN)
    a("s_mov_b32 s%d, %d" % (sSO, LDS_F))
    a("s_mov_b32 s%d, 8" % sI)
    a("s_and_b32 s%d, s%d, 7" % (sKC, sJ))
    a("s_lshl_b32 s%d, s%d, 7" % (sKC, sKC))
    def addrs(nk=4, wb=WB):
        a("v_xor_b32 v%d, s%d, v%d" % (XA, sKC, XB))
        a("v_add_u32 v%d, s%d, v%d" % (WA, sSO, wb))
        for k in range(1, nk): a("v_xor_b32 v%d, %d, v%d" % (XA + k, k << 5, XA))
        a("s_add_u32 s%d, s%d, %d" % (sKC, sKC, 32 * nk))
        a("s_and_b32 s%d, s%d, 0x3ff" % (sKC, sKC))
        a("s_add_u32 s%d, s%d, %d" % (sSO, sSO, FSLOT))
        a("s_cmp_eq_u32 s%d, %d" % (sSO, LDS_F + 3 * FSLOT))
        a("s_cselect_b32 s%d, %d, s%d" % (sSO, LDS_F, sSO))
    addrs()
    for p in range(4):
        a("buffer_load_dwordx4 %s, v164, %s, s11 offen offset:%d" % (v(148 + 4 * p, 4), s(SB, 4), p * 256))
    late_setup()
    tagsetup(a)
    a.stamp(1)
    def unpack(n):
        for q in range(4):
            r = XS + 4 * n + q; t = 20 + 8 * (n % 2) + 2 * q
            a("v_lshlrev_b32 v%d, 16, v%d" % (t, r))
            a("v_and_b32 v%d, 0xffff0000, v%d" % (t + 1, r))
    for g in range(2):
        a("s_waitcnt vmcnt(%d)" % (4 - 4 * g))
        if g == 1: a.stamp(14)
        for i in range(16):
            r = XS + 16 * g + i; d = 120 + 2 * (i & 3)
            a("v_dot2_f32_bf16 v%d, v%d, s%d, %s" % (d, r, sONE, "0" if i < 4 else "v%d" % d))
            a("v_dot2_f32_bf16 v%d, v%d, v%d, %s" % (d + 1, r, r, "0" if i < 4 else "v%d" % (d + 1)))
        fill = cap0(a, unpack, 4 * g) + cap0(a, unpack, 4 * g + 1)
        a("v_pk_add_f32 v[120:121], v[120:121], v[122:123]")
        a(fill.pop(0)); a(fill.pop(0))
        a("v_pk_add_f32 v[124:125], v[124:125], v[126:127]")
        a(fill.pop(0))
        a("v_pk_add_f32 v[118:119], v[120:121], v[124:125]")
        a(fill.pop(0)); a(fill.pop(0))
        for sh in (8, 4, 2, 1):
            for k in (118, 119):
                a("v_add_f32_dpp v%d, v%d, v%d row_ror:%d row_mask:0xf bank_mask:0xf" % (k, k, k, sh))
            a(fill.pop(0))
        for x in cap0(a, ln_final, a, 118, 119, 0):
            if x.startswith("s_nop") and fill: a(fill.pop(0))
            else: a(x)
            if x.startswith("v_cvt") and len(fill) > 2: a(fill.pop(0))
        a("v_mul_f32_e64 v118, -v118, v119")
        for l in fill: a(l)
        for n in range(4 * g, 4 * g + 4):
            p = n % 4; T = 20 + 8 * (n % 2)
            for q in range(4):
                a("v_pk_fma_f32 %s, %s, v[118:119], v[118:119] op_sel:[0,1,0] op_sel_hi:[1,1,0]" % (v(T + 2 * q, 2), v(T + 2 * q, 2)))
            for q in range(4):
                a("v_cvt_pk_bf16_f32 v%d, v%d, v%d" % (XS + 4 * n + q, T + 2 * q, T + 2 * q + 1))
            a("ds_write_b128 v%d, %s offset:%d" % (116 + g, v(XS + 4 * n, 4), p * 256))
            if p + 2 < 4: unpack(n + 2)
    a("s_waitcnt lgkmcnt(0)")
    a.stamp(2)
    a("s_barrier")
    a("s_setprio 0")
    a.stamp(3)
    a("s_cmp_ge_u32 s%d, 4" % sW)
    a("s_cbranch_scc1 L_p1_v0")
    def wread(k, dst):
        for sec in range(2):
            a("ds_read_b64_tr_b16 %s, v%d offset:%d" % (v(dst + 2 * sec, 2), WA, k * 6144 + sec * 512))
    def xread(k, dst, tb): a("ds_read_b128 %s, v%d offset:%d" % (v(dst, 4), XA + k, tb * 32768))
    def gread(k, dst, t):
        for sec in range(2):
            a("ds_read_b64_tr_b16 %s, v%d offset:%d" % (v(dst + 2 * sec, 2), WA, k * 7168 + sec * 1792 + t * 32))
    def cap(fn, *args):
        n = len(a.lines); fn(*args); out = a.lines[n:]; del a.lines[n:]; return out
    def weave(mm, rd, per):
        for l in mm:
            a(l)
            if l.startswith("v_mfma"):
                for _ in range(per):
                    if rd: a(rd.pop(0))
        for l in rd: a(l)
    def gemm(lab, rdf, mmf, n, per, touch=False):
        for k in range(3): rdf(k)
        a("s_branch %s_m" % lab)
        a.label(lab)
        rd = cap(rdf, 0) + cap(rdf, 1)
        m2 = cap(mmf, 2)
        for l in m2:
            a(l)
            for _ in range(per):
                if rd: a(rd.pop(0))
        weave(cap(mmf, 3), rd + cap(rdf, 2), per)
        a.label(lab + "_m")
        a("s_waitcnt lgkmcnt(%d)" % (2 * n))
        weave(cap(mmf, 0), cap(rdf, 3), per)
        a("s_waitcnt lgkmcnt(%d)" % (2 * n))
        mm1 = cap(mmf, 1)
        a(mm1[0]); addrs()
        for l in mm1[1:]: a(l)
        a("s_sub_u32 s%d, s%d, 1" % (sI, sI))
        a("s_waitcnt lgkmcnt(0)")
        a("s_barrier")
        a("s_cmp_lg_u32 s%d, 0" % sI)
        a("s_cbranch_scc1 %s" % lab)
        a.stamp(4)
        mmf(2); mmf(3)
        a("s_mov_b32 s%d, %d" % (sSO, LDS_F + 2 * FSLOT))
        a("s_lshl_b32 s%d, s56, 6" % sKC)
        a("s_mov_b32 s%d, 16" % sI)
        addrs(2, WB2)
    GB = [[132, 148], [116, 20]]
    def gu(lab, rdf, mmf, n):
        a.stamp(5)
        def pre():
            addrs(2, WB2)
            a("s_sub_u32 s%d, s%d, 1" % (sI, sI))
        def tail(last=False):
            if last:
                a("s_cmp_lg_u32 s%d, %d" % (sI, 18 - OPT["qflag"]))
                a("s_cbranch_scc1 %s_b" % lab)
                a("s_waitcnt vmcnt(0)")
                a.label(lab + "_b")
            a("s_waitcnt lgkmcnt(0)")
            a("s_barrier")
        def half(p):
            mm = cap(mmf, 1 - p, 0) + cap(mmf, 1 - p, 1)
            k = OPT["gtail"]
            weave(mm[:len(mm) - k], cap(rdf, p, 0) + cap(rdf, p, 1), OPT["gper"] if n == 6 else OPT["gper3"])
            pre()
            for l in mm[len(mm) - k:]: a(l)
        pre()
        a("s_branch %s_m" % lab)
        a.label(lab)
        half(0)
        a.label(lab + "_m")
        tail()
        half(1)
        tail(True)
        a("s_cmp_lg_u32 s%d, 0" % sI)
        a("s_cbranch_scc1 %s" % lab)
        a("s_setprio 3")
        mmf(1, 0); mmf(1, 1)
    def qk_rd(k): wread(k, FR + 12 * k); xread(k, FR + 12 * k + 4, 0); xread(k, FR + 12 * k + 8, 1)
    def qk_mm(k):
        f = FR + 12 * k
        for tb in range(2):
            d = v(ACC1 + 16 * tb, 16)
            a("v_mfma_f32_32x32x16_bf16 %s, %s, %s, %s" % (d, v(f, 4), v(f + 4 + 4 * tb, 4), d))
    def g4_rd(p, k):
        b = GB[p][k]
        gread(k, b, 0); xread(k, b + 8, 0); xread(k, b + 12, 1); gread(k, b + 4, 1)
    def g4_mm(p, k):
        b = GB[p][k]
        for fi in range(2):
            for tb in range(2):
                d = v(ACC1 + 16 * (2 * fi + tb), 16)
                a("v_mfma_f32_32x32x16_bf16 %s, %s, %s, %s" % (d, v(b + 4 * fi, 4), v(b + 8 + 4 * tb, 4), d))
    gemm("L_p1_qk", qk_rd, qk_mm, 4, 3)
    g4_rd(0, 0); g4_rd(0, 1)
    for tb in range(2):
        A0 = ACC1 + 16 * tb
        for i in range(0, 16, 2): a("v_pk_mul_f32 %s, %s, v[4:5] op_sel_hi:[1,0]" % (v(A0 + i, 2), v(A0 + i, 2)))
        for i in range(8): a("v_cvt_pk_bf16_f32 v%d, v%d, v%d" % (FR + 8 * tb + i, A0 + 2 * i, A0 + 2 * i + 1))
        a("buffer_store_dwordx4 %s, v%d, %s, s%d offen %s" % (v(FR + 8 * tb, 4), VST if tb else 3, s(SWS, 4), sD0, sc()))
        a("buffer_store_dwordx4 %s, v%d, %s, s%d offen %s" % (v(FR + 8 * tb + 4, 4), VST if tb else 3, s(SWS, 4), sD1, sc()))
        for i in range(0, 16, 2): a("v_mov_b64 %s, 0" % v(A0 + i, 2))
    gu("L_gu4", g4_rd, g4_mm, 6)
    a("s_branch L_p1_done")
    a.label("L_p1_v0")
    if OPT["vprio"]: a("s_setprio 1")
    def v_rd(k): xread(k, FR + 8 * k + 4, 0); wread(k, FR + 8 * k)
    def v_mm(k):
        f = FR + 8 * k; d = v(ACC1, 16)
        a("v_mfma_f32_32x32x16_bf16 %s, %s, %s, %s" % (d, v(f + 4, 4), v(f, 4), d))
    def g3_rd(p, k):
        b = GB[p][k]
        gread(k, b, 0); xread(k, b + 12, 0); gread(k, b + 4, 1); gread(k, b + 8, 2)
    def g3_mm(p, k):
        b = GB[p][k]
        for fi in range(3):
            d = v(ACC1 + 16 * fi, 16)
            a("v_mfma_f32_32x32x16_bf16 %s, %s, %s, %s" % (d, v(b + 4 * fi, 4), v(b + 12, 4), d))
    gemm("L_p1_v", v_rd, v_mm, 3, 4, True)
    g3_rd(0, 0); g3_rd(0, 1)
    for i in range(8): a("v_cvt_pk_bf16_f32 v%d, v%d, v%d" % (FR + i, ACC1 + 2 * i, ACC1 + 2 * i + 1))
    a("buffer_store_dwordx4 %s, v115, %s, s%d offen offset:1024 %s" % (v(FR, 4), s(SWS, 4), sD0, sc()))
    a("buffer_store_dwordx4 %s, v115, %s, s%d offen offset:1536 %s" % (v(FR + 4, 4), s(SWS, 4), sD0, sc()))
    for i in range(0, 16, 2): a("v_mov_b64 %s, 0" % v(ACC1 + i, 2))
    gu("L_gu3", g3_rd, g3_mm, 7)
    a.label("L_p1_done")
    tr_dump(a, 165, 164)
    a.stamp(6)
    def dma():
        a("s_mov_b32 m0, s%d" % sSL)
        a("s_add_u32 s%d, s%d, s%d" % (sT0, sKV, sCH))
        a("buffer_load_dwordx4 v3, %s, s%d offen sc1 lds" % (s(SWS, 4), sT0))
        a("buffer_load_dwordx4 v3, %s, s%d offen offset:1024 sc1 lds" % (s(SWS, 4), sT0))
        a("s_add_u32 s%d, s%d, 16384" % (sSL, sSL))
        a("s_and_b32 s%d, s%d, 0xffff" % (sSL, sSL))
        a("s_add_u32 s%d, s%d, 16384" % (sCH, sCH))
    dma()
    a("s_xor_b32 s%d, s%d, 1024" % (sT1, sQ0))
    a("buffer_load_dwordx4 %s, v3, %s, s%d offen sc1" % (v(Q[0], 4), s(SWS, 4), sQ0))
    a("buffer_load_dwordx4 %s, v3, %s, s%d offen sc1" % (v(Q[1], 4), s(SWS, 4), sT1))
    dma()
    def geglu(t):
        Gt = ACC1 + 16 * t; U = Gt + 8; T = 132 + (t % 2) * 12
        R = range(0, 8, 2)
        for i in R: a("v_pk_mul_f32 %s, %s, %s" % (v(T + i, 2), v(Gt + i, 2), v(Gt + i, 2)))
        for i in R: a("v_pk_fma_f32 %s, %s, v[38:39], v[36:37] op_sel_hi:[1,0,0]" % (v(T + i, 2), v(T + i, 2)))
        for i in R: a("v_pk_mul_f32 %s, %s, %s" % (v(T + i, 2), v(T + i, 2), v(Gt + i, 2)))
        for i in range(8): a("v_exp_f32 v%d, v%d" % (T + i, T + i))
        for i in R: a("v_pk_mul_f32 %s, %s, %s" % (v(Gt + i, 2), v(Gt + i, 2), v(U + i, 2)))
        for i in R: a("v_pk_add_f32 %s, %s, 1.0 op_sel_hi:[1,0]" % (v(T + i, 2), v(T + i, 2)))
        for i in range(8): a("v_rcp_f32 v%d, v%d" % (T + i, T + i))
        a.nop(1)
        for i in R: a("v_pk_mul_f32 %s, %s, %s" % (v(Gt + i, 2), v(Gt + i, 2), v(T + i, 2)))
        for i in range(4): a("v_cvt_pk_bf16_f32 v%d, v%d, v%d" % (T + 8 + i, Gt + 2 * i, Gt + 2 * i + 1))
        a("buffer_store_dwordx4 %s, v3, %s, s%d offen %s" % (v(T + 8, 4), s(SWS, 4), sH + t, sc()))
        if t >= 2:
            for i in range(0, 16, 2): a("v_mov_b64 %s, 0" % v(Gt + i, 2))
    a("v_mov_b32 v10, v11")
    geglu(0)
    for i in range(0, 16, 2): a("v_mov_b64 %s, v[10:11]" % v(VF[0] + i, 2))
    dma()
    geglu(1); geglu(2)
    a("s_cmp_ge_u32 s%d, 4" % sW)
    a("s_cbranch_scc1 L_g_done")
    geglu(3)
    a.label("L_g_done")
    a.stamp(9)
    def rdK(kt): a("ds_read_b128 %s, v%d offset:%d" % (v(KF[kt % 2], 4), KA, (kt % 4) * 2048))
    def rdV(kt):
        a("s_mov_b64 exec, %s" % s(sVM, 2))
        a("ds_read_b128 %s, v%d offset:%d" % (v(VF[kt % 2], 4), VA, (kt % 4) * 2048 + 1024))
        a("ds_read_b128 %s, v%d offset:%d" % (v(VF[kt % 2] + 4, 4), VA, (kt % 4) * 2048 + 1536))
        a("s_mov_b64 exec, -1")
    def mfS(u): a("v_mfma_f32_32x32x16_bf16 %s, %s, %s, 0" % (v(S[u % 2], 16), v(KF[(u >> 1) % 2], 4), v(Q[u % 2], 4)))
    def mfPV(u, j): a("v_mfma_f32_32x32x16_bf16 %s, %s, %s, %s" % (v(O[u % 2], 16), v(VF[(u >> 1) % 2] + 4 * j, 4), v(P + 4 * j, 4), v(O[u % 2], 16)))
    a("s_waitcnt vmcnt(5)")
    arrive(a, VCN, VONE, 0)
    spin(a, VCN, VP, 0, sT0, "8", "L_a_first")
    rdK(0); rdV(0); rdK(1)
    a("s_mov_b32 s%d, 0" % sCNT)
    a("s_mov_b32 s%d, 8" % sTGT)
    a("s_waitcnt lgkmcnt(3)")
    mfS(0)
    a.stamp(10)
    a("s_setprio 0")
    if OPT["yprio"]:
        a("s_cmp_lt_u32 s%d, 4" % sW)
        a("s_cbranch_scc1 L_at_yp")
        a("s_setprio 1")
        a.label("L_at_yp")
    a.nop(9)
    a.label("L_at_loop")
    for u in range(8):
        Sx = S[u % 2]
        e = lambda i: a("v_exp_f32 v%d, v%d" % (Sx + i, Sx + i))
        cv = lambda i: a("v_cvt_pk_bf16_f32 v%d, v%d, v%d" % (P + i, Sx + 2 * i, Sx + 2 * i + 1))
        if OPT["hp"] == 1 and u in (0, 4): a("s_setprio %d" % (1 if u == 0 else 0))
        if OPT["hp"] == 2 and u % 2 == 0: a("s_setprio %d" % (1 if u % 4 == 2 else 0))
        if OPT["hp"] == 3: a("s_setprio %d" % (1 if u % 2 == 0 else 0))
        if OPT["hp"] == 4 and u in (0, 2, 4): a("s_setprio %d" % (2 - u // 2))
        if u % 2 == 0: a("s_waitcnt lgkmcnt(0)")
        mfS(u + 1)
        e(0)
        if u == 4: a("v_readfirstlane_b32 s%d, v%d" % (sT0, VP))
        e(1)
        if u == 4:
            a("s_cmp_ge_u32 s%d, s%d" % (sT0, sTGT))
            a("s_cbranch_scc0 L_at_slow")
            a.label("L_at_back")
        e(2); e(3)
        mfPV(u - 1, 1)
        if u % 2 == 0:
            rdK(u // 2 + 2); rdV(u // 2 + 1)
        cv(0); e(4)
        if u == 3:
            a("ds_read_b32 v%d, v%d" % (VP, VCN))
            a("v_add_u32 v%d, 16384, v%d" % (KA, KA))
            a("v_and_b32 v%d, 0xffff, v%d" % (KA, KA))
        if u == 5:
            a("v_add_u32 v%d, 16384, v%d" % (VA, VA))
            a("v_and_b32 v%d, 0xffff, v%d" % (VA, VA))
            a("s_waitcnt vmcnt(0)")
            a("s_cmp_ge_u32 s%d, 5" % sCNT)
            a("s_cbranch_scc1 L_at_nodma")
            a("s_setprio 3")
            dma()
            a("s_setprio 0")
            if OPT["yprio"]:
                a("s_cmp_lt_u32 s%d, 4" % sW)
                a("s_cbranch_scc1 L_at_nodma")
                a("s_setprio 1")
            a.label("L_at_nodma")
        if u == 6:
            arrive(a, VCN, VONE, 0)
        if OPT["sched"] == 0:
            cv(1); e(5); e(6); e(7); cv(2); e(8); cv(3); e(9); e(10)
            mfPV(u, 0)
            e(11); e(12); cv(4); e(13); cv(5); e(14); e(15); cv(6)
        elif OPT["sched"] == 1:
            e(5); e(6); e(7); e(8); cv(1); cv(2); cv(3); e(9); e(10)
            mfPV(u, 0)
            e(11); e(12); e(13); e(14); e(15); cv(4); cv(5); cv(6)
        else:
            cv(1); e(5); e(6); e(7); cv(2); e(8); cv(3); e(9); e(10); e(11); cv(4)
            mfPV(u, 0)
            e(12); e(13); cv(5); e(14); e(15); cv(6)
        if u == 7:
            a("s_add_u32 s%d, s%d, 8" % (sTGT, sTGT))
            a("s_add_u32 s%d, s%d, 1" % (sCNT, sCNT))
            a("s_cmp_lt_u32 s%d, 8" % sCNT)
        cv(7)
    a("s_cbranch_scc1 L_at_loop")
    a.nop(1)
    mfPV(7, 1)
    a.stamp(11)
    a("s_lshl_b32 s%d, s%d, 12" % (sT0, sW))
    a("s_add_u32 s%d, s%d, 16384" % (sT0, sT0))
    a("v_add_u32 v10, s%d, v3" % sT0)
    a("v_xor_b32 v11, 0xc000, v10")
    a("s_and_b32 s%d, s%d, 3" % (sT1, sW))
    a("s_lshl_b32 s%d, s%d, 2" % (sKH, sT1))
    a("s_mul_i32 s%d, s%d, %d" % (sT2, sQT, A2_TT))
    a("s_lshl_b32 s%d, s%d, 10" % (sT1, sHEAD))
    a("s_add_u32 s%d, s%d, s%d" % (sT2, sT2, sT1))
    a("s_add_u32 s%d, s%d, %d" % (sT2, sT2, A2_OFF))
    a("s_lshr_b32 s%d, s%d, 3" % (sT3, sQT))
    a("s_lshl_b32 s%d, s%d, 5" % (sT3, sT3))
    a("s_add_u32 s%d, s%d, s%d" % (sT3, sT3, sHEAD))
    a("s_lshl_b32 s%d, s%d, %d" % (sT3, sT3, OPT["fs"]))
    a("s_add_u32 s%d, s%d, %d" % (sT3, sT3, FO_OFF))
    a("ds_write_b128 v10, %s" % v(O[1], 4))
    a("ds_write_b128 v10, %s offset:1024" % v(O[1] + 4, 4))
    a("ds_write_b32 v10, v%d offset:2048" % (O[1] + 8))
    a("s_waitcnt lgkmcnt(0)")
    a("v_add_u32 v12, s%d, v%d" % (sKH, VCN))
    arrive(a, 12, VONE, 8)
    spin(a, 12, VP, 8, sT0, "2", "L_a_pair")
    a("ds_read_b128 %s, v11" % v(S[0], 4))
    a("ds_read_b128 %s, v11 offset:1024" % v(S[0] + 4, 4))
    a("ds_read_b32 v%d, v11 offset:2048" % (S[0] + 8))
    a("s_waitcnt lgkmcnt(0)")
    for i in range(8, -1, -1): a("v_add_f32 v%d, v%d, v%d" % (O[0] + i, O[0] + i, S[0] + i))
    a("v_cmp_nle_f32 vcc, 0x21800000, v%d" % (O[0] + 8))
    a("s_nop 1")
    a("s_mov_b64 s[56:57], vcc")
    a("v_cmp_nge_f32 vcc, 0x5d800000, v%d" % (O[0] + 8))
    a("s_nop 1")
    a("s_or_b64 vcc, vcc, s[56:57]")
    a("s_cbranch_vccnz L_a_fallback")
    a.label("L_a_fin")
    a("s_setprio 3")
    a.stamp(12)
    a("v_rcp_f32 v10, v%d" % (O[0] + 8))
    a.nop(1)
    for i in range(8): a("v_mul_f32 v%d, v%d, v10" % (O[0] + i, O[0] + i))
    for i in range(4): a("v_cvt_pk_bf16_f32 v%d, v%d, v%d" % (P + i, O[0] + 2 * i, O[0] + 2 * i + 1))
    a("buffer_store_dwordx4 %s, v3, %s, s%d offen %s" % (v(P, 4), s(SWS, 4), sT2, sc()))
    last_flag(a, VCN, VONE, VP, 32, 8, sT3, "L_a_exit")
    a.label("L_a_exit")
    a.stamp(13)
    a.stamp_flush(0, SWS, sW, 12)
    a("s_endpgm")
    a.label("L_at_slow")
    spin(a, VCN, VP, 0, sT0, "s%d" % sTGT, "L_at_spin")
    a("s_branch L_at_back")
    a.label("L_a_fallback")
    C = O[1]; S0 = S[0]
    a("v_mov_b32 v10, 0xff800000")
    a("s_mov_b32 s%d, s%d" % (sT0, sKVB))
    a("s_mov_b32 s%d, 64" % sCNT)
    a.label("L_fb1")
    a("buffer_load_dwordx4 %s, v3, %s, s%d offen sc1" % (v(KF[0], 4), s(SWS, 4), sT0))
    a("s_waitcnt vmcnt(0)")
    a("v_mfma_f32_32x32x16_bf16 %s, %s, %s, 0" % (v(S0, 16), v(KF[0], 4), v(Q[0], 4)))
    a.nop(12)
    for i in range(0, 16, 2): a("v_max3_f32 v10, v10, v%d, v%d" % (S0 + i, S0 + i + 1))
    a("s_add_u32 s%d, s%d, 2048" % (sT0, sT0))
    a("s_sub_u32 s%d, s%d, 1" % (sCNT, sCNT))
    a("s_cmp_lg_u32 s%d, 0" % sCNT)
    a("s_cbranch_scc1 L_fb1")
    a("v_mov_b32 v11, v10")
    a.nop(2)
    a("v_permlane32_swap_b32 v10, v11")
    a("v_max_f32 v10, v10, v11")
    for i in range(16): a("v_sub_f32 v%d, 0, v10" % (C + i))
    for i in range(16): a("v_mov_b32 v%d, 0" % (O[0] + i))
    a("s_mov_b32 s%d, s%d" % (sT0, sKVB))
    a("s_mov_b32 s%d, 64" % sCNT)
    a.label("L_fb2")
    a("buffer_load_dwordx4 %s, v3, %s, s%d offen sc1" % (v(KF[0], 4), s(SWS, 4), sT0))
    a("s_mov_b64 exec, %s" % s(sVM, 2))
    a("buffer_load_dwordx4 %s, v47, %s, s%d offen offset:1024 sc1" % (v(VF[0], 4), s(SWS, 4), sT0))
    a("buffer_load_dwordx4 %s, v47, %s, s%d offen offset:1536 sc1" % (v(VF[0] + 4, 4), s(SWS, 4), sT0))
    a("s_mov_b64 exec, -1")
    a("s_waitcnt vmcnt(0)")
    a("v_mfma_f32_32x32x16_bf16 %s, %s, %s, %s" % (v(S0, 16), v(KF[0], 4), v(Q[0], 4), v(C, 16)))
    a.nop(12)
    for i in range(16): a("v_exp_f32 v%d, v%d" % (S0 + i, S0 + i))
    a.nop(1)
    for i in range(8): a("v_cvt_pk_bf16_f32 v%d, v%d, v%d" % (P + i, S0 + 2 * i, S0 + 2 * i + 1))
    a.nop(2)
    for j in range(2): a("v_mfma_f32_32x32x16_bf16 %s, %s, %s, %s" % (v(O[0], 16), v(VF[0] + 4 * j, 4), v(P + 4 * j, 4), v(O[0], 16)))
    a("s_add_u32 s%d, s%d, 2048" % (sT0, sT0))
    a("s_sub_u32 s%d, s%d, 1" % (sCNT, sCNT))
    a("s_cmp_lg_u32 s%d, 0" % sCNT)
    a("s_cbranch_scc1 L_fb2")
    a.nop(12)
    a("s_branch L_a_fin")

def role_f(a):
    sF = 47; SG = 12
    VCN, VONE = 164, 1
    sW1, sM1, sKD, sSO, sI, sW2, sM2, sFQ, sFH, sPOLL = 10, 11, 20, 21, 48, 49, 50, 51, 52, 58
    a("s_sub_u32 s%d, s%d, 8" % (sF, sW))
    a("s_setprio 2")
    srd(a, SA, P_WQKV, 512 * 3072)
    a("v_lshrrev_b32 v6, 3, v2")
    a("v_and_b32 v9, 7, v2")
    a("v_lshlrev_b32 v8, 1, v6")
    a("v_and_b32 v8, 4, v8")
    a("v_xor_b32 v7, v9, v8")
    a("v_mul_u32_u24 v8, 3072, v6")
    a("v_lshl_add_u32 v8, v7, 4, v8")
    a("s_mul_i32 s%d, s%d, %d" % (sW1, sF, 16 * 3072))
    a("s_lshl_b32 s%d, s%d, 7" % (sT0, sNG))
    a("s_add_u32 s%d, s%d, s%d" % (sW1, sW1, sT0))
    a("s_mul_i32 s%d, s%d, 6144" % (sM1, sF))
    a("s_add_u32 s%d, s%d, %d" % (sM1, sM1, LDS_F))
    a("s_and_b32 s%d, s%d, 7" % (sKD, sJ))
    a("s_mov_b32 s%d, 0" % sSO)
    a("s_mov_b32 s%d, 0" % sI)
    a("s_cmp_ge_u32 s%d, 2" % sF)
    a("s_cselect_b64 %s, %s, %s" % (s(P_WG, 2), s(P_WU, 2), s(P_WG, 2)))
    a("s_cselect_b32 s%d, %d, 0" % (sM2, UPOFF))
    a("s_add_u32 s%d, s%d, %d" % (sM2, sM2, LDS_F))
    srd(a, SG, P_WG, 512 * 3584)
    for i in range(7):
        a("v_add_u32 v4, %d, v2" % (64 * i))
        a("v_mul_u32_u24 v5, 2341, v4")
        a("v_lshrrev_b32 v5, 16, v5")
        a("v_mul_u32_u24 v5, %d, v5" % (3584 - 448))
        a("v_lshl_add_u32 v5, v4, 4, v5")
        a("v_subrev_u32 v%d, %d, v5" % (16 + i, (i % 4) * 1024))
    a("s_and_b32 s%d, s%d, 1" % (sT1, sF))
    a("s_mul_i32 s%d, s%d, %d" % (sW2, sT1, 16 * 3584))
    a("s_mul_i32 s%d, s%d, 448" % (sT2, sNG))
    a("s_add_u32 s%d, s%d, s%d" % (sW2, sW2, sT2))
    a("s_mul_i32 s%d, s%d, 7168" % (sT1, sT1))
    a("s_add_u32 s%d, s%d, s%d" % (sM2, sM2, sT1))
    def spf():
        if not OPT["spf"]: return
        for r in range(2):
            for q in range(4): a("s_load_dword s53, s[54:55], %d" % (r * 3584 + q * 128))
        a("s_add_u32 s54, s54, %d" % (2 * 3584))
        a("s_addc_u32 s55, s55, 0")
    tagsetup(a)
    a("s_mul_i32 s%d, s56, %d" % (sT0, 32 * 3584))
    a("s_add_u32 s%d, s%d, s%d" % (sT0, sT0, sW2))
    a("s_mov_b32 s53, s%d" % sT0)
    a("v_lshrrev_b32 v4, 2, v2")
    a("v_mul_u32_u24 v4, 3584, v4")
    a("v_and_b32 v5, 3, v2")
    a("v_lshl_add_u32 v23, v5, 7, v4")
    a("s_lshl_b32 s%d, s%d, 5" % (sFQ, sNG))
    a("s_add_u32 s%d, s%d, s%d" % (sFQ, sFQ, sMT))
    a("s_lshl_b32 s%d, s%d, %d" % (sFQ, sFQ, OPT["fs"]))
    a("s_add_u32 s%d, s%d, %d" % (sFQ, sFQ, FQ_OFF))
    a("s_lshl3_add_u32 s%d, s%d, s%d" % (sFH, sMT, sNG))
    a("s_lshl_b32 s%d, s%d, %d" % (sFH, sFH, OPT["fs"]))
    a("s_add_u32 s%d, s%d, %d" % (sFH, sFH, FH_OFF))
    a("s_lshl_b32 s%d, s%d, %d" % (sPOLL, sXCD, 5 + OPT["fs"]))
    a("s_add_u32 s%d, s%d, %d" % (sPOLL, sPOLL, FQ_OFF))
    a("v_mov_b32 v%d, %d" % (VCN, LDS_CNT))
    a("v_mov_b32 v%d, 1" % VONE)
    def slot():
        a("s_add_u32 s%d, s%d, %d" % (sSO, sSO, FSLOT))
        a("s_cmp_eq_u32 s%d, %d" % (sSO, 3 * FSLOT))
        a("s_cselect_b32 s%d, 0, s%d" % (sSO, sSO))
        a("s_add_u32 s%d, s%d, 1" % (sI, sI))
    a("s_waitcnt vmcnt(0)")
    a.stamp(1)
    a.label("L_d_issue")
    a("s_mul_i32 s%d, s%d, %d" % (sT2, sKD, 64 * 3072))
    a("s_add_u32 s%d, s%d, s%d" % (sT2, sT2, sW1))
    a("s_add_u32 m0, s%d, s%d" % (sM1, sSO))
    a("s_add_u32 s%d, s%d, 1" % (sKD, sKD))
    for m in range(3): a("buffer_load_dwordx4 v8, %s, s%d offen offset:%d lds" % (s(SA, 4), sT2, m * 1024))
    a("s_add_u32 m0, m0, 3072")
    a("s_add_u32 s%d, s%d, %d" % (sT2, sT2, 8 * 3072))
    for m in range(3): a("buffer_load_dwordx4 v8, %s, s%d offen offset:%d lds" % (s(SA, 4), sT2, m * 1024))
    a("s_and_b32 s%d, s%d, 7" % (sKD, sKD))
    slot()
    if OPT["ft"]:
        a("s_cmp_lt_u32 s%d, 3" % sI)
        a("s_cbranch_scc1 L_d_issue")
        a("s_cmp_lg_u32 s%d, 3" % sI)
        a("s_cbranch_scc1 L_d_w")
        a("buffer_load_dword v23, v23, %s, s53 offen" % s(SG, 4))
        a("s_waitcnt vmcnt(13)")
        a("s_barrier")
        a.label("L_d_w")
        a("s_waitcnt vmcnt(7)")
        a("s_cmp_lt_u32 s%d, 5" % sI)
        a("s_cbranch_scc1 L_d_b")
        a("s_waitcnt vmcnt(6)")
        a.label("L_d_b")
    else:
        a("s_cmp_eq_u32 s%d, 1" % sI)
        a("s_cbranch_scc1 L_d_issue")
        a("s_waitcnt vmcnt(6)")
    a("s_barrier")
    a("s_cmp_lg_u32 s%d, 8" % sI)
    a("s_cbranch_scc1 L_d_issue")
    a.stamp(3)
    if OPT["probe"] == 1: a("s_memrealtime s[92:93]")
    a("s_mov_b32 s%d, s56" % sKD)
    a("s_mov_b32 s%d, 0" % sI)
    a("v_lshlrev_b32 v165, %d, v2" % OPT["fs"])
    a.label("L_g_issue")
    a("s_mul_i32 s%d, s%d, %d" % (sT2, sKD, 32 * 3584))
    a("s_add_u32 m0, s%d, s%d" % (sM2, sSO))
    a("s_add_u32 s%d, s%d, s%d" % (sT2, sT2, sW2))
    for i in range(7):
        if i == 4:
            a("s_add_u32 m0, m0, 4096")
            a("s_add_u32 s%d, s%d, 1" % (sKD, sKD))
        a("buffer_load_dwordx4 v%d, %s, s%d offen offset:%d lds" % (16 + i, s(SG, 4), sT2, (i % 4) * 1024))
    a("s_and_b32 s%d, s%d, 15" % (sKD, sKD))
    slot()
    tr(a, 30)
    a("s_waitcnt vmcnt(7)")
    tr(a, 30)
    a("s_barrier")
    tr(a, 30)
    a("s_lshl_b32 s%d, s%d, 5" % (sT0, sF))
    a("s_add_u32 s%d, s%d, s%d" % (sT0, sT0, sI))
    a("s_cmp_lg_u32 s%d, %d" % (sT0, OPT["qflag"]))
    a("s_cbranch_scc1 L_g_nf")
    a("s_mov_b64 exec, 1")
    a("buffer_store_dwordx2 %s, v3, %s, s%d offen %s" % (v(VTAG, 2), s(SWS, 4), sFQ, sc()))
    a("s_mov_b64 exec, -1")
    a.label("L_g_nf")
    a("s_cmp_lg_u32 s%d, 16" % sI)
    a("s_cbranch_scc1 L_g_issue")
    a.stamp(4)
    a("s_waitcnt vmcnt(0) lgkmcnt(0)")
    a("s_barrier")
    a("s_cmp_lg_u32 s%d, 0" % sF)
    a("s_cbranch_scc1 L_f_nopoll")
    poll(a, 165, sPOLL, 32, 24, "L_f_pollq")
    a.label("L_f_nopoll")
    a("s_barrier")
    if OPT["probe"] == 2: a("s_memrealtime s[92:93]")
    tr_dump(a, 30, 31)
    a.stamp(5)
    a("s_setprio %d" % OPT["prio3"])
    if OPT["nof"] == 1: a("s_branch L_f_ep")
    sMT2, sNT, sWB, sA0, sA1, sGW, sGA, sLB = 43, 44, 45, 46, 53, 54, 55, 56
    a("s_and_b32 s%d, s%d, 3" % (sT2, sJ))
    a("s_lshl2_add_u32 s%d, s%d, s%d" % (sMT2, sXCD, sT2))
    a("s_lshr_b32 s%d, s%d, 2" % (sNT, sJ))
    srd(a, SA, P_WD, 1792 * 1024)
    srd(a, SB, P_WO, 512 * 1024)
    a("v_lshrrev_b32 v8, 3, v2")
    a("v_lshlrev_b32 v7, 1, v8")
    a("v_and_b32 v7, 4, v7")
    a("v_and_b32 v9, 7, v2")
    a("v_xor_b32 v7, v7, v9")
    a("v_lshlrev_b32 v8, 10, v8")
    a("v_lshl_add_u32 v8, v7, 4, v8")
    for i in range(1, 4): a("v_add_u32 v%d, %d, v8" % (8 + i, i * 7168))
    a("s_lshl_b32 s%d, s%d, 7" % (sWB, sNT))
    a("s_mul_i32 s%d, s%d, %d" % (sLB, sF, F2REG))
    a("s_add_u32 s%d, s%d, %d" % (sLB, sLB, LDS_F))
    a("s_mul_i32 s%d, s%d, 3" % (sGW, sT2))
    a("s_add_u32 s%d, s%d, s%d" % (sGW, sGW, sNT))
    a("s_sub_u32 s%d, s%d, 14" % (sT2, sGW))
    a("s_cmp_ge_u32 s%d, 14" % sGW)
    a("s_cselect_b32 s%d, s%d, s%d" % (sGW, sT2, sGW))
    a("s_mov_b32 s%d, s%d" % (sGA, sGW))
    a("s_and_b32 s%d, s%d, 1" % (sT1, sF))
    a("s_lshl1_add_u32 s%d, s%d, s%d" % (sT1, sMT2, sT1))
    a("s_mul_i32 s%d, s%d, %d" % (sA0, sT1, A2_TT))
    a("s_xor_b32 s%d, s%d, 1" % (sT1, sT1))
    a("s_mul_i32 s%d, s%d, %d" % (sA1, sT1, A2_TT))
    a("s_add_u32 s%d, s%d, %d" % (sA0, sA0, A2_OFF))
    a("s_add_u32 s%d, s%d, %d" % (sA1, sA1, A2_OFF))
    sF14 = 57
    a("s_mul_i32 s%d, s%d, 14" % (sF14, sF))
    a.vm = []
    def adv(sg):
        a("s_add_u32 s%d, s%d, 1" % (sg, sg))
        a("s_cmp_eq_u32 s%d, 14" % sg)
        a("s_cselect_b32 s%d, 0, s%d" % (sg, sg))
    def w2(g):
        a("s_add_u32 m0, s%d, %d" % (sLB, (g % 5) * 4096))
        if g < 14:
            a("s_add_u32 s%d, s%d, s%d" % (sT0, sF14, sGW))
            a("s_lshl_b32 s%d, s%d, 15" % (sT0, sT0))
            adv(sGW); sr = SA
        else:
            a("s_lshl_b32 s%d, s%d, 17" % (sT0, sF))
            a("s_add_u32 s%d, s%d, %d" % (sT0, sT0, (g - 14) * 32768)); sr = SB
        a("s_add_u32 s%d, s%d, s%d" % (sT0, sT0, sWB))
        if OPT["thr2"]: a("s_waitcnt vmcnt(%d)" % OPT["thr2"])
        for i in range(4):
            a.vmem("buffer_load_dwordx4 v%d, %s, s%d offen offset:%d lds" % (8 + i, s(sr, 4), sT0, i * 1024), "W%d" % g)
    AB = 96
    def a2(g):
        if g < 14:
            a("s_add_u32 s%d, s%d, s%d" % (sT0, sF14, sGA))
            a("s_lshl_b32 s%d, s%d, 11" % (sT0, sT0))
            a("s_add_u32 s%d, s%d, 32768" % (sT0, sT0))
            adv(sGA)
        else:
            a("s_lshl_b32 s%d, s%d, 13" % (sT0, sF))
            a("s_add_u32 s%d, s%d, %d" % (sT0, sT0, (g - 14) * 2048))
        a("s_add_u32 s%d, s%d, s%d" % (sT1, sT0, sA1))
        a("s_add_u32 s%d, s%d, s%d" % (sT0, sT0, sA0))
        if OPT["thr2"] and g < 14: a("s_waitcnt vmcnt(%d)" % OPT["thr2"])
        for ks in range(2):
            for tb in range(2):
                a.vmem("buffer_load_dwordx4 %s, v3, %s, s%d offen offset:%d sc1" % (v(AB + (g % 4) * 16 + ks * 8 + tb * 4, 4), s(SWS, 4), sT0 + tb, ks * 1024), "A%d" % g)
    a("v_lshrrev_b32 v14, 5, v2")
    a("v_bfe_u32 v4, v2, 2, 2")
    a("v_and_b32 v5, 1, v2")
    a("v_lshlrev_b32 v5, 4, v5")
    a("v_and_b32 v6, 2, v2")
    a("v_lshl_add_u32 v5, v6, 2, v5")
    a("v_and_b32 v6, 16, v2")
    a("v_lshl_add_u32 v5, v6, 1, v5")
    a("s_and_b32 s%d, s%d, 2" % (sT2, sF))
    a("s_lshl_b32 s%d, s%d, 5" % (sT2, sT2))
    a("v_add_u32 v5, s%d, v5" % sT2)
    a("v_lshlrev_b32 v6, 5, v4")
    a("v_and_b32 v6, 64, v6")
    a("v_xor_b32 v5, v5, v6")
    a("v_lshl_add_u32 v4, v14, 2, v4")
    a("v_lshl_add_u32 v5, v4, 7, v5")
    a("v_xor_b32 v6, 64, v5")
    a("v_add_u32 v12, s%d, v5" % sLB)
    a("v_add_u32 v13, s%d, v6" % sLB)
    a("s_lshl2_add_u32 s%d, s%d, s%d" % (sT3, sMT2, sF))
    a("s_lshl_b32 s%d, s%d, %d" % (sT3, sT3, 1 + OPT["fs"]))
    a("s_add_u32 s%d, s%d, %d" % (sT3, sT3, FH_OFF))
    if OPT["w2at"] == 8:
        spin(a, VCN, 0, 0, sT0, "8", "L_f_nofw0")
        for g in range(4): w2(g)
    spin(a, VCN, 0, 0, sT0, "16", "L_f_nofw1")
    a("s_cmp_lg_u32 s%d, 0" % sF)
    a("s_cbranch_scc1 L_f_hf")
    a("s_mov_b64 exec, 1")
    a("buffer_store_dwordx2 %s, v3, %s, s%d offen %s" % (v(VTAG, 2), s(SWS, 4), sFH, sc()))
    a("s_mov_b64 exec, -1")
    a.label("L_f_hf")
    if OPT["w2at"] != 8:
        for g in range(4): w2(g)
    if OPT["f2gate"]: spin(a, VCN, 0, 0, sT0, "%d" % (8 + 8 * OPT["f2gate"]), "L_f_nofw2")
    a.stamp(11)
    poll(a, 165, sT3, 2, 16, "L_f_pollh")
    a.stamp(12)
    a.vm = []
    ACC2 = 32; WF = 16
    def rd2(g, ks, ci):
        for sec in range(2):
            a("ds_read_b64_tr_b16 %s, v%d offset:%d" % (v(WF + ks * 8 + ci * 4 + sec * 2, 2), 12 + ci, (g % 5) * 4096 + ks * 2048 + sec * 1024))
    def mm2(g, ks, ci):
        for ti in range(2):
            d = v(ACC2 + (ci * 2 + ti) * 16, 16)
            a("v_mfma_f32_32x32x16_bf16 %s, %s, %s, %s" % (d, v(WF + ks * 8 + ci * 4, 4), v(AB + (g % 4) * 16 + ks * 8 + ti * 4, 4), "0" if (g == 0 and ks == 0) else d))
    def comp(g, pre=None):
        if OPT["f2pace"] and g < 14:
            if pre: pre()
            for ks in range(2):
                for ci in range(2):
                    rd2(g, ks, ci)
                    a("s_waitcnt lgkmcnt(0)")
                    mm2(g, ks, ci)
            return
        for ks in range(2):
            for ci in range(2): rd2(g, ks, ci)
        if pre: pre()
        for ks in range(2):
            a("s_waitcnt lgkmcnt(%d)" % (4 if ks == 0 else 0))
            for ci in range(2): mm2(g, ks, ci)
    for g in range(3): a2(g)
    for g in range(14):
        if g + 3 < 14: a2(g + 3)
        w2(g + 4)
        a.wait_vm("A%d" % g)
        if a.vm_count_after("W%d" % g) is not None: a.wait_vm("W%d" % g)
        comp(g)
    srd(a, SA, P_X, 2 * MB)
    srd(a, SB, P_OUT, 2 * MB)
    sXS = 48
    a("s_and_b32 s%d, s%d, 1" % (sT1, sF))
    a("s_lshl1_add_u32 s%d, s%d, s%d" % (sT0, sMT2, sT1))
    a("s_lshl_b32 s%d, s%d, 15" % (sXS, sT0))
    a("s_add_u32 s%d, s%d, s%d" % (sXS, sXS, sWB))
    a("s_and_b32 s%d, s%d, 2" % (sT2, sF))
    a("s_lshl_b32 s%d, s%d, 5" % (sT2, sT2))
    a("s_add_u32 s%d, s%d, s%d" % (sXS, sXS, sT2))
    a("v_and_b32 v4, 31, v2")
    a("v_lshlrev_b32 v4, 10, v4")
    a("v_lshl_add_u32 v4, v14, 4, v4")
    a("buffer_load_dwordx4 v[8:11], v4, %s, s%d offen" % (s(SA, 4), sXS))
    a("buffer_load_dwordx4 v[160:163], v4, %s, s%d offen offset:32" % (s(SA, 4), sXS))
    a("s_lshl2_add_u32 s%d, s%d, s%d" % (sT3, sXCD, sF))
    a("s_lshl_b32 s%d, s%d, %d" % (sT3, sT3, 3 + OPT["fs"]))
    a("s_add_u32 s%d, s%d, %d" % (sT3, sT3, FO_OFF))
    a("s_waitcnt vmcnt(0)")
    for i in range(4):
        a("v_lshlrev_b32 v%d, 16, v%d" % (96 + 2 * i, 8 + i))
        a("v_and_b32 v%d, 0xffff0000, v%d" % (97 + 2 * i, 8 + i))
        a("v_lshlrev_b32 v%d, 16, v%d" % (104 + 2 * i, 160 + i))
        a("v_and_b32 v%d, 0xffff0000, v%d" % (105 + 2 * i, 160 + i))
    for i in range(16): a("v_add_f32 v%d, v%d, v%d" % (ACC2 + i, ACC2 + i, 96 + i))
    a("v_add_u32 v5, s%d, v3" % sLB)
    for sl in range(1, 4):
        a("s_xor_b32 s%d, s%d, %d" % (sT0, sF, sl))
        a("s_mul_i32 s%d, s%d, %d" % (sT0, sT0, F2REG))
        a("s_add_u32 s%d, s%d, %d" % (sT0, sT0, LDS_F + (sl - 1) * 4096))
        a("v_add_u32 v%d, s%d, v3" % (7 + sl, sT0))
    a("s_setprio 0")
    a.stamp(13)
    if OPT["nof"] == 4: a("s_branch L_f_ep")
    if not OPT["prog"]:
        poll(a, 165, sT3, 8, 16, "L_f_pollo")
        a.stamp(14)
        a("s_setprio 3")
        a.vm = []
        for g in range(14, 18): a2(g)
        for g in range(14, 18):
            comp(g, lambda: a.wait_vm("A%d" % g))
    else:
        sPEND, sRDY = 49, 50
        a("s_mov_b32 s%d, 0x55" % sPEND)
        a("s_mov_b32 s%d, 0" % sRDY)
        a("s_mov_b32 s%d, 0x20000" % sSPIN)
        a.label("L_o_round")
        for g in range(14, 18):
            a("s_bitcmp1_b32 s%d, %d" % (sRDY, 2 * (g - 14)))
            a("s_cbranch_scc0 L_o_nl%d" % g)
            a2(g)
            a.label("L_o_nl%d" % g)
        a("s_cmp_eq_u32 s%d, 0" % sPEND)
        a("s_cbranch_scc1 L_o_np")
        a("s_mov_b64 exec, 0xff")
        a("buffer_load_dwordx2 v[6:7], v165, %s, s%d offen sc1" % (s(SWS, 4), sT3))
        a("s_mov_b64 exec, -1")
        a.label("L_o_np")
        for g in range(14, 18):
            a("s_bitcmp1_b32 s%d, %d" % (sRDY, 2 * (g - 14)))
            a("s_cbranch_scc0 L_o_nc%d" % g)
            comp(g, lambda: a("s_waitcnt vmcnt(0)"))
            a.label("L_o_nc%d" % g)
        a("s_cmp_eq_u32 s%d, 0" % sPEND)
        a("s_cbranch_scc1 L_o_done")
        a("s_waitcnt vmcnt(0)")
        a("v_cmp_eq_u64 vcc, %s, v[6:7]" % s(sTAG, 2))
        a("s_sub_u32 s%d, s%d, 1" % (sSPIN, sSPIN))
        a("s_cselect_b32 s%d, 0xff, 0" % sT1)
        a("s_or_b32 s%d, vcc_lo, s%d" % (sT0, sT1))
        a("s_lshr_b32 s%d, s%d, 1" % (sT1, sT0))
        a("s_and_b32 s%d, s%d, s%d" % (sT0, sT0, sT1))
        a("s_and_b32 s%d, s%d, s%d" % (sRDY, sT0, sPEND))
        a("s_cbranch_scc1 L_o_some")
        a("s_sleep %d" % OPT["psleep"])
        a.label("L_o_some")
        a("s_andn2_b32 s%d, s%d, s%d" % (sPEND, sPEND, sRDY))
        a("s_branch L_o_round")
        a.label("L_o_done")
        a.stamp(14)
    a.nop(10)
    for sl in range(1, 4):
        for q in range(4):
            a("ds_write_b128 v5, %s offset:%d" % (v(ACC2 + sl * 16 + 4 * q, 4), (sl - 1) * 4096 + q * 1024))
    a("s_waitcnt lgkmcnt(0)")
    arrive(a, VCN, VONE, 40)
    spin(a, VCN, 0, 40, sT0, "4", "L_f_spin3")
    for sl in range(1, 4):
        for q in range(4):
            a("ds_read_b128 %s, v%d offset:%d" % (v(ACC2 + sl * 16 + 4 * q, 4), 7 + sl, q * 1024))
    for sl in range(1, 4):
        a("s_waitcnt lgkmcnt(%d)" % (12 - 4 * sl))
        for i in range(0, 16, 2): a("v_pk_add_f32 %s, %s, %s" % (v(ACC2 + i, 2), v(ACC2 + i, 2), v(ACC2 + 16 * sl + i, 2)))
    for i in range(8): a("v_cvt_pk_bf16_f32 v%d, v%d, v%d" % (96 + i, ACC2 + 2 * i, ACC2 + 2 * i + 1))
    osc = ["", "sc1", "nt"][OPT["osc"]]
    a("buffer_store_dwordx4 v[96:99], v4, %s, s%d offen %s" % (s(SB, 4), sXS, osc))
    a("buffer_store_dwordx4 v[100:103], v4, %s, s%d offen offset:32 %s" % (s(SB, 4), sXS, osc))
    a.label("L_f_ep")
    if OPT["nof"]:
        spin(a, VCN, 0, 32, sT0, "8", "L_f_nofw")
    a("s_add_u32 s%d, s2, s%d" % (sT0, sF))
    a("s_cmp_lg_u32 s%d, 0" % sT0)
    a("s_cbranch_scc1 L_f_noep")
    if OPT["probe"]:
        a("s_memrealtime s[94:95]")
        if OPT["probe"] == 3: a("s_memrealtime s[92:93]")
        a("s_waitcnt lgkmcnt(0)")
        a("s_sub_u32 s92, s92, s90")
        a.label("L_probe")
        a("s_memrealtime s[96:97]")
        a("s_waitcnt lgkmcnt(0)")
        a("s_sub_u32 s96, s96, s94")
        a("s_cmp_lt_u32 s96, s92")
        a("s_cbranch_scc1 L_probe")
    a("s_mov_b32 s%d, %d" % (sT0, EPOCH_OFF))
    a("s_mov_b64 exec, 1")
    a("buffer_store_dword v%d, v3, %s, s%d offen" % (VTAG, s(SWS, 4), sT0))
    a("s_mov_b64 exec, -1")
    a.label("L_f_noep")
    a.stamp_flush(0, SWS, sW, 12)
    a("s_endpgm")

def gen_kernel(name):
    a = Asm()
    a.label("L_start")
    a("s_cmp_ge_u32 s2, 256")
    a("s_cbranch_scc1 L_end")
    a.stamp(0)
    if OPT["p1diag"]: a("s_mov_b32 s100, 0")
    if OPT["probe"]: a("s_memrealtime s[90:91]")
    a("s_load_dwordx16 s[4:19], s[0:1], 0")
    a("s_load_dwordx4 s[20:23], s[0:1], 64")
    a("s_getpc_b64 s[30:31]")
    a.label("L_pc")
    a("s_lshr_b32 s%d, s2, 3" % sJ)
    a("v_lshrrev_b32 v1, 6, v0")
    a("s_mul_i32 s%d, s%d, 12" % (sT0, sJ))
    a("v_add_lshl_u32 v165, v1, s%d, 7" % sT0)
    a("v_min_u32 v165, (L_end - L_pc), v165")
    a("s_mov_b64 exec, 1")
    a("global_load_dword v165, v165, s[30:31]")
    a("s_mov_b64 exec, -1")
    a("v_and_b32 v2, 63, v0")
    a("v_readfirstlane_b32 s%d, v1" % sW)
    a("v_lshlrev_b32 v3, 4, v2")
    a("s_and_b32 s%d, s2, 7" % sXCD)
    lg = {0: 3, 1: 4, 2: 5}[OPT["map"]]
    a("s_lshr_b32 s%d, s%d, %d" % (sMT, sXCD, lg - 2))
    a("s_lshl_b32 s%d, s%d, %d" % (sMT, sMT, lg))
    a("s_and_b32 s%d, s%d, %d" % (sT0, sJ, (1 << lg) - 1))
    a("s_add_u32 s%d, s%d, s%d" % (sMT, sMT, sT0))
    a("s_and_b32 s%d, s%d, %d" % (sNG, sXCD, (1 << (lg - 2)) - 1))
    a("s_lshl_b32 s%d, s%d, %d" % (sNG, sNG, 5 - lg))
    a("s_lshr_b32 s%d, s%d, %d" % (sT0, sJ, lg))
    a("s_add_u32 s%d, s%d, s%d" % (sNG, sNG, sT0))
    if lg == 3: a("s_lshl_b32 s56, s%d, 1" % sJ)
    else: a("s_mov_b32 s56, s%d" % sJ)
    a("s_and_b32 s56, s56, %d" % OPT["grot"])
    a("s_and_b32 s%d, s%d, 1" % (sT0, sT0))
    a("s_lshl3_add_u32 s%d, s%d, s%d" % (sT0, sT0, sW))
    a("s_lshl4_add_u32 s%d, s%d, s%d" % (sT0, sMT, sT0))
    a("s_lshl_b32 s%d, s%d, 12" % (sT0, sT0))
    a("s_xor_b32 s%d, s%d, 32768" % (sT1, sT0))
    a("v_lshrrev_b32 v164, 4, v2")
    a("v_mul_u32_u24 v164, 768, v164")
    a("v_add_u32 v164, v164, v3")
    a("s_cmp_lt_u32 s%d, 8" % sW)
    a("s_waitcnt lgkmcnt(0)")
    srd(a, SB, P_X, 2 * MB)
    a("s_cbranch_scc0 L_norow")
    for p in range(4):
        a("buffer_load_dwordx4 %s, v164, %s, s%d offen offset:%d" % (v(132 + 4 * p, 4), s(SB, 4), sT0, p * 256))
    a.label("L_norow")
    a.stamp(8)
    a("s_add_u32 s62, s%d, %d" % (P_WS, EPOCH_OFF))
    a("s_addc_u32 s63, s%d, 0" % (P_WS + 1))
    a("s_load_dword s%d, s[62:63], 0" % sTAG)
    srd(a, SWS, P_WS, WS_BYTES)
    a("s_mov_b32 s%d, 0x3f803f80" % sONE)
    a("s_cmp_lt_u32 s%d, 8" % sW)
    a("s_cbranch_scc1 L_role_a")
    role_f(a)
    if OPT["ldf"]:
        fl = ["", "sc1", "nt", "sc0"][OPT["ldf"]]
        a.lines = [l[:-4] + " %s lds" % fl if (l.endswith(" lds") and "sc1" not in l) else l for l in a.lines]
    a.label("L_role_a")
    a.vm = []
    role_a(a)
    if OPT["abl"]:
        i0 = a.lines.index("L_p1_qk:"); i1 = a.lines.index("L_p1_done:")
        def keep(l):
            if OPT["abl"] & 1 and l.startswith("v_mfma"): return False
            if OPT["abl"] & 4 and l.startswith("ds_read"): return False
            return True
        a.lines[i0:i1] = [l for l in a.lines[i0:i1] if keep(l)]
        if OPT["abl"] & 2:
            i0 = a.lines.index("L_g_issue:"); i1 = a.lines.index("L_g_nf:")
            a.lines[i0:i1] = [l for l in a.lines[i0:i1] if not l.startswith("buffer_load")]
    a.label("L_end")
    a("s_endpgm")
    return dict(name=name, asm=a, vgpr=168, grid=(256, 1, 1), block=(768, 1, 1), lds=LDS_TOTAL)
```

```python
from common import *
from layout import *
from kgu import f2u, C1, C2

FL_OFF = 32 * MB
EPOCH_OFF = FL_OFF
FX_OFF = FL_OFF + 0x10000
FQ_OFF = FL_OFF + 0x20000
FH_OFF = FL_OFF + 0x30000
FO_OFF = FL_OFF + 0x40000
TAGX = 0x5bd1e995

LDS_F = 65536
FSLOT = 28800; UPOFF = 14368; FNS = 3
F2REG = 20480
LDS_CNT = LDS_F + FNS * FSLOT
LDS_ST = LDS_CNT + 128
LDS_TOTAL = 163840

P_X, P_WQKV, P_WO, P_WG, P_WU, P_WD, P_OUT, P_WS = 4, 6, 8, 12, 14, 16, 18, 22
SWS, SA, SB = 24, 28, 32
sW = 36
sT0, sT1, sT2, sT3 = 37, 38, 39, 40
sXCD, sJ = 41, 42
sMT, sNG = 43, 44
sTAG = 60
sSPIN = 62
sONE = 3
VTAG = 166
SC = "sc0 sc1"
OPT = dict(early=1, probe=0, ldf=0, hp=4, prog=0, gtail=2, gper3=4, abl=0, map=0, osc=0, grot=15, yprio=0, sched=0, w2at=16, f2gate=0, spf=0, ft=1, touch=0, gper=2, p1diag=0, fs=7, psleep=2, sc=0, vprio=1, prio3=0, f2pace=1, nof=0, pk=1, thr2=2, qflag=6)

_stamp = Asm.stamp
def stamp_gate(self, i, force=False):
    if OPT["p1diag"] and not force and i not in (0, 15): return
    _stamp(self, i)
Asm.stamp = stamp_gate
def bar(a, i):
    if OPT["p1diag"] and i < 7: a.stamp(1 + 2 * i, True)
    a("s_barrier")
    if OPT["p1diag"] and i < 7: a.stamp(2 + 2 * i, True)

def tr(a, vr):
    if not OPT["p1diag"]: return
    a("s_memtime s[98:99]")
    a("s_waitcnt lgkmcnt(0)")
    a("s_sub_u32 s98, s98, s96")
    a("s_mov_b32 m0, s100")
    a("s_add_u32 s100, s100, 1")
    a("v_writelane_b32 v%d, s98, m0" % vr)
def tr_dump(a, vr, vtmp):
    if not OPT["p1diag"]: return
    a("s_mul_i32 s100, s2, 12")
    a("s_add_u32 s100, s100, s%d" % sW)
    a("s_lshl_b32 s100, s100, 8")
    a("s_add_u32 s100, s100, %d" % (66 << 20))
    a("v_lshlrev_b32 v%d, 2, v2" % vtmp)
    a("buffer_store_dword v%d, v%d, %s, s100 offen" % (vr, vtmp, s(SWS, 4)))

def cap0(a, fn, *args):
    n = len(a.lines); fn(*args); out = a.lines[n:]; del a.lines[n:]; return out

def arrive(a, vaddr, vone, off):
    a("s_mov_b64 exec, 1")
    a("ds_add_u32 v%d, v%d offset:%d" % (vaddr, vone, off))
    a("s_mov_b64 exec, -1")

def spin(a, vaddr, vp, off, stmp, target, name):
    a("s_mov_b32 s%d, 0x200000" % sSPIN)
    a.label(name)
    a("ds_read_b32 v%d, v%d offset:%d" % (vp, vaddr, off))
    a("s_waitcnt lgkmcnt(0)")
    a("v_readfirstlane_b32 s%d, v%d" % (stmp, vp))
    a("s_nop 0")
    a("s_cmp_ge_u32 s%d, %s" % (stmp, target))
    a("s_cbranch_scc1 %s_ok" % name)
    a("s_sleep %d" % (8 if name.startswith("L_f_nofw") else 1))
    a("s_sub_u32 s%d, s%d, 1" % (sSPIN, sSPIN))
    a("s_cbranch_scc0 %s" % name)
    a.label(name + "_ok")

def sc(): return "sc1" if OPT["sc"] else "sc0 sc1"

def set_flag(a, soff, vz, lanes=1):
    a("s_waitcnt vmcnt(0)")
    a("s_mov_b64 exec, %d" % ((1 << lanes) - 1))
    a("buffer_store_dwordx2 %s, v%d, %s, s%d offen %s" % (v(VTAG, 2), vz, s(SWS, 4), soff, sc()))
    a("s_mov_b64 exec, -1")

def last_flag(a, vcn, vone, vp, off, n, soff, skip):
    a("s_waitcnt vmcnt(0)")
    a("s_mov_b64 exec, 1")
    a("ds_add_rtn_u32 v%d, v%d, v%d offset:%d" % (vp, vcn, vone, off))
    a("s_waitcnt lgkmcnt(0)")
    a("v_readfirstlane_b32 s%d, v%d" % (sT0, vp))
    a("s_mov_b64 exec, -1")
    a("s_cmp_lg_u32 s%d, %d" % (sT0, n - 1))
    a("s_cbranch_scc1 %s" % skip)
    a("s_mov_b64 exec, 1")
    a("buffer_store_dwordx2 %s, v3, %s, s%d offen %s" % (v(VTAG, 2), s(SWS, 4), soff, sc()))
    a("s_mov_b64 exec, -1")

def poll(a, voff, soff, nl, vp, name):
    a("s_mov_b32 s%d, 0x20000" % sSPIN)
    assert nl <= 32
    a("s_mov_b32 exec_lo, 0x%x" % ((1 << nl) - 1))
    a("s_mov_b32 exec_hi, 0")
    a.label(name)
    a("buffer_load_dwordx2 %s, v%d, %s, s%d offen sc1" % (v(vp, 2), voff, s(SWS, 4), soff))
    a("s_waitcnt vmcnt(0)")
    a("v_cmp_ne_u64 vcc, %s, %s" % (s(sTAG, 2), v(vp, 2)))
    a("s_sub_u32 s%d, s%d, 1" % (sSPIN, sSPIN))
    a("s_cbranch_scc1 %s_ok" % name)
    a("s_cbranch_vccz %s_ok" % name)
    a("s_sleep %d" % OPT["psleep"])
    a("s_branch %s" % name)
    a.label(name + "_ok")
    a("s_mov_b64 exec, -1")

def tagsetup(a):
    a("s_waitcnt lgkmcnt(0)")
    a("s_add_u32 s%d, s%d, 1" % (sTAG, sTAG))
    a("s_xor_b32 s%d, s%d, 0x%x" % (sTAG + 1, sTAG, TAGX))
    a("v_mov_b32 v%d, s%d" % (VTAG, sTAG))
    a("v_mov_b32 v%d, s%d" % (VTAG + 1, sTAG + 1))

def bf16r(a, r):
    a("v_cvt_pk_bf16_f32 v%d, v%d, v%d" % (r, r, r))
    a("v_and_b32 v%d, 0xffff0000, v%d" % (r, r))

def ln_final(a, sm, sq, tmp):
    a("v_mul_f32 v%d, 0x3b000000, v%d" % (sm, sm))
    a("v_mul_f32 v%d, 0x3b000000, v%d" % (sq, sq))
    a("v_fma_f32 v%d, -v%d, v%d, v%d" % (sq, sm, sm, sq))
    a("v_max_f32 v%d, 0, v%d" % (sq, sq))
    bf16r(a, sq)
    bf16r(a, sm)
    a("v_add_f32 v%d, 0x3727c5ac, v%d" % (sq, sq))
    bf16r(a, sq)
    a("v_sqrt_f32 v%d, v%d" % (sq, sq))
    a.nop(1)
    bf16r(a, sq)
    a("v_rcp_f32 v%d, v%d" % (sq, sq))
    a.nop(1)

def xsum(a, r, t, kind):
    a("v_mov_b32 v%d, v%d" % (t, r))
    a.nop(2)
    a("v_permlane%d_swap_b32 v%d, v%d" % (kind, r, t))
    a("v_add_f32 v%d, v%d, v%d" % (r, r, t))

XB, XA, WB, WA = 12, 13, 17, 18
FR = 116; ACC1 = 48
def role_a(a):
    sD0, sD1, sSCL = 45, 46, 48
    sHEAD, sQT, sKV, sCH, sSL, sKVB, sQ0, sKH = 49, 50, 51, 52, 53, 54, 55, 57
    sVM = 58
    sCNT, sTGT = 45, 46
    sSO, sI, sKC = 28, 29, 31
    sH = 12
    KA, VA, VCN, VONE, VP, VLO = 8, 9, 44, 45, 46, 47
    Q = [4, 112]; KF = [12, 16]; VF = [20, 28]; P = 36; S = [48, 64]; O = [80, 96]
    VST, WB2 = 19, 10
    XS = 132
    a("s_setprio 3")
    a("s_mov_b32 s10, s%d" % sT0)
    a("s_mov_b32 s11, s%d" % sT1)
    a("v_lshrrev_b32 v4, 4, v2")
    a("v_and_b32 v5, 15, v2")
    a("v_xor_b32 v5, v5, v4")
    a("v_lshlrev_b32 v4, 10, v4")
    a("v_lshl_add_u32 v116, v5, 4, v4")
    a("s_and_b32 s%d, s%d, 3" % (sT1, sW))
    a("s_lshl_b32 s%d, s%d, 6" % (sT1, sT1))
    a("s_and_b32 s%d, s%d, 0xffff" % (sT0, sT0))
    a("v_xor_b32 v116, s%d, v116" % sT1)
    a("v_add_u32 v116, s%d, v116" % sT0)
    a("v_xor_b32 v117, 0x8000, v116")
    a("v_and_b32 v4, 31, v2")
    a("v_lshrrev_b32 v5, 5, v2")
    a("v_and_b32 v6, 15, v2")
    a("v_xor_b32 v6, v6, v5")
    a("v_lshlrev_b32 v6, 4, v6")
    a("v_lshl_add_u32 v%d, v4, 10, v6" % XB)
    a("s_lshr_b32 s%d, s%d, 1" % (sT0, sW))
    a("s_min_u32 s%d, s%d, 2" % (sT1, sT0))
    a("s_sub_u32 s%d, s%d, s%d" % (sT2, sT0, sT1))
    a("s_lshl_b32 s%d, s%d, 15" % (sT3, sT2))
    a("v_add_u32 v%d, s%d, v%d" % (XB, sT3, XB))
    a("v_bfe_u32 v6, v2, 2, 2")
    a("v_and_b32 v7, 3, v2")
    a("v_lshlrev_b32 v7, 3, v7")
    a("v_lshl_add_u32 v14, v5, 3, v6")
    a("v_mul_u32_u24 v14, 448, v14")
    a("v_bfe_u32 v15, v2, 4, 1")
    a("v_mul_u32_u24 v15, %d, v15" % UPOFF)
    a("v_add3_u32 v%d, v14, v15, v7" % WB2)
    a("v_and_b32 v13, 16, v2")
    a("v_lshl_add_u32 v7, v13, 1, v7")
    a("s_and_b32 s%d, s%d, 1" % (sT0, sW))
    a("s_lshl_b32 s%d, s%d, 6" % (sT3, sT0))
    a("v_add_u32 v7, s%d, v7" % sT3)
    a("v_lshlrev_b32 v14, 5, v6")
    a("v_and_b32 v14, 64, v14")
    a("v_xor_b32 v7, v7, v14")
    a("v_lshl_add_u32 v7, v6, 7, v7")
    a("v_mul_u32_u24 v14, 3072, v5")
    a("s_lshl_b32 s%d, s%d, 10" % (sT3, sT1))
    a("v_add3_u32 v%d, v7, v14, s%d" % (WB, sT3))
    a("v_and_b32 v6, 15, v2")
    a("v_lshlrev_b32 v6, 4, v6")
    a("v_lshl_add_u32 v%d, v5, 8, v6" % VLO)
    a("s_mul_i32 s%d, s%d, 3" % (sT3, sT0))
    a("s_add_u32 s%d, s%d, 8" % (sT3, sT3))
    a("s_lshl_b32 s%d, s%d, 1" % (sKH, sW))
    a("s_cmp_lt_u32 s%d, 4" % sW)
    a("s_cselect_b32 s%d, s%d, s%d" % (sT3, sKH, sT3))
    a("s_cselect_b32 s%d, %d, 0" % (sH + 1, A2_TT - 1024))
    a("s_cselect_b32 s%d, 0, 1024" % (sH + 2))
    a("s_add_u32 s%d, s%d, 1024" % (sH + 1, sH + 1))
    a("s_add_u32 s%d, s%d, 1024" % (sH + 2, sH + 2))
    a("s_lshl_b32 s%d, s%d, 5" % (sKH, sT3))
    a("v_add_u32 v%d, s%d, v%d" % (WB2, sKH, WB2))
    a("s_lshl1_add_u32 s%d, s%d, s%d" % (sT0, sNG, sT0))
    a("s_lshl1_add_u32 s%d, s%d, s%d" % (sT2, sMT, sT2))
    a("s_mul_i32 s%d, s%d, 14" % (sKH, sNG))
    a("s_add_u32 s%d, s%d, s%d" % (sKH, sKH, sT3))
    a("s_lshl_b32 s%d, s%d, 10" % (sKH, sKH))
    a("s_mul_i32 s%d, s%d, %d" % (sH, sT2, A2_TT))
    a("s_add_u32 s%d, s%d, s%d" % (sH, sH, sKH))
    a("s_add_u32 s%d, s%d, %d" % (sH, sH, A2_OFF + 32 * 1024))
    a("s_add_u32 s%d, s%d, s%d" % (sH + 1, sH + 1, sH))
    a("s_add_u32 s%d, s%d, s%d" % (sH + 2, sH + 2, sH))
    a("s_add_u32 s%d, s%d, 1024" % (sH + 3, sH + 1))
    a("s_lshl_b32 s%d, s%d, 17" % (sD0, sT0))
    a("s_lshl_b32 s%d, s%d, 10" % (sT3, sT2))
    a("s_add_u32 s%d, s%d, s%d" % (sD0, sD0, sT3))
    a("s_add_u32 s%d, s%d, %d" % (sD0, sD0, QF_OFF))
    a("s_min_u32 s%d, s%d, 1" % (sT3, sT1))
    a("s_lshl_b32 s%d, s%d, s%d" % (sD0, sD0, sT3))
    a("s_lshl_b32 s%d, 65536, s%d" % (sD1, sT3))
    a("s_add_u32 s%d, s%d, s%d" % (sD1, sD1, sD0))
    a("s_lshl_b32 s%d, 1024, s%d" % (sKH, sT3))
    a("v_add_u32 v%d, s%d, v3" % (VST, sKH))
    a("v_lshl_add_u32 v115, v13, 13, v%d" % VLO)
    a("s_cmp_eq_u32 s%d, 0" % sT1)
    a("s_cselect_b32 s%d, 0x%x, 1.0" % (sSCL, QSCALE))
    def late_setup():
        a("s_lshr_b32 s%d, s%d, 3" % (sT2, sJ))
        a("s_lshl2_add_u32 s%d, s%d, s%d" % (sHEAD, sXCD, sT2))
        a("s_and_b32 s%d, s%d, 7" % (sCH, sJ))
        a("s_and_b32 s%d, s%d, 3" % (sT0, sW))
        a("s_lshl_b32 s%d, s%d, 1" % (sT0, sT0))
        a("s_lshl3_add_u32 s%d, s%d, s%d" % (sQT, sCH, sT0))
        a("s_lshr_b32 s%d, s%d, 2" % (sKH, sW))
        a("s_add_u32 s%d, s%d, s%d" % (sQT, sQT, sKH))
        a("s_lshl_b32 s%d, s%d, 11" % (sSL, sW))
        a("s_lshl_b32 s%d, s%d, 17" % (sKVB, sHEAD))
        a("s_add_u32 s%d, s%d, %d" % (sKVB, sKVB, KV_OFF))
        a("s_add_u32 s%d, s%d, s%d" % (sKV, sKVB, sSL))
        a("s_lshl_b32 s%d, s%d, 16" % (sQ0, sHEAD))
        a("s_lshl_b32 s%d, s%d, 10" % (sT2, sQT))
        a("s_add_u32 s%d, s%d, s%d" % (sQ0, sQ0, sT2))
        a("s_add_u32 s%d, s%d, %d" % (sQ0, sQ0, QF_OFF))
        a("v_mov_b32 v6, 0")
        a("s_mov_b32 exec_lo, 0x00110000")
        a("s_mov_b32 exec_hi, 0x00110000")
        a("v_mov_b32 v6, s%d" % sONE)
        a("s_mov_b64 exec, -1")
        a("v_mov_b32 v11, v6")
        a("s_mov_b32 s%d, 0" % sCH)
        a("s_mov_b32 s%d, 0x0000ffff" % sVM)
        a("s_mov_b32 s%d, 0x0000ffff" % (sVM + 1))
        a("s_lshl_b32 s%d, s%d, 13" % (sKH, sKH))
        a("v_add_u32 v%d, s%d, v3" % (KA, sKH))
        a("v_add_u32 v%d, s%d, v%d" % (VA, sKH, VLO))
        a("v_mov_b32 v%d, 1" % VONE)
        for i in range(40, 44, 2): a("v_mov_b64 %s, 0" % v(i, 2))
        a("v_mov_b32 v36, 0x%x" % f2u(C1))
        a("v_mov_b32 v38, 0x%x" % f2u(C2))
    a("v_mov_b32 v%d, %d" % (VCN, LDS_CNT))
    for i in range(48, 112, 2): a("v_mov_b64 %s, 0" % v(i, 2))
    a("v_mov_b32 v4, s%d" % sSCL)
    a("ds_write_b128 v%d, v[48:51]" % VCN)
    a("ds_write_b128 v%d, v[48:51] offset:16" % VCN)
    a("ds_write_b128 v%d, v[48:51] offset:32" % VCN)
    a("s_mov_b32 s%d, %d" % (sSO, LDS_F))
    a("s_mov_b32 s%d, 8" % sI)
    a("s_and_b32 s%d, s%d, 7" % (sKC, sJ))
    a("s_lshl_b32 s%d, s%d, 7" % (sKC, sKC))
    def addrs(nk=4, wb=WB):
        a("v_xor_b32 v%d, s%d, v%d" % (XA, sKC, XB))
        a("v_add_u32 v%d, s%d, v%d" % (WA, sSO, wb))
        for k in range(1, nk): a("v_xor_b32 v%d, %d, v%d" % (XA + k, k << 5, XA))
        a("s_add_u32 s%d, s%d, %d" % (sKC, sKC, 32 * nk))
        a("s_and_b32 s%d, s%d, 0x3ff" % (sKC, sKC))
        a("s_add_u32 s%d, s%d, %d" % (sSO, sSO, FSLOT))
        a("s_cmp_eq_u32 s%d, %d" % (sSO, LDS_F + 3 * FSLOT))
        a("s_cselect_b32 s%d, %d, s%d" % (sSO, LDS_F, sSO))
    addrs()
    for p in range(4):
        a("buffer_load_dwordx4 %s, v164, %s, s11 offen offset:%d" % (v(148 + 4 * p, 4), s(SB, 4), p * 256))
    late_setup()
    tagsetup(a)
    a.stamp(1)
    def unpack(n):
        for q in range(4):
            r = XS + 4 * n + q; t = 20 + 8 * (n % 2) + 2 * q
            a("v_lshlrev_b32 v%d, 16, v%d" % (t, r))
            a("v_and_b32 v%d, 0xffff0000, v%d" % (t + 1, r))
    for g in range(2):
        a("s_waitcnt vmcnt(%d)" % (4 - 4 * g))
        if g == 1: a.stamp(14)
        for i in range(16):
            r = XS + 16 * g + i; d = 120 + 2 * (i & 3)
            a("v_dot2_f32_bf16 v%d, v%d, s%d, %s" % (d, r, sONE, "0" if i < 4 else "v%d" % d))
            a("v_dot2_f32_bf16 v%d, v%d, v%d, %s" % (d + 1, r, r, "0" if i < 4 else "v%d" % (d + 1)))
        fill = cap0(a, unpack, 4 * g) + cap0(a, unpack, 4 * g + 1)
        a("v_pk_add_f32 v[120:121], v[120:121], v[122:123]")
        a(fill.pop(0)); a(fill.pop(0))
        a("v_pk_add_f32 v[124:125], v[124:125], v[126:127]")
        a(fill.pop(0))
        a("v_pk_add_f32 v[118:119], v[120:121], v[124:125]")
        a(fill.pop(0)); a(fill.pop(0))
        for sh in (8, 4, 2, 1):
            for k in (118, 119):
                a("v_add_f32_dpp v%d, v%d, v%d row_ror:%d row_mask:0xf bank_mask:0xf" % (k, k, k, sh))
            a(fill.pop(0))
        for x in cap0(a, ln_final, a, 118, 119, 0):
            if x.startswith("s_nop") and fill: a(fill.pop(0))
            else: a(x)
            if x.startswith("v_cvt") and len(fill) > 2: a(fill.pop(0))
        a("v_mul_f32_e64 v118, -v118, v119")
        for l in fill: a(l)
        for n in range(4 * g, 4 * g + 4):
            p = n % 4; T = 20 + 8 * (n % 2)
            for q in range(4):
                a("v_pk_fma_f32 %s, %s, v[118:119], v[118:119] op_sel:[0,1,0] op_sel_hi:[1,1,0]" % (v(T + 2 * q, 2), v(T + 2 * q, 2)))
            for q in range(4):
                a("v_cvt_pk_bf16_f32 v%d, v%d, v%d" % (XS + 4 * n + q, T + 2 * q, T + 2 * q + 1))
            a("ds_write_b128 v%d, %s offset:%d" % (116 + g, v(XS + 4 * n, 4), p * 256))
            if p + 2 < 4: unpack(n + 2)
    a("s_waitcnt lgkmcnt(0)")
    a.stamp(2)
    a("s_barrier")
    a("s_setprio 0")
    a.stamp(3)
    a("s_cmp_ge_u32 s%d, 4" % sW)
    a("s_cbranch_scc1 L_p1_v0")
    def wread(k, dst):
        for sec in range(2):
            a("ds_read_b64_tr_b16 %s, v%d offset:%d" % (v(dst + 2 * sec, 2), WA, k * 6144 + sec * 512))
    def xread(k, dst, tb): a("ds_read_b128 %s, v%d offset:%d" % (v(dst, 4), XA + k, tb * 32768))
    def gread(k, dst, t):
        for sec in range(2):
            a("ds_read_b64_tr_b16 %s, v%d offset:%d" % (v(dst + 2 * sec, 2), WA, k * 7168 + sec * 1792 + t * 32))
    def cap(fn, *args):
        n = len(a.lines); fn(*args); out = a.lines[n:]; del a.lines[n:]; return out
    def weave(mm, rd, per):
        for l in mm:
            a(l)
            if l.startswith("v_mfma"):
                for _ in range(per):
                    if rd: a(rd.pop(0))
        for l in rd: a(l)
    def gemm(lab, rdf, mmf, n, per, touch=False):
        for k in range(3): rdf(k)
        a("s_branch %s_m" % lab)
        a.label(lab)
        rd = cap(rdf, 0) + cap(rdf, 1)
        m2 = cap(mmf, 2)
        for l in m2:
            a(l)
            for _ in range(per):
                if rd: a(rd.pop(0))
        weave(cap(mmf, 3), rd + cap(rdf, 2), per)
        a.label(lab + "_m")
        a("s_waitcnt lgkmcnt(%d)" % (2 * n))
        weave(cap(mmf, 0), cap(rdf, 3), per)
        a("s_waitcnt lgkmcnt(%d)" % (2 * n))
        mm1 = cap(mmf, 1)
        a(mm1[0]); addrs()
        for l in mm1[1:]: a(l)
        a("s_sub_u32 s%d, s%d, 1" % (sI, sI))
        a("s_waitcnt lgkmcnt(0)")
        a("s_barrier")
        a("s_cmp_lg_u32 s%d, 0" % sI)
        a("s_cbranch_scc1 %s" % lab)
        a.stamp(4)
        mmf(2); mmf(3)
        a("s_mov_b32 s%d, %d" % (sSO, LDS_F + 2 * FSLOT))
        a("s_lshl_b32 s%d, s56, 6" % sKC)
        a("s_mov_b32 s%d, 16" % sI)
        addrs(2, WB2)
    GB = [[132, 148], [116, 20]]
    def gu(lab, rdf, mmf, n):
        a.stamp(5)
        def pre():
            addrs(2, WB2)
            a("s_sub_u32 s%d, s%d, 1" % (sI, sI))
        def tail(last=False):
            if last:
                a("s_cmp_lg_u32 s%d, %d" % (sI, 18 - OPT["qflag"]))
                a("s_cbranch_scc1 %s_b" % lab)
                a("s_waitcnt vmcnt(0)")
                a.label(lab + "_b")
            a("s_waitcnt lgkmcnt(0)")
            a("s_barrier")
        def half(p):
            mm = cap(mmf, 1 - p, 0) + cap(mmf, 1 - p, 1)
            k = OPT["gtail"]
            weave(mm[:len(mm) - k], cap(rdf, p, 0) + cap(rdf, p, 1), OPT["gper"] if n == 6 else OPT["gper3"])
            pre()
            for l in mm[len(mm) - k:]: a(l)
        pre()
        a("s_branch %s_m" % lab)
        a.label(lab)
        half(0)
        a.label(lab + "_m")
        tail()
        half(1)
        tail(True)
        a("s_cmp_lg_u32 s%d, 0" % sI)
        a("s_cbranch_scc1 %s" % lab)
        a("s_setprio 3")
        mmf(1, 0); mmf(1, 1)
    def qk_rd(k): wread(k, FR + 12 * k); xread(k, FR + 12 * k + 4, 0); xread(k, FR + 12 * k + 8, 1)
    def qk_mm(k):
        f = FR + 12 * k
        for tb in range(2):
            d = v(ACC1 + 16 * tb, 16)
            a("v_mfma_f32_32x32x16_bf16 %s, %s, %s, %s" % (d, v(f, 4), v(f + 4 + 4 * tb, 4), d))
    def g4_rd(p, k):
        b = GB[p][k]
        gread(k, b, 0); xread(k, b + 8, 0); xread(k, b + 12, 1); gread(k, b + 4, 1)
    def g4_mm(p, k):
        b = GB[p][k]
        for fi in range(2):
            for tb in range(2):
                d = v(ACC1 + 16 * (2 * fi + tb), 16)
                a("v_mfma_f32_32x32x16_bf16 %s, %s, %s, %s" % (d, v(b + 4 * fi, 4), v(b + 8 + 4 * tb, 4), d))
    gemm("L_p1_qk", qk_rd, qk_mm, 4, 3)
    g4_rd(0, 0); g4_rd(0, 1)
    for tb in range(2):
        A0 = ACC1 + 16 * tb
        for i in range(0, 16, 2): a("v_pk_mul_f32 %s, %s, v[4:5] op_sel_hi:[1,0]" % (v(A0 + i, 2), v(A0 + i, 2)))
        for i in range(8): a("v_cvt_pk_bf16_f32 v%d, v%d, v%d" % (FR + 8 * tb + i, A0 + 2 * i, A0 + 2 * i + 1))
        a("buffer_store_dwordx4 %s, v%d, %s, s%d offen %s" % (v(FR + 8 * tb, 4), VST if tb else 3, s(SWS, 4), sD0, sc()))
        a("buffer_store_dwordx4 %s, v%d, %s, s%d offen %s" % (v(FR + 8 * tb + 4, 4), VST if tb else 3, s(SWS, 4), sD1, sc()))
        for i in range(0, 16, 2): a("v_mov_b64 %s, 0" % v(A0 + i, 2))
    gu("L_gu4", g4_rd, g4_mm, 6)
    a("s_branch L_p1_done")
    a.label("L_p1_v0")
    if OPT["vprio"]: a("s_setprio 1")
    def v_rd(k): xread(k, FR + 8 * k + 4, 0); wread(k, FR + 8 * k)
    def v_mm(k):
        f = FR + 8 * k; d = v(ACC1, 16)
        a("v_mfma_f32_32x32x16_bf16 %s, %s, %s, %s" % (d, v(f + 4, 4), v(f, 4), d))
    def g3_rd(p, k):
        b = GB[p][k]
        gread(k, b, 0); xread(k, b + 12, 0); gread(k, b + 4, 1); gread(k, b + 8, 2)
    def g3_mm(p, k):
        b = GB[p][k]
        for fi in range(3):
            d = v(ACC1 + 16 * fi, 16)
            a("v_mfma_f32_32x32x16_bf16 %s, %s, %s, %s" % (d, v(b + 4 * fi, 4), v(b + 12, 4), d))
    gemm("L_p1_v", v_rd, v_mm, 3, 4, True)
    g3_rd(0, 0); g3_rd(0, 1)
    for i in range(8): a("v_cvt_pk_bf16_f32 v%d, v%d, v%d" % (FR + i, ACC1 + 2 * i, ACC1 + 2 * i + 1))
    a("buffer_store_dwordx4 %s, v115, %s, s%d offen offset:1024 %s" % (v(FR, 4), s(SWS, 4), sD0, sc()))
    a("buffer_store_dwordx4 %s, v115, %s, s%d offen offset:1536 %s" % (v(FR + 4, 4), s(SWS, 4), sD0, sc()))
    for i in range(0, 16, 2): a("v_mov_b64 %s, 0" % v(ACC1 + i, 2))
    gu("L_gu3", g3_rd, g3_mm, 7)
    a.label("L_p1_done")
    tr_dump(a, 165, 164)
    a.stamp(6)
    def dma():
        a("s_mov_b32 m0, s%d" % sSL)
        a("s_add_u32 s%d, s%d, s%d" % (sT0, sKV, sCH))
        a("buffer_load_dwordx4 v3, %s, s%d offen sc1 lds" % (s(SWS, 4), sT0))
        a("buffer_load_dwordx4 v3, %s, s%d offen offset:1024 sc1 lds" % (s(SWS, 4), sT0))
        a("s_add_u32 s%d, s%d, 16384" % (sSL, sSL))
        a("s_and_b32 s%d, s%d, 0xffff" % (sSL, sSL))
        a("s_add_u32 s%d, s%d, 16384" % (sCH, sCH))
    dma()
    a("s_xor_b32 s%d, s%d, 1024" % (sT1, sQ0))
    a("buffer_load_dwordx4 %s, v3, %s, s%d offen sc1" % (v(Q[0], 4), s(SWS, 4), sQ0))
    a("buffer_load_dwordx4 %s, v3, %s, s%d offen sc1" % (v(Q[1], 4), s(SWS, 4), sT1))
    dma()
    def geglu(t):
        Gt = ACC1 + 16 * t; U = Gt + 8; T = 132 + (t % 2) * 12
        R = range(0, 8, 2)
        for i in R: a("v_pk_mul_f32 %s, %s, %s" % (v(T + i, 2), v(Gt + i, 2), v(Gt + i, 2)))
        for i in R: a("v_pk_fma_f32 %s, %s, v[38:39], v[36:37] op_sel_hi:[1,0,0]" % (v(T + i, 2), v(T + i, 2)))
        for i in R: a("v_pk_mul_f32 %s, %s, %s" % (v(T + i, 2), v(T + i, 2), v(Gt + i, 2)))
        for i in range(8): a("v_exp_f32 v%d, v%d" % (T + i, T + i))
        for i in R: a("v_pk_mul_f32 %s, %s, %s" % (v(Gt + i, 2), v(Gt + i, 2), v(U + i, 2)))
        for i in R: a("v_pk_add_f32 %s, %s, 1.0 op_sel_hi:[1,0]" % (v(T + i, 2), v(T + i, 2)))
        for i in range(8): a("v_rcp_f32 v%d, v%d" % (T + i, T + i))
        a.nop(1)
        for i in R: a("v_pk_mul_f32 %s, %s, %s" % (v(Gt + i, 2), v(Gt + i, 2), v(T + i, 2)))
        for i in range(4): a("v_cvt_pk_bf16_f32 v%d, v%d, v%d" % (T + 8 + i, Gt + 2 * i, Gt + 2 * i + 1))
        a("buffer_store_dwordx4 %s, v3, %s, s%d offen %s" % (v(T + 8, 4), s(SWS, 4), sH + t, sc()))
        if t >= 2:
            for i in range(0, 16, 2): a("v_mov_b64 %s, 0" % v(Gt + i, 2))
    a("v_mov_b32 v10, v11")
    geglu(0)
    for i in range(0, 16, 2): a("v_mov_b64 %s, v[10:11]" % v(VF[0] + i, 2))
    dma()
    geglu(1)
    if OPT["early"]:
        a("s_waitcnt vmcnt(4)")
        arrive(a, VCN, VONE, 0)
    geglu(2)
    a("s_cmp_ge_u32 s%d, 4" % sW)
    a("s_cbranch_scc1 L_g_done")
    geglu(3)
    a.label("L_g_done")
    a.stamp(9)
    def rdK(kt): a("ds_read_b128 %s, v%d offset:%d" % (v(KF[kt % 2], 4), KA, (kt % 4) * 2048))
    def rdV(kt):
        a("s_mov_b64 exec, %s" % s(sVM, 2))
        a("ds_read_b128 %s, v%d offset:%d" % (v(VF[kt % 2], 4), VA, (kt % 4) * 2048 + 1024))
        a("ds_read_b128 %s, v%d offset:%d" % (v(VF[kt % 2] + 4, 4), VA, (kt % 4) * 2048 + 1536))
        a("s_mov_b64 exec, -1")
    def mfS(u): a("v_mfma_f32_32x32x16_bf16 %s, %s, %s, 0" % (v(S[u % 2], 16), v(KF[(u >> 1) % 2], 4), v(Q[u % 2], 4)))
    def mfPV(u, j): a("v_mfma_f32_32x32x16_bf16 %s, %s, %s, %s" % (v(O[u % 2], 16), v(VF[(u >> 1) % 2] + 4 * j, 4), v(P + 4 * j, 4), v(O[u % 2], 16)))
    if not OPT["early"]:
        a("s_waitcnt vmcnt(5)")
        arrive(a, VCN, VONE, 0)
    spin(a, VCN, VP, 0, sT0, "8", "L_a_first")
    rdK(0); rdV(0); rdK(1)
    a("s_mov_b32 s%d, 0" % sCNT)
    a("s_mov_b32 s%d, 8" % sTGT)
    a("s_waitcnt lgkmcnt(3)")
    mfS(0)
    a.stamp(10)
    a("s_setprio 0")
    if OPT["yprio"]:
        a("s_cmp_lt_u32 s%d, 4" % sW)
        a("s_cbranch_scc1 L_at_yp")
        a("s_setprio 1")
        a.label("L_at_yp")
    a.nop(9)
    a.label("L_at_loop")
    for u in range(8):
        Sx = S[u % 2]
        e = lambda i: a("v_exp_f32 v%d, v%d" % (Sx + i, Sx + i))
        cv = lambda i: a("v_cvt_pk_bf16_f32 v%d, v%d, v%d" % (P + i, Sx + 2 * i, Sx + 2 * i + 1))
        if OPT["hp"] == 1 and u in (0, 4): a("s_setprio %d" % (1 if u == 0 else 0))
        if OPT["hp"] == 2 and u % 2 == 0: a("s_setprio %d" % (1 if u % 4 == 2 else 0))
        if OPT["hp"] == 3: a("s_setprio %d" % (1 if u % 2 == 0 else 0))
        if OPT["hp"] == 4 and u in (0, 2, 4): a("s_setprio %d" % (2 - u // 2))
        if u % 2 == 0: a("s_waitcnt lgkmcnt(0)")
        mfS(u + 1)
        e(0)
        if u == 4: a("v_readfirstlane_b32 s%d, v%d" % (sT0, VP))
        e(1)
        if u == 4:
            a("s_cmp_ge_u32 s%d, s%d" % (sT0, sTGT))
            a("s_cbranch_scc0 L_at_slow")
            a.label("L_at_back")
        e(2); e(3)
        mfPV(u - 1, 1)
        if u % 2 == 0:
            rdK(u // 2 + 2); rdV(u // 2 + 1)
        cv(0); e(4)
        if u == 3:
            a("ds_read_b32 v%d, v%d" % (VP, VCN))
            a("v_add_u32 v%d, 16384, v%d" % (KA, KA))
            a("v_and_b32 v%d, 0xffff, v%d" % (KA, KA))
        if u == 5:
            a("v_add_u32 v%d, 16384, v%d" % (VA, VA))
            a("v_and_b32 v%d, 0xffff, v%d" % (VA, VA))
            a("s_waitcnt vmcnt(0)")
            a("s_cmp_ge_u32 s%d, 5" % sCNT)
            a("s_cbranch_scc1 L_at_nodma")
            a("s_setprio 3")
            dma()
            a("s_setprio 0")
            if OPT["yprio"]:
                a("s_cmp_lt_u32 s%d, 4" % sW)
                a("s_cbranch_scc1 L_at_nodma")
                a("s_setprio 1")
            a.label("L_at_nodma")
        if u == 6:
            arrive(a, VCN, VONE, 0)
        if OPT["sched"] == 0:
            cv(1); e(5); e(6); e(7); cv(2); e(8); cv(3); e(9); e(10)
            mfPV(u, 0)
            e(11); e(12); cv(4); e(13); cv(5); e(14); e(15); cv(6)
        elif OPT["sched"] == 1:
            e(5); e(6); e(7); e(8); cv(1); cv(2); cv(3); e(9); e(10)
            mfPV(u, 0)
            e(11); e(12); e(13); e(14); e(15); cv(4); cv(5); cv(6)
        else:
            cv(1); e(5); e(6); e(7); cv(2); e(8); cv(3); e(9); e(10); e(11); cv(4)
            mfPV(u, 0)
            e(12); e(13); cv(5); e(14); e(15); cv(6)
        if u == 7:
            a("s_add_u32 s%d, s%d, 8" % (sTGT, sTGT))
            a("s_add_u32 s%d, s%d, 1" % (sCNT, sCNT))
            a("s_cmp_lt_u32 s%d, 8" % sCNT)
        cv(7)
    a("s_cbranch_scc1 L_at_loop")
    a.nop(1)
    mfPV(7, 1)
    a.stamp(11)
    a("s_lshl_b32 s%d, s%d, 12" % (sT0, sW))
    a("s_add_u32 s%d, s%d, 16384" % (sT0, sT0))
    a("v_add_u32 v10, s%d, v3" % sT0)
    a("v_xor_b32 v11, 0xc000, v10")
    a("s_and_b32 s%d, s%d, 3" % (sT1, sW))
    a("s_lshl_b32 s%d, s%d, 2" % (sKH, sT1))
    a("s_mul_i32 s%d, s%d, %d" % (sT2, sQT, A2_TT))
    a("s_lshl_b32 s%d, s%d, 10" % (sT1, sHEAD))
    a("s_add_u32 s%d, s%d, s%d" % (sT2, sT2, sT1))
    a("s_add_u32 s%d, s%d, %d" % (sT2, sT2, A2_OFF))
    a("s_lshr_b32 s%d, s%d, 3" % (sT3, sQT))
    a("s_lshl_b32 s%d, s%d, 5" % (sT3, sT3))
    a("s_add_u32 s%d, s%d, s%d" % (sT3, sT3, sHEAD))
    a("s_lshl_b32 s%d, s%d, %d" % (sT3, sT3, OPT["fs"]))
    a("s_add_u32 s%d, s%d, %d" % (sT3, sT3, FO_OFF))
    a("ds_write_b128 v10, %s" % v(O[1], 4))
    a("ds_write_b128 v10, %s offset:1024" % v(O[1] + 4, 4))
    a("ds_write_b32 v10, v%d offset:2048" % (O[1] + 8))
    a("s_waitcnt lgkmcnt(0)")
    a("v_add_u32 v12, s%d, v%d" % (sKH, VCN))
    arrive(a, 12, VONE, 8)
    spin(a, 12, VP, 8, sT0, "2", "L_a_pair")
    a("ds_read_b128 %s, v11" % v(S[0], 4))
    a("ds_read_b128 %s, v11 offset:1024" % v(S[0] + 4, 4))
    a("ds_read_b32 v%d, v11 offset:2048" % (S[0] + 8))
    a("s_waitcnt lgkmcnt(0)")
    for i in range(8, -1, -1): a("v_add_f32 v%d, v%d, v%d" % (O[0] + i, O[0] + i, S[0] + i))
    a("v_cmp_nle_f32 vcc, 0x21800000, v%d" % (O[0] + 8))
    a("s_nop 1")
    a("s_mov_b64 s[56:57], vcc")
    a("v_cmp_nge_f32 vcc, 0x5d800000, v%d" % (O[0] + 8))
    a("s_nop 1")
    a("s_or_b64 vcc, vcc, s[56:57]")
    a("s_cbranch_vccnz L_a_fallback")
    a.label("L_a_fin")
    a("s_setprio 3")
    a.stamp(12)
    a("v_rcp_f32 v10, v%d" % (O[0] + 8))
    a.nop(1)
    for i in range(8): a("v_mul_f32 v%d, v%d, v10" % (O[0] + i, O[0] + i))
    for i in range(4): a("v_cvt_pk_bf16_f32 v%d, v%d, v%d" % (P + i, O[0] + 2 * i, O[0] + 2 * i + 1))
    a("buffer_store_dwordx4 %s, v3, %s, s%d offen %s" % (v(P, 4), s(SWS, 4), sT2, sc()))
    last_flag(a, VCN, VONE, VP, 32, 8, sT3, "L_a_exit")
    a.label("L_a_exit")
    a.stamp(13)
    a.stamp_flush(0, SWS, sW, 12)
    a("s_endpgm")
    a.label("L_at_slow")
    spin(a, VCN, VP, 0, sT0, "s%d" % sTGT, "L_at_spin")
    a("s_branch L_at_back")
    a.label("L_a_fallback")
    C = O[1]; S0 = S[0]
    a("v_mov_b32 v10, 0xff800000")
    a("s_mov_b32 s%d, s%d" % (sT0, sKVB))
    a("s_mov_b32 s%d, 64" % sCNT)
    a.label("L_fb1")
    a("buffer_load_dwordx4 %s, v3, %s, s%d offen sc1" % (v(KF[0], 4), s(SWS, 4), sT0))
    a("s_waitcnt vmcnt(0)")
    a("v_mfma_f32_32x32x16_bf16 %s, %s, %s, 0" % (v(S0, 16), v(KF[0], 4), v(Q[0], 4)))
    a.nop(12)
    for i in range(0, 16, 2): a("v_max3_f32 v10, v10, v%d, v%d" % (S0 + i, S0 + i + 1))
    a("s_add_u32 s%d, s%d, 2048" % (sT0, sT0))
    a("s_sub_u32 s%d, s%d, 1" % (sCNT, sCNT))
    a("s_cmp_lg_u32 s%d, 0" % sCNT)
    a("s_cbranch_scc1 L_fb1")
    a("v_mov_b32 v11, v10")
    a.nop(2)
    a("v_permlane32_swap_b32 v10, v11")
    a("v_max_f32 v10, v10, v11")
    for i in range(16): a("v_sub_f32 v%d, 0, v10" % (C + i))
    for i in range(16): a("v_mov_b32 v%d, 0" % (O[0] + i))
    a("s_mov_b32 s%d, s%d" % (sT0, sKVB))
    a("s_mov_b32 s%d, 64" % sCNT)
    a.label("L_fb2")
    a("buffer_load_dwordx4 %s, v3, %s, s%d offen sc1" % (v(KF[0], 4), s(SWS, 4), sT0))
    a("s_mov_b64 exec, %s" % s(sVM, 2))
    a("buffer_load_dwordx4 %s, v47, %s, s%d offen offset:1024 sc1" % (v(VF[0], 4), s(SWS, 4), sT0))
    a("buffer_load_dwordx4 %s, v47, %s, s%d offen offset:1536 sc1" % (v(VF[0] + 4, 4), s(SWS, 4), sT0))
    a("s_mov_b64 exec, -1")
    a("s_waitcnt vmcnt(0)")
    a("v_mfma_f32_32x32x16_bf16 %s, %s, %s, %s" % (v(S0, 16), v(KF[0], 4), v(Q[0], 4), v(C, 16)))
    a.nop(12)
    for i in range(16): a("v_exp_f32 v%d, v%d" % (S0 + i, S0 + i))
    a.nop(1)
    for i in range(8): a("v_cvt_pk_bf16_f32 v%d, v%d, v%d" % (P + i, S0 + 2 * i, S0 + 2 * i + 1))
    a.nop(2)
    for j in range(2): a("v_mfma_f32_32x32x16_bf16 %s, %s, %s, %s" % (v(O[0], 16), v(VF[0] + 4 * j, 4), v(P + 4 * j, 4), v(O[0], 16)))
    a("s_add_u32 s%d, s%d, 2048" % (sT0, sT0))
    a("s_sub_u32 s%d, s%d, 1" % (sCNT, sCNT))
    a("s_cmp_lg_u32 s%d, 0" % sCNT)
    a("s_cbranch_scc1 L_fb2")
    a.nop(12)
    a("s_branch L_a_fin")

def role_f(a):
    sF = 47; SG = 12
    VCN, VONE = 164, 1
    sW1, sM1, sKD, sSO, sI, sW2, sM2, sFQ, sFH, sPOLL = 10, 11, 20, 21, 48, 49, 50, 51, 52, 58
    a("s_sub_u32 s%d, s%d, 8" % (sF, sW))
    a("s_setprio 2")
    srd(a, SA, P_WQKV, 512 * 3072)
    a("v_lshrrev_b32 v6, 3, v2")
    a("v_and_b32 v9, 7, v2")
    a("v_lshlrev_b32 v8, 1, v6")
    a("v_and_b32 v8, 4, v8")
    a("v_xor_b32 v7, v9, v8")
    a("v_mul_u32_u24 v8, 3072, v6")
    a("v_lshl_add_u32 v8, v7, 4, v8")
    a("s_mul_i32 s%d, s%d, %d" % (sW1, sF, 16 * 3072))
    a("s_lshl_b32 s%d, s%d, 7" % (sT0, sNG))
    a("s_add_u32 s%d, s%d, s%d" % (sW1, sW1, sT0))
    a("s_mul_i32 s%d, s%d, 6144" % (sM1, sF))
    a("s_add_u32 s%d, s%d, %d" % (sM1, sM1, LDS_F))
    a("s_and_b32 s%d, s%d, 7" % (sKD, sJ))
    a("s_mov_b32 s%d, 0" % sSO)
    a("s_mov_b32 s%d, 0" % sI)
    a("s_cmp_ge_u32 s%d, 2" % sF)
    a("s_cselect_b64 %s, %s, %s" % (s(P_WG, 2), s(P_WU, 2), s(P_WG, 2)))
    a("s_cselect_b32 s%d, %d, 0" % (sM2, UPOFF))
    a("s_add_u32 s%d, s%d, %d" % (sM2, sM2, LDS_F))
    srd(a, SG, P_WG, 512 * 3584)
    for i in range(7):
        a("v_add_u32 v4, %d, v2" % (64 * i))
        a("v_mul_u32_u24 v5, 2341, v4")
        a("v_lshrrev_b32 v5, 16, v5")
        a("v_mul_u32_u24 v5, %d, v5" % (3584 - 448))
        a("v_lshl_add_u32 v5, v4, 4, v5")
        a("v_subrev_u32 v%d, %d, v5" % (16 + i, (i % 4) * 1024))
    a("s_and_b32 s%d, s%d, 1" % (sT1, sF))
    a("s_mul_i32 s%d, s%d, %d" % (sW2, sT1, 16 * 3584))
    a("s_mul_i32 s%d, s%d, 448" % (sT2, sNG))
    a("s_add_u32 s%d, s%d, s%d" % (sW2, sW2, sT2))
    a("s_mul_i32 s%d, s%d, 7168" % (sT1, sT1))
    a("s_add_u32 s%d, s%d, s%d" % (sM2, sM2, sT1))
    def spf():
        if not OPT["spf"]: return
        for r in range(2):
            for q in range(4): a("s_load_dword s53, s[54:55], %d" % (r * 3584 + q * 128))
        a("s_add_u32 s54, s54, %d" % (2 * 3584))
        a("s_addc_u32 s55, s55, 0")
    tagsetup(a)
    a("s_mul_i32 s%d, s56, %d" % (sT0, 32 * 3584))
    a("s_add_u32 s%d, s%d, s%d" % (sT0, sT0, sW2))
    a("s_mov_b32 s53, s%d" % sT0)
    a("v_lshrrev_b32 v4, 2, v2")
    a("v_mul_u32_u24 v4, 3584, v4")
    a("v_and_b32 v5, 3, v2")
    a("v_lshl_add_u32 v23, v5, 7, v4")
    a("s_lshl_b32 s%d, s%d, 5" % (sFQ, sNG))
    a("s_add_u32 s%d, s%d, s%d" % (sFQ, sFQ, sMT))
    a("s_lshl_b32 s%d, s%d, %d" % (sFQ, sFQ, OPT["fs"]))
    a("s_add_u32 s%d, s%d, %d" % (sFQ, sFQ, FQ_OFF))
    a("s_lshl3_add_u32 s%d, s%d, s%d" % (sFH, sMT, sNG))
    a("s_lshl_b32 s%d, s%d, %d" % (sFH, sFH, OPT["fs"]))
    a("s_add_u32 s%d, s%d, %d" % (sFH, sFH, FH_OFF))
    a("s_lshl_b32 s%d, s%d, %d" % (sPOLL, sXCD, 5 + OPT["fs"]))
    a("s_add_u32 s%d, s%d, %d" % (sPOLL, sPOLL, FQ_OFF))
    a("v_mov_b32 v%d, %d" % (VCN, LDS_CNT))
    a("v_mov_b32 v%d, 1" % VONE)
    def slot():
        a("s_add_u32 s%d, s%d, %d" % (sSO, sSO, FSLOT))
        a("s_cmp_eq_u32 s%d, %d" % (sSO, 3 * FSLOT))
        a("s_cselect_b32 s%d, 0, s%d" % (sSO, sSO))
        a("s_add_u32 s%d, s%d, 1" % (sI, sI))
    a("s_waitcnt vmcnt(0)")
    a.stamp(1)
    a.label("L_d_issue")
    a("s_mul_i32 s%d, s%d, %d" % (sT2, sKD, 64 * 3072))
    a("s_add_u32 s%d, s%d, s%d" % (sT2, sT2, sW1))
    a("s_add_u32 m0, s%d, s%d" % (sM1, sSO))
    a("s_add_u32 s%d, s%d, 1" % (sKD, sKD))
    for m in range(3): a("buffer_load_dwordx4 v8, %s, s%d offen offset:%d lds" % (s(SA, 4), sT2, m * 1024))
    a("s_add_u32 m0, m0, 3072")
    a("s_add_u32 s%d, s%d, %d" % (sT2, sT2, 8 * 3072))
    for m in range(3): a("buffer_load_dwordx4 v8, %s, s%d offen offset:%d lds" % (s(SA, 4), sT2, m * 1024))
    a("s_and_b32 s%d, s%d, 7" % (sKD, sKD))
    slot()
    if OPT["ft"]:
        a("s_cmp_lt_u32 s%d, 3" % sI)
        a("s_cbranch_scc1 L_d_issue")
        a("s_cmp_lg_u32 s%d, 3" % sI)
        a("s_cbranch_scc1 L_d_w")
        a("buffer_load_dword v23, v23, %s, s53 offen" % s(SG, 4))
        a("s_waitcnt vmcnt(13)")
        a("s_barrier")
        a.label("L_d_w")
        a("s_waitcnt vmcnt(7)")
        a("s_cmp_lt_u32 s%d, 5" % sI)
        a("s_cbranch_scc1 L_d_b")
        a("s_waitcnt vmcnt(6)")
        a.label("L_d_b")
    else:
        a("s_cmp_eq_u32 s%d, 1" % sI)
        a("s_cbranch_scc1 L_d_issue")
        a("s_waitcnt vmcnt(6)")
    a("s_barrier")
    a("s_cmp_lg_u32 s%d, 8" % sI)
    a("s_cbranch_scc1 L_d_issue")
    a.stamp(3)
    if OPT["probe"] == 1: a("s_memrealtime s[92:93]")
    a("s_mov_b32 s%d, s56" % sKD)
    a("s_mov_b32 s%d, 0" % sI)
    a("v_lshlrev_b32 v165, %d, v2" % OPT["fs"])
    a.label("L_g_issue")
    a("s_mul_i32 s%d, s%d, %d" % (sT2, sKD, 32 * 3584))
    a("s_add_u32 m0, s%d, s%d" % (sM2, sSO))
    a("s_add_u32 s%d, s%d, s%d" % (sT2, sT2, sW2))
    for i in range(7):
        if i == 4:
            a("s_add_u32 m0, m0, 4096")
            a("s_add_u32 s%d, s%d, 1" % (sKD, sKD))
        a("buffer_load_dwordx4 v%d, %s, s%d offen offset:%d lds" % (16 + i, s(SG, 4), sT2, (i % 4) * 1024))
    a("s_and_b32 s%d, s%d, 15" % (sKD, sKD))
    slot()
    tr(a, 30)
    a("s_waitcnt vmcnt(7)")
    tr(a, 30)
    a("s_barrier")
    tr(a, 30)
    a("s_lshl_b32 s%d, s%d, 5" % (sT0, sF))
    a("s_add_u32 s%d, s%d, s%d" % (sT0, sT0, sI))
    a("s_cmp_lg_u32 s%d, %d" % (sT0, OPT["qflag"]))
    a("s_cbranch_scc1 L_g_nf")
    a("s_mov_b64 exec, 1")
    a("buffer_store_dwordx2 %s, v3, %s, s%d offen %s" % (v(VTAG, 2), s(SWS, 4), sFQ, sc()))
    a("s_mov_b64 exec, -1")
    a.label("L_g_nf")
    a("s_cmp_lg_u32 s%d, 16" % sI)
    a("s_cbranch_scc1 L_g_issue")
    a.stamp(4)
    a("s_waitcnt vmcnt(0) lgkmcnt(0)")
    a("s_barrier")
    a("s_cmp_lg_u32 s%d, 0" % sF)
    a("s_cbranch_scc1 L_f_nopoll")
    poll(a, 165, sPOLL, 32, 24, "L_f_pollq")
    a.label("L_f_nopoll")
    a("s_barrier")
    if OPT["probe"] == 2: a("s_memrealtime s[92:93]")
    tr_dump(a, 30, 31)
    a.stamp(5)
    a("s_setprio %d" % OPT["prio3"])
    if OPT["nof"] == 1: a("s_branch L_f_ep")
    sMT2, sNT, sWB, sA0, sA1, sGW, sGA, sLB = 43, 44, 45, 46, 53, 54, 55, 56
    a("s_and_b32 s%d, s%d, 3" % (sT2, sJ))
    a("s_lshl2_add_u32 s%d, s%d, s%d" % (sMT2, sXCD, sT2))
    a("s_lshr_b32 s%d, s%d, 2" % (sNT, sJ))
    srd(a, SA, P_WD, 1792 * 1024)
    srd(a, SB, P_WO, 512 * 1024)
    a("v_lshrrev_b32 v8, 3, v2")
    a("v_lshlrev_b32 v7, 1, v8")
    a("v_and_b32 v7, 4, v7")
    a("v_and_b32 v9, 7, v2")
    a("v_xor_b32 v7, v7, v9")
    a("v_lshlrev_b32 v8, 10, v8")
    a("v_lshl_add_u32 v8, v7, 4, v8")
    for i in range(1, 4): a("v_add_u32 v%d, %d, v8" % (8 + i, i * 7168))
    a("s_lshl_b32 s%d, s%d, 7" % (sWB, sNT))
    a("s_mul_i32 s%d, s%d, %d" % (sLB, sF, F2REG))
    a("s_add_u32 s%d, s%d, %d" % (sLB, sLB, LDS_F))
    a("s_mul_i32 s%d, s%d, 3" % (sGW, sT2))
    a("s_add_u32 s%d, s%d, s%d" % (sGW, sGW, sNT))
    a("s_sub_u32 s%d, s%d, 14" % (sT2, sGW))
    a("s_cmp_ge_u32 s%d, 14" % sGW)
    a("s_cselect_b32 s%d, s%d, s%d" % (sGW, sT2, sGW))
    a("s_mov_b32 s%d, s%d" % (sGA, sGW))
    a("s_and_b32 s%d, s%d, 1" % (sT1, sF))
    a("s_lshl1_add_u32 s%d, s%d, s%d" % (sT1, sMT2, sT1))
    a("s_mul_i32 s%d, s%d, %d" % (sA0, sT1, A2_TT))
    a("s_xor_b32 s%d, s%d, 1" % (sT1, sT1))
    a("s_mul_i32 s%d, s%d, %d" % (sA1, sT1, A2_TT))
    a("s_add_u32 s%d, s%d, %d" % (sA0, sA0, A2_OFF))
    a("s_add_u32 s%d, s%d, %d" % (sA1, sA1, A2_OFF))
    sF14 = 57
    a("s_mul_i32 s%d, s%d, 14" % (sF14, sF))
    a.vm = []
    def adv(sg):
        a("s_add_u32 s%d, s%d, 1" % (sg, sg))
        a("s_cmp_eq_u32 s%d, 14" % sg)
        a("s_cselect_b32 s%d, 0, s%d" % (sg, sg))
    def w2(g):
        a("s_add_u32 m0, s%d, %d" % (sLB, (g % 5) * 4096))
        if g < 14:
            a("s_add_u32 s%d, s%d, s%d" % (sT0, sF14, sGW))
            a("s_lshl_b32 s%d, s%d, 15" % (sT0, sT0))
            adv(sGW); sr = SA
        else:
            a("s_lshl_b32 s%d, s%d, 17" % (sT0, sF))
            a("s_add_u32 s%d, s%d, %d" % (sT0, sT0, (g - 14) * 32768)); sr = SB
        a("s_add_u32 s%d, s%d, s%d" % (sT0, sT0, sWB))
        if OPT["thr2"]: a("s_waitcnt vmcnt(%d)" % OPT["thr2"])
        for i in range(4):
            a.vmem("buffer_load_dwordx4 v%d, %s, s%d offen offset:%d lds" % (8 + i, s(sr, 4), sT0, i * 1024), "W%d" % g)
    AB = 96
    def a2(g):
        if g < 14:
            a("s_add_u32 s%d, s%d, s%d" % (sT0, sF14, sGA))
            a("s_lshl_b32 s%d, s%d, 11" % (sT0, sT0))
            a("s_add_u32 s%d, s%d, 32768" % (sT0, sT0))
            adv(sGA)
        else:
            a("s_lshl_b32 s%d, s%d, 13" % (sT0, sF))
            a("s_add_u32 s%d, s%d, %d" % (sT0, sT0, (g - 14) * 2048))
        a("s_add_u32 s%d, s%d, s%d" % (sT1, sT0, sA1))
        a("s_add_u32 s%d, s%d, s%d" % (sT0, sT0, sA0))
        if OPT["thr2"] and g < 14: a("s_waitcnt vmcnt(%d)" % OPT["thr2"])
        for ks in range(2):
            for tb in range(2):
                a.vmem("buffer_load_dwordx4 %s, v3, %s, s%d offen offset:%d sc1" % (v(AB + (g % 4) * 16 + ks * 8 + tb * 4, 4), s(SWS, 4), sT0 + tb, ks * 1024), "A%d" % g)
    a("v_lshrrev_b32 v14, 5, v2")
    a("v_bfe_u32 v4, v2, 2, 2")
    a("v_and_b32 v5, 1, v2")
    a("v_lshlrev_b32 v5, 4, v5")
    a("v_and_b32 v6, 2, v2")
    a("v_lshl_add_u32 v5, v6, 2, v5")
    a("v_and_b32 v6, 16, v2")
    a("v_lshl_add_u32 v5, v6, 1, v5")
    a("s_and_b32 s%d, s%d, 2" % (sT2, sF))
    a("s_lshl_b32 s%d, s%d, 5" % (sT2, sT2))
    a("v_add_u32 v5, s%d, v5" % sT2)
    a("v_lshlrev_b32 v6, 5, v4")
    a("v_and_b32 v6, 64, v6")
    a("v_xor_b32 v5, v5, v6")
    a("v_lshl_add_u32 v4, v14, 2, v4")
    a("v_lshl_add_u32 v5, v4, 7, v5")
    a("v_xor_b32 v6, 64, v5")
    a("v_add_u32 v12, s%d, v5" % sLB)
    a("v_add_u32 v13, s%d, v6" % sLB)
    a("s_lshl2_add_u32 s%d, s%d, s%d" % (sT3, sMT2, sF))
    a("s_lshl_b32 s%d, s%d, %d" % (sT3, sT3, 1 + OPT["fs"]))
    a("s_add_u32 s%d, s%d, %d" % (sT3, sT3, FH_OFF))
    if OPT["w2at"] == 8:
        spin(a, VCN, 0, 0, sT0, "8", "L_f_nofw0")
        for g in range(4): w2(g)
    spin(a, VCN, 0, 0, sT0, "16", "L_f_nofw1")
    a("s_cmp_lg_u32 s%d, 0" % sF)
    a("s_cbranch_scc1 L_f_hf")
    a("s_mov_b64 exec, 1")
    a("buffer_store_dwordx2 %s, v3, %s, s%d offen %s" % (v(VTAG, 2), s(SWS, 4), sFH, sc()))
    a("s_mov_b64 exec, -1")
    a.label("L_f_hf")
    if OPT["w2at"] != 8:
        for g in range(4): w2(g)
    if OPT["f2gate"]: spin(a, VCN, 0, 0, sT0, "%d" % (8 + 8 * OPT["f2gate"]), "L_f_nofw2")
    a.stamp(11)
    poll(a, 165, sT3, 2, 16, "L_f_pollh")
    a.stamp(12)
    a.vm = []
    ACC2 = 32; WF = 16
    def rd2(g, ks, ci):
        for sec in range(2):
            a("ds_read_b64_tr_b16 %s, v%d offset:%d" % (v(WF + ks * 8 + ci * 4 + sec * 2, 2), 12 + ci, (g % 5) * 4096 + ks * 2048 + sec * 1024))
    def mm2(g, ks, ci):
        for ti in range(2):
            d = v(ACC2 + (ci * 2 + ti) * 16, 16)
            a("v_mfma_f32_32x32x16_bf16 %s, %s, %s, %s" % (d, v(WF + ks * 8 + ci * 4, 4), v(AB + (g % 4) * 16 + ks * 8 + ti * 4, 4), "0" if (g == 0 and ks == 0) else d))
    def comp(g, pre=None):
        if OPT["f2pace"] and g < 14:
            if pre: pre()
            for ks in range(2):
                for ci in range(2):
                    rd2(g, ks, ci)
                    a("s_waitcnt lgkmcnt(0)")
                    mm2(g, ks, ci)
            return
        for ks in range(2):
            for ci in range(2): rd2(g, ks, ci)
        if pre: pre()
        for ks in range(2):
            a("s_waitcnt lgkmcnt(%d)" % (4 if ks == 0 else 0))
            for ci in range(2): mm2(g, ks, ci)
    for g in range(3): a2(g)
    for g in range(14):
        if g + 3 < 14: a2(g + 3)
        w2(g + 4)
        a.wait_vm("A%d" % g)
        if a.vm_count_after("W%d" % g) is not None: a.wait_vm("W%d" % g)
        comp(g)
    srd(a, SA, P_X, 2 * MB)
    srd(a, SB, P_OUT, 2 * MB)
    sXS = 48
    a("s_and_b32 s%d, s%d, 1" % (sT1, sF))
    a("s_lshl1_add_u32 s%d, s%d, s%d" % (sT0, sMT2, sT1))
    a("s_lshl_b32 s%d, s%d, 15" % (sXS, sT0))
    a("s_add_u32 s%d, s%d, s%d" % (sXS, sXS, sWB))
    a("s_and_b32 s%d, s%d, 2" % (sT2, sF))
    a("s_lshl_b32 s%d, s%d, 5" % (sT2, sT2))
    a("s_add_u32 s%d, s%d, s%d" % (sXS, sXS, sT2))
    a("v_and_b32 v4, 31, v2")
    a("v_lshlrev_b32 v4, 10, v4")
    a("v_lshl_add_u32 v4, v14, 4, v4")
    a("buffer_load_dwordx4 v[8:11], v4, %s, s%d offen" % (s(SA, 4), sXS))
    a("buffer_load_dwordx4 v[160:163], v4, %s, s%d offen offset:32" % (s(SA, 4), sXS))
    a("s_lshl2_add_u32 s%d, s%d, s%d" % (sT3, sXCD, sF))
    a("s_lshl_b32 s%d, s%d, %d" % (sT3, sT3, 3 + OPT["fs"]))
    a("s_add_u32 s%d, s%d, %d" % (sT3, sT3, FO_OFF))
    a("s_waitcnt vmcnt(0)")
    for i in range(4):
        a("v_lshlrev_b32 v%d, 16, v%d" % (96 + 2 * i, 8 + i))
        a("v_and_b32 v%d, 0xffff0000, v%d" % (97 + 2 * i, 8 + i))
        a("v_lshlrev_b32 v%d, 16, v%d" % (104 + 2 * i, 160 + i))
        a("v_and_b32 v%d, 0xffff0000, v%d" % (105 + 2 * i, 160 + i))
    for i in range(16): a("v_add_f32 v%d, v%d, v%d" % (ACC2 + i, ACC2 + i, 96 + i))
    a("v_add_u32 v5, s%d, v3" % sLB)
    for sl in range(1, 4):
        a("s_xor_b32 s%d, s%d, %d" % (sT0, sF, sl))
        a("s_mul_i32 s%d, s%d, %d" % (sT0, sT0, F2REG))
        a("s_add_u32 s%d, s%d, %d" % (sT0, sT0, LDS_F + (sl - 1) * 4096))
        a("v_add_u32 v%d, s%d, v3" % (7 + sl, sT0))
    a("s_setprio 0")
    a.stamp(13)
    if OPT["nof"] == 4: a("s_branch L_f_ep")
    if not OPT["prog"]:
        poll(a, 165, sT3, 8, 16, "L_f_pollo")
        a.stamp(14)
        a("s_setprio 3")
        a.vm = []
        for g in range(14, 18): a2(g)
        for g in range(14, 18):
            comp(g, lambda: a.wait_vm("A%d" % g))
    else:
        sPEND, sRDY = 49, 50
        a("s_mov_b32 s%d, 0x55" % sPEND)
        a("s_mov_b32 s%d, 0" % sRDY)
        a("s_mov_b32 s%d, 0x20000" % sSPIN)
        a.label("L_o_round")
        for g in range(14, 18):
            a("s_bitcmp1_b32 s%d, %d" % (sRDY, 2 * (g - 14)))
            a("s_cbranch_scc0 L_o_nl%d" % g)
            a2(g)
            a.label("L_o_nl%d" % g)
        a("s_cmp_eq_u32 s%d, 0" % sPEND)
        a("s_cbranch_scc1 L_o_np")
        a("s_mov_b64 exec, 0xff")
        a("buffer_load_dwordx2 v[6:7], v165, %s, s%d offen sc1" % (s(SWS, 4), sT3))
        a("s_mov_b64 exec, -1")
        a.label("L_o_np")
        for g in range(14, 18):
            a("s_bitcmp1_b32 s%d, %d" % (sRDY, 2 * (g - 14)))
            a("s_cbranch_scc0 L_o_nc%d" % g)
            comp(g, lambda: a("s_waitcnt vmcnt(0)"))
            a.label("L_o_nc%d" % g)
        a("s_cmp_eq_u32 s%d, 0" % sPEND)
        a("s_cbranch_scc1 L_o_done")
        a("s_waitcnt vmcnt(0)")
        a("v_cmp_eq_u64 vcc, %s, v[6:7]" % s(sTAG, 2))
        a("s_sub_u32 s%d, s%d, 1" % (sSPIN, sSPIN))
        a("s_cselect_b32 s%d, 0xff, 0" % sT1)
        a("s_or_b32 s%d, vcc_lo, s%d" % (sT0, sT1))
        a("s_lshr_b32 s%d, s%d, 1" % (sT1, sT0))
        a("s_and_b32 s%d, s%d, s%d" % (sT0, sT0, sT1))
        a("s_and_b32 s%d, s%d, s%d" % (sRDY, sT0, sPEND))
        a("s_cbranch_scc1 L_o_some")
        a("s_sleep %d" % OPT["psleep"])
        a.label("L_o_some")
        a("s_andn2_b32 s%d, s%d, s%d" % (sPEND, sPEND, sRDY))
        a("s_branch L_o_round")
        a.label("L_o_done")
        a.stamp(14)
    a.nop(10)
    for sl in range(1, 4):
        for q in range(4):
            a("ds_write_b128 v5, %s offset:%d" % (v(ACC2 + sl * 16 + 4 * q, 4), (sl - 1) * 4096 + q * 1024))
    a("s_waitcnt lgkmcnt(0)")
    arrive(a, VCN, VONE, 40)
    spin(a, VCN, 0, 40, sT0, "4", "L_f_spin3")
    for sl in range(1, 4):
        for q in range(4):
            a("ds_read_b128 %s, v%d offset:%d" % (v(ACC2 + sl * 16 + 4 * q, 4), 7 + sl, q * 1024))
    for sl in range(1, 4):
        a("s_waitcnt lgkmcnt(%d)" % (12 - 4 * sl))
        for i in range(0, 16, 2): a("v_pk_add_f32 %s, %s, %s" % (v(ACC2 + i, 2), v(ACC2 + i, 2), v(ACC2 + 16 * sl + i, 2)))
    for i in range(8): a("v_cvt_pk_bf16_f32 v%d, v%d, v%d" % (96 + i, ACC2 + 2 * i, ACC2 + 2 * i + 1))
    osc = ["", "sc1", "nt"][OPT["osc"]]
    a("buffer_store_dwordx4 v[96:99], v4, %s, s%d offen %s" % (s(SB, 4), sXS, osc))
    a("buffer_store_dwordx4 v[100:103], v4, %s, s%d offen offset:32 %s" % (s(SB, 4), sXS, osc))
    a.label("L_f_ep")
    if OPT["nof"]:
        spin(a, VCN, 0, 32, sT0, "8", "L_f_nofw")
    a("s_add_u32 s%d, s2, s%d" % (sT0, sF))
    a("s_cmp_lg_u32 s%d, 0" % sT0)
    a("s_cbranch_scc1 L_f_noep")
    if OPT["probe"]:
        a("s_memrealtime s[94:95]")
        if OPT["probe"] == 3: a("s_memrealtime s[92:93]")
        a("s_waitcnt lgkmcnt(0)")
        a("s_sub_u32 s92, s92, s90")
        a.label("L_probe")
        a("s_memrealtime s[96:97]")
        a("s_waitcnt lgkmcnt(0)")
        a("s_sub_u32 s96, s96, s94")
        a("s_cmp_lt_u32 s96, s92")
        a("s_cbranch_scc1 L_probe")
    a("s_mov_b32 s%d, %d" % (sT0, EPOCH_OFF))
    a("s_mov_b64 exec, 1")
    a("buffer_store_dword v%d, v3, %s, s%d offen" % (VTAG, s(SWS, 4), sT0))
    a("s_mov_b64 exec, -1")
    a.label("L_f_noep")
    a.stamp_flush(0, SWS, sW, 12)
    a("s_endpgm")

def gen_kernel(name):
    a = Asm()
    a.label("L_start")
    a("s_cmp_ge_u32 s2, 256")
    a("s_cbranch_scc1 L_end")
    a.stamp(0)
    if OPT["p1diag"]: a("s_mov_b32 s100, 0")
    if OPT["probe"]: a("s_memrealtime s[90:91]")
    a("s_load_dwordx16 s[4:19], s[0:1], 0")
    a("s_load_dwordx4 s[20:23], s[0:1], 64")
    a("s_getpc_b64 s[30:31]")
    a.label("L_pc")
    a("s_lshr_b32 s%d, s2, 3" % sJ)
    a("v_lshrrev_b32 v1, 6, v0")
    a("s_mul_i32 s%d, s%d, 12" % (sT0, sJ))
    a("v_add_lshl_u32 v165, v1, s%d, 7" % sT0)
    a("v_min_u32 v165, (L_end - L_pc), v165")
    a("s_mov_b64 exec, 1")
    a("global_load_dword v165, v165, s[30:31]")
    a("s_mov_b64 exec, -1")
    a("v_and_b32 v2, 63, v0")
    a("v_readfirstlane_b32 s%d, v1" % sW)
    a("v_lshlrev_b32 v3, 4, v2")
    a("s_and_b32 s%d, s2, 7" % sXCD)
    lg = {0: 3, 1: 4, 2: 5}[OPT["map"]]
    a("s_lshr_b32 s%d, s%d, %d" % (sMT, sXCD, lg - 2))
    a("s_lshl_b32 s%d, s%d, %d" % (sMT, sMT, lg))
    a("s_and_b32 s%d, s%d, %d" % (sT0, sJ, (1 << lg) - 1))
    a("s_add_u32 s%d, s%d, s%d" % (sMT, sMT, sT0))
    a("s_and_b32 s%d, s%d, %d" % (sNG, sXCD, (1 << (lg - 2)) - 1))
    a("s_lshl_b32 s%d, s%d, %d" % (sNG, sNG, 5 - lg))
    a("s_lshr_b32 s%d, s%d, %d" % (sT0, sJ, lg))
    a("s_add_u32 s%d, s%d, s%d" % (sNG, sNG, sT0))
    if lg == 3: a("s_lshl_b32 s56, s%d, 1" % sJ)
    else: a("s_mov_b32 s56, s%d" % sJ)
    a("s_and_b32 s56, s56, %d" % OPT["grot"])
    a("s_and_b32 s%d, s%d, 1" % (sT0, sT0))
    a("s_lshl3_add_u32 s%d, s%d, s%d" % (sT0, sT0, sW))
    a("s_lshl4_add_u32 s%d, s%d, s%d" % (sT0, sMT, sT0))
    a("s_lshl_b32 s%d, s%d, 12" % (sT0, sT0))
    a("s_xor_b32 s%d, s%d, 32768" % (sT1, sT0))
    a("v_lshrrev_b32 v164, 4, v2")
    a("v_mul_u32_u24 v164, 768, v164")
    a("v_add_u32 v164, v164, v3")
    a("s_cmp_lt_u32 s%d, 8" % sW)
    a("s_waitcnt lgkmcnt(0)")
    srd(a, SB, P_X, 2 * MB)
    a("s_cbranch_scc0 L_norow")
    for p in range(4):
        a("buffer_load_dwordx4 %s, v164, %s, s%d offen offset:%d" % (v(132 + 4 * p, 4), s(SB, 4), sT0, p * 256))
    a.label("L_norow")
    a.stamp(8)
    a("s_add_u32 s62, s%d, %d" % (P_WS, EPOCH_OFF))
    a("s_addc_u32 s63, s%d, 0" % (P_WS + 1))
    a("s_load_dword s%d, s[62:63], 0" % sTAG)
    srd(a, SWS, P_WS, WS_BYTES)
    a("s_mov_b32 s%d, 0x3f803f80" % sONE)
    a("s_cmp_lt_u32 s%d, 8" % sW)
    a("s_cbranch_scc1 L_role_a")
    role_f(a)
    if OPT["ldf"]:
        fl = ["", "sc1", "nt", "sc0"][OPT["ldf"]]
        a.lines = [l[:-4] + " %s lds" % fl if (l.endswith(" lds") and "sc1" not in l) else l for l in a.lines]
    a.label("L_role_a")
    a.vm = []
    role_a(a)
    if OPT["abl"]:
        i0 = a.lines.index("L_p1_qk:"); i1 = a.lines.index("L_p1_done:")
        def keep(l):
            if OPT["abl"] & 1 and l.startswith("v_mfma"): return False
            if OPT["abl"] & 4 and l.startswith("ds_read"): return False
            return True
        a.lines[i0:i1] = [l for l in a.lines[i0:i1] if keep(l)]
        if OPT["abl"] & 2:
            i0 = a.lines.index("L_g_issue:"); i1 = a.lines.index("L_g_nf:")
            a.lines[i0:i1] = [l for l in a.lines[i0:i1] if not l.startswith("buffer_load")]
    a.label("L_end")
    a("s_endpgm")
    return dict(name=name, asm=a, vgpr=168, grid=(256, 1, 1), block=(768, 1, 1), lds=LDS_TOTAL)
```

```python
from common import *
from layout import *
from kgu import f2u, C1, C2

FL_OFF = 32 * MB
EPOCH_OFF = FL_OFF
FX_OFF = FL_OFF + 0x10000
FQ_OFF = FL_OFF + 0x20000
FH_OFF = FL_OFF + 0x30000
FG_OFF = FL_OFF + 0x50000
FO_OFF = FL_OFF + 0x40000
TAGX = 0x5bd1e995

LDS_F = 65536
FSLOT = 24704; UPOFF = 12320; FNS = 3; GBASE = 106880; GSLOT = 16384
F2REG = 20480
LDS_CNT = GBASE + 3 * GSLOT
LDS_ST = LDS_CNT + 128
LDS_TOTAL = 163840

P_X, P_WQKV, P_WO, P_WG, P_WU, P_WD, P_OUT, P_WS = 4, 6, 8, 12, 14, 16, 18, 22
SWS, SA, SB = 24, 28, 32
sW = 36
sT0, sT1, sT2, sT3 = 37, 38, 39, 40
sXCD, sJ = 41, 42
sMT, sNG = 43, 44
sTAG = 60
sSPIN = 62
sONE = 3
VTAG = 166
SC = "sc0 sc1"
OPT = dict(w2pre=2, kv0=1, hp=4, g0pro=0, k1=1, k2=1, fgate=1, gtail=2, gper3=4, abl=0, map=0, osc=0, grot=15, yprio=0, sched=0, w2at=16, f2gate=0, spf=0, ft=1, touch=0, gper=2, p1diag=0, fs=7, psleep=2, sc=0, vprio=1, prio3=2, f2pace=0, nof=0, pk=1, thr2=2, qflag=10, prio=2, prio2=2, f1depth=3)

_stamp = Asm.stamp
def stamp_gate(self, i, force=False):
    if OPT["p1diag"] and not force and i not in (0, 15): return
    _stamp(self, i)
Asm.stamp = stamp_gate
def bar(a, i):
    if OPT["p1diag"] and i < 7: a.stamp(1 + 2 * i, True)
    a("s_barrier")
    if OPT["p1diag"] and i < 7: a.stamp(2 + 2 * i, True)

def tr(a, vr):
    if not OPT["p1diag"]: return
    a("s_memtime s[98:99]")
    a("s_waitcnt lgkmcnt(0)")
    a("s_sub_u32 s98, s98, s96")
    a("s_mov_b32 m0, s100")
    a("s_add_u32 s100, s100, 1")
    a("v_writelane_b32 v%d, s98, m0" % vr)
def tr_dump(a, vr, vtmp):
    if not OPT["p1diag"]: return
    a("s_mul_i32 s100, s2, 12")
    a("s_add_u32 s100, s100, s%d" % sW)
    a("s_lshl_b32 s100, s100, 8")
    a("s_add_u32 s100, s100, %d" % (66 << 20))
    a("v_lshlrev_b32 v%d, 2, v2" % vtmp)
    a("buffer_store_dword v%d, v%d, %s, s100 offen" % (vr, vtmp, s(SWS, 4)))

def cap0(a, fn, *args):
    n = len(a.lines); fn(*args); out = a.lines[n:]; del a.lines[n:]; return out

def arrive(a, vaddr, vone, off):
    a("s_mov_b64 exec, 1")
    a("ds_add_u32 v%d, v%d offset:%d" % (vaddr, vone, off))
    a("s_mov_b64 exec, -1")

def spin(a, vaddr, vp, off, stmp, target, name):
    a("s_mov_b32 s%d, 0x200000" % sSPIN)
    a.label(name)
    a("ds_read_b32 v%d, v%d offset:%d" % (vp, vaddr, off))
    a("s_waitcnt lgkmcnt(0)")
    a("v_readfirstlane_b32 s%d, v%d" % (stmp, vp))
    a("s_nop 0")
    a("s_cmp_ge_u32 s%d, %s" % (stmp, target))
    a("s_cbranch_scc1 %s_ok" % name)
    a("s_sleep %d" % (8 if name.startswith("L_f_nofw") else 1))
    a("s_sub_u32 s%d, s%d, 1" % (sSPIN, sSPIN))
    a("s_cbranch_scc0 %s" % name)
    a.label(name + "_ok")

def sc(): return "sc1" if OPT["sc"] else "sc0 sc1"

def set_flag(a, soff, vz, lanes=1):
    a("s_waitcnt vmcnt(0)")
    a("s_mov_b64 exec, %d" % ((1 << lanes) - 1))
    a("buffer_store_dwordx2 %s, v%d, %s, s%d offen %s" % (v(VTAG, 2), vz, s(SWS, 4), soff, sc()))
    a("s_mov_b64 exec, -1")

def last_flag(a, vcn, vone, vp, off, n, soff, skip):
    a("s_waitcnt vmcnt(0)")
    a("s_mov_b64 exec, 1")
    a("ds_add_rtn_u32 v%d, v%d, v%d offset:%d" % (vp, vcn, vone, off))
    a("s_waitcnt lgkmcnt(0)")
    a("v_readfirstlane_b32 s%d, v%d" % (sT0, vp))
    a("s_mov_b64 exec, -1")
    a("s_cmp_lg_u32 s%d, %d" % (sT0, n - 1))
    a("s_cbranch_scc1 %s" % skip)
    a("s_mov_b64 exec, 1")
    a("buffer_store_dwordx2 %s, v3, %s, s%d offen %s" % (v(VTAG, 2), s(SWS, 4), soff, sc()))
    a("s_mov_b64 exec, -1")

def poll(a, voff, soff, nl, vp, name):
    a("s_mov_b32 s%d, 0x20000" % sSPIN)
    assert nl <= 32
    a("s_mov_b32 exec_lo, 0x%x" % ((1 << nl) - 1))
    a("s_mov_b32 exec_hi, 0")
    a.label(name)
    a("buffer_load_dwordx2 %s, v%d, %s, s%d offen sc1" % (v(vp, 2), voff, s(SWS, 4), soff))
    a("s_waitcnt vmcnt(0)")
    a("v_cmp_ne_u64 vcc, %s, %s" % (s(sTAG, 2), v(vp, 2)))
    a("s_sub_u32 s%d, s%d, 1" % (sSPIN, sSPIN))
    a("s_cbranch_scc1 %s_ok" % name)
    a("s_cbranch_vccz %s_ok" % name)
    a("s_sleep %d" % OPT["psleep"])
    a("s_branch %s" % name)
    a.label(name + "_ok")
    a("s_mov_b64 exec, -1")

def tagsetup(a):
    a("s_waitcnt lgkmcnt(0)")
    a("s_add_u32 s%d, s%d, 1" % (sTAG, sTAG))
    a("s_xor_b32 s%d, s%d, 0x%x" % (sTAG + 1, sTAG, TAGX))
    a("v_mov_b32 v%d, s%d" % (VTAG, sTAG))
    a("v_mov_b32 v%d, s%d" % (VTAG + 1, sTAG + 1))

def bf16r(a, r):
    a("v_cvt_pk_bf16_f32 v%d, v%d, v%d" % (r, r, r))
    a("v_and_b32 v%d, 0xffff0000, v%d" % (r, r))

def ln_final(a, sm, sq, tmp):
    a("v_mul_f32 v%d, 0x3b000000, v%d" % (sm, sm))
    a("v_mul_f32 v%d, 0x3b000000, v%d" % (sq, sq))
    a("v_fma_f32 v%d, -v%d, v%d, v%d" % (sq, sm, sm, sq))
    a("v_max_f32 v%d, 0, v%d" % (sq, sq))
    bf16r(a, sq)
    bf16r(a, sm)
    a("v_add_f32 v%d, 0x3727c5ac, v%d" % (sq, sq))
    bf16r(a, sq)
    a("v_sqrt_f32 v%d, v%d" % (sq, sq))
    a.nop(1)
    bf16r(a, sq)
    a("v_rcp_f32 v%d, v%d" % (sq, sq))
    a.nop(1)

def xsum(a, r, t, kind):
    a("v_mov_b32 v%d, v%d" % (t, r))
    a.nop(2)
    a("v_permlane%d_swap_b32 v%d, v%d" % (kind, r, t))
    a("v_add_f32 v%d, v%d, v%d" % (r, r, t))

XB, XA, WB, WA = 12, 13, 17, 18
FR = 116; ACC1 = 48
def role_a(a):
    sD0, sD1, sSCL = 45, 46, 48
    sHEAD, sQT, sKV, sCH, sSL, sKVB, sQ0, sKH = 49, 50, 51, 52, 53, 54, 55, 57
    sVM = 58
    sCNT, sTGT = 45, 46
    sSO, sI, sKC = 28, 29, 31
    sH = 12
    KA, VA, VCN, VONE, VP, VLO = 8, 9, 44, 45, 46, 47
    Q = [4, 112]; KF = [12, 16]; VF = [20, 28]; P = 36; S = [48, 64]; O = [80, 96]
    VST, WB2 = 19, 10
    XS = 132
    a("s_setprio 3")
    a("s_mov_b32 s10, s%d" % sT0)
    a("s_mov_b32 s11, s%d" % sT1)
    a("v_lshrrev_b32 v4, 4, v2")
    a("v_and_b32 v5, 15, v2")
    a("v_xor_b32 v5, v5, v4")
    a("v_lshlrev_b32 v4, 10, v4")
    a("v_lshl_add_u32 v116, v5, 4, v4")
    a("s_and_b32 s%d, s%d, 3" % (sT1, sW))
    a("s_lshl_b32 s%d, s%d, 6" % (sT1, sT1))
    a("s_and_b32 s%d, s%d, 0xffff" % (sT0, sT0))
    a("v_xor_b32 v116, s%d, v116" % sT1)
    a("v_add_u32 v116, s%d, v116" % sT0)
    a("v_xor_b32 v117, 0x8000, v116")
    a("s_and_b32 s%d, s%d, 1" % (sT1, sW))
    a("s_lshl_b32 s%d, s%d, 7" % (sT1, sT1))
    a("v_and_b32 v4, 31, v2")
    a("v_lshrrev_b32 v5, 5, v2")
    a("v_and_b32 v6, 15, v2")
    a("v_xor_b32 v6, v6, v5")
    a("v_lshlrev_b32 v6, 4, v6")
    a("v_lshl_add_u32 v%d, v4, 10, v6" % XB)
    sXE = 14
    a("s_lshr_b32 s%d, s%d, 1" % (sT0, sW))
    a("s_lshl2_add_u32 s%d, s%d, s%d" % (sT2, sNG, sT0))
    a("s_lshl_b32 s%d, s%d, 8" % (sT1, sT1))
    a("s_lshl_b32 s%d, s%d, 5" % (sT3, sT2))
    a("s_add_u32 s%d, s%d, s%d" % (sT3, sT3, sT1))
    a("v_xor_b32 v113, s%d, v%d" % (sT3, XB))
    a("s_lshl_b32 s%d, s%d, 16" % (sXE, sMT))
    a("s_add_u32 s%d, s%d, s%d" % (sXE, sXE, sT1))
    a("s_lshl_b32 s%d, s%d, 10" % (sT2, sT2))
    a("s_add_u32 s%d, s%d, s%d" % (sXE, sXE, sT2))
    a("s_min_u32 s%d, s%d, 2" % (sT1, sT0))
    a("s_sub_u32 s%d, s%d, s%d" % (sT2, sT0, sT1))
    a("s_lshl_b32 s%d, s%d, 15" % (sT3, sT2))
    a("v_add_u32 v%d, s%d, v%d" % (XB, sT3, XB))
    a("v_bfe_u32 v6, v2, 2, 2")
    a("v_and_b32 v7, 3, v2")
    a("v_lshlrev_b32 v7, 3, v7")
    a("v_lshl_add_u32 v14, v5, 3, v6")
    a("v_mul_u32_u24 v14, 192, v14")
    a("v_bfe_u32 v15, v2, 4, 1")
    a("v_mul_u32_u24 v15, %d, v15" % UPOFF)
    a("v_add3_u32 v%d, v14, v15, v7" % WB2)
    a("v_and_b32 v13, 16, v2")
    a("v_lshl_add_u32 v7, v13, 1, v7")
    a("s_and_b32 s%d, s%d, 1" % (sT0, sW))
    a("s_lshl_b32 s%d, s%d, 6" % (sT3, sT0))
    a("v_add_u32 v7, s%d, v7" % sT3)
    a("v_lshlrev_b32 v14, 5, v6")
    a("v_and_b32 v14, 64, v14")
    a("v_xor_b32 v7, v7, v14")
    a("v_lshl_add_u32 v7, v6, 7, v7")
    a("v_mul_u32_u24 v14, 3072, v5")
    a("s_lshl_b32 s%d, s%d, 10" % (sT3, sT1))
    a("v_add3_u32 v%d, v7, v14, s%d" % (WB, sT3))
    a("v_and_b32 v6, 15, v2")
    a("v_lshlrev_b32 v6, 4, v6")
    a("v_lshl_add_u32 v%d, v5, 8, v6" % VLO)
    a("s_lshl1_add_u32 s%d, s%d, s%d" % (sT3, sT1, sT0))
    a("s_lshl_b32 s%d, s%d, 5" % (sKH, sT3))
    a("v_add_u32 v%d, s%d, v%d" % (WB2, sKH, WB2))
    a("s_lshl1_add_u32 s%d, s%d, s%d" % (sT0, sNG, sT0))
    a("s_lshl1_add_u32 s%d, s%d, s%d" % (sT2, sMT, sT2))
    a("s_mul_i32 s%d, s%d, 6" % (sKH, sNG))
    a("s_add_u32 s%d, s%d, s%d" % (sKH, sKH, sT3))
    a("s_lshl_b32 s%d, s%d, 10" % (sKH, sKH))
    a("s_mul_i32 s%d, s%d, %d" % (sH, sT2, A2_TT))
    a("s_add_u32 s%d, s%d, s%d" % (sH, sH, sKH))
    a("s_add_u32 s%d, s%d, %d" % (sH, sH, A2_OFF + 96 * 1024))
    a("s_add_u32 s%d, s%d, %d" % (sH + 1, sH, A2_TT))
    a("s_lshl_b32 s%d, s%d, 17" % (sD0, sT0))
    a("s_lshl_b32 s%d, s%d, 10" % (sT3, sT2))
    a("s_add_u32 s%d, s%d, s%d" % (sD0, sD0, sT3))
    a("s_add_u32 s%d, s%d, %d" % (sD0, sD0, QF_OFF))
    a("s_min_u32 s%d, s%d, 1" % (sT3, sT1))
    a("s_lshl_b32 s%d, s%d, s%d" % (sD0, sD0, sT3))
    a("s_lshl_b32 s%d, 65536, s%d" % (sD1, sT3))
    a("s_add_u32 s%d, s%d, s%d" % (sD1, sD1, sD0))
    a("s_lshl_b32 s%d, 1024, s%d" % (sKH, sT3))
    a("v_add_u32 v%d, s%d, v3" % (VST, sKH))
    a("v_lshl_add_u32 v115, v13, 13, v%d" % VLO)
    a("s_cmp_eq_u32 s%d, 0" % sT1)
    a("s_cselect_b32 s%d, 0x%x, 1.0" % (sSCL, QSCALE))
    def late_setup():
        a("s_lshr_b32 s%d, s%d, 3" % (sT2, sJ))
        a("s_lshl2_add_u32 s%d, s%d, s%d" % (sHEAD, sXCD, sT2))
        a("s_and_b32 s%d, s%d, 7" % (sCH, sJ))
        a("s_and_b32 s%d, s%d, 3" % (sT0, sW))
        a("s_lshl_b32 s%d, s%d, 1" % (sT0, sT0))
        a("s_lshl3_add_u32 s%d, s%d, s%d" % (sQT, sCH, sT0))
        a("s_lshr_b32 s%d, s%d, 2" % (sKH, sW))
        a("s_add_u32 s%d, s%d, s%d" % (sQT, sQT, sKH))
        a("s_lshl_b32 s%d, s%d, 11" % (sSL, sW))
        a("s_lshl_b32 s%d, s%d, 17" % (sKVB, sHEAD))
        a("s_add_u32 s%d, s%d, %d" % (sKVB, sKVB, KV_OFF))
        a("s_add_u32 s%d, s%d, s%d" % (sKV, sKVB, sSL))
        a("s_lshl_b32 s%d, s%d, 16" % (sQ0, sHEAD))
        a("s_lshl_b32 s%d, s%d, 10" % (sT2, sQT))
        a("s_add_u32 s%d, s%d, s%d" % (sQ0, sQ0, sT2))
        a("s_add_u32 s%d, s%d, %d" % (sQ0, sQ0, QF_OFF))
        a("v_mov_b32 v6, 0")
        a("s_mov_b32 exec_lo, 0x00110000")
        a("s_mov_b32 exec_hi, 0x00110000")
        a("v_mov_b32 v6, s%d" % sONE)
        a("s_mov_b64 exec, -1")
        a("v_mov_b32 v11, v6")
        a("s_mov_b32 s%d, %d" % (sCH, 16384 if OPT["kv0"] else 0))
        if OPT["kv0"]: a("s_add_u32 s%d, s%d, 16384" % (sSL, sSL))
        a("s_mov_b32 s%d, 0x0000ffff" % sVM)
        a("s_mov_b32 s%d, 0x0000ffff" % (sVM + 1))
        a("s_lshl_b32 s%d, s%d, 13" % (sKH, sKH))
        if OPT["kv0"]: a("s_add_u32 s%d, s%d, 65536" % (sKH, sKH))
        a("v_add_u32 v%d, s%d, v3" % (KA, sKH))
        a("v_add_u32 v%d, s%d, v%d" % (VA, sKH, VLO))
        a("v_mov_b32 v%d, 1" % VONE)
        for i in range(40, 44, 2): a("v_mov_b64 %s, 0" % v(i, 2))
        a("v_mov_b32 v36, 0x%x" % f2u(C1))
        a("v_mov_b32 v38, 0x%x" % f2u(C2))
    a("v_mov_b32 v%d, %d" % (VCN, LDS_CNT))
    for i in range(48, 112, 2): a("v_mov_b64 %s, 0" % v(i, 2))
    a("v_mov_b32 v4, s%d" % sSCL)
    a("ds_write_b128 v%d, v[48:51]" % VCN)
    a("ds_write_b128 v%d, v[48:51] offset:16" % VCN)
    a("ds_write_b128 v%d, v[48:51] offset:32" % VCN)
    a("s_mov_b32 s%d, %d" % (sSO, LDS_F + FSLOT))
    a("s_mov_b32 s%d, 8" % sI)
    a("s_and_b32 s%d, s%d, 7" % (sKC, sJ))
    a("s_lshl_b32 s%d, s%d, 7" % (sKC, sKC))
    def addrs(nk=4, wb=WB):
        a("v_xor_b32 v%d, s%d, v%d" % (XA, sKC, XB))
        a("v_add_u32 v%d, s%d, v%d" % (WA, sSO, wb))
        for k in range(1, nk): a("v_xor_b32 v%d, %d, v%d" % (XA + k, k << 5, XA))
        a("s_add_u32 s%d, s%d, %d" % (sKC, sKC, 32 * nk))
        a("s_and_b32 s%d, s%d, 0x3ff" % (sKC, sKC))
        a("s_add_u32 s%d, s%d, %d" % (sSO, sSO, FSLOT))
        a("s_cmp_eq_u32 s%d, %d" % (sSO, LDS_F + 3 * FSLOT))
        a("s_cselect_b32 s%d, %d, s%d" % (sSO, LDS_F, sSO))
    addrs()
    for p in range(4):
        a("buffer_load_dwordx4 %s, v164, %s, s11 offen offset:%d" % (v(148 + 4 * p, 4), s(SB, 4), p * 256))
    late_setup()
    tagsetup(a)
    a.stamp(1)
    def unpack(n):
        for q in range(4):
            r = XS + 4 * n + q; t = 20 + 8 * (n % 2) + 2 * q
            a("v_lshlrev_b32 v%d, 16, v%d" % (t, r))
            a("v_and_b32 v%d, 0xffff0000, v%d" % (t + 1, r))
    for g in range(2):
        a("s_waitcnt vmcnt(%d)" % (4 - 4 * g))
        if g == 1: a.stamp(14)
        for i in range(16):
            r = XS + 16 * g + i; d = 120 + 2 * (i & 3)
            a("v_dot2_f32_bf16 v%d, v%d, s%d, %s" % (d, r, sONE, "0" if i < 4 else "v%d" % d))
            a("v_dot2_f32_bf16 v%d, v%d, v%d, %s" % (d + 1, r, r, "0" if i < 4 else "v%d" % (d + 1)))
        fill = cap0(a, unpack, 4 * g) + cap0(a, unpack, 4 * g + 1)
        a("v_pk_add_f32 v[120:121], v[120:121], v[122:123]")
        a(fill.pop(0)); a(fill.pop(0))
        a("v_pk_add_f32 v[124:125], v[124:125], v[126:127]")
        a(fill.pop(0))
        a("v_pk_add_f32 v[118:119], v[120:121], v[124:125]")
        a(fill.pop(0)); a(fill.pop(0))
        for sh in (8, 4, 2, 1):
            for k in (118, 119):
                a("v_add_f32_dpp v%d, v%d, v%d row_ror:%d row_mask:0xf bank_mask:0xf" % (k, k, k, sh))
            a(fill.pop(0))
        for x in cap0(a, ln_final, a, 118, 119, 0):
            if x.startswith("s_nop") and fill: a(fill.pop(0))
            else: a(x)
            if x.startswith("v_cvt") and len(fill) > 2: a(fill.pop(0))
        a("v_mul_f32_e64 v118, -v118, v119")
        for l in fill: a(l)
        for n in range(4 * g, 4 * g + 4):
            p = n % 4; T = 20 + 8 * (n % 2)
            for q in range(4):
                a("v_pk_fma_f32 %s, %s, v[118:119], v[118:119] op_sel:[0,1,0] op_sel_hi:[1,1,0]" % (v(T + 2 * q, 2), v(T + 2 * q, 2)))
            for q in range(4):
                a("v_cvt_pk_bf16_f32 v%d, v%d, v%d" % (XS + 4 * n + q, T + 2 * q, T + 2 * q + 1))
            a("ds_write_b128 v%d, %s offset:%d" % (116 + g, v(XS + 4 * n, 4), p * 256))
            if p + 2 < 4: unpack(n + 2)
    a("s_waitcnt lgkmcnt(0)")
    a.stamp(2)
    a("s_barrier")
    a("s_setprio 0")
    a.stamp(3)
    a("ds_read_b128 v[20:23], v113")
    a("s_cmp_ge_u32 s%d, 4" % sW)
    a("s_cbranch_scc1 L_p1_v0")
    def wread(k, dst, gu):
        for sec in range(2):
            a("ds_read_b64_tr_b16 %s, v%d offset:%d" % (v(dst + 2 * sec, 2), WA, k * 3072 + sec * 768 if gu else k * 6144 + sec * 512))
    def xread(k, dst, tb): a("ds_read_b128 %s, v%d offset:%d" % (v(dst, 4), XA + k, tb * 32768))
    def cap(fn, *args):
        n = len(a.lines); fn(*args); out = a.lines[n:]; del a.lines[n:]; return out
    def weave(mm, rd, per):
        for l in mm:
            a(l)
            if l.startswith("v_mfma"):
                for _ in range(per):
                    if rd: a(rd.pop(0))
        for l in rd: a(l)
    def gemm(lab, rdf, mmf, n, per, gu, first_hook, drain_at):
        for k in range(3): rdf(k, gu)
        first_hook()
        a("s_branch %s_m" % lab)
        a.label(lab)
        rd = cap(rdf, 0, gu) + cap(rdf, 1, gu)
        for l in cap(mmf, 2, gu):
            a(l)
            for _ in range(per):
                if rd: a(rd.pop(0))
        weave(cap(mmf, 3, gu), rd + cap(rdf, 2, gu), per)
        a.label(lab + "_m")
        a("s_waitcnt lgkmcnt(%d)" % (2 * n))
        weave(cap(mmf, 0, gu), cap(rdf, 3, gu), per)
        a("s_waitcnt lgkmcnt(%d)" % (2 * n))
        mm1 = cap(mmf, 1, gu)
        a(mm1[0]); addrs(4, WB2 if gu else WB)
        for l in mm1[1:]: a(l)
        a("s_sub_u32 s%d, s%d, 1" % (sI, sI))
        a("s_cmp_lg_u32 s%d, %d" % (sI, drain_at))
        a("s_cbranch_scc1 %s_b" % lab)
        a("s_waitcnt vmcnt(0)")
        a.label(lab + "_b")
        a("s_waitcnt lgkmcnt(0)")
        a("s_barrier")
        a("s_cmp_lg_u32 s%d, 0" % sI)
        a("s_cbranch_scc1 %s" % lab)
        if gu: a("s_setprio 3")
        else: a.stamp(4)
        mmf(2, gu); mmf(3, gu)
        if not gu:
            a("v_sub_u32 v%d, v%d, v%d" % (WA, WA, WB))
            a("v_add_u32 v%d, v%d, v%d" % (WA, WA, WB2))
            a("s_mov_b32 s%d, 8" % sI)
    def export(n):
        a("s_waitcnt lgkmcnt(%d)" % (3 * n))
        a("buffer_store_dwordx4 v[20:23], v3, %s, s%d offen %s" % (s(SWS, 4), sXE, sc()))
    GA = 80
    def qk_rd(k, gu): wread(k, FR + 12 * k, gu); xread(k, FR + 12 * k + 4, 0); xread(k, FR + 12 * k + 8, 1)
    def qk_mm(k, gu):
        f = FR + 12 * k
        for tb in range(2):
            d = v((GA if gu else ACC1) + 16 * tb, 16)
            a("v_mfma_f32_32x32x16_bf16 %s, %s, %s, %s" % (d, v(f, 4), v(f + 4 + 4 * tb, 4), d))
    def qk_epi():
        for tb in range(2):
            A0 = ACC1 + 16 * tb
            for i in range(16): a("v_mul_f32 v%d, v4, v%d" % (A0 + i, A0 + i))
            for i in range(8): a("v_cvt_pk_bf16_f32 v%d, v%d, v%d" % (20 + 8 * tb + i, A0 + 2 * i, A0 + 2 * i + 1))
            a("buffer_store_dwordx4 %s, v%d, %s, s%d offen %s" % (v(20 + 8 * tb, 4), VST if tb else 3, s(SWS, 4), sD0, sc()))
            a("buffer_store_dwordx4 %s, v%d, %s, s%d offen %s" % (v(20 + 8 * tb + 4, 4), VST if tb else 3, s(SWS, 4), sD1, sc()))
        a.stamp(5)
    gemm("L_p1_qk", qk_rd, qk_mm, 4, 3, False, lambda: export(4), 5)
    gemm("L_gu4", qk_rd, qk_mm, 4, 3, True, qk_epi, 16 - OPT["qflag"])
    a("s_branch L_p1_done")
    a.label("L_p1_v0")
    if OPT["vprio"]: a("s_setprio 1")
    def v_rd(k, gu): xread(k, FR + 8 * k + 4, 0); wread(k, FR + 8 * k, gu)
    def v_mm(k, gu):
        f = FR + 8 * k; d = v(GA if gu else ACC1, 16)
        if gu: a("v_mfma_f32_32x32x16_bf16 %s, %s, %s, %s" % (d, v(f, 4), v(f + 4, 4), d))
        else: a("v_mfma_f32_32x32x16_bf16 %s, %s, %s, %s" % (d, v(f + 4, 4), v(f, 4), d))
    def v_epi():
        for i in range(8): a("v_cvt_pk_bf16_f32 v%d, v%d, v%d" % (20 + i, ACC1 + 2 * i, ACC1 + 2 * i + 1))
        a("buffer_store_dwordx4 v[20:23], v115, %s, s%d offen offset:1024 %s" % (s(SWS, 4), sD0, sc()))
        a("buffer_store_dwordx4 v[24:27], v115, %s, s%d offen offset:1536 %s" % (s(SWS, 4), sD0, sc()))
        a.stamp(5)
    gemm("L_p1_v", v_rd, v_mm, 3, 4, False, lambda: export(3), 5)
    gemm("L_gu3", v_rd, v_mm, 3, 4, True, v_epi, 16 - OPT["qflag"])
    a.label("L_p1_done")
    a.stamp(6)
    def dma():
        a("s_mov_b32 m0, s%d" % sSL)
        a("s_add_u32 s%d, s%d, s%d" % (sT0, sKV, sCH))
        a("buffer_load_dwordx4 v3, %s, s%d offen sc1 lds" % (s(SWS, 4), sT0))
        a("buffer_load_dwordx4 v3, %s, s%d offen offset:1024 sc1 lds" % (s(SWS, 4), sT0))
        a("s_add_u32 s%d, s%d, 16384" % (sSL, sSL))
        a("s_and_b32 s%d, s%d, 0xffff" % (sSL, sSL))
        a("s_add_u32 s%d, s%d, 16384" % (sCH, sCH))
    if not OPT["kv0"]: dma()
    a("s_xor_b32 s%d, s%d, 1024" % (sT1, sQ0))
    a("buffer_load_dwordx4 %s, v3, %s, s%d offen sc1" % (v(Q[0], 4), s(SWS, 4), sQ0))
    a("buffer_load_dwordx4 %s, v3, %s, s%d offen sc1" % (v(Q[1], 4), s(SWS, 4), sT1))
    dma()
    def geglu(t):
        Gt = GA + 16 * t; U = Gt + 8; T = 48 + (t % 2) * 12
        R = range(0, 8, 2)
        for i in R: a("v_pk_mul_f32 %s, %s, %s" % (v(T + i, 2), v(Gt + i, 2), v(Gt + i, 2)))
        for i in R: a("v_pk_fma_f32 %s, %s, v[38:39], v[36:37] op_sel_hi:[1,0,0]" % (v(T + i, 2), v(T + i, 2)))
        for i in R: a("v_pk_mul_f32 %s, %s, %s" % (v(T + i, 2), v(T + i, 2), v(Gt + i, 2)))
        for i in range(8): a("v_exp_f32 v%d, v%d" % (T + i, T + i))
        for i in R: a("v_pk_mul_f32 %s, %s, %s" % (v(Gt + i, 2), v(Gt + i, 2), v(U + i, 2)))
        for i in R: a("v_pk_add_f32 %s, %s, 1.0 op_sel_hi:[1,0]" % (v(T + i, 2), v(T + i, 2)))
        for i in range(8): a("v_rcp_f32 v%d, v%d" % (T + i, T + i))
        a.nop(1)
        for i in R: a("v_pk_mul_f32 %s, %s, %s" % (v(Gt + i, 2), v(Gt + i, 2), v(T + i, 2)))
        for i in range(4): a("v_cvt_pk_bf16_f32 v%d, v%d, v%d" % (T + 8 + i, Gt + 2 * i, Gt + 2 * i + 1))
        a("buffer_store_dwordx4 %s, v3, %s, s%d offen %s" % (v(T + 8, 4), s(SWS, 4), sH + t, sc()))
        for i in range(0, 16, 2): a("v_mov_b64 %s, 0" % v(Gt + i, 2))
    if not OPT["kv0"]: dma()
    a("v_mov_b32 v10, v11")
    for i in range(0, 16, 2): a("v_mov_b64 %s, v[10:11]" % v(VF[0] + i, 2))
    geglu(0)
    a("s_cmp_ge_u32 s%d, 4" % sW)
    a("s_cbranch_scc1 L_g_done")
    geglu(1)
    a.label("L_g_done")
    if OPT["kv0"]: dma()
    a.stamp(9)
    def rdK(kt): a("ds_read_b128 %s, v%d offset:%d" % (v(KF[kt % 2], 4), KA, (kt % 4) * 2048))
    def rdV(kt):
        a("s_mov_b64 exec, %s" % s(sVM, 2))
        a("ds_read_b128 %s, v%d offset:%d" % (v(VF[kt % 2], 4), VA, (kt % 4) * 2048 + 1024))
        a("ds_read_b128 %s, v%d offset:%d" % (v(VF[kt % 2] + 4, 4), VA, (kt % 4) * 2048 + 1536))
        a("s_mov_b64 exec, -1")
    def mfS(u): a("v_mfma_f32_32x32x16_bf16 %s, %s, %s, 0" % (v(S[u % 2], 16), v(KF[(u >> 1) % 2], 4), v(Q[u % 2], 4)))
    def mfPV(u, j): a("v_mfma_f32_32x32x16_bf16 %s, %s, %s, %s" % (v(O[u % 2], 16), v(VF[(u >> 1) % 2] + 4 * j, 4), v(P + 4 * j, 4), v(O[u % 2], 16)))
    a("s_waitcnt vmcnt(3)")
    arrive(a, VCN, VONE, 0)
    if OPT["kv0"]: spin(a, VCN, VP, 28, sT0, "4", "L_a_first")
    else: spin(a, VCN, VP, 0, sT0, "8", "L_a_first")
    rdK(0); rdV(0); rdK(1)
    a("s_mov_b32 s%d, 0" % sCNT)
    a("s_mov_b32 s%d, 8" % sTGT)
    a("s_waitcnt lgkmcnt(3)")
    mfS(0)
    a.stamp(10)
    a("s_setprio 0")
    if OPT["yprio"]:
        a("s_cmp_lt_u32 s%d, 4" % sW)
        a("s_cbranch_scc1 L_at_yp")
        a("s_setprio 1")
        a.label("L_at_yp")
    a.nop(9)
    a.label("L_at_loop")
    for u in range(8):
        Sx = S[u % 2]
        e = lambda i: a("v_exp_f32 v%d, v%d" % (Sx + i, Sx + i))
        cv = lambda i: a("v_cvt_pk_bf16_f32 v%d, v%d, v%d" % (P + i, Sx + 2 * i, Sx + 2 * i + 1))
        if OPT["hp"] == 1 and u in (0, 4): a("s_setprio %d" % (1 if u == 0 else 0))
        if OPT["hp"] == 2 and u % 2 == 0: a("s_setprio %d" % (1 if u % 4 == 2 else 0))
        if OPT["hp"] == 3: a("s_setprio %d" % (1 if u % 2 == 0 else 0))
        if OPT["hp"] == 4 and u in (0, 2, 4): a("s_setprio %d" % (2 - u // 2))
        if u % 2 == 0: a("s_waitcnt lgkmcnt(0)")
        mfS(u + 1)
        e(0)
        if u == 4: a("v_readfirstlane_b32 s%d, v%d" % (sT0, VP))
        e(1)
        if u == 4:
            a("s_cmp_ge_u32 s%d, s%d" % (sT0, sTGT))
            a("s_cbranch_scc0 L_at_slow")
            a.label("L_at_back")
        e(2); e(3)
        mfPV(u - 1, 1)
        if u % 2 == 0:
            rdK(u // 2 + 2); rdV(u // 2 + 1)
        cv(0); e(4)
        if u == 3:
            a("ds_read_b32 v%d, v%d" % (VP, VCN))
            a("v_add_u32 v%d, 16384, v%d" % (KA, KA))
            a("v_and_b32 v%d, 0xffff, v%d" % (KA, KA))
        if u == 5:
            a("v_add_u32 v%d, 16384, v%d" % (VA, VA))
            a("v_and_b32 v%d, 0xffff, v%d" % (VA, VA))
            a("s_waitcnt vmcnt(0)")
            a("s_cmp_ge_u32 s%d, 5" % sCNT)
            a("s_cbranch_scc1 L_at_nodma")
            a("s_setprio 3")
            dma()
            a("s_setprio 0")
            if OPT["yprio"]:
                a("s_cmp_lt_u32 s%d, 4" % sW)
                a("s_cbranch_scc1 L_at_nodma")
                a("s_setprio 1")
            a.label("L_at_nodma")
        if u == 6:
            arrive(a, VCN, VONE, 0)
        if OPT["sched"] == 0:
            cv(1); e(5); e(6); e(7); cv(2); e(8); cv(3); e(9); e(10)
            mfPV(u, 0)
            e(11); e(12); cv(4); e(13); cv(5); e(14); e(15); cv(6)
        elif OPT["sched"] == 1:
            e(5); e(6); e(7); e(8); cv(1); cv(2); cv(3); e(9); e(10)
            mfPV(u, 0)
            e(11); e(12); e(13); e(14); e(15); cv(4); cv(5); cv(6)
        else:
            cv(1); e(5); e(6); e(7); cv(2); e(8); cv(3); e(9); e(10); e(11); cv(4)
            mfPV(u, 0)
            e(12); e(13); cv(5); e(14); e(15); cv(6)
        if u == 7:
            a("s_add_u32 s%d, s%d, 8" % (sTGT, sTGT))
            a("s_add_u32 s%d, s%d, 1" % (sCNT, sCNT))
            a("s_cmp_lt_u32 s%d, 8" % sCNT)
        cv(7)
    a("s_cbranch_scc1 L_at_loop")
    a.nop(1)
    mfPV(7, 1)
    a.stamp(11)
    a("s_lshl_b32 s%d, s%d, 12" % (sT0, sW))
    a("s_add_u32 s%d, s%d, 16384" % (sT0, sT0))
    a("v_add_u32 v10, s%d, v3" % sT0)
    a("v_xor_b32 v11, 0xc000, v10")
    a("s_and_b32 s%d, s%d, 3" % (sT1, sW))
    a("s_lshl_b32 s%d, s%d, 2" % (sKH, sT1))
    a("s_mul_i32 s%d, s%d, %d" % (sT2, sQT, A2_TT))
    a("s_lshl_b32 s%d, s%d, 10" % (sT1, sHEAD))
    a("s_add_u32 s%d, s%d, s%d" % (sT2, sT2, sT1))
    a("s_add_u32 s%d, s%d, %d" % (sT2, sT2, A2_OFF))
    a("s_lshr_b32 s%d, s%d, 3" % (sT3, sQT))
    a("s_lshl_b32 s%d, s%d, 5" % (sT3, sT3))
    a("s_add_u32 s%d, s%d, s%d" % (sT3, sT3, sHEAD))
    a("s_lshl_b32 s%d, s%d, %d" % (sT3, sT3, OPT["fs"]))
    a("s_add_u32 s%d, s%d, %d" % (sT3, sT3, FO_OFF))
    a("ds_write_b128 v10, %s" % v(O[1], 4))
    a("ds_write_b128 v10, %s offset:1024" % v(O[1] + 4, 4))
    a("ds_write_b32 v10, v%d offset:2048" % (O[1] + 8))
    a("s_waitcnt lgkmcnt(0)")
    a("v_add_u32 v12, s%d, v%d" % (sKH, VCN))
    arrive(a, 12, VONE, 8)
    spin(a, 12, VP, 8, sT0, "2", "L_a_pair")
    a("ds_read_b128 %s, v11" % v(S[0], 4))
    a("ds_read_b128 %s, v11 offset:1024" % v(S[0] + 4, 4))
    a("ds_read_b32 v%d, v11 offset:2048" % (S[0] + 8))
    a("s_waitcnt lgkmcnt(0)")
    for i in range(8, -1, -1): a("v_add_f32 v%d, v%d, v%d" % (O[0] + i, O[0] + i, S[0] + i))
    a("v_cmp_nle_f32 vcc, 0x21800000, v%d" % (O[0] + 8))
    a("s_nop 1")
    a("s_mov_b64 s[56:57], vcc")
    a("v_cmp_nge_f32 vcc, 0x5d800000, v%d" % (O[0] + 8))
    a("s_nop 1")
    a("s_or_b64 vcc, vcc, s[56:57]")
    a("s_cbranch_vccnz L_a_fallback")
    a.label("L_a_fin")
    a("s_setprio 3")
    a.stamp(12)
    a("v_rcp_f32 v10, v%d" % (O[0] + 8))
    a.nop(1)
    for i in range(8): a("v_mul_f32 v%d, v%d, v10" % (O[0] + i, O[0] + i))
    for i in range(4): a("v_cvt_pk_bf16_f32 v%d, v%d, v%d" % (P + i, O[0] + 2 * i, O[0] + 2 * i + 1))
    a("buffer_store_dwordx4 %s, v3, %s, s%d offen %s" % (v(P, 4), s(SWS, 4), sT2, sc()))
    last_flag(a, VCN, VONE, VP, 32, 8, sT3, "L_a_exit")
    a.label("L_a_exit")
    a.stamp(13)
    a.stamp_flush(0, SWS, sW, 12)
    a("s_endpgm")
    a.label("L_at_slow")
    spin(a, VCN, VP, 0, sT0, "s%d" % sTGT, "L_at_spin")
    a("s_branch L_at_back")
    a.label("L_a_fallback")
    C = O[1]; S0 = S[0]
    a("v_mov_b32 v10, 0xff800000")
    a("s_mov_b32 s%d, s%d" % (sT0, sKVB))
    a("s_mov_b32 s%d, 64" % sCNT)
    a.label("L_fb1")
    a("buffer_load_dwordx4 %s, v3, %s, s%d offen sc1" % (v(KF[0], 4), s(SWS, 4), sT0))
    a("s_waitcnt vmcnt(0)")
    a("v_mfma_f32_32x32x16_bf16 %s, %s, %s, 0" % (v(S0, 16), v(KF[0], 4), v(Q[0], 4)))
    a.nop(12)
    for i in range(0, 16, 2): a("v_max3_f32 v10, v10, v%d, v%d" % (S0 + i, S0 + i + 1))
    a("s_add_u32 s%d, s%d, 2048" % (sT0, sT0))
    a("s_sub_u32 s%d, s%d, 1" % (sCNT, sCNT))
    a("s_cmp_lg_u32 s%d, 0" % sCNT)
    a("s_cbranch_scc1 L_fb1")
    a("v_mov_b32 v11, v10")
    a.nop(2)
    a("v_permlane32_swap_b32 v10, v11")
    a("v_max_f32 v10, v10, v11")
    for i in range(16): a("v_sub_f32 v%d, 0, v10" % (C + i))
    for i in range(16): a("v_mov_b32 v%d, 0" % (O[0] + i))
    a("s_mov_b32 s%d, s%d" % (sT0, sKVB))
    a("s_mov_b32 s%d, 64" % sCNT)
    a.label("L_fb2")
    a("buffer_load_dwordx4 %s, v3, %s, s%d offen sc1" % (v(KF[0], 4), s(SWS, 4), sT0))
    a("s_mov_b64 exec, %s" % s(sVM, 2))
    a("buffer_load_dwordx4 %s, v47, %s, s%d offen offset:1024 sc1" % (v(VF[0], 4), s(SWS, 4), sT0))
    a("buffer_load_dwordx4 %s, v47, %s, s%d offen offset:1536 sc1" % (v(VF[0] + 4, 4), s(SWS, 4), sT0))
    a("s_mov_b64 exec, -1")
    a("s_waitcnt vmcnt(0)")
    a("v_mfma_f32_32x32x16_bf16 %s, %s, %s, %s" % (v(S0, 16), v(KF[0], 4), v(Q[0], 4), v(C, 16)))
    a.nop(12)
    for i in range(16): a("v_exp_f32 v%d, v%d" % (S0 + i, S0 + i))
    a.nop(1)
    for i in range(8): a("v_cvt_pk_bf16_f32 v%d, v%d, v%d" % (P + i, S0 + 2 * i, S0 + 2 * i + 1))
    a.nop(2)
    for j in range(2): a("v_mfma_f32_32x32x16_bf16 %s, %s, %s, %s" % (v(O[0], 16), v(VF[0] + 4 * j, 4), v(P + 4 * j, 4), v(O[0], 16)))
    a("s_add_u32 s%d, s%d, 2048" % (sT0, sT0))
    a("s_sub_u32 s%d, s%d, 1" % (sCNT, sCNT))
    a("s_cmp_lg_u32 s%d, 0" % sCNT)
    a("s_cbranch_scc1 L_fb2")
    a.nop(12)
    a("s_branch L_a_fin")

def role_f(a):
    sF = 47; SG = 12
    VCN, VONE = 164, 1
    sW1, sM1, sKD, sSO, sI, sW2, sM2, sFQ, sFH, sPOLL = 10, 11, 20, 21, 48, 49, 50, 51, 52, 58
    sXO, sWO, sM0, sKC1, sFXP, sFG, sH0 = 54, 55, 56, 57, 59, 63, 3
    a("s_sub_u32 s%d, s%d, 8" % (sF, sW))
    a("s_setprio 2")
    srd(a, SA, P_WQKV, 512 * 3072)
    a("v_lshrrev_b32 v6, 3, v2")
    a("v_and_b32 v9, 7, v2")
    a("v_lshlrev_b32 v8, 1, v6")
    a("v_and_b32 v8, 4, v8")
    a("v_xor_b32 v7, v9, v8")
    a("v_mul_u32_u24 v8, 3072, v6")
    a("v_lshl_add_u32 v8, v7, 4, v8")
    a("s_mul_i32 s%d, s%d, %d" % (sW1, sF, 16 * 3072))
    a("s_lshl_b32 s%d, s%d, 7" % (sT0, sNG))
    a("s_add_u32 s%d, s%d, s%d" % (sW1, sW1, sT0))
    a("s_mul_i32 s%d, s%d, 6144" % (sM1, sF))
    a("s_add_u32 s%d, s%d, %d" % (sM1, sM1, LDS_F))
    a("s_and_b32 s%d, s%d, 7" % (sKD, sJ))
    a("s_mov_b32 s%d, %d" % (sSO, FSLOT))
    a("s_mov_b32 s%d, 0" % sI)
    a("s_cmp_ge_u32 s%d, 2" % sF)
    a("s_cselect_b64 %s, %s, %s" % (s(P_WG, 2), s(P_WU, 2), s(P_WG, 2)))
    a("s_cselect_b32 s%d, %d, 0" % (sM2, UPOFF))
    a("s_add_u32 s%d, s%d, %d" % (sM2, sM2, LDS_F))
    srd(a, SG, P_WG, 512 * 3584)
    for i in range(6):
        a("v_add_u32 v4, %d, v2" % (64 * i))
        a("v_mul_u32_u24 v5, 5462, v4")
        a("v_lshrrev_b32 v5, 16, v5")
        a("v_mul_u32_u24 v5, %d, v5" % (3584 - 192))
        a("v_lshl_add_u32 v5, v4, 4, v5")
        a("v_subrev_u32 v%d, %d, v5" % (16 + i, (i % 4) * 1024))
    a("s_and_b32 s%d, s%d, 1" % (sT1, sF))
    a("s_mul_i32 s%d, s%d, %d" % (sWO, sT1, 32 * 3584))
    a("s_mul_i32 s%d, s%d, 192" % (sT2, sNG))
    a("s_add_u32 s%d, s%d, s%d" % (sW2, sWO, sT2))
    a("s_add_u32 s%d, s%d, 2048" % (sW2, sW2))
    a("s_mul_i32 s%d, s%d, 6144" % (sT1, sT1))
    a("s_add_u32 s%d, s%d, s%d" % (sM2, sM2, sT1))
    tagsetup(a)
    a("s_mul_i32 s53, s%d, %d" % (sKD, 64 * 3584))
    a("s_add_u32 s53, s53, s%d" % sW2)
    a("v_lshrrev_b32 v4, 1, v2")
    a("v_mul_u32_u24 v4, 3584, v4")
    a("v_and_b32 v5, 1, v2")
    a("v_lshl_add_u32 v23, v5, 7, v4")
    a("s_lshl_b32 s%d, s%d, 5" % (sFQ, sNG))
    a("s_add_u32 s%d, s%d, s%d" % (sFQ, sFQ, sMT))
    a("s_lshl_b32 s%d, s%d, %d" % (sFQ, sFQ, OPT["fs"]))
    a("s_add_u32 s%d, s%d, %d" % (sFQ, sFQ, FQ_OFF))
    a("s_lshl3_add_u32 s%d, s%d, s%d" % (sFH, sMT, sNG))
    a("s_lshl_b32 s%d, s%d, %d" % (sFH, sFH, OPT["fs"]))
    a("s_add_u32 s%d, s%d, %d" % (sFH, sFH, FH_OFF))
    a("s_lshl_b32 s%d, s%d, %d" % (sPOLL, sXCD, 5 + OPT["fs"]))
    a("s_add_u32 s%d, s%d, %d" % (sPOLL, sPOLL, FQ_OFF))
    a("v_mov_b32 v%d, %d" % (VCN, LDS_CNT))
    a("v_mov_b32 v%d, 1" % VONE)
    def f1_setup():
        a("s_lshr_b32 s43, s%d, 2" % sXCD)
        a("s_and_b32 s%d, s%d, 7" % (sKC1, sJ))
        a("s_lshl3_add_u32 s43, s43, s%d" % sKC1)
        a("s_and_b32 s44, s%d, 3" % sXCD)
        a("s_lshr_b32 s%d, s%d, 3" % (sT2, sJ))
        a("s_lshl2_add_u32 s44, s44, s%d" % sT2)
        a("s_lshl1_add_u32 s%d, s%d, s%d" % (sKC1, sT2, sKC1))
        a("s_and_b32 s%d, s%d, 7" % (sKC1, sKC1))
        a("s_lshl2_add_u32 s%d, s43, s%d" % (sT0, sF))
        a("s_lshl_b32 s%d, s%d, 15" % (sXO, sT0))
        a("s_lshr_b32 s%d, s%d, 1" % (sFXP, sT0))
        a("s_lshl_b32 s%d, s%d, %d" % (sFXP, sFXP, 3 + OPT["fs"]))
        a("s_add_u32 s%d, s%d, %d" % (sFXP, sFXP, FX_OFF))
        a("s_mul_i32 s%d, s%d, %d" % (sH0, sT0, A2_TT))
        a("s_lshl_b32 s%d, s44, 12" % sT1)
        a("s_add_u32 s%d, s%d, s%d" % (sH0, sH0, sT1))
        a("s_add_u32 s%d, s%d, %d" % (sH0, sH0, A2_OFF + 32 * 1024))
        a("s_lshl_b32 s%d, s44, 7" % sT1)
        a("s_add_u32 s%d, s%d, s%d" % (sWO, sWO, sT1))
        a("s_lshl_b32 s%d, s%d, 12" % (sM0, sF))
        a("s_add_u32 s%d, s%d, %d" % (sM0, sM0, GBASE))
        a("s_lshl4_add_u32 s%d, s43, s44" % sFG)
        a("s_lshl_b32 s%d, s%d, %d" % (sFG, sFG, OPT["fs"]))
        a("s_add_u32 s%d, s%d, %d" % (sFG, sFG, FG_OFF))
        a("v_and_b32 v4, 2, v6")
        a("s_and_b32 s%d, s%d, 2" % (sT1, sF))
        a("s_lshl_b32 s%d, s%d, 1" % (sT1, sT1))
        a("v_or_b32 v4, s%d, v4" % sT1)
        a("v_xor_b32 v4, v4, v9")
        a("v_mul_u32_u24 v5, 3584, v6")
        a("v_lshl_add_u32 v136, v4, 4, v5")
        for i in range(1, 4): a("v_add_u32 v%d, %d, v136" % (136 + i, i * (8 * 3584 - 1024)))
        a("v_bfe_u32 v4, v2, 2, 2")
        a("v_lshrrev_b32 v5, 5, v2")
        a("v_lshl_add_u32 v5, v5, 3, v4")
        a("v_lshlrev_b32 v5, 7, v5")
        a("v_lshrrev_b32 v4, 1, v4")
        a("v_lshl_add_u32 v5, v4, 5, v5")
        a("v_bfe_u32 v4, v2, 4, 1")
        a("v_mul_u32_u24 v4, %d, v4" % (8192 + 64))
        a("v_and_b32 v10, 3, v2")
        a("v_lshl_add_u32 v4, v10, 3, v4")
        a("v_add_u32 v128, v4, v5")
        a("v_add_u32 v128, %d, v128" % GBASE)
        for i in range(64, 128, 2): a("v_mov_b64 %s, 0" % v(i, 2))
    srd(a, SB, P_WS, WS_BYTES)
    for i in range(4): a("v_mov_b32 v%d, 0" % (136 + i))
    def slot():
        a("s_add_u32 s%d, s%d, %d" % (sSO, sSO, FSLOT))
        a("s_cmp_eq_u32 s%d, %d" % (sSO, 3 * FSLOT))
        a("s_cselect_b32 s%d, 0, s%d" % (sSO, sSO))
        a("s_add_u32 s%d, s%d, 1" % (sI, sI))
    a("s_waitcnt vmcnt(0)")
    a.stamp(1)
    a.label("L_d_issue")
    a("s_mul_i32 s%d, s%d, %d" % (sT2, sKD, 64 * 3072))
    a("s_add_u32 s%d, s%d, s%d" % (sT2, sT2, sW1))
    a("s_add_u32 m0, s%d, s%d" % (sM1, sSO))
    a("s_add_u32 s%d, s%d, 1" % (sKD, sKD))
    for m in range(3): a("buffer_load_dwordx4 v8, %s, s%d offen offset:%d lds" % (s(SA, 4), sT2, m * 1024))
    a("s_add_u32 m0, m0, 3072")
    a("s_add_u32 s%d, s%d, %d" % (sT2, sT2, 8 * 3072))
    for m in range(3): a("buffer_load_dwordx4 v8, %s, s%d offen offset:%d lds" % (s(SA, 4), sT2, m * 1024))
    a("s_and_b32 s%d, s%d, 7" % (sKD, sKD))
    slot()
    if OPT["ft"]:
        a("s_cmp_lt_u32 s%d, 3" % sI)
        a("s_cbranch_scc1 L_d_issue")
        a("s_cmp_lg_u32 s%d, 3" % sI)
        a("s_cbranch_scc1 L_d_w")
        a("buffer_load_dword v23, v23, %s, s53 offen" % s(SG, 4))
        def g0():
            a("s_mul_i32 s%d, s%d, %d" % (sT2, sKC1, 64 * 3584))
            a("s_add_u32 m0, s%d, %d" % (sM0, 2 * GSLOT))
            a("s_add_u32 s%d, s%d, s%d" % (sT2, sT2, sWO))
            for i in range(4): a("buffer_load_dwordx4 v%d, %s, s%d offen offset:%d lds" % (136 + i, s(SG, 4), sT2, i * 1024))
        f1_setup()
        a("s_waitcnt vmcnt(%d)" % (17 if OPT["g0pro"] else 13))
        a("s_barrier")
        a.label("L_d_w")
        a("s_waitcnt vmcnt(%d)" % (11 if OPT["g0pro"] else 7))
        a("s_cmp_lt_u32 s%d, 5" % sI)
        a("s_cbranch_scc1 L_d_b")
        a("s_waitcnt vmcnt(6)")
        a.label("L_d_b")
    else:
        a("s_cmp_eq_u32 s%d, 1" % sI)
        a("s_cbranch_scc1 L_d_issue")
        a("s_waitcnt vmcnt(6)")
    a("s_barrier")
    a("s_lshl4_add_u32 s%d, s%d, s%d" % (sT0, sF, sI))
    a("s_cmp_lg_u32 s%d, 5" % sT0)
    a("s_cbranch_scc1 L_d_nf")
    a("s_add_u32 s%d, s%d, %d" % (sT0, sFH, (FX_OFF - FH_OFF) & 0xffffffff))
    a("s_mov_b64 exec, 1")
    a("buffer_store_dwordx2 %s, v3, %s, s%d offen %s" % (v(VTAG, 2), s(SWS, 4), sT0, sc()))
    a("s_mov_b64 exec, -1")
    a.label("L_d_nf")
    a("s_cmp_lg_u32 s%d, 8" % sI)
    a("s_cbranch_scc1 L_d_issue")
    a.stamp(3)
    a("v_lshlrev_b32 v165, %d, v2" % OPT["fs"])
    a.label("L_g_issue")
    a("s_mul_i32 s%d, s%d, %d" % (sT2, sKD, 64 * 3584))
    a("s_add_u32 m0, s%d, s%d" % (sM2, sSO))
    a("s_add_u32 s%d, s%d, s%d" % (sT2, sT2, sW2))
    for i in range(6):
        if i == 4:
            a("s_add_u32 m0, m0, 4096")
            a("s_add_u32 s%d, s%d, 1" % (sKD, sKD))
        a("buffer_load_dwordx4 v%d, %s, s%d offen offset:%d lds" % (16 + i, s(SG, 4), sT2, (i % 4) * 1024))
    a("s_and_b32 s%d, s%d, 7" % (sKD, sKD))
    slot()
    a("s_waitcnt vmcnt(6)")
    a("s_barrier")
    a("s_lshl_b32 s%d, s%d, 5" % (sT0, sF))
    a("s_add_u32 s%d, s%d, s%d" % (sT0, sT0, sI))
    a("s_cmp_lg_u32 s%d, %d" % (sT0, OPT["qflag"] + 2))
    a("s_cbranch_scc1 L_g_nf")
    a("s_mov_b64 exec, 1")
    a("buffer_store_dwordx2 %s, v3, %s, s%d offen %s" % (v(VTAG, 2), s(SWS, 4), sFQ, sc()))
    a("s_mov_b64 exec, -1")
    a.label("L_g_nf")
    a("s_cmp_lg_u32 s%d, 16" % sI)
    a("s_cbranch_scc1 L_g_issue")
    a.stamp(4)
    sIT, sTGT, sDN, sSLW, sSLR, sKX, sXC = 10, 11, 20, 21, 49, 50, 51
    XR = 8; FB = 24; ACC = 64; TA = 132
    a("s_mov_b32 s%d, %d" % (sSLW, 2 * GSLOT))
    a("s_mov_b32 s%d, %d" % (sSLR, 2 * GSLOT))
    a("s_mov_b32 s%d, s%d" % (sKX, sKC1))
    a("s_mov_b32 s%d, 0" % sIT)
    a("s_mov_b32 s%d, 4" % sTGT)
    a("s_mov_b32 s%d, 0" % sDN)
    def d_pre():
        a("s_mul_i32 s%d, s%d, %d" % (sT2, sKC1, 64 * 3584))
        a("s_add_u32 s%d, s%d, s%d" % (sT2, sT2, sWO))
        a("s_add_u32 m0, s%d, s%d" % (sM0, sSLW))
        a("s_add_u32 s%d, s%d, 1" % (sKC1, sKC1))
        a("s_and_b32 s%d, s%d, 7" % (sKC1, sKC1))
        a("s_add_u32 s%d, s%d, %d" % (sSLW, sSLW, GSLOT))
        a("s_cmp_eq_u32 s%d, %d" % (sSLW, 3 * GSLOT))
        a("s_cselect_b32 s%d, 0, s%d" % (sSLW, sSLW))
    def d_ld(i): a("buffer_load_dwordx4 v%d, %s, s%d offen offset:%d lds" % (136 + i, s(SG, 4), sT2, i * 1024))
    def xoff(guard=None):
        a("s_lshl_b32 s%d, s%d, 12" % (sXC, sKX))
        a("s_add_u32 s%d, s%d, s%d" % (sXC, sXC, sXO))
        if guard is not None:
            a("s_cmp_lt_u32 s%d, %d" % (sIT, guard))
            a("s_cselect_b32 s%d, s%d, 0" % (SB + 2, SB + 2))
        a("s_add_u32 s%d, s%d, 1" % (sKX, sKX))
        a("s_and_b32 s%d, s%d, 7" % (sKX, sKX))
    def xld(i): a("buffer_load_dwordx4 %s, v3, %s, s%d offen offset:%d sc1" % (v(XR + 4 * i, 4), s(SB, 4), sXC, i * 1024))
    def taddr():
        a("v_add_u32 v%d, s%d, v128" % (TA, sSLR))
        for t in range(1, 4): a("v_xor_b32 v%d, %d, v%d" % (TA + t, t << 5, TA))
    a("s_mov_b32 exec_hi, 0")
    a("buffer_load_dwordx2 v[26:27], v165, %s, s%d offen sc1" % (s(SWS, 4), sPOLL))
    a("s_mov_b64 exec, 0xff")
    a("buffer_load_dwordx2 v[24:25], v165, %s, s%d offen sc1" % (s(SWS, 4), sFXP))
    a("s_mov_b64 exec, -1")
    g0()
    d_pre()
    xoff()
    taddr()
    a("s_waitcnt vmcnt(4)")
    a("s_barrier")
    a("v_cmp_ne_u64 vcc, %s, v[26:27]" % s(sTAG, 2))
    if not OPT["kv0"]:
        a("s_cmp_lg_u32 s%d, 0" % sF)
        a("s_cbranch_scc1 L_f_nopoll")
    else:
        a("s_lshr_b32 s%d, s%d, 3" % (sT3, sJ))
        a("s_lshl2_add_u32 s%d, s%d, s%d" % (sT3, sXCD, sT3))
    a("s_cmp_eq_u32 vcc_lo, 0")
    a("s_cbranch_scc1 L_f_nopoll")
    poll(a, 165, sPOLL, 32, 26, "L_f_pollq")
    a.label("L_f_nopoll")
    if OPT["kv0"]:
        a("s_lshl_b32 s%d, s%d, 17" % (sT3, sT3))
        a("s_lshl_b32 s%d, s%d, 12" % (sT0, sF))
        a("s_add_u32 m0, s%d, 65536" % sT0)
        a("s_add_u32 s%d, s%d, s%d" % (sT3, sT3, sT0))
        a("s_add_u32 s%d, s%d, %d" % (sT3, sT3, KV_OFF))
        for i in range(4): a("buffer_load_dwordx4 v3, %s, s%d offen offset:%d sc1 lds" % (s(SWS, 4), sT3, i * 1024))
    a("v_cmp_ne_u64 vcc, %s, v[24:25]" % s(sTAG, 2))
    d_pre()
    a("s_barrier")
    a.stamp(5)
    if OPT["kv0"]:
        a("s_waitcnt vmcnt(0)")
        arrive(a, VCN, VONE, 28)
    a("s_setprio %d" % OPT["prio"])
    if OPT["nof"] == 1: a("s_branch L_f_ep")
    a("s_and_b32 s%d, vcc_lo, 0xff" % sT0)
    a("s_cbranch_scc0 L_f_xok")
    poll(a, 165, sFXP, 8, 24, "L_f_pollx")
    a.label("L_f_xok")
    for i in range(3): xld(i)
    for i in range(4): d_ld(i)
    xld(3)
    a("s_waitcnt vmcnt(5)")
    arrive(a, VCN, VONE, 44)
    spin(a, VCN, 0, 44, sT0, "4", "L_f_g0")
    if OPT["fgate"]: spin(a, VCN, 0, 0, sT0, "8", "L_f_gate")
    D = OPT["f1depth"]; NM = 16
    def rd(n):
        s4, t = (n // 4) % 4, n % 4
        for sec in range(2):
            a("ds_read_b64_tr_b16 %s, v%d offset:%d" % (v(FB + (n % 8) * 4 + sec * 2, 2), TA + t, s4 * 2048 + sec * 512))
    for n in range(D): rd(n)
    a("s_waitcnt lgkmcnt(0)")
    a.stamp(9)
    N_DRD, N_DCK, N_RAR, N_RRD, N_RCK = 0, D + 1, 6, NM - 1 - D - D - 1, NM - 1 - D
    dma_at = {N_DCK + 1 + 2 * j: j for j in range(4)}
    vm_after = []
    for n in range(NM):
        ops = []
        if n in dma_at: ops.append("d%d" % dma_at[n])
        if n % 4 == 3: ops.append("x%d" % (n // 4))
        vm_after.append(ops)
    flat = [o for ops in vm_after for o in ops]
    assert flat[flat.index("d3") + 1:] in (["x3"], ["x2", "x3"]), flat
    def vm_n(op, n): return len(flat) - 1 - flat.index(op) + sum(len(o) for o in vm_after[:n])
    lg_after = [[] for _ in range(NM)]
    for n in (N_DRD, N_RAR, N_RRD, NM - 1): lg_after[n].append(1)
    a.label("L_f_loop")
    a("s_cmp_lt_u32 s%d, 6" % sIT)
    a("s_cselect_b32 s%d, s%d, 0" % (SG + 2, SG + 2))
    d_pre()
    xoff(7)
    for n in range(NM):
        s4, t = n // 4, n % 4
        rd(n + D)
        out = 2 * D + sum(len(lg_after[(n - k) % NM]) for k in range(1, D + 1))
        w = "s_waitcnt lgkmcnt(%d)" % out
        if t == 0: w += " vmcnt(%d)" % vm_n("x%d" % s4, n)
        if n == N_RAR: w += " vmcnt(%d)" % (vm_n("x3", n) + 1)
        a(w)
        a("v_mfma_f32_32x32x16_bf16 %s, %s, %s, %s" % (v(ACC + 16 * t, 16), v(FB + (n % 8) * 4, 4), v(XR + 4 * s4, 4), v(ACC + 16 * t, 16)))
        if n == N_DRD: a("ds_read_b32 v0, v%d offset:40" % VCN)
        if n == N_RRD: a("ds_read_b32 v0, v%d offset:4" % VCN)
        if n == N_RAR: arrive(a, VCN, VONE, 4)
        if n == NM - 1: arrive(a, VCN, VONE, 40)
        if n in (N_DCK, N_RCK):
            nm = "L_f_d" if n == N_DCK else "L_f_r"
            a("v_readfirstlane_b32 s%d, v0" % sT0)
            if n == N_RCK:
                a("s_add_u32 s%d, s%d, %d" % (sSLR, sSLR, GSLOT))
                a("s_cmp_eq_u32 s%d, %d" % (sSLR, 3 * GSLOT))
                a("s_cselect_b32 s%d, 0, s%d" % (sSLR, sSLR))
                taddr()
            else: a("s_nop 0")
            a("s_cmp_ge_u32 s%d, s%d" % (sT0, sDN if n == N_DCK else sTGT))
            a("s_cbranch_scc0 %s_slow" % nm)
            a.label(nm + "_back")
        if n in dma_at: d_ld(dma_at[n])
        if t == 3: xld(s4)
    a("s_add_u32 s%d, s%d, 4" % (sTGT, sTGT))
    a("s_add_u32 s%d, s%d, 4" % (sDN, sDN))
    a("s_add_u32 s%d, s%d, 1" % (sIT, sIT))
    a("s_cmp_lt_u32 s%d, 8" % sIT)
    a("s_cbranch_scc1 L_f_loop")
    a.stamp(10)
    a("s_setprio %d" % OPT["prio2"])
    a("s_waitcnt vmcnt(0) lgkmcnt(0)")
    arrive(a, VCN, VONE, 40)
    a("s_cmp_lg_u32 s%d, 0" % sF)
    a("s_cbranch_scc1 L_f_hf")
    spin(a, VCN, 0, 0, sT0, "16", "L_f_nofw1")
    a("s_mov_b64 exec, 1")
    a("buffer_store_dwordx2 %s, v3, %s, s%d offen %s" % (v(VTAG, 2), s(SWS, 4), sFH, sc()))
    a("s_mov_b64 exec, -1")
    a.label("L_f_hf")
    sMT2, sNT, sWB, sA0, sA1, sGW, sGA, sLB = 43, 44, 45, 46, 53, 54, 55, 56
    a("s_and_b32 s%d, s%d, 3" % (sT2, sJ))
    a("s_lshl2_add_u32 s%d, s%d, s%d" % (sMT2, sXCD, sT2))
    a("s_lshr_b32 s%d, s%d, 2" % (sNT, sJ))
    srd(a, SA, P_WD, 1792 * 1024)
    srd(a, SB, P_WO, 512 * 1024)
    a("v_lshrrev_b32 v8, 3, v2")
    a("v_lshlrev_b32 v7, 1, v8")
    a("v_and_b32 v7, 4, v7")
    a("v_and_b32 v9, 7, v2")
    a("v_xor_b32 v7, v7, v9")
    a("v_lshlrev_b32 v8, 10, v8")
    a("v_lshl_add_u32 v8, v7, 4, v8")
    for i in range(1, 4): a("v_add_u32 v%d, %d, v8" % (8 + i, i * 7168))
    a("s_lshl_b32 s%d, s%d, 7" % (sWB, sNT))
    a("s_mul_i32 s%d, s%d, %d" % (sLB, sF, F2REG))
    a("s_add_u32 s%d, s%d, %d" % (sLB, sLB, LDS_F))
    a("s_lshl1_add_u32 s20, s%d, s%d" % (sT2, sNT))
    a("s_and_b32 s20, s20, 7")
    a("s_sub_u32 s%d, s20, 6" % sT2)
    a("s_cmp_ge_u32 s20, 6")
    a("s_cselect_b32 s%d, s%d, s20" % (sGW, sT2))
    a("s_mov_b32 s%d, s%d" % (sGA, sGW))
    a("s_and_b32 s%d, s%d, 1" % (sT1, sF))
    a("s_lshl1_add_u32 s%d, s%d, s%d" % (sT1, sMT2, sT1))
    a("s_mul_i32 s%d, s%d, %d" % (sA0, sT1, A2_TT))
    a("s_xor_b32 s%d, s%d, 1" % (sT1, sT1))
    a("s_mul_i32 s%d, s%d, %d" % (sA1, sT1, A2_TT))
    a("s_add_u32 s%d, s%d, %d" % (sA0, sA0, A2_OFF))
    a("s_add_u32 s%d, s%d, %d" % (sA1, sA1, A2_OFF))
    sE, sL = 57, 58
    a("s_mul_i32 s%d, s%d, 6" % (sE, sF))
    a("s_add_u32 s%d, s%d, 32" % (sE, sE))
    a("s_lshl_b32 s%d, s%d, 3" % (sL, sF))
    a.vm = []
    def gidx(g, sg):
        if g == 6: a("s_mov_b32 s%d, s20" % sg)
        a("s_add_u32 s%d, s%d, s%d" % (sT0, sE if g < 6 else sL, sg))
        a("s_add_u32 s%d, s%d, 1" % (sg, sg))
        if g < 6:
            a("s_cmp_eq_u32 s%d, 6" % sg)
            a("s_cselect_b32 s%d, 0, s%d" % (sg, sg))
        else: a("s_and_b32 s%d, s%d, 7" % (sg, sg))
    def w2(g):
        a("s_add_u32 m0, s%d, %d" % (sLB, (g % 5) * 4096))
        if g < 14:
            gidx(g, sGW)
            a("s_lshl_b32 s%d, s%d, 15" % (sT0, sT0)); sr = SA
        else:
            a("s_lshl_b32 s%d, s%d, 17" % (sT0, sF))
            a("s_add_u32 s%d, s%d, %d" % (sT0, sT0, (g - 14) * 32768)); sr = SB
        a("s_add_u32 s%d, s%d, s%d" % (sT0, sT0, sWB))
        if OPT["thr2"]: a("s_waitcnt vmcnt(%d)" % OPT["thr2"])
        for i in range(4):
            a.vmem("buffer_load_dwordx4 v%d, %s, s%d offen offset:%d lds" % (8 + i, s(sr, 4), sT0, i * 1024), "W%d" % g)
    AB = 96
    def a2(g):
        if g < 14:
            gidx(g, sGA)
            a("s_lshl_b32 s%d, s%d, 11" % (sT0, sT0))
            a("s_add_u32 s%d, s%d, 32768" % (sT0, sT0))
        else:
            a("s_lshl_b32 s%d, s%d, 13" % (sT0, sF))
            a("s_add_u32 s%d, s%d, %d" % (sT0, sT0, (g - 14) * 2048))
        a("s_add_u32 s%d, s%d, s%d" % (sT1, sT0, sA1))
        a("s_add_u32 s%d, s%d, s%d" % (sT0, sT0, sA0))
        if OPT["thr2"] and g < 14: a("s_waitcnt vmcnt(%d)" % OPT["thr2"])
        for ks in range(2):
            for tb in range(2):
                a.vmem("buffer_load_dwordx4 %s, v3, %s, s%d offen offset:%d sc1" % (v(AB + (g % 4) * 16 + ks * 8 + tb * 4, 4), s(SWS, 4), sT0 + tb, ks * 1024), "A%d" % g)
    spin(a, VCN, 0, 40, sT0, "36", "L_f_spin2")
    sv = OPT["thr2"]; OPT["thr2"] = 0
    for g in range(OPT["w2pre"]): w2(g)
    OPT["thr2"] = sv
    a("v_mov_b32 v12, 0x%x" % f2u(C1))
    for t in range(4):
        Gt = ACC + 16 * t; U = Gt + 8; T = 24 + (t % 2) * 12
        for i in range(8): a("v_mul_f32 v%d, v%d, v%d" % (T + i, Gt + i, Gt + i))
        for i in range(8): a("v_fmamk_f32 v%d, v%d, 0x%x, v12" % (T + i, T + i, f2u(C2)))
        for i in range(8): a("v_mul_f32 v%d, v%d, v%d" % (T + i, T + i, Gt + i))
        for i in range(8): a("v_exp_f32 v%d, v%d" % (T + i, T + i))
        for i in range(8): a("v_mul_f32 v%d, v%d, v%d" % (Gt + i, Gt + i, U + i))
        for i in range(8): a("v_add_f32 v%d, 1.0, v%d" % (T + i, T + i))
        for i in range(8): a("v_rcp_f32 v%d, v%d" % (T + i, T + i))
        a.nop(1)
        for i in range(8): a("v_mul_f32 v%d, v%d, v%d" % (Gt + i, Gt + i, T + i))
        for i in range(4): a("v_cvt_pk_bf16_f32 v%d, v%d, v%d" % (T + 8 + i, Gt + 2 * i, Gt + 2 * i + 1))
        a("buffer_store_dwordx4 %s, v3, %s, s%d offen offset:%d %s" % (v(T + 8, 4), s(SWS, 4), sH0, t * 1024, sc()))
    last_flag(a, VCN, VONE, 0, 36, 4, sFG, "L_f_gf")
    a.label("L_f_gf")
    a("s_setprio %d" % OPT["prio3"])
    a("v_lshrrev_b32 v14, 5, v2")
    a("v_bfe_u32 v4, v2, 2, 2")
    a("v_and_b32 v5, 1, v2")
    a("v_lshlrev_b32 v5, 4, v5")
    a("v_and_b32 v6, 2, v2")
    a("v_lshl_add_u32 v5, v6, 2, v5")
    a("v_and_b32 v6, 16, v2")
    a("v_lshl_add_u32 v5, v6, 1, v5")
    a("s_and_b32 s%d, s%d, 2" % (sT2, sF))
    a("s_lshl_b32 s%d, s%d, 5" % (sT2, sT2))
    a("v_add_u32 v5, s%d, v5" % sT2)
    a("v_lshlrev_b32 v6, 5, v4")
    a("v_and_b32 v6, 64, v6")
    a("v_xor_b32 v5, v5, v6")
    a("v_lshl_add_u32 v4, v14, 2, v4")
    a("v_lshl_add_u32 v5, v4, 7, v5")
    a("v_xor_b32 v6, 64, v5")
    a("v_add_u32 v12, s%d, v5" % sLB)
    a("v_add_u32 v13, s%d, v6" % sLB)
    a("s_lshl2_add_u32 s%d, s%d, s%d" % (sT3, sMT2, sF))
    a("s_lshl_b32 s%d, s%d, %d" % (sT3, sT3, 1 + OPT["fs"]))
    a("s_add_u32 s%d, s%d, %d" % (sT3, sT3, FH_OFF))
    a("s_lshr_b32 s21, s%d, 1" % sMT2)
    a("s_lshl2_add_u32 s21, s21, s%d" % sF)
    a("s_lshl_b32 s21, s21, %d" % (2 + OPT["fs"]))
    a("s_add_u32 s21, s21, %d" % FG_OFF)
    for g in range(OPT["w2pre"], 4): w2(g)
    a.stamp(11)
    poll(a, 165, sT3, 2, 16, "L_f_pollh")
    a.stamp(12)
    a.vm = []
    ACC2 = 32; WF = 16
    def rd2(g, ks, ci):
        for sec in range(2):
            a("ds_read_b64_tr_b16 %s, v%d offset:%d" % (v(WF + ks * 8 + ci * 4 + sec * 2, 2), 12 + ci, (g % 5) * 4096 + ks * 2048 + sec * 1024))
    def mm2(g, ks, ci):
        for ti in range(2):
            d = v(ACC2 + (ci * 2 + ti) * 16, 16)
            a("v_mfma_f32_32x32x16_bf16 %s, %s, %s, %s" % (d, v(WF + ks * 8 + ci * 4, 4), v(AB + (g % 4) * 16 + ks * 8 + ti * 4, 4), "0" if (g == 0 and ks == 0) else d))
    def comp(g, pre=None):
        if OPT["f2pace"] and g < 14:
            if pre: pre()
            for ks in range(2):
                for ci in range(2):
                    rd2(g, ks, ci)
                    a("s_waitcnt lgkmcnt(0)")
                    mm2(g, ks, ci)
            return
        for ks in range(2):
            for ci in range(2): rd2(g, ks, ci)
        if pre: pre()
        for ks in range(2):
            a("s_waitcnt lgkmcnt(%d)" % (4 if ks == 0 else 0))
            for ci in range(2): mm2(g, ks, ci)
    for g in range(3): a2(g)
    for g in range(14):
        if g + 3 == 6:
            poll(a, 165, 21, 4, 16, "L_f_pollg")
            a.vm = []
        if g + 3 < 14: a2(g + 3)
        w2(g + 4)
        a.wait_vm("A%d" % g)
        if a.vm_count_after("W%d" % g) is not None: a.wait_vm("W%d" % g)
        comp(g)
    srd(a, SA, P_X, 2 * MB)
    srd(a, SB, P_OUT, 2 * MB)
    sXS = 48
    a("s_and_b32 s%d, s%d, 1" % (sT1, sF))
    a("s_lshl1_add_u32 s%d, s%d, s%d" % (sT0, sMT2, sT1))
    a("s_lshl_b32 s%d, s%d, 15" % (sXS, sT0))
    a("s_add_u32 s%d, s%d, s%d" % (sXS, sXS, sWB))
    a("s_and_b32 s%d, s%d, 2" % (sT2, sF))
    a("s_lshl_b32 s%d, s%d, 5" % (sT2, sT2))
    a("s_add_u32 s%d, s%d, s%d" % (sXS, sXS, sT2))
    a("v_and_b32 v4, 31, v2")
    a("v_lshlrev_b32 v4, 10, v4")
    a("v_lshl_add_u32 v4, v14, 4, v4")
    a("buffer_load_dwordx4 v[8:11], v4, %s, s%d offen" % (s(SA, 4), sXS))
    a("buffer_load_dwordx4 v[160:163], v4, %s, s%d offen offset:32" % (s(SA, 4), sXS))
    a("s_lshl2_add_u32 s%d, s%d, s%d" % (sT3, sXCD, sF))
    a("s_lshl_b32 s%d, s%d, %d" % (sT3, sT3, 3 + OPT["fs"]))
    a("s_add_u32 s%d, s%d, %d" % (sT3, sT3, FO_OFF))
    a("s_waitcnt vmcnt(0)")
    for i in range(4):
        a("v_lshlrev_b32 v%d, 16, v%d" % (96 + 2 * i, 8 + i))
        a("v_and_b32 v%d, 0xffff0000, v%d" % (97 + 2 * i, 8 + i))
        a("v_lshlrev_b32 v%d, 16, v%d" % (104 + 2 * i, 160 + i))
        a("v_and_b32 v%d, 0xffff0000, v%d" % (105 + 2 * i, 160 + i))
    for i in range(16): a("v_add_f32 v%d, v%d, v%d" % (ACC2 + i, ACC2 + i, 96 + i))
    a("v_add_u32 v5, s%d, v3" % sLB)
    for sl in range(1, 4):
        a("s_xor_b32 s%d, s%d, %d" % (sT0, sF, sl))
        a("s_mul_i32 s%d, s%d, %d" % (sT0, sT0, F2REG))
        a("s_add_u32 s%d, s%d, %d" % (sT0, sT0, LDS_F + (sl - 1) * 4096))
        a("v_add_u32 v%d, s%d, v3" % (7 + sl, sT0))
    a("s_setprio 0")
    a.stamp(13)
    if OPT["nof"] == 4: a("s_branch L_f_ep")
    poll(a, 165, sT3, 8, 16, "L_f_pollo")
    a.stamp(14)
    a("s_setprio 3")
    a.vm = []
    for g in range(14, 18): a2(g)
    for g in range(14, 18):
        comp(g, lambda: a.wait_vm("A%d" % g))
    a.nop(10)
    for sl in range(1, 4):
        for q in range(4):
            a("ds_write_b128 v5, %s offset:%d" % (v(ACC2 + sl * 16 + 4 * q, 4), (sl - 1) * 4096 + q * 1024))
    a("s_waitcnt lgkmcnt(0)")
    arrive(a, VCN, VONE, 40)
    spin(a, VCN, 0, 40, sT0, "40", "L_f_spin3")
    for sl in range(1, 4):
        for q in range(4):
            a("ds_read_b128 %s, v%d offset:%d" % (v(ACC2 + sl * 16 + 4 * q, 4), 7 + sl, q * 1024))
    for sl in range(1, 4):
        a("s_waitcnt lgkmcnt(%d)" % (12 - 4 * sl))
        for i in range(0, 16, 2): a("v_pk_add_f32 %s, %s, %s" % (v(ACC2 + i, 2), v(ACC2 + i, 2), v(ACC2 + 16 * sl + i, 2)))
    for i in range(8): a("v_cvt_pk_bf16_f32 v%d, v%d, v%d" % (96 + i, ACC2 + 2 * i, ACC2 + 2 * i + 1))
    osc = ["", "sc1", "nt"][OPT["osc"]]
    a("buffer_store_dwordx4 v[96:99], v4, %s, s%d offen %s" % (s(SB, 4), sXS, osc))
    a("buffer_store_dwordx4 v[100:103], v4, %s, s%d offen offset:32 %s" % (s(SB, 4), sXS, osc))
    a.label("L_f_ep")
    if OPT["nof"]:
        spin(a, VCN, 0, 32, sT0, "8", "L_f_nofw")
    a("s_add_u32 s%d, s2, s%d" % (sT0, sF))
    a("s_cmp_lg_u32 s%d, 0" % sT0)
    a("s_cbranch_scc1 L_f_noep")
    a("s_mov_b32 s%d, %d" % (sT0, EPOCH_OFF))
    a("s_mov_b64 exec, 1")
    a("buffer_store_dword v%d, v3, %s, s%d offen" % (VTAG, s(SWS, 4), sT0))
    a("s_mov_b64 exec, -1")
    a.label("L_f_noep")
    a.stamp_flush(0, SWS, sW, 12)
    a("s_endpgm")
    a.label("L_f_d_slow")
    spin(a, VCN, 0, 40, sT0, "s%d" % sDN, "L_f_dspin")
    a("s_branch L_f_d_back")
    a.label("L_f_r_slow")
    spin(a, VCN, 0, 4, sT0, "s%d" % sTGT, "L_f_rspin")
    a("s_branch L_f_r_back")

def gen_kernel(name):
    a = Asm()
    a.label("L_start")
    a("s_cmp_ge_u32 s2, 256")
    a("s_cbranch_scc1 L_end")
    a.stamp(0)
    if OPT["p1diag"]: a("s_mov_b32 s100, 0")
    a("s_load_dwordx16 s[4:19], s[0:1], 0")
    a("s_load_dwordx4 s[20:23], s[0:1], 64")
    a("s_getpc_b64 s[30:31]")
    a.label("L_pc")
    a("s_lshr_b32 s%d, s2, 3" % sJ)
    a("v_lshrrev_b32 v1, 6, v0")
    a("s_mul_i32 s%d, s%d, 12" % (sT0, sJ))
    a("v_add_lshl_u32 v165, v1, s%d, 7" % sT0)
    a("v_min_u32 v165, (L_end - L_pc), v165")
    a("s_mov_b64 exec, 1")
    a("global_load_dword v165, v165, s[30:31]")
    a("s_mov_b64 exec, -1")
    a("v_and_b32 v2, 63, v0")
    a("v_readfirstlane_b32 s%d, v1" % sW)
    a("v_lshlrev_b32 v3, 4, v2")
    a("s_and_b32 s%d, s2, 7" % sXCD)
    lg = {0: 3, 1: 4, 2: 5}[OPT["map"]]
    a("s_lshr_b32 s%d, s%d, %d" % (sMT, sXCD, lg - 2))
    a("s_lshl_b32 s%d, s%d, %d" % (sMT, sMT, lg))
    a("s_and_b32 s%d, s%d, %d" % (sT0, sJ, (1 << lg) - 1))
    a("s_add_u32 s%d, s%d, s%d" % (sMT, sMT, sT0))
    a("s_and_b32 s%d, s%d, %d" % (sNG, sXCD, (1 << (lg - 2)) - 1))
    a("s_lshl_b32 s%d, s%d, %d" % (sNG, sNG, 5 - lg))
    a("s_lshr_b32 s%d, s%d, %d" % (sT0, sJ, lg))
    a("s_add_u32 s%d, s%d, s%d" % (sNG, sNG, sT0))
    if lg == 3: a("s_lshl_b32 s56, s%d, 1" % sJ)
    else: a("s_mov_b32 s56, s%d" % sJ)
    a("s_and_b32 s56, s56, %d" % OPT["grot"])
    a("s_and_b32 s%d, s%d, 1" % (sT0, sT0))
    a("s_lshl3_add_u32 s%d, s%d, s%d" % (sT0, sT0, sW))
    a("s_lshl4_add_u32 s%d, s%d, s%d" % (sT0, sMT, sT0))
    a("s_lshl_b32 s%d, s%d, 12" % (sT0, sT0))
    a("s_xor_b32 s%d, s%d, 32768" % (sT1, sT0))
    a("v_lshrrev_b32 v164, 4, v2")
    a("v_mul_u32_u24 v164, 768, v164")
    a("v_add_u32 v164, v164, v3")
    a("s_cmp_lt_u32 s%d, 8" % sW)
    a("s_waitcnt lgkmcnt(0)")
    srd(a, SB, P_X, 2 * MB)
    a("s_cbranch_scc0 L_norow")
    for p in range(4):
        a("buffer_load_dwordx4 %s, v164, %s, s%d offen offset:%d" % (v(132 + 4 * p, 4), s(SB, 4), sT0, p * 256))
    a.label("L_norow")
    a.stamp(8)
    a("s_add_u32 s62, s%d, %d" % (P_WS, EPOCH_OFF))
    a("s_addc_u32 s63, s%d, 0" % (P_WS + 1))
    a("s_load_dword s%d, s[62:63], 0" % sTAG)
    srd(a, SWS, P_WS, WS_BYTES)
    a("s_mov_b32 s%d, 0x3f803f80" % sONE)
    a("s_cmp_lt_u32 s%d, 8" % sW)
    a("s_cbranch_scc1 L_role_a")
    role_f(a)
    def lowmf(l0, l1, k):
        if not k: return
        i0 = a.lines.index(l0); i1 = a.lines.index(l1)
        out = []; n = 0
        for l in a.lines[i0:i1]:
            if l.startswith("v_mfma"):
                if n % k == 0: out += ["s_setprio 0", l, "s_setprio 2"]
                else: out.append(l)
                n += 1
            else: out.append(l)
        a.lines[i0:i1] = out
    lowmf("L_f_loop:", "L_f_hf:", OPT["k1"])
    lowmf("L_f_pollh_ok:", "L_f_pollo:", OPT["k2"])
    a.label("L_role_a")
    a.vm = []
    role_a(a)
    if OPT["abl"]:
        i0 = a.lines.index("L_p1_qk:"); i1 = a.lines.index("L_p1_done:")
        def keep(l):
            if OPT["abl"] & 1 and l.startswith("v_mfma"): return False
            if OPT["abl"] & 4 and l.startswith("ds_read"): return False
            return True
        a.lines[i0:i1] = [l for l in a.lines[i0:i1] if keep(l)]
        if OPT["abl"] & 2:
            i0 = a.lines.index("L_g_issue:"); i1 = a.lines.index("L_g_nf:")
            a.lines[i0:i1] = [l for l in a.lines[i0:i1] if not l.startswith("buffer_load")]
    a.label("L_end")
    a("s_endpgm")
    return dict(name=name, asm=a, vgpr=168, grid=(256, 1, 1), block=(768, 1, 1), lds=LDS_TOTAL)
```

```python
from common import *
from layout import *
from kgu import f2u, C1, C2

FL_OFF = 32 * MB
EPOCH_OFF = FL_OFF
FX_OFF = FL_OFF + 0x10000
FQ_OFF = FL_OFF + 0x20000
FH_OFF = FL_OFF + 0x30000
FG_OFF = FL_OFF + 0x50000
FO_OFF = FL_OFF + 0x40000
TAGX = 0x5bd1e995

LDS_F = 65536
FSLOT = 24704; UPOFF = 12320; FNS = 3; GBASE = 106880; GSLOT = 16384
F2REG = 20480
LDS_CNT = GBASE + 3 * GSLOT
LDS_ST = LDS_CNT + 128
LDS_TOTAL = 163840

P_X, P_WQKV, P_WO, P_WG, P_WU, P_WD, P_OUT, P_WS = 4, 6, 8, 12, 14, 16, 18, 22
SWS, SA, SB = 24, 28, 32
sW = 36
sT0, sT1, sT2, sT3 = 37, 38, 39, 40
sXCD, sJ = 41, 42
sMT, sNG = 43, 44
sTAG = 60
sSPIN = 62
sONE = 3
VTAG = 166
SC = "sc0 sc1"
OPT = dict(jit=0, gs=0, gx=72, thr3=0, probe=0, w2pre=2, kv0=1, hp=4, g0pro=0, k1=1, k2=1, fgate=1, gtail=2, gper3=4, abl=0, map=0, osc=0, grot=15, yprio=0, sched=0, w2at=16, f2gate=0, spf=0, ft=1, touch=0, gper=2, p1diag=0, fs=7, psleep=2, sc=0, vprio=1, prio3=2, f2pace=0, nof=0, pk=1, thr2=2, qflag=10, prio=2, prio2=2, f1depth=3)

_stamp = Asm.stamp
def stamp_gate(self, i, force=False):
    if OPT["probe"] and OPT["probe"] == i: self("s_memrealtime s[92:93]")
    if OPT["p1diag"] and not force and i not in (0, 15): return
    _stamp(self, i)
Asm.stamp = stamp_gate
def bar(a, i):
    if OPT["p1diag"] and i < 7: a.stamp(1 + 2 * i, True)
    a("s_barrier")
    if OPT["p1diag"] and i < 7: a.stamp(2 + 2 * i, True)

def tr(a, vr):
    if not OPT["p1diag"]: return
    a("s_memtime s[98:99]")
    a("s_waitcnt lgkmcnt(0)")
    a("s_sub_u32 s98, s98, s96")
    a("s_mov_b32 m0, s100")
    a("s_add_u32 s100, s100, 1")
    a("v_writelane_b32 v%d, s98, m0" % vr)
def tr_dump(a, vr, vtmp):
    if not OPT["p1diag"]: return
    a("s_mul_i32 s100, s2, 12")
    a("s_add_u32 s100, s100, s%d" % sW)
    a("s_lshl_b32 s100, s100, 8")
    a("s_add_u32 s100, s100, %d" % (66 << 20))
    a("v_lshlrev_b32 v%d, 2, v2" % vtmp)
    a("buffer_store_dword v%d, v%d, %s, s100 offen" % (vr, vtmp, s(SWS, 4)))

def cap0(a, fn, *args):
    n = len(a.lines); fn(*args); out = a.lines[n:]; del a.lines[n:]; return out

def arrive(a, vaddr, vone, off):
    a("s_mov_b64 exec, 1")
    a("ds_add_u32 v%d, v%d offset:%d" % (vaddr, vone, off))
    a("s_mov_b64 exec, -1")

def spin(a, vaddr, vp, off, stmp, target, name):
    a("s_mov_b32 s%d, 0x200000" % sSPIN)
    a.label(name)
    a("ds_read_b32 v%d, v%d offset:%d" % (vp, vaddr, off))
    a("s_waitcnt lgkmcnt(0)")
    a("v_readfirstlane_b32 s%d, v%d" % (stmp, vp))
    a("s_nop 0")
    a("s_cmp_ge_u32 s%d, %s" % (stmp, target))
    a("s_cbranch_scc1 %s_ok" % name)
    a("s_sleep %d" % (8 if name.startswith("L_f_nofw") else 1))
    a("s_sub_u32 s%d, s%d, 1" % (sSPIN, sSPIN))
    a("s_cbranch_scc0 %s" % name)
    a.label(name + "_ok")

def sc(): return "sc1" if OPT["sc"] else "sc0 sc1"

def set_flag(a, soff, vz, lanes=1):
    a("s_waitcnt vmcnt(0)")
    a("s_mov_b64 exec, %d" % ((1 << lanes) - 1))
    a("buffer_store_dwordx2 %s, v%d, %s, s%d offen %s" % (v(VTAG, 2), vz, s(SWS, 4), soff, sc()))
    a("s_mov_b64 exec, -1")

def last_flag(a, vcn, vone, vp, off, n, soff, skip):
    a("s_waitcnt vmcnt(0)")
    a("s_mov_b64 exec, 1")
    a("ds_add_rtn_u32 v%d, v%d, v%d offset:%d" % (vp, vcn, vone, off))
    a("s_waitcnt lgkmcnt(0)")
    a("v_readfirstlane_b32 s%d, v%d" % (sT0, vp))
    a("s_mov_b64 exec, -1")
    a("s_cmp_lg_u32 s%d, %d" % (sT0, n - 1))
    a("s_cbranch_scc1 %s" % skip)
    a("s_mov_b64 exec, 1")
    a("buffer_store_dwordx2 %s, v3, %s, s%d offen %s" % (v(VTAG, 2), s(SWS, 4), soff, sc()))
    a("s_mov_b64 exec, -1")

def poll(a, voff, soff, nl, vp, name):
    a("s_mov_b32 s%d, 0x20000" % sSPIN)
    assert nl <= 32
    a("s_mov_b32 exec_lo, 0x%x" % ((1 << nl) - 1))
    a("s_mov_b32 exec_hi, 0")
    a.label(name)
    a("buffer_load_dwordx2 %s, v%d, %s, s%d offen sc1" % (v(vp, 2), voff, s(SWS, 4), soff))
    a("s_waitcnt vmcnt(0)")
    a("v_cmp_ne_u64 vcc, %s, %s" % (s(sTAG, 2), v(vp, 2)))
    a("s_sub_u32 s%d, s%d, 1" % (sSPIN, sSPIN))
    a("s_cbranch_scc1 %s_ok" % name)
    a("s_cbranch_vccz %s_ok" % name)
    a("s_sleep %d" % OPT["psleep"])
    a("s_branch %s" % name)
    a.label(name + "_ok")
    a("s_mov_b64 exec, -1")

def tagsetup(a):
    a("s_waitcnt lgkmcnt(0)")
    a("s_add_u32 s%d, s%d, 1" % (sTAG, sTAG))
    a("s_xor_b32 s%d, s%d, 0x%x" % (sTAG + 1, sTAG, TAGX))
    a("v_mov_b32 v%d, s%d" % (VTAG, sTAG))
    a("v_mov_b32 v%d, s%d" % (VTAG + 1, sTAG + 1))

def bf16r(a, r):
    a("v_cvt_pk_bf16_f32 v%d, v%d, v%d" % (r, r, r))
    a("v_and_b32 v%d, 0xffff0000, v%d" % (r, r))

def ln_final(a, sm, sq, tmp):
    a("v_mul_f32 v%d, 0x3b000000, v%d" % (sm, sm))
    a("v_mul_f32 v%d, 0x3b000000, v%d" % (sq, sq))
    a("v_fma_f32 v%d, -v%d, v%d, v%d" % (sq, sm, sm, sq))
    a("v_max_f32 v%d, 0, v%d" % (sq, sq))
    bf16r(a, sq)
    bf16r(a, sm)
    a("v_add_f32 v%d, 0x3727c5ac, v%d" % (sq, sq))
    bf16r(a, sq)
    a("v_sqrt_f32 v%d, v%d" % (sq, sq))
    a.nop(1)
    bf16r(a, sq)
    a("v_rcp_f32 v%d, v%d" % (sq, sq))
    a.nop(1)

def xsum(a, r, t, kind):
    a("v_mov_b32 v%d, v%d" % (t, r))
    a.nop(2)
    a("v_permlane%d_swap_b32 v%d, v%d" % (kind, r, t))
    a("v_add_f32 v%d, v%d, v%d" % (r, r, t))

XB, XA, WB, WA = 12, 13, 17, 18
FR = 116; ACC1 = 48
def role_a(a):
    sD0, sD1, sSCL = 45, 46, 48
    sHEAD, sQT, sKV, sCH, sSL, sKVB, sQ0, sKH = 49, 50, 51, 52, 53, 54, 55, 57
    sVM = 58
    sCNT, sTGT = 45, 46
    sSO, sI, sKC = 28, 29, 31
    sH = 12
    KA, VA, VCN, VONE, VP, VLO = 8, 9, 44, 45, 46, 47
    Q = [4, 112]; KF = [12, 16]; VF = [20, 28]; P = 36; S = [48, 64]; O = [80, 96]
    VST, WB2 = 19, 10
    XS = 132
    a("s_setprio 3")
    a("s_mov_b32 s10, s%d" % sT0)
    a("s_mov_b32 s11, s%d" % sT1)
    a("v_lshrrev_b32 v4, 4, v2")
    a("v_and_b32 v5, 15, v2")
    a("v_xor_b32 v5, v5, v4")
    a("v_lshlrev_b32 v4, 10, v4")
    a("v_lshl_add_u32 v116, v5, 4, v4")
    a("s_and_b32 s%d, s%d, 3" % (sT1, sW))
    a("s_lshl_b32 s%d, s%d, 6" % (sT1, sT1))
    a("s_and_b32 s%d, s%d, 0xffff" % (sT0, sT0))
    a("v_xor_b32 v116, s%d, v116" % sT1)
    a("v_add_u32 v116, s%d, v116" % sT0)
    a("v_xor_b32 v117, 0x8000, v116")
    a("s_and_b32 s%d, s%d, 1" % (sT1, sW))
    a("s_lshl_b32 s%d, s%d, 7" % (sT1, sT1))
    a("v_and_b32 v4, 31, v2")
    a("v_lshrrev_b32 v5, 5, v2")
    a("v_and_b32 v6, 15, v2")
    a("v_xor_b32 v6, v6, v5")
    a("v_lshlrev_b32 v6, 4, v6")
    a("v_lshl_add_u32 v%d, v4, 10, v6" % XB)
    sXE = 14
    a("s_lshr_b32 s%d, s%d, 1" % (sT0, sW))
    a("s_lshl2_add_u32 s%d, s%d, s%d" % (sT2, sNG, sT0))
    a("s_lshl_b32 s%d, s%d, 8" % (sT1, sT1))
    a("s_lshl_b32 s%d, s%d, 5" % (sT3, sT2))
    a("s_add_u32 s%d, s%d, s%d" % (sT3, sT3, sT1))
    a("v_xor_b32 v113, s%d, v%d" % (sT3, XB))
    a("s_lshl_b32 s%d, s%d, 16" % (sXE, sMT))
    a("s_add_u32 s%d, s%d, s%d" % (sXE, sXE, sT1))
    a("s_lshl_b32 s%d, s%d, 10" % (sT2, sT2))
    a("s_add_u32 s%d, s%d, s%d" % (sXE, sXE, sT2))
    a("s_min_u32 s%d, s%d, 2" % (sT1, sT0))
    a("s_sub_u32 s%d, s%d, s%d" % (sT2, sT0, sT1))
    a("s_lshl_b32 s%d, s%d, 15" % (sT3, sT2))
    a("v_add_u32 v%d, s%d, v%d" % (XB, sT3, XB))
    a("v_bfe_u32 v6, v2, 2, 2")
    a("v_and_b32 v7, 3, v2")
    a("v_lshlrev_b32 v7, 3, v7")
    a("v_lshl_add_u32 v14, v5, 3, v6")
    a("v_mul_u32_u24 v14, 192, v14")
    a("v_bfe_u32 v15, v2, 4, 1")
    a("v_mul_u32_u24 v15, %d, v15" % UPOFF)
    a("v_add3_u32 v%d, v14, v15, v7" % WB2)
    a("v_and_b32 v13, 16, v2")
    a("v_lshl_add_u32 v7, v13, 1, v7")
    a("s_and_b32 s%d, s%d, 1" % (sT0, sW))
    a("s_lshl_b32 s%d, s%d, 6" % (sT3, sT0))
    a("v_add_u32 v7, s%d, v7" % sT3)
    a("v_lshlrev_b32 v14, 5, v6")
    a("v_and_b32 v14, 64, v14")
    a("v_xor_b32 v7, v7, v14")
    a("v_lshl_add_u32 v7, v6, 7, v7")
    a("v_mul_u32_u24 v14, 3072, v5")
    a("s_lshl_b32 s%d, s%d, 10" % (sT3, sT1))
    a("v_add3_u32 v%d, v7, v14, s%d" % (WB, sT3))
    a("v_and_b32 v6, 15, v2")
    a("v_lshlrev_b32 v6, 4, v6")
    a("v_lshl_add_u32 v%d, v5, 8, v6" % VLO)
    a("s_lshl1_add_u32 s%d, s%d, s%d" % (sT3, sT1, sT0))
    a("s_lshl_b32 s%d, s%d, 5" % (sKH, sT3))
    a("v_add_u32 v%d, s%d, v%d" % (WB2, sKH, WB2))
    a("s_lshl1_add_u32 s%d, s%d, s%d" % (sT0, sNG, sT0))
    a("s_lshl1_add_u32 s%d, s%d, s%d" % (sT2, sMT, sT2))
    a("s_mul_i32 s%d, s%d, 6" % (sKH, sNG))
    a("s_add_u32 s%d, s%d, s%d" % (sKH, sKH, sT3))
    a("s_lshl_b32 s%d, s%d, 10" % (sKH, sKH))
    a("s_mul_i32 s%d, s%d, %d" % (sH, sT2, A2_TT))
    a("s_add_u32 s%d, s%d, s%d" % (sH, sH, sKH))
    a("s_add_u32 s%d, s%d, %d" % (sH, sH, A2_OFF + 96 * 1024))
    a("s_add_u32 s%d, s%d, %d" % (sH + 1, sH, A2_TT))
    a("s_lshl_b32 s%d, s%d, 17" % (sD0, sT0))
    a("s_lshl_b32 s%d, s%d, 10" % (sT3, sT2))
    a("s_add_u32 s%d, s%d, s%d" % (sD0, sD0, sT3))
    a("s_add_u32 s%d, s%d, %d" % (sD0, sD0, QF_OFF))
    a("s_min_u32 s%d, s%d, 1" % (sT3, sT1))
    a("s_lshl_b32 s%d, s%d, s%d" % (sD0, sD0, sT3))
    a("s_lshl_b32 s%d, 65536, s%d" % (sD1, sT3))
    a("s_add_u32 s%d, s%d, s%d" % (sD1, sD1, sD0))
    a("s_lshl_b32 s%d, 1024, s%d" % (sKH, sT3))
    a("v_add_u32 v%d, s%d, v3" % (VST, sKH))
    a("v_lshl_add_u32 v115, v13, 13, v%d" % VLO)
    a("s_cmp_eq_u32 s%d, 0" % sT1)
    a("s_cselect_b32 s%d, 0x%x, 1.0" % (sSCL, QSCALE))
    def late_setup():
        a("s_lshr_b32 s%d, s%d, 3" % (sT2, sJ))
        a("s_lshl2_add_u32 s%d, s%d, s%d" % (sHEAD, sXCD, sT2))
        a("s_and_b32 s%d, s%d, 7" % (sCH, sJ))
        a("s_and_b32 s%d, s%d, 3" % (sT0, sW))
        a("s_lshl_b32 s%d, s%d, 1" % (sT0, sT0))
        a("s_lshl3_add_u32 s%d, s%d, s%d" % (sQT, sCH, sT0))
        a("s_lshr_b32 s%d, s%d, 2" % (sKH, sW))
        a("s_add_u32 s%d, s%d, s%d" % (sQT, sQT, sKH))
        a("s_lshl_b32 s%d, s%d, 11" % (sSL, sW))
        a("s_lshl_b32 s%d, s%d, 17" % (sKVB, sHEAD))
        a("s_add_u32 s%d, s%d, %d" % (sKVB, sKVB, KV_OFF))
        a("s_add_u32 s%d, s%d, s%d" % (sKV, sKVB, sSL))
        a("s_lshl_b32 s%d, s%d, 16" % (sQ0, sHEAD))
        a("s_lshl_b32 s%d, s%d, 10" % (sT2, sQT))
        a("s_add_u32 s%d, s%d, s%d" % (sQ0, sQ0, sT2))
        a("s_add_u32 s%d, s%d, %d" % (sQ0, sQ0, QF_OFF))
        a("v_mov_b32 v6, 0")
        a("s_mov_b32 exec_lo, 0x00110000")
        a("s_mov_b32 exec_hi, 0x00110000")
        a("v_mov_b32 v6, s%d" % sONE)
        a("s_mov_b64 exec, -1")
        a("v_mov_b32 v11, v6")
        a("s_mov_b32 s%d, %d" % (sCH, 16384 if OPT["kv0"] else 0))
        if OPT["kv0"]: a("s_add_u32 s%d, s%d, 16384" % (sSL, sSL))
        a("s_mov_b32 s%d, 0x0000ffff" % sVM)
        a("s_mov_b32 s%d, 0x0000ffff" % (sVM + 1))
        a("s_lshl_b32 s%d, s%d, 13" % (sKH, sKH))
        if OPT["kv0"]: a("s_add_u32 s%d, s%d, 65536" % (sKH, sKH))
        a("v_add_u32 v%d, s%d, v3" % (KA, sKH))
        a("v_add_u32 v%d, s%d, v%d" % (VA, sKH, VLO))
        a("v_mov_b32 v%d, 1" % VONE)
        for i in range(40, 44, 2): a("v_mov_b64 %s, 0" % v(i, 2))
        a("v_mov_b32 v36, 0x%x" % f2u(C1))
        a("v_mov_b32 v38, 0x%x" % f2u(C2))
    a("v_mov_b32 v%d, %d" % (VCN, LDS_CNT))
    for i in range(48, 112, 2): a("v_mov_b64 %s, 0" % v(i, 2))
    a("v_mov_b32 v4, s%d" % sSCL)
    a("ds_write_b128 v%d, v[48:51]" % VCN)
    a("ds_write_b128 v%d, v[48:51] offset:16" % VCN)
    a("ds_write_b128 v%d, v[48:51] offset:32" % VCN)
    a("s_mov_b32 s%d, %d" % (sSO, LDS_F + FSLOT))
    a("s_mov_b32 s%d, 8" % sI)
    a("s_and_b32 s%d, s%d, 7" % (sKC, sJ))
    a("s_lshl_b32 s%d, s%d, 7" % (sKC, sKC))
    def addrs(nk=4, wb=WB):
        a("v_xor_b32 v%d, s%d, v%d" % (XA, sKC, XB))
        a("v_add_u32 v%d, s%d, v%d" % (WA, sSO, wb))
        for k in range(1, nk): a("v_xor_b32 v%d, %d, v%d" % (XA + k, k << 5, XA))
        a("s_add_u32 s%d, s%d, %d" % (sKC, sKC, 32 * nk))
        a("s_and_b32 s%d, s%d, 0x3ff" % (sKC, sKC))
        a("s_add_u32 s%d, s%d, %d" % (sSO, sSO, FSLOT))
        a("s_cmp_eq_u32 s%d, %d" % (sSO, LDS_F + 3 * FSLOT))
        a("s_cselect_b32 s%d, %d, s%d" % (sSO, LDS_F, sSO))
    addrs()
    for p in range(4):
        a("buffer_load_dwordx4 %s, v164, %s, s11 offen offset:%d" % (v(148 + 4 * p, 4), s(SB, 4), p * 256))
    late_setup()
    tagsetup(a)
    a.stamp(1)
    def unpack(n):
        for q in range(4):
            r = XS + 4 * n + q; t = 20 + 8 * (n % 2) + 2 * q
            a("v_lshlrev_b32 v%d, 16, v%d" % (t, r))
            a("v_and_b32 v%d, 0xffff0000, v%d" % (t + 1, r))
    for g in range(2):
        a("s_waitcnt vmcnt(%d)" % (4 - 4 * g))
        if g == 1: a.stamp(14)
        for i in range(16):
            r = XS + 16 * g + i; d = 120 + 2 * (i & 3)
            a("v_dot2_f32_bf16 v%d, v%d, s%d, %s" % (d, r, sONE, "0" if i < 4 else "v%d" % d))
            a("v_dot2_f32_bf16 v%d, v%d, v%d, %s" % (d + 1, r, r, "0" if i < 4 else "v%d" % (d + 1)))
        fill = cap0(a, unpack, 4 * g) + cap0(a, unpack, 4 * g + 1)
        a("v_pk_add_f32 v[120:121], v[120:121], v[122:123]")
        a(fill.pop(0)); a(fill.pop(0))
        a("v_pk_add_f32 v[124:125], v[124:125], v[126:127]")
        a(fill.pop(0))
        a("v_pk_add_f32 v[118:119], v[120:121], v[124:125]")
        a(fill.pop(0)); a(fill.pop(0))
        for sh in (8, 4, 2, 1):
            for k in (118, 119):
                a("v_add_f32_dpp v%d, v%d, v%d row_ror:%d row_mask:0xf bank_mask:0xf" % (k, k, k, sh))
            a(fill.pop(0))
        for x in cap0(a, ln_final, a, 118, 119, 0):
            if x.startswith("s_nop") and fill: a(fill.pop(0))
            else: a(x)
            if x.startswith("v_cvt") and len(fill) > 2: a(fill.pop(0))
        a("v_mul_f32_e64 v118, -v118, v119")
        for l in fill: a(l)
        for n in range(4 * g, 4 * g + 4):
            p = n % 4; T = 20 + 8 * (n % 2)
            for q in range(4):
                a("v_pk_fma_f32 %s, %s, v[118:119], v[118:119] op_sel:[0,1,0] op_sel_hi:[1,1,0]" % (v(T + 2 * q, 2), v(T + 2 * q, 2)))
            for q in range(4):
                a("v_cvt_pk_bf16_f32 v%d, v%d, v%d" % (XS + 4 * n + q, T + 2 * q, T + 2 * q + 1))
            a("ds_write_b128 v%d, %s offset:%d" % (116 + g, v(XS + 4 * n, 4), p * 256))
            if p + 2 < 4: unpack(n + 2)
    a("s_waitcnt lgkmcnt(0)")
    a.stamp(2)
    a("s_barrier")
    a("s_setprio 0")
    a.stamp(3)
    a("ds_read_b128 v[20:23], v113")
    a("s_cmp_ge_u32 s%d, 4" % sW)
    a("s_cbranch_scc1 L_p1_v0")
    def wread(k, dst, gu):
        for sec in range(2):
            a("ds_read_b64_tr_b16 %s, v%d offset:%d" % (v(dst + 2 * sec, 2), WA, k * 3072 + sec * 768 if gu else k * 6144 + sec * 512))
    def xread(k, dst, tb): a("ds_read_b128 %s, v%d offset:%d" % (v(dst, 4), XA + k, tb * 32768))
    def cap(fn, *args):
        n = len(a.lines); fn(*args); out = a.lines[n:]; del a.lines[n:]; return out
    def weave(mm, rd, per):
        for l in mm:
            a(l)
            if l.startswith("v_mfma"):
                for _ in range(per):
                    if rd: a(rd.pop(0))
        for l in rd: a(l)
    def gemm(lab, rdf, mmf, n, per, gu, first_hook, drain_at):
        for k in range(3): rdf(k, gu)
        first_hook()
        a("s_branch %s_m" % lab)
        a.label(lab)
        rd = cap(rdf, 0, gu) + cap(rdf, 1, gu)
        for l in cap(mmf, 2, gu):
            a(l)
            for _ in range(per):
                if rd: a(rd.pop(0))
        weave(cap(mmf, 3, gu), rd + cap(rdf, 2, gu), per)
        a.label(lab + "_m")
        a("s_waitcnt lgkmcnt(%d)" % (2 * n))
        weave(cap(mmf, 0, gu), cap(rdf, 3, gu), per)
        a("s_waitcnt lgkmcnt(%d)" % (2 * n))
        mm1 = cap(mmf, 1, gu)
        a(mm1[0]); addrs(4, WB2 if gu else WB)
        for l in mm1[1:]: a(l)
        a("s_sub_u32 s%d, s%d, 1" % (sI, sI))
        a("s_cmp_lg_u32 s%d, %d" % (sI, drain_at))
        a("s_cbranch_scc1 %s_b" % lab)
        a("s_waitcnt vmcnt(0)")
        a.label(lab + "_b")
        a("s_waitcnt lgkmcnt(0)")
        a("s_barrier")
        a("s_cmp_lg_u32 s%d, 0" % sI)
        a("s_cbranch_scc1 %s" % lab)
        if gu: a("s_setprio 3")
        else: a.stamp(4)
        mmf(2, gu); mmf(3, gu)
        if not gu:
            a("v_sub_u32 v%d, v%d, v%d" % (WA, WA, WB))
            a("v_add_u32 v%d, v%d, v%d" % (WA, WA, WB2))
            a("s_mov_b32 s%d, 8" % sI)
    def export(n):
        a("s_waitcnt lgkmcnt(%d)" % (3 * n))
        a("buffer_store_dwordx4 v[20:23], v3, %s, s%d offen %s" % (s(SWS, 4), sXE, sc()))
    GA = 80
    def qk_rd(k, gu): wread(k, FR + 12 * k, gu); xread(k, FR + 12 * k + 4, 0); xread(k, FR + 12 * k + 8, 1)
    def qk_mm(k, gu):
        f = FR + 12 * k
        for tb in range(2):
            d = v((GA if gu else ACC1) + 16 * tb, 16)
            a("v_mfma_f32_32x32x16_bf16 %s, %s, %s, %s" % (d, v(f, 4), v(f + 4 + 4 * tb, 4), d))
    def qk_epi():
        for tb in range(2):
            A0 = ACC1 + 16 * tb
            for i in range(16): a("v_mul_f32 v%d, v4, v%d" % (A0 + i, A0 + i))
            for i in range(8): a("v_cvt_pk_bf16_f32 v%d, v%d, v%d" % (20 + 8 * tb + i, A0 + 2 * i, A0 + 2 * i + 1))
            a("buffer_store_dwordx4 %s, v%d, %s, s%d offen %s" % (v(20 + 8 * tb, 4), VST if tb else 3, s(SWS, 4), sD0, sc()))
            a("buffer_store_dwordx4 %s, v%d, %s, s%d offen %s" % (v(20 + 8 * tb + 4, 4), VST if tb else 3, s(SWS, 4), sD1, sc()))
        a.stamp(5)
    gemm("L_p1_qk", qk_rd, qk_mm, 4, 3, False, lambda: export(4), 5)
    gemm("L_gu4", qk_rd, qk_mm, 4, 3, True, qk_epi, 16 - OPT["qflag"])
    a("s_branch L_p1_done")
    a.label("L_p1_v0")
    if OPT["vprio"]: a("s_setprio 1")
    def v_rd(k, gu): xread(k, FR + 8 * k + 4, 0); wread(k, FR + 8 * k, gu)
    def v_mm(k, gu):
        f = FR + 8 * k; d = v(GA if gu else ACC1, 16)
        if gu: a("v_mfma_f32_32x32x16_bf16 %s, %s, %s, %s" % (d, v(f, 4), v(f + 4, 4), d))
        else: a("v_mfma_f32_32x32x16_bf16 %s, %s, %s, %s" % (d, v(f + 4, 4), v(f, 4), d))
    def v_epi():
        for i in range(8): a("v_cvt_pk_bf16_f32 v%d, v%d, v%d" % (20 + i, ACC1 + 2 * i, ACC1 + 2 * i + 1))
        a("buffer_store_dwordx4 v[20:23], v115, %s, s%d offen offset:1024 %s" % (s(SWS, 4), sD0, sc()))
        a("buffer_store_dwordx4 v[24:27], v115, %s, s%d offen offset:1536 %s" % (s(SWS, 4), sD0, sc()))
        a.stamp(5)
    gemm("L_p1_v", v_rd, v_mm, 3, 4, False, lambda: export(3), 5)
    gemm("L_gu3", v_rd, v_mm, 3, 4, True, v_epi, 16 - OPT["qflag"])
    a.label("L_p1_done")
    a.stamp(6)
    def dma():
        a("s_mov_b32 m0, s%d" % sSL)
        a("s_add_u32 s%d, s%d, s%d" % (sT0, sKV, sCH))
        a("buffer_load_dwordx4 v3, %s, s%d offen sc1 lds" % (s(SWS, 4), sT0))
        a("buffer_load_dwordx4 v3, %s, s%d offen offset:1024 sc1 lds" % (s(SWS, 4), sT0))
        a("s_add_u32 s%d, s%d, 16384" % (sSL, sSL))
        a("s_and_b32 s%d, s%d, 0xffff" % (sSL, sSL))
        a("s_add_u32 s%d, s%d, 16384" % (sCH, sCH))
    if not OPT["kv0"]: dma()
    a("s_xor_b32 s%d, s%d, 1024" % (sT1, sQ0))
    a("buffer_load_dwordx4 %s, v3, %s, s%d offen sc1" % (v(Q[0], 4), s(SWS, 4), sQ0))
    a("buffer_load_dwordx4 %s, v3, %s, s%d offen sc1" % (v(Q[1], 4), s(SWS, 4), sT1))
    dma()
    def geglu(t):
        Gt = GA + 16 * t; U = Gt + 8; T = 48 + (t % 2) * 12
        R = range(0, 8, 2)
        for i in R: a("v_pk_mul_f32 %s, %s, %s" % (v(T + i, 2), v(Gt + i, 2), v(Gt + i, 2)))
        for i in R: a("v_pk_fma_f32 %s, %s, v[38:39], v[36:37] op_sel_hi:[1,0,0]" % (v(T + i, 2), v(T + i, 2)))
        for i in R: a("v_pk_mul_f32 %s, %s, %s" % (v(T + i, 2), v(T + i, 2), v(Gt + i, 2)))
        for i in range(8): a("v_exp_f32 v%d, v%d" % (T + i, T + i))
        for i in R: a("v_pk_mul_f32 %s, %s, %s" % (v(Gt + i, 2), v(Gt + i, 2), v(U + i, 2)))
        for i in R: a("v_pk_add_f32 %s, %s, 1.0 op_sel_hi:[1,0]" % (v(T + i, 2), v(T + i, 2)))
        for i in range(8): a("v_rcp_f32 v%d, v%d" % (T + i, T + i))
        a.nop(1)
        for i in R: a("v_pk_mul_f32 %s, %s, %s" % (v(Gt + i, 2), v(Gt + i, 2), v(T + i, 2)))
        for i in range(4): a("v_cvt_pk_bf16_f32 v%d, v%d, v%d" % (T + 8 + i, Gt + 2 * i, Gt + 2 * i + 1))
        a("buffer_store_dwordx4 %s, v3, %s, s%d offen %s" % (v(T + 8, 4), s(SWS, 4), sH + t, sc()))
        for i in range(0, 16, 2): a("v_mov_b64 %s, 0" % v(Gt + i, 2))
    if not OPT["kv0"]: dma()
    a("v_mov_b32 v10, v11")
    for i in range(0, 16, 2): a("v_mov_b64 %s, v[10:11]" % v(VF[0] + i, 2))
    geglu(0)
    a("s_cmp_ge_u32 s%d, 4" % sW)
    a("s_cbranch_scc1 L_g_done")
    geglu(1)
    a.label("L_g_done")
    if OPT["kv0"]: dma()
    a.stamp(9)
    def rdK(kt): a("ds_read_b128 %s, v%d offset:%d" % (v(KF[kt % 2], 4), KA, (kt % 4) * 2048))
    def rdV(kt):
        a("s_mov_b64 exec, %s" % s(sVM, 2))
        a("ds_read_b128 %s, v%d offset:%d" % (v(VF[kt % 2], 4), VA, (kt % 4) * 2048 + 1024))
        a("ds_read_b128 %s, v%d offset:%d" % (v(VF[kt % 2] + 4, 4), VA, (kt % 4) * 2048 + 1536))
        a("s_mov_b64 exec, -1")
    def mfS(u): a("v_mfma_f32_32x32x16_bf16 %s, %s, %s, 0" % (v(S[u % 2], 16), v(KF[(u >> 1) % 2], 4), v(Q[u % 2], 4)))
    def mfPV(u, j): a("v_mfma_f32_32x32x16_bf16 %s, %s, %s, %s" % (v(O[u % 2], 16), v(VF[(u >> 1) % 2] + 4 * j, 4), v(P + 4 * j, 4), v(O[u % 2], 16)))
    a("s_waitcnt vmcnt(3)")
    arrive(a, VCN, VONE, 0)
    if OPT["kv0"]: spin(a, VCN, VP, 28, sT0, "4", "L_a_first")
    else: spin(a, VCN, VP, 0, sT0, "8", "L_a_first")
    rdK(0); rdV(0); rdK(1)
    a("s_mov_b32 s%d, 0" % sCNT)
    a("s_mov_b32 s%d, 8" % sTGT)
    a("s_waitcnt lgkmcnt(3)")
    mfS(0)
    a.stamp(10)
    a("s_setprio 0")
    if OPT["yprio"]:
        a("s_cmp_lt_u32 s%d, 4" % sW)
        a("s_cbranch_scc1 L_at_yp")
        a("s_setprio 1")
        a.label("L_at_yp")
    a.nop(9)
    a.label("L_at_loop")
    for u in range(8):
        Sx = S[u % 2]
        e = lambda i: a("v_exp_f32 v%d, v%d" % (Sx + i, Sx + i))
        cv = lambda i: a("v_cvt_pk_bf16_f32 v%d, v%d, v%d" % (P + i, Sx + 2 * i, Sx + 2 * i + 1))
        if OPT["hp"] == 1 and u in (0, 4): a("s_setprio %d" % (1 if u == 0 else 0))
        if OPT["hp"] == 2 and u % 2 == 0: a("s_setprio %d" % (1 if u % 4 == 2 else 0))
        if OPT["hp"] == 3: a("s_setprio %d" % (1 if u % 2 == 0 else 0))
        if OPT["hp"] == 4 and u in (0, 2, 4): a("s_setprio %d" % (2 - u // 2))
        if u % 2 == 0: a("s_waitcnt lgkmcnt(0)")
        mfS(u + 1)
        e(0)
        if u == 4: a("v_readfirstlane_b32 s%d, v%d" % (sT0, VP))
        e(1)
        if u == 4:
            a("s_cmp_ge_u32 s%d, s%d" % (sT0, sTGT))
            a("s_cbranch_scc0 L_at_slow")
            a.label("L_at_back")
        e(2); e(3)
        mfPV(u - 1, 1)
        if u % 2 == 0:
            rdK(u // 2 + 2); rdV(u // 2 + 1)
        cv(0); e(4)
        if u == 3:
            a("ds_read_b32 v%d, v%d" % (VP, VCN))
            a("v_add_u32 v%d, 16384, v%d" % (KA, KA))
            a("v_and_b32 v%d, 0xffff, v%d" % (KA, KA))
        if u == 5:
            a("v_add_u32 v%d, 16384, v%d" % (VA, VA))
            a("v_and_b32 v%d, 0xffff, v%d" % (VA, VA))
            a("s_waitcnt vmcnt(0)")
            a("s_cmp_ge_u32 s%d, 5" % sCNT)
            a("s_cbranch_scc1 L_at_nodma")
            a("s_setprio 3")
            dma()
            a("s_setprio 0")
            if OPT["yprio"]:
                a("s_cmp_lt_u32 s%d, 4" % sW)
                a("s_cbranch_scc1 L_at_nodma")
                a("s_setprio 1")
            a.label("L_at_nodma")
        if u == 6:
            arrive(a, VCN, VONE, 0)
        if OPT["sched"] == 0:
            cv(1); e(5); e(6); e(7); cv(2); e(8); cv(3); e(9); e(10)
            mfPV(u, 0)
            e(11); e(12); cv(4); e(13); cv(5); e(14); e(15); cv(6)
        elif OPT["sched"] == 1:
            e(5); e(6); e(7); e(8); cv(1); cv(2); cv(3); e(9); e(10)
            mfPV(u, 0)
            e(11); e(12); e(13); e(14); e(15); cv(4); cv(5); cv(6)
        else:
            cv(1); e(5); e(6); e(7); cv(2); e(8); cv(3); e(9); e(10); e(11); cv(4)
            mfPV(u, 0)
            e(12); e(13); cv(5); e(14); e(15); cv(6)
        if u == 7:
            a("s_add_u32 s%d, s%d, 8" % (sTGT, sTGT))
            a("s_add_u32 s%d, s%d, 1" % (sCNT, sCNT))
            a("s_cmp_lt_u32 s%d, 8" % sCNT)
        cv(7)
    a("s_cbranch_scc1 L_at_loop")
    a.nop(1)
    mfPV(7, 1)
    a.stamp(11)
    a("s_lshl_b32 s%d, s%d, 12" % (sT0, sW))
    a("s_add_u32 s%d, s%d, 16384" % (sT0, sT0))
    a("v_add_u32 v10, s%d, v3" % sT0)
    a("v_xor_b32 v11, 0xc000, v10")
    a("s_and_b32 s%d, s%d, 3" % (sT1, sW))
    a("s_lshl_b32 s%d, s%d, 2" % (sKH, sT1))
    a("s_mul_i32 s%d, s%d, %d" % (sT2, sQT, A2_TT))
    a("s_lshl_b32 s%d, s%d, 10" % (sT1, sHEAD))
    a("s_add_u32 s%d, s%d, s%d" % (sT2, sT2, sT1))
    a("s_add_u32 s%d, s%d, %d" % (sT2, sT2, A2_OFF))
    a("s_lshr_b32 s%d, s%d, 3" % (sT3, sQT))
    a("s_lshl_b32 s%d, s%d, 5" % (sT3, sT3))
    a("s_add_u32 s%d, s%d, s%d" % (sT3, sT3, sHEAD))
    a("s_lshl_b32 s%d, s%d, %d" % (sT3, sT3, OPT["fs"]))
    a("s_add_u32 s%d, s%d, %d" % (sT3, sT3, FO_OFF))
    a("ds_write_b128 v10, %s" % v(O[1], 4))
    a("ds_write_b128 v10, %s offset:1024" % v(O[1] + 4, 4))
    a("ds_write_b32 v10, v%d offset:2048" % (O[1] + 8))
    a("s_waitcnt lgkmcnt(0)")
    a("v_add_u32 v12, s%d, v%d" % (sKH, VCN))
    arrive(a, 12, VONE, 8)
    spin(a, 12, VP, 8, sT0, "2", "L_a_pair")
    a("ds_read_b128 %s, v11" % v(S[0], 4))
    a("ds_read_b128 %s, v11 offset:1024" % v(S[0] + 4, 4))
    a("ds_read_b32 v%d, v11 offset:2048" % (S[0] + 8))
    a("s_waitcnt lgkmcnt(0)")
    for i in range(8, -1, -1): a("v_add_f32 v%d, v%d, v%d" % (O[0] + i, O[0] + i, S[0] + i))
    a("v_cmp_nle_f32 vcc, 0x21800000, v%d" % (O[0] + 8))
    a("s_nop 1")
    a("s_mov_b64 s[56:57], vcc")
    a("v_cmp_nge_f32 vcc, 0x5d800000, v%d" % (O[0] + 8))
    a("s_nop 1")
    a("s_or_b64 vcc, vcc, s[56:57]")
    a("s_cbranch_vccnz L_a_fallback")
    a.label("L_a_fin")
    a("s_setprio 3")
    a.stamp(12)
    a("v_rcp_f32 v10, v%d" % (O[0] + 8))
    a.nop(1)
    for i in range(8): a("v_mul_f32 v%d, v%d, v10" % (O[0] + i, O[0] + i))
    for i in range(4): a("v_cvt_pk_bf16_f32 v%d, v%d, v%d" % (P + i, O[0] + 2 * i, O[0] + 2 * i + 1))
    a("buffer_store_dwordx4 %s, v3, %s, s%d offen %s" % (v(P, 4), s(SWS, 4), sT2, sc()))
    last_flag(a, VCN, VONE, VP, 32, 8, sT3, "L_a_exit")
    a.label("L_a_exit")
    a.stamp(13)
    a.stamp_flush(0, SWS, sW, 12)
    a("s_endpgm")
    a.label("L_at_slow")
    spin(a, VCN, VP, 0, sT0, "s%d" % sTGT, "L_at_spin")
    a("s_branch L_at_back")
    a.label("L_a_fallback")
    C = O[1]; S0 = S[0]
    a("v_mov_b32 v10, 0xff800000")
    a("s_mov_b32 s%d, s%d" % (sT0, sKVB))
    a("s_mov_b32 s%d, 64" % sCNT)
    a.label("L_fb1")
    a("buffer_load_dwordx4 %s, v3, %s, s%d offen sc1" % (v(KF[0], 4), s(SWS, 4), sT0))
    a("s_waitcnt vmcnt(0)")
    a("v_mfma_f32_32x32x16_bf16 %s, %s, %s, 0" % (v(S0, 16), v(KF[0], 4), v(Q[0], 4)))
    a.nop(12)
    for i in range(0, 16, 2): a("v_max3_f32 v10, v10, v%d, v%d" % (S0 + i, S0 + i + 1))
    a("s_add_u32 s%d, s%d, 2048" % (sT0, sT0))
    a("s_sub_u32 s%d, s%d, 1" % (sCNT, sCNT))
    a("s_cmp_lg_u32 s%d, 0" % sCNT)
    a("s_cbranch_scc1 L_fb1")
    a("v_mov_b32 v11, v10")
    a.nop(2)
    a("v_permlane32_swap_b32 v10, v11")
    a("v_max_f32 v10, v10, v11")
    for i in range(16): a("v_sub_f32 v%d, 0, v10" % (C + i))
    for i in range(16): a("v_mov_b32 v%d, 0" % (O[0] + i))
    a("s_mov_b32 s%d, s%d" % (sT0, sKVB))
    a("s_mov_b32 s%d, 64" % sCNT)
    a.label("L_fb2")
    a("buffer_load_dwordx4 %s, v3, %s, s%d offen sc1" % (v(KF[0], 4), s(SWS, 4), sT0))
    a("s_mov_b64 exec, %s" % s(sVM, 2))
    a("buffer_load_dwordx4 %s, v47, %s, s%d offen offset:1024 sc1" % (v(VF[0], 4), s(SWS, 4), sT0))
    a("buffer_load_dwordx4 %s, v47, %s, s%d offen offset:1536 sc1" % (v(VF[0] + 4, 4), s(SWS, 4), sT0))
    a("s_mov_b64 exec, -1")
    a("s_waitcnt vmcnt(0)")
    a("v_mfma_f32_32x32x16_bf16 %s, %s, %s, %s" % (v(S0, 16), v(KF[0], 4), v(Q[0], 4), v(C, 16)))
    a.nop(12)
    for i in range(16): a("v_exp_f32 v%d, v%d" % (S0 + i, S0 + i))
    a.nop(1)
    for i in range(8): a("v_cvt_pk_bf16_f32 v%d, v%d, v%d" % (P + i, S0 + 2 * i, S0 + 2 * i + 1))
    a.nop(2)
    for j in range(2): a("v_mfma_f32_32x32x16_bf16 %s, %s, %s, %s" % (v(O[0], 16), v(VF[0] + 4 * j, 4), v(P + 4 * j, 4), v(O[0], 16)))
    a("s_add_u32 s%d, s%d, 2048" % (sT0, sT0))
    a("s_sub_u32 s%d, s%d, 1" % (sCNT, sCNT))
    a("s_cmp_lg_u32 s%d, 0" % sCNT)
    a("s_cbranch_scc1 L_fb2")
    a.nop(12)
    a("s_branch L_a_fin")

def role_f(a):
    sF = 47; SG = 12
    VCN, VONE = 164, 1
    sW1, sM1, sKD, sSO, sI, sW2, sM2, sFQ, sFH, sPOLL = 10, 11, 20, 21, 48, 49, 50, 51, 52, 58
    sXO, sWO, sM0, sKC1, sFXP, sFG, sH0 = 54, 55, 56, 57, 59, 63, 3
    a("s_sub_u32 s%d, s%d, 8" % (sF, sW))
    a("s_setprio 2")
    srd(a, SA, P_WQKV, 512 * 3072)
    a("v_lshrrev_b32 v6, 3, v2")
    a("v_and_b32 v9, 7, v2")
    a("v_lshlrev_b32 v8, 1, v6")
    a("v_and_b32 v8, 4, v8")
    a("v_xor_b32 v7, v9, v8")
    a("v_mul_u32_u24 v8, 3072, v6")
    a("v_lshl_add_u32 v8, v7, 4, v8")
    a("s_mul_i32 s%d, s%d, %d" % (sW1, sF, 16 * 3072))
    a("s_lshl_b32 s%d, s%d, 7" % (sT0, sNG))
    a("s_add_u32 s%d, s%d, s%d" % (sW1, sW1, sT0))
    a("s_mul_i32 s%d, s%d, 6144" % (sM1, sF))
    a("s_add_u32 s%d, s%d, %d" % (sM1, sM1, LDS_F))
    a("s_and_b32 s%d, s%d, 7" % (sKD, sJ))
    a("s_mov_b32 s%d, %d" % (sSO, FSLOT))
    a("s_mov_b32 s%d, 0" % sI)
    a("s_cmp_ge_u32 s%d, 2" % sF)
    a("s_cselect_b64 %s, %s, %s" % (s(P_WG, 2), s(P_WU, 2), s(P_WG, 2)))
    a("s_cselect_b32 s%d, %d, 0" % (sM2, UPOFF))
    a("s_add_u32 s%d, s%d, %d" % (sM2, sM2, LDS_F))
    srd(a, SG, P_WG, 512 * 3584)
    for i in range(6):
        a("v_add_u32 v4, %d, v2" % (64 * i))
        a("v_mul_u32_u24 v5, 5462, v4")
        a("v_lshrrev_b32 v5, 16, v5")
        a("v_mul_u32_u24 v5, %d, v5" % (3584 - 192))
        a("v_lshl_add_u32 v5, v4, 4, v5")
        a("v_subrev_u32 v%d, %d, v5" % (16 + i, (i % 4) * 1024))
    a("s_and_b32 s%d, s%d, 1" % (sT1, sF))
    a("s_mul_i32 s%d, s%d, %d" % (sWO, sT1, 32 * 3584))
    a("s_mul_i32 s%d, s%d, 192" % (sT2, sNG))
    a("s_add_u32 s%d, s%d, s%d" % (sW2, sWO, sT2))
    a("s_add_u32 s%d, s%d, 2048" % (sW2, sW2))
    a("s_mul_i32 s%d, s%d, 6144" % (sT1, sT1))
    a("s_add_u32 s%d, s%d, s%d" % (sM2, sM2, sT1))
    tagsetup(a)
    a("s_mul_i32 s53, s%d, %d" % (sKD, 64 * 3584))
    a("s_add_u32 s53, s53, s%d" % sW2)
    a("v_lshrrev_b32 v4, 1, v2")
    a("v_mul_u32_u24 v4, 3584, v4")
    a("v_and_b32 v5, 1, v2")
    a("v_lshl_add_u32 v23, v5, 7, v4")
    a("s_lshl_b32 s%d, s%d, 5" % (sFQ, sNG))
    a("s_add_u32 s%d, s%d, s%d" % (sFQ, sFQ, sMT))
    a("s_lshl_b32 s%d, s%d, %d" % (sFQ, sFQ, OPT["fs"]))
    a("s_add_u32 s%d, s%d, %d" % (sFQ, sFQ, FQ_OFF))
    a("s_lshl3_add_u32 s%d, s%d, s%d" % (sFH, sMT, sNG))
    a("s_lshl_b32 s%d, s%d, %d" % (sFH, sFH, OPT["fs"]))
    a("s_add_u32 s%d, s%d, %d" % (sFH, sFH, FH_OFF))
    a("s_lshl_b32 s%d, s%d, %d" % (sPOLL, sXCD, 5 + OPT["fs"]))
    a("s_add_u32 s%d, s%d, %d" % (sPOLL, sPOLL, FQ_OFF))
    a("v_mov_b32 v%d, %d" % (VCN, LDS_CNT))
    a("v_mov_b32 v%d, 1" % VONE)
    def f1_setup():
        a("s_lshr_b32 s43, s%d, 2" % sXCD)
        a("s_and_b32 s%d, s%d, 7" % (sKC1, sJ))
        a("s_lshl3_add_u32 s43, s43, s%d" % sKC1)
        a("s_and_b32 s44, s%d, 3" % sXCD)
        a("s_lshr_b32 s%d, s%d, 3" % (sT2, sJ))
        a("s_lshl2_add_u32 s44, s44, s%d" % sT2)
        a("s_lshl1_add_u32 s%d, s%d, s%d" % (sKC1, sT2, sKC1))
        a("s_and_b32 s%d, s%d, 7" % (sKC1, sKC1))
        a("s_lshl2_add_u32 s%d, s43, s%d" % (sT0, sF))
        a("s_lshl_b32 s%d, s%d, 15" % (sXO, sT0))
        a("s_lshr_b32 s%d, s%d, 1" % (sFXP, sT0))
        a("s_lshl_b32 s%d, s%d, %d" % (sFXP, sFXP, 3 + OPT["fs"]))
        a("s_add_u32 s%d, s%d, %d" % (sFXP, sFXP, FX_OFF))
        a("s_mul_i32 s%d, s%d, %d" % (sH0, sT0, A2_TT))
        a("s_lshl_b32 s%d, s44, 12" % sT1)
        a("s_add_u32 s%d, s%d, s%d" % (sH0, sH0, sT1))
        a("s_add_u32 s%d, s%d, %d" % (sH0, sH0, A2_OFF + 32 * 1024))
        a("s_lshl_b32 s%d, s44, 7" % sT1)
        a("s_add_u32 s%d, s%d, s%d" % (sWO, sWO, sT1))
        a("s_lshl_b32 s%d, s%d, 12" % (sM0, sF))
        a("s_add_u32 s%d, s%d, %d" % (sM0, sM0, GBASE))
        a("s_lshl4_add_u32 s%d, s43, s44" % sFG)
        a("s_lshl_b32 s%d, s%d, %d" % (sFG, sFG, OPT["fs"]))
        a("s_add_u32 s%d, s%d, %d" % (sFG, sFG, FG_OFF))
        a("v_and_b32 v4, 2, v6")
        a("s_and_b32 s%d, s%d, 2" % (sT1, sF))
        a("s_lshl_b32 s%d, s%d, 1" % (sT1, sT1))
        a("v_or_b32 v4, s%d, v4" % sT1)
        a("v_xor_b32 v4, v4, v9")
        a("v_mul_u32_u24 v5, 3584, v6")
        a("v_lshl_add_u32 v136, v4, 4, v5")
        for i in range(1, 4): a("v_add_u32 v%d, %d, v136" % (136 + i, i * (8 * 3584 - 1024)))
        a("v_bfe_u32 v4, v2, 2, 2")
        a("v_lshrrev_b32 v5, 5, v2")
        a("v_lshl_add_u32 v5, v5, 3, v4")
        a("v_lshlrev_b32 v5, 7, v5")
        a("v_lshrrev_b32 v4, 1, v4")
        a("v_lshl_add_u32 v5, v4, 5, v5")
        a("v_bfe_u32 v4, v2, 4, 1")
        a("v_mul_u32_u24 v4, %d, v4" % (8192 + 64))
        a("v_and_b32 v10, 3, v2")
        a("v_lshl_add_u32 v4, v10, 3, v4")
        a("v_add_u32 v128, v4, v5")
        a("v_add_u32 v128, %d, v128" % GBASE)
        for i in range(64, 128, 2): a("v_mov_b64 %s, 0" % v(i, 2))
    srd(a, SB, P_WS, WS_BYTES)
    for i in range(4): a("v_mov_b32 v%d, 0" % (136 + i))
    def slot():
        a("s_add_u32 s%d, s%d, %d" % (sSO, sSO, FSLOT))
        a("s_cmp_eq_u32 s%d, %d" % (sSO, 3 * FSLOT))
        a("s_cselect_b32 s%d, 0, s%d" % (sSO, sSO))
        a("s_add_u32 s%d, s%d, 1" % (sI, sI))
    a("s_waitcnt vmcnt(0)")
    a.stamp(1)
    a.label("L_d_issue")
    a("s_mul_i32 s%d, s%d, %d" % (sT2, sKD, 64 * 3072))
    a("s_add_u32 s%d, s%d, s%d" % (sT2, sT2, sW1))
    a("s_add_u32 m0, s%d, s%d" % (sM1, sSO))
    a("s_add_u32 s%d, s%d, 1" % (sKD, sKD))
    for m in range(3): a("buffer_load_dwordx4 v8, %s, s%d offen offset:%d lds" % (s(SA, 4), sT2, m * 1024))
    a("s_add_u32 m0, m0, 3072")
    a("s_add_u32 s%d, s%d, %d" % (sT2, sT2, 8 * 3072))
    for m in range(3): a("buffer_load_dwordx4 v8, %s, s%d offen offset:%d lds" % (s(SA, 4), sT2, m * 1024))
    a("s_and_b32 s%d, s%d, 7" % (sKD, sKD))
    slot()
    if OPT["ft"]:
        a("s_cmp_lt_u32 s%d, 3" % sI)
        a("s_cbranch_scc1 L_d_issue")
        a("s_cmp_lg_u32 s%d, 3" % sI)
        a("s_cbranch_scc1 L_d_w")
        a("buffer_load_dword v23, v23, %s, s53 offen" % s(SG, 4))
        def g0():
            a("s_mul_i32 s%d, s%d, %d" % (sT2, sKC1, 64 * 3584))
            a("s_add_u32 m0, s%d, %d" % (sM0, 2 * GSLOT))
            a("s_add_u32 s%d, s%d, s%d" % (sT2, sT2, sWO))
            for i in range(4): a("buffer_load_dwordx4 v%d, %s, s%d offen offset:%d lds" % (136 + i, s(SG, 4), sT2, i * 1024))
        f1_setup()
        a("s_waitcnt vmcnt(%d)" % (17 if OPT["g0pro"] else 13))
        a("s_barrier")
        a.label("L_d_w")
        a("s_waitcnt vmcnt(%d)" % (11 if OPT["g0pro"] else 7))
        a("s_cmp_lt_u32 s%d, 5" % sI)
        a("s_cbranch_scc1 L_d_b")
        a("s_waitcnt vmcnt(6)")
        a.label("L_d_b")
    else:
        a("s_cmp_eq_u32 s%d, 1" % sI)
        a("s_cbranch_scc1 L_d_issue")
        a("s_waitcnt vmcnt(6)")
    a("s_barrier")
    a("s_lshl4_add_u32 s%d, s%d, s%d" % (sT0, sF, sI))
    a("s_cmp_lg_u32 s%d, 5" % sT0)
    a("s_cbranch_scc1 L_d_nf")
    a("s_add_u32 s%d, s%d, %d" % (sT0, sFH, (FX_OFF - FH_OFF) & 0xffffffff))
    a("s_mov_b64 exec, 1")
    a("buffer_store_dwordx2 %s, v3, %s, s%d offen %s" % (v(VTAG, 2), s(SWS, 4), sT0, sc()))
    a("s_mov_b64 exec, -1")
    a.label("L_d_nf")
    a("s_cmp_lg_u32 s%d, 8" % sI)
    a("s_cbranch_scc1 L_d_issue")
    a.stamp(3)
    a("v_lshlrev_b32 v165, %d, v2" % OPT["fs"])
    a.label("L_g_issue")
    a("s_mul_i32 s%d, s%d, %d" % (sT2, sKD, 64 * 3584))
    a("s_add_u32 m0, s%d, s%d" % (sM2, sSO))
    a("s_add_u32 s%d, s%d, s%d" % (sT2, sT2, sW2))
    for i in range(6):
        if i == 4:
            a("s_add_u32 m0, m0, 4096")
            a("s_add_u32 s%d, s%d, 1" % (sKD, sKD))
        a("buffer_load_dwordx4 v%d, %s, s%d offen offset:%d lds" % (16 + i, s(SG, 4), sT2, (i % 4) * 1024))
    a("s_and_b32 s%d, s%d, 7" % (sKD, sKD))
    slot()
    a("s_waitcnt vmcnt(6)")
    a("s_barrier")
    a("s_lshl_b32 s%d, s%d, 5" % (sT0, sF))
    a("s_add_u32 s%d, s%d, s%d" % (sT0, sT0, sI))
    a("s_cmp_lg_u32 s%d, %d" % (sT0, OPT["qflag"] + 2))
    a("s_cbranch_scc1 L_g_nf")
    a("s_mov_b64 exec, 1")
    a("buffer_store_dwordx2 %s, v3, %s, s%d offen %s" % (v(VTAG, 2), s(SWS, 4), sFQ, sc()))
    a("s_mov_b64 exec, -1")
    a.label("L_g_nf")
    a("s_cmp_lg_u32 s%d, 16" % sI)
    a("s_cbranch_scc1 L_g_issue")
    a.stamp(4)
    sIT, sTGT, sDN, sSLW, sSLR, sKX, sXC = 10, 11, 20, 21, 49, 50, 51
    XR = 8; FB = 24; ACC = 64; TA = 132
    a("s_mov_b32 s%d, %d" % (sSLW, 2 * GSLOT))
    a("s_mov_b32 s%d, %d" % (sSLR, 2 * GSLOT))
    a("s_mov_b32 s%d, s%d" % (sKX, sKC1))
    a("s_mov_b32 s%d, 0" % sIT)
    a("s_mov_b32 s%d, 4" % sTGT)
    a("s_mov_b32 s%d, 0" % sDN)
    def d_pre():
        a("s_mul_i32 s%d, s%d, %d" % (sT2, sKC1, 64 * 3584))
        a("s_add_u32 s%d, s%d, s%d" % (sT2, sT2, sWO))
        a("s_add_u32 m0, s%d, s%d" % (sM0, sSLW))
        a("s_add_u32 s%d, s%d, 1" % (sKC1, sKC1))
        a("s_and_b32 s%d, s%d, 7" % (sKC1, sKC1))
        a("s_add_u32 s%d, s%d, %d" % (sSLW, sSLW, GSLOT))
        a("s_cmp_eq_u32 s%d, %d" % (sSLW, 3 * GSLOT))
        a("s_cselect_b32 s%d, 0, s%d" % (sSLW, sSLW))
    def d_ld(i): a("buffer_load_dwordx4 v%d, %s, s%d offen offset:%d lds" % (136 + i, s(SG, 4), sT2, i * 1024))
    def xoff(guard=None):
        a("s_lshl_b32 s%d, s%d, 12" % (sXC, sKX))
        a("s_add_u32 s%d, s%d, s%d" % (sXC, sXC, sXO))
        if guard is not None:
            a("s_cmp_lt_u32 s%d, %d" % (sIT, guard))
            a("s_cselect_b32 s%d, s%d, 0" % (SB + 2, SB + 2))
        a("s_add_u32 s%d, s%d, 1" % (sKX, sKX))
        a("s_and_b32 s%d, s%d, 7" % (sKX, sKX))
    def xld(i): a("buffer_load_dwordx4 %s, v3, %s, s%d offen offset:%d sc1" % (v(XR + 4 * i, 4), s(SB, 4), sXC, i * 1024))
    def taddr():
        a("v_add_u32 v%d, s%d, v128" % (TA, sSLR))
        for t in range(1, 4): a("v_xor_b32 v%d, %d, v%d" % (TA + t, t << 5, TA))
    a("s_mov_b32 exec_hi, 0")
    a("buffer_load_dwordx2 v[26:27], v165, %s, s%d offen sc1" % (s(SWS, 4), sPOLL))
    a("s_mov_b64 exec, 0xff")
    a("buffer_load_dwordx2 v[24:25], v165, %s, s%d offen sc1" % (s(SWS, 4), sFXP))
    a("s_mov_b64 exec, -1")
    g0()
    d_pre()
    xoff()
    taddr()
    a("s_waitcnt vmcnt(4)")
    a("s_barrier")
    a("v_cmp_ne_u64 vcc, %s, v[26:27]" % s(sTAG, 2))
    if not OPT["kv0"]:
        a("s_cmp_lg_u32 s%d, 0" % sF)
        a("s_cbranch_scc1 L_f_nopoll")
    else:
        a("s_lshr_b32 s%d, s%d, 3" % (sT3, sJ))
        a("s_lshl2_add_u32 s%d, s%d, s%d" % (sT3, sXCD, sT3))
    a("s_cmp_eq_u32 vcc_lo, 0")
    a("s_cbranch_scc1 L_f_nopoll")
    poll(a, 165, sPOLL, 32, 26, "L_f_pollq")
    a.label("L_f_nopoll")
    if OPT["kv0"]:
        a("s_lshl_b32 s%d, s%d, 17" % (sT3, sT3))
        a("s_lshl_b32 s%d, s%d, 12" % (sT0, sF))
        a("s_add_u32 m0, s%d, 65536" % sT0)
        a("s_add_u32 s%d, s%d, s%d" % (sT3, sT3, sT0))
        a("s_add_u32 s%d, s%d, %d" % (sT3, sT3, KV_OFF))
        for i in range(4): a("buffer_load_dwordx4 v3, %s, s%d offen offset:%d sc1 lds" % (s(SWS, 4), sT3, i * 1024))
    a("v_cmp_ne_u64 vcc, %s, v[24:25]" % s(sTAG, 2))
    d_pre()
    a("s_barrier")
    a.stamp(5)
    if OPT["kv0"]:
        a("s_waitcnt vmcnt(0)")
        arrive(a, VCN, VONE, 28)
    a("s_setprio %d" % OPT["prio"])
    if OPT["nof"] == 1: a("s_branch L_f_ep")
    a("s_and_b32 s%d, vcc_lo, 0xff" % sT0)
    a("s_cbranch_scc0 L_f_xok")
    poll(a, 165, sFXP, 8, 24, "L_f_pollx")
    a.label("L_f_xok")
    for i in range(3): xld(i)
    for i in range(4): d_ld(i)
    xld(3)
    a("s_waitcnt vmcnt(5)")
    arrive(a, VCN, VONE, 44)
    spin(a, VCN, 0, 44, sT0, "4", "L_f_g0")
    if OPT["fgate"]: spin(a, VCN, 0, 0, sT0, "8", "L_f_gate")
    D = OPT["f1depth"]; NM = 16
    def rd(n):
        s4, t = (n // 4) % 4, n % 4
        for sec in range(2):
            a("ds_read_b64_tr_b16 %s, v%d offset:%d" % (v(FB + (n % 8) * 4 + sec * 2, 2), TA + t, s4 * 2048 + sec * 512))
    for n in range(D): rd(n)
    a("s_waitcnt lgkmcnt(0)")
    a.stamp(9)
    N_DRD, N_DCK, N_RAR, N_RRD, N_RCK = 0, D + 1, 6, NM - 1 - D - D - 1, NM - 1 - D
    dma_at = {N_DCK + 1 + 2 * j: j for j in range(4)}
    vm_after = []
    for n in range(NM):
        ops = []
        if n in dma_at: ops.append("d%d" % dma_at[n])
        if n % 4 == 3: ops.append("x%d" % (n // 4))
        vm_after.append(ops)
    flat = [o for ops in vm_after for o in ops]
    assert flat[flat.index("d3") + 1:] in (["x3"], ["x2", "x3"]), flat
    def vm_n(op, n): return len(flat) - 1 - flat.index(op) + sum(len(o) for o in vm_after[:n])
    lg_after = [[] for _ in range(NM)]
    for n in (N_DRD, N_RAR, N_RRD, NM - 1): lg_after[n].append(1)
    a.label("L_f_loop")
    a("s_cmp_lt_u32 s%d, 6" % sIT)
    a("s_cselect_b32 s%d, s%d, 0" % (SG + 2, SG + 2))
    d_pre()
    xoff(7)
    for n in range(NM):
        s4, t = n // 4, n % 4
        rd(n + D)
        out = 2 * D + sum(len(lg_after[(n - k) % NM]) for k in range(1, D + 1))
        w = "s_waitcnt lgkmcnt(%d)" % out
        if t == 0: w += " vmcnt(%d)" % vm_n("x%d" % s4, n)
        if n == N_RAR: w += " vmcnt(%d)" % (vm_n("x3", n) + 1)
        a(w)
        a("v_mfma_f32_32x32x16_bf16 %s, %s, %s, %s" % (v(ACC + 16 * t, 16), v(FB + (n % 8) * 4, 4), v(XR + 4 * s4, 4), v(ACC + 16 * t, 16)))
        if n == N_DRD: a("ds_read_b32 v0, v%d offset:40" % VCN)
        if n == N_RRD: a("ds_read_b32 v0, v%d offset:4" % VCN)
        if n == N_RAR: arrive(a, VCN, VONE, 4)
        if n == NM - 1: arrive(a, VCN, VONE, 40)
        if n in (N_DCK, N_RCK):
            nm = "L_f_d" if n == N_DCK else "L_f_r"
            a("v_readfirstlane_b32 s%d, v0" % sT0)
            if n == N_RCK:
                a("s_add_u32 s%d, s%d, %d" % (sSLR, sSLR, GSLOT))
                a("s_cmp_eq_u32 s%d, %d" % (sSLR, 3 * GSLOT))
                a("s_cselect_b32 s%d, 0, s%d" % (sSLR, sSLR))
                taddr()
            else: a("s_nop 0")
            a("s_cmp_ge_u32 s%d, s%d" % (sT0, sDN if n == N_DCK else sTGT))
            a("s_cbranch_scc0 %s_slow" % nm)
            a.label(nm + "_back")
        if n in dma_at: d_ld(dma_at[n])
        if t == 3: xld(s4)
    a("s_add_u32 s%d, s%d, 4" % (sTGT, sTGT))
    a("s_add_u32 s%d, s%d, 4" % (sDN, sDN))
    a("s_add_u32 s%d, s%d, 1" % (sIT, sIT))
    a("s_cmp_lt_u32 s%d, 8" % sIT)
    a("s_cbranch_scc1 L_f_loop")
    a.stamp(10)
    a("s_setprio %d" % OPT["prio2"])
    a("s_waitcnt vmcnt(0) lgkmcnt(0)")
    arrive(a, VCN, VONE, 40)
    a("s_cmp_lg_u32 s%d, 0" % sF)
    a("s_cbranch_scc1 L_f_hf")
    spin(a, VCN, 0, 0, sT0, "16", "L_f_nofw1")
    a("s_mov_b64 exec, 1")
    a("buffer_store_dwordx2 %s, v3, %s, s%d offen %s" % (v(VTAG, 2), s(SWS, 4), sFH, sc()))
    a("s_mov_b64 exec, -1")
    a.label("L_f_hf")
    sMT2, sNT, sWB, sA0, sA1, sGW, sGA, sLB = 43, 44, 45, 46, 53, 54, 55, 56
    a("s_and_b32 s%d, s%d, 3" % (sT2, sJ))
    a("s_lshl2_add_u32 s%d, s%d, s%d" % (sMT2, sXCD, sT2))
    a("s_lshr_b32 s%d, s%d, 2" % (sNT, sJ))
    srd(a, SA, P_WD, 1792 * 1024)
    srd(a, SB, P_WO, 512 * 1024)
    a("v_lshrrev_b32 v8, 3, v2")
    a("v_lshlrev_b32 v7, 1, v8")
    a("v_and_b32 v7, 4, v7")
    a("v_and_b32 v9, 7, v2")
    a("v_xor_b32 v7, v7, v9")
    a("v_lshlrev_b32 v8, 10, v8")
    a("v_lshl_add_u32 v8, v7, 4, v8")
    for i in range(1, 4): a("v_add_u32 v%d, %d, v8" % (8 + i, i * 7168))
    a("s_lshl_b32 s%d, s%d, 7" % (sWB, sNT))
    a("s_mul_i32 s%d, s%d, %d" % (sLB, sF, F2REG))
    a("s_add_u32 s%d, s%d, %d" % (sLB, sLB, LDS_F))
    a("s_lshl1_add_u32 s20, s%d, s%d" % (sT2, sNT))
    a("s_and_b32 s20, s20, 7")
    a("s_sub_u32 s%d, s20, 6" % sT2)
    a("s_cmp_ge_u32 s20, 6")
    a("s_cselect_b32 s%d, s%d, s20" % (sGW, sT2))
    a("s_mov_b32 s%d, s%d" % (sGA, sGW))
    a("s_and_b32 s%d, s%d, 1" % (sT1, sF))
    a("s_lshl1_add_u32 s%d, s%d, s%d" % (sT1, sMT2, sT1))
    a("s_mul_i32 s%d, s%d, %d" % (sA0, sT1, A2_TT))
    a("s_xor_b32 s%d, s%d, 1" % (sT1, sT1))
    a("s_mul_i32 s%d, s%d, %d" % (sA1, sT1, A2_TT))
    a("s_add_u32 s%d, s%d, %d" % (sA0, sA0, A2_OFF))
    a("s_add_u32 s%d, s%d, %d" % (sA1, sA1, A2_OFF))
    sE, sL = 57, 58
    a("s_mul_i32 s%d, s%d, 6" % (sE, sF))
    a("s_add_u32 s%d, s%d, 32" % (sE, sE))
    a("s_lshl_b32 s%d, s%d, 3" % (sL, sF))
    a.vm = []
    def gidx(g, sg):
        if g == 6: a("s_mov_b32 s%d, s20" % sg)
        a("s_add_u32 s%d, s%d, s%d" % (sT0, sE if g < 6 else sL, sg))
        a("s_add_u32 s%d, s%d, 1" % (sg, sg))
        if g < 6:
            a("s_cmp_eq_u32 s%d, 6" % sg)
            a("s_cselect_b32 s%d, 0, s%d" % (sg, sg))
        else: a("s_and_b32 s%d, s%d, 7" % (sg, sg))
    def w2(g):
        a("s_add_u32 m0, s%d, %d" % (sLB, (g % 5) * 4096))
        if g < 14:
            gidx(g, sGW)
            a("s_lshl_b32 s%d, s%d, 15" % (sT0, sT0)); sr = SA
        else:
            a("s_lshl_b32 s%d, s%d, 17" % (sT0, sF))
            a("s_add_u32 s%d, s%d, %d" % (sT0, sT0, (g - 14) * 32768)); sr = SB
        a("s_add_u32 s%d, s%d, s%d" % (sT0, sT0, sWB))
        if OPT["thr2"]: a("s_waitcnt vmcnt(%d)" % OPT["thr2"])
        for i in range(4):
            a.vmem("buffer_load_dwordx4 v%d, %s, s%d offen offset:%d lds" % (8 + i, s(sr, 4), sT0, i * 1024), "W%d" % g)
    AB = 96
    def a2(g):
        if g < 14:
            gidx(g, sGA)
            a("s_lshl_b32 s%d, s%d, 11" % (sT0, sT0))
            a("s_add_u32 s%d, s%d, 32768" % (sT0, sT0))
        else:
            a("s_lshl_b32 s%d, s%d, 13" % (sT0, sF))
            a("s_add_u32 s%d, s%d, %d" % (sT0, sT0, (g - 14) * 2048))
        a("s_add_u32 s%d, s%d, s%d" % (sT1, sT0, sA1))
        a("s_add_u32 s%d, s%d, s%d" % (sT0, sT0, sA0))
        if OPT["thr2"] and g < 14: a("s_waitcnt vmcnt(%d)" % OPT["thr2"])
        for ks in range(2):
            for tb in range(2):
                a.vmem("buffer_load_dwordx4 %s, v3, %s, s%d offen offset:%d sc1" % (v(AB + (g % 4) * 16 + ks * 8 + tb * 4, 4), s(SWS, 4), sT0 + tb, ks * 1024), "A%d" % g)
    spin(a, VCN, 0, 40, sT0, "36", "L_f_spin2")
    sv = OPT["thr2"]; OPT["thr2"] = 0
    for g in range(OPT["w2pre"]): w2(g)
    OPT["thr2"] = sv
    a("v_mov_b32 v12, 0x%x" % f2u(C1))
    for t in range(4):
        Gt = ACC + 16 * t; U = Gt + 8; T = 24 + (t % 2) * 12
        for i in range(8): a("v_mul_f32 v%d, v%d, v%d" % (T + i, Gt + i, Gt + i))
        for i in range(8): a("v_fmamk_f32 v%d, v%d, 0x%x, v12" % (T + i, T + i, f2u(C2)))
        for i in range(8): a("v_mul_f32 v%d, v%d, v%d" % (T + i, T + i, Gt + i))
        for i in range(8): a("v_exp_f32 v%d, v%d" % (T + i, T + i))
        for i in range(8): a("v_mul_f32 v%d, v%d, v%d" % (Gt + i, Gt + i, U + i))
        for i in range(8): a("v_add_f32 v%d, 1.0, v%d" % (T + i, T + i))
        for i in range(8): a("v_rcp_f32 v%d, v%d" % (T + i, T + i))
        a.nop(1)
        for i in range(8): a("v_mul_f32 v%d, v%d, v%d" % (Gt + i, Gt + i, T + i))
        for i in range(4): a("v_cvt_pk_bf16_f32 v%d, v%d, v%d" % (T + 8 + i, Gt + 2 * i, Gt + 2 * i + 1))
        a("buffer_store_dwordx4 %s, v3, %s, s%d offen offset:%d %s" % (v(T + 8, 4), s(SWS, 4), sH0, t * 1024, sc()))
    last_flag(a, VCN, VONE, 0, 36, 4, sFG, "L_f_gf")
    a.label("L_f_gf")
    a("s_setprio %d" % OPT["prio3"])
    a("v_lshrrev_b32 v14, 5, v2")
    a("v_bfe_u32 v4, v2, 2, 2")
    a("v_and_b32 v5, 1, v2")
    a("v_lshlrev_b32 v5, 4, v5")
    a("v_and_b32 v6, 2, v2")
    a("v_lshl_add_u32 v5, v6, 2, v5")
    a("v_and_b32 v6, 16, v2")
    a("v_lshl_add_u32 v5, v6, 1, v5")
    a("s_and_b32 s%d, s%d, 2" % (sT2, sF))
    a("s_lshl_b32 s%d, s%d, 5" % (sT2, sT2))
    a("v_add_u32 v5, s%d, v5" % sT2)
    a("v_lshlrev_b32 v6, 5, v4")
    a("v_and_b32 v6, 64, v6")
    a("v_xor_b32 v5, v5, v6")
    a("v_lshl_add_u32 v4, v14, 2, v4")
    a("v_lshl_add_u32 v5, v4, 7, v5")
    a("v_xor_b32 v6, 64, v5")
    a("v_add_u32 v12, s%d, v5" % sLB)
    a("v_add_u32 v13, s%d, v6" % sLB)
    a("s_lshl2_add_u32 s%d, s%d, s%d" % (sT3, sMT2, sF))
    a("s_lshl_b32 s%d, s%d, %d" % (sT3, sT3, 1 + OPT["fs"]))
    a("s_add_u32 s%d, s%d, %d" % (sT3, sT3, FH_OFF))
    a("s_lshr_b32 s21, s%d, 1" % sMT2)
    a("s_lshl2_add_u32 s21, s21, s%d" % sF)
    a("s_lshl_b32 s21, s21, %d" % (2 + OPT["fs"]))
    a("s_add_u32 s21, s21, %d" % FG_OFF)
    for g in range(OPT["w2pre"], 4): w2(g)
    srd(a, 4, P_X, 2 * MB)
    srd(a, 16, P_OUT, 2 * MB)
    sXS = 48
    a("s_and_b32 s%d, s%d, 1" % (sT1, sF))
    a("s_lshl1_add_u32 s%d, s%d, s%d" % (sT0, sMT2, sT1))
    a("s_lshl_b32 s%d, s%d, 15" % (sXS, sT0))
    a("s_add_u32 s%d, s%d, s%d" % (sXS, sXS, sWB))
    a("s_and_b32 s%d, s%d, 2" % (sT2, sF))
    a("s_lshl_b32 s%d, s%d, 5" % (sT2, sT2))
    a("s_add_u32 s%d, s%d, s%d" % (sXS, sXS, sT2))
    a("v_and_b32 v4, 31, v2")
    a("v_lshlrev_b32 v4, 10, v4")
    a("v_lshl_add_u32 v4, v14, 4, v4")
    a("buffer_load_dwordx4 v[16:19], v4, s[4:7], s%d offen" % sXS)
    a("buffer_load_dwordx4 v[20:23], v4, s[4:7], s%d offen offset:32" % sXS)
    a("v_lshlrev_b32 v6, 10, v2")
    a("s_lshl_b32 s%d, s%d, 17" % (sT0, sF))
    a("s_add_u32 s%d, s%d, s%d" % (sT0, sT0, sWB))
    a("s_add_u32 s%d, s%d, 65536" % (sT1, sT0))
    a("buffer_load_dword v7, v6, %s, s%d offen" % (s(SB, 4), sT0))
    a("buffer_load_dword v15, v6, %s, s%d offen" % (s(SB, 4), sT1))
    a("s_lshl2_add_u32 s50, s%d, s%d" % (sXCD, sF))
    a("s_lshl_b32 s50, s50, %d" % (3 + OPT["fs"]))
    a("s_add_u32 s50, s50, %d" % FO_OFF)
    a("v_add_u32 v5, s%d, v3" % sLB)
    for sl in range(1, 4):
        a("s_xor_b32 s%d, s%d, %d" % (sT0, sF, sl))
        a("s_mul_i32 s%d, s%d, %d" % (sT0, sT0, F2REG))
        a("s_add_u32 s%d, s%d, %d" % (sT0, sT0, LDS_F + (sl - 1) * 4096))
        a("v_add_u32 v%d, s%d, v3" % (159 + sl, sT0))
    a.stamp(11)
    poll(a, 165, sT3, 2, 24, "L_f_pollh")
    for i in range(8):
        a("v_lshlrev_b32 v%d, 16, v%d" % (32 + 2 * i, 16 + i))
        a("v_and_b32 v%d, 0xffff0000, v%d" % (33 + 2 * i, 16 + i))
    a.stamp(12)
    a.vm = []
    ACC2 = 32; WF = 16
    def rd2(g, ks, ci):
        for sec in range(2):
            a("ds_read_b64_tr_b16 %s, v%d offset:%d" % (v(WF + ks * 8 + ci * 4 + sec * 2, 2), 12 + ci, (g % 5) * 4096 + ks * 2048 + sec * 1024))
    def mm2(g, ks, ci):
        for ti in range(2):
            d = v(ACC2 + (ci * 2 + ti) * 16, 16)
            a("v_mfma_f32_32x32x16_bf16 %s, %s, %s, %s" % (d, v(WF + ks * 8 + ci * 4, 4), v(AB + (g % 4) * 16 + ks * 8 + ti * 4, 4), "0" if (g == 0 and ks == 0 and ci + ti > 0) else d))
    def comp(g, pre=None):
        if OPT["f2pace"] and g < 14:
            if pre: pre()
            for ks in range(2):
                for ci in range(2):
                    rd2(g, ks, ci)
                    a("s_waitcnt lgkmcnt(0)")
                    mm2(g, ks, ci)
            return
        for ks in range(2):
            for ci in range(2): rd2(g, ks, ci)
        if pre: pre()
        for ks in range(2):
            a("s_waitcnt lgkmcnt(%d)" % (4 if ks == 0 else 0))
            for ci in range(2): mm2(g, ks, ci)
    for g in range(3): a2(g)
    for g in range(14):
        if g + 3 == 6:
            poll(a, 165, 21, 4, 16, "L_f_pollg")
            a.vm = []
        if g + 3 < 14: a2(g + 3)
        w2(g + 4)
        if OPT["gs"] and g == OPT["gs"]:
            spin(a, VCN, 0, 0, sT0, "%d" % OPT["gx"], "L_f_nofw5")
            a.label("L_f_sprint")
            OPT["thr2"] = OPT["thr3"]
        a.wait_vm("A%d" % g)
        if a.vm_count_after("W%d" % g) is not None: a.wait_vm("W%d" % g)
        comp(g)
    a("s_mov_b32 s%d, s50" % sT3)
    a("s_setprio 0")
    a.stamp(13)
    if OPT["nof"] == 4: a("s_branch L_f_ep")
    poll(a, 165, sT3, 8, 16, "L_f_pollo")
    a.stamp(14)
    a("s_setprio 3")
    a.vm = []
    for g in range(14, 18): a2(g)
    for g in range(14, 18):
        comp(g, lambda: a.wait_vm("A%d" % g))
    a.nop(10)
    for sl in range(1, 4):
        for q in range(4):
            a("ds_write_b128 v5, %s offset:%d" % (v(ACC2 + sl * 16 + 4 * q, 4), (sl - 1) * 4096 + q * 1024))
    a("s_waitcnt lgkmcnt(0)")
    arrive(a, VCN, VONE, 40)
    spin(a, VCN, 0, 40, sT0, "40", "L_f_spin3")
    for sl in range(1, 4):
        for q in range(4):
            a("ds_read_b128 %s, v%d offset:%d" % (v(ACC2 + sl * 16 + 4 * q, 4), 159 + sl, q * 1024))
    for sl in range(1, 4):
        a("s_waitcnt lgkmcnt(%d)" % (12 - 4 * sl))
        for i in range(0, 16, 2): a("v_pk_add_f32 %s, %s, %s" % (v(ACC2 + i, 2), v(ACC2 + i, 2), v(ACC2 + 16 * sl + i, 2)))
    for i in range(8): a("v_cvt_pk_bf16_f32 v%d, v%d, v%d" % (96 + i, ACC2 + 2 * i, ACC2 + 2 * i + 1))
    osc = ["", "sc1", "nt"][OPT["osc"]]
    a("buffer_store_dwordx4 v[96:99], v4, s[16:19], s%d offen %s" % (sXS, osc))
    a("buffer_store_dwordx4 v[100:103], v4, s[16:19], s%d offen offset:32 %s" % (sXS, osc))
    a.label("L_f_ep")
    if OPT["nof"]:
        spin(a, VCN, 0, 32, sT0, "8", "L_f_nofw")
    a("s_add_u32 s%d, s2, s%d" % (sT0, sF))
    a("s_cmp_lg_u32 s%d, 0" % sT0)
    a("s_cbranch_scc1 L_f_noep")
    if OPT["probe"]:
        a("s_memrealtime s[94:95]")
        if OPT["probe"] == 99: a("s_memrealtime s[92:93]")
        a("s_waitcnt lgkmcnt(0)")
        a("s_sub_u32 s92, s92, s90")
        a.label("L_probe")
        a("s_memrealtime s[96:97]")
        a("s_waitcnt lgkmcnt(0)")
        a("s_sub_u32 s96, s96, s94")
        a("s_cmp_lt_u32 s96, s92")
        a("s_cbranch_scc1 L_probe")
    a("s_mov_b32 s%d, %d" % (sT0, EPOCH_OFF))
    a("s_mov_b64 exec, 1")
    a("buffer_store_dword v%d, v3, %s, s%d offen" % (VTAG, s(SWS, 4), sT0))
    a("s_mov_b64 exec, -1")
    a.label("L_f_noep")
    a.stamp_flush(0, SWS, sW, 12)
    a("s_endpgm")
    a.label("L_f_d_slow")
    spin(a, VCN, 0, 40, sT0, "s%d" % sDN, "L_f_dspin")
    a("s_branch L_f_d_back")
    a.label("L_f_r_slow")
    spin(a, VCN, 0, 4, sT0, "s%d" % sTGT, "L_f_rspin")
    a("s_branch L_f_r_back")

def gen_kernel(name):
    a = Asm()
    a.label("L_start")
    a("s_cmp_ge_u32 s2, 256")
    a("s_cbranch_scc1 L_end")
    a.stamp(0)
    if OPT["p1diag"]: a("s_mov_b32 s100, 0")
    if OPT["probe"]: a("s_memrealtime s[90:91]")
    a("s_load_dwordx16 s[4:19], s[0:1], 0")
    a("s_load_dwordx4 s[20:23], s[0:1], 64")
    a("s_getpc_b64 s[30:31]")
    a.label("L_pc")
    a("s_lshr_b32 s%d, s2, 3" % sJ)
    a("v_lshrrev_b32 v1, 6, v0")
    a("s_mul_i32 s%d, s%d, 12" % (sT0, sJ))
    a("v_add_lshl_u32 v165, v1, s%d, 7" % sT0)
    a("v_min_u32 v165, (L_end - L_pc), v165")
    a("s_mov_b64 exec, 1")
    a("global_load_dword v165, v165, s[30:31]")
    a("s_mov_b64 exec, -1")
    a("v_and_b32 v2, 63, v0")
    a("v_readfirstlane_b32 s%d, v1" % sW)
    a("v_lshlrev_b32 v3, 4, v2")
    a("s_and_b32 s%d, s2, 7" % sXCD)
    lg = {0: 3, 1: 4, 2: 5}[OPT["map"]]
    a("s_lshr_b32 s%d, s%d, %d" % (sMT, sXCD, lg - 2))
    a("s_lshl_b32 s%d, s%d, %d" % (sMT, sMT, lg))
    a("s_and_b32 s%d, s%d, %d" % (sT0, sJ, (1 << lg) - 1))
    a("s_add_u32 s%d, s%d, s%d" % (sMT, sMT, sT0))
    a("s_and_b32 s%d, s%d, %d" % (sNG, sXCD, (1 << (lg - 2)) - 1))
    a("s_lshl_b32 s%d, s%d, %d" % (sNG, sNG, 5 - lg))
    a("s_lshr_b32 s%d, s%d, %d" % (sT0, sJ, lg))
    a("s_add_u32 s%d, s%d, s%d" % (sNG, sNG, sT0))
    if lg == 3: a("s_lshl_b32 s56, s%d, 1" % sJ)
    else: a("s_mov_b32 s56, s%d" % sJ)
    a("s_and_b32 s56, s56, %d" % OPT["grot"])
    a("s_and_b32 s%d, s%d, 1" % (sT0, sT0))
    a("s_lshl3_add_u32 s%d, s%d, s%d" % (sT0, sT0, sW))
    a("s_lshl4_add_u32 s%d, s%d, s%d" % (sT0, sMT, sT0))
    a("s_lshl_b32 s%d, s%d, 12" % (sT0, sT0))
    a("s_xor_b32 s%d, s%d, 32768" % (sT1, sT0))
    a("v_lshrrev_b32 v164, 4, v2")
    a("v_mul_u32_u24 v164, 768, v164")
    a("v_add_u32 v164, v164, v3")
    a("s_cmp_lt_u32 s%d, 8" % sW)
    a("s_waitcnt lgkmcnt(0)")
    srd(a, SB, P_X, 2 * MB)
    a("s_cbranch_scc0 L_norow")
    for p in range(4):
        a("buffer_load_dwordx4 %s, v164, %s, s%d offen offset:%d" % (v(132 + 4 * p, 4), s(SB, 4), sT0, p * 256))
    a.label("L_norow")
    a.stamp(8)
    a("s_add_u32 s62, s%d, %d" % (P_WS, EPOCH_OFF))
    a("s_addc_u32 s63, s%d, 0" % (P_WS + 1))
    a("s_load_dword s%d, s[62:63], 0" % sTAG)
    srd(a, SWS, P_WS, WS_BYTES)
    a("s_mov_b32 s%d, 0x3f803f80" % sONE)
    a("s_cmp_lt_u32 s%d, 8" % sW)
    a("s_cbranch_scc1 L_role_a")
    role_f(a)
    def lowmf(l0, l1, k):
        if not k: return
        i0 = a.lines.index(l0); i1 = a.lines.index(l1)
        out = []; n = 0
        for l in a.lines[i0:i1]:
            if l.startswith("v_mfma"):
                if n % k == 0: out += ["s_setprio 0", l, "s_setprio 2"]
                else: out.append(l)
                n += 1
            else: out.append(l)
        a.lines[i0:i1] = out
    lowmf("L_f_loop:", "L_f_hf:", OPT["k1"])
    lowmf("L_f_pollh_ok:", "L_f_sprint:" if OPT["gs"] else "L_f_pollo:", OPT["k2"])
    a.label("L_role_a")
    a.vm = []
    role_a(a)
    if OPT["abl"]:
        i0 = a.lines.index("L_p1_qk:"); i1 = a.lines.index("L_p1_done:")
        def keep(l):
            if OPT["abl"] & 1 and l.startswith("v_mfma"): return False
            if OPT["abl"] & 4 and l.startswith("ds_read"): return False
            return True
        a.lines[i0:i1] = [l for l in a.lines[i0:i1] if keep(l)]
        if OPT["abl"] & 2:
            i0 = a.lines.index("L_g_issue:"); i1 = a.lines.index("L_g_nf:")
            a.lines[i0:i1] = [l for l in a.lines[i0:i1] if not l.startswith("buffer_load")]
    if OPT["jit"]:
        import random
        rnd = random.Random(OPT["jit"]); out = []; n = 0
        L = a.lines
        for i, l in enumerate(L):
            pre = l == "s_mov_b64 exec, 1" and L[i + 1].startswith("ds_add")
            if pre or l.endswith("_ok:") or l == "s_barrier":
                n += 1
                src = "s%d" % sW if rnd.random() < 0.7 else "s2"
                j = ["s_bitcmp1_b32 %s, %d" % (src, rnd.randrange(3 if src != "s2" else 6)), "s_cbranch_scc%d L_jit%d" % (rnd.randrange(2), n), "s_sleep %d" % rnd.choice((3, 10, 40)), "L_jit%d:" % n]
                out += (j + [l]) if pre else ([l] + j)
            else: out.append(l)
        a.lines = out
    a.label("L_end")
    a("s_endpgm")
    return dict(name=name, asm=a, vgpr=168, grid=(256, 1, 1), block=(768, 1, 1), lds=LDS_TOTAL)
```
